```python
import torch

def _softmax(x, axis=-1):
    return torch.softmax(x, dim=axis)
def _gelu(x):
    return torch.nn.functional.gelu(x, approximate="tanh")
def _silu(x):
    return torch.nn.functional.silu(x)
def _sigmoid(x):
    return torch.sigmoid(x)
def _layernorm(x, axis=-1, eps=1e-5):
    m = x.mean(dim=axis, keepdim=True)
    v = x.var(dim=axis, keepdim=True, unbiased=False)
    return (x - m) / torch.sqrt(v + eps)
def _scatter_add(tgt, idx, src, axis=0):
    return tgt.clone().index_add_(axis, idx, src)
def _segment_sum(src, seg, n):
    out = torch.zeros((n,) + src.shape[1:], dtype=src.dtype)
    return out.index_add_(0, seg, src)
def _pad(x, pw):
    flat = tuple(v for pair in reversed(pw) for v in pair)
    return torch.nn.functional.pad(x, flat)

kernel_name = 'parallel_sum__ssm_conv_h3__glu_gated_geglu__prompt'

def setup_inputs():

    _w = (lambda a: (lambda t: t.to(torch.bfloat16) if t.is_floating_point() else t)(torch.as_tensor(a)))
    def _A_setup():
        B, S, D = 1, 2048, 576
        ks = 4
        return {
            "q": _w((lambda *s: torch.randn(*s, dtype=torch.bfloat16) * 0.05)(B, S, D)),
            "k": _w((lambda *s: torch.randn(*s, dtype=torch.bfloat16) * 0.2)(B, S, D)),
            "v": _w((lambda *s: torch.randn(*s, dtype=torch.bfloat16) * 0.2)(B, S, D)),
            "shift_k": _w((lambda *s: torch.randn(*s, dtype=torch.bfloat16) * 0.2)(D, ks) * 0.5),
            "ssm_k": _w((lambda *s: torch.randn(*s, dtype=torch.bfloat16) * 0.4)(D, S) * (1.0 / S ** 0.5)),
            "ssm_D": _w((lambda *s: torch.randn(*s, dtype=torch.bfloat16) * 0.2)(D)),
        }
    _A_in = _A_setup()

    def _B_setup():
        B, S, Dm, Df = 1, 2048, 576, 4608
        return {
            "x": _w((lambda *s: torch.randn(*s, dtype=torch.bfloat16) * 0.05)(B, S, Dm)),
            "w_gate": _w((lambda *s: torch.randn(*s, dtype=torch.bfloat16) * 0.4)(Dm, Df) * (Dm ** -0.5)),
            "w_up": _w((lambda *s: torch.randn(*s, dtype=torch.bfloat16) * 0.4)(Dm, Df) * (Dm ** -0.5)),
            "w_down": _w((lambda *s: torch.randn(*s, dtype=torch.bfloat16) * 0.4)(Df, Dm) * (Df ** -0.5)),
        }
    _B_in = _B_setup()

    return {
        "A_q": _A_in["q"],
        "A_k": _A_in["k"],
        "A_v": _A_in["v"],
        "A_shift_k": _A_in["shift_k"],
        "A_ssm_k": _A_in["ssm_k"],
        "A_ssm_D": _A_in["ssm_D"],
        "B_x": _B_in["x"],
        "B_w_gate": _B_in["w_gate"],
        "B_w_up": _B_in["w_up"],
        "B_w_down": _B_in["w_down"],
    }

def reference(A_q, A_k, A_v, A_shift_k, A_ssm_k, A_ssm_D, B_x, B_w_gate, B_w_up, B_w_down):
    def _A_ref(q, k, v, shift_k, ssm_k, ssm_D):
        B, S, D = q.shape
        ks = shift_k.shape[-1]
        k_pad = _pad(k, ((0, 0), (ks - 1, 0), (0, 0)))
        k_shift = torch.zeros_like(k)
        for t in range(ks):
            k_shift = k_shift + k_pad[:, t:t + S, :] * shift_k[:, ks - 1 - t][None, None, :]
        kv = k_shift * v
        L = 2 * S
        kv_pad = _pad(kv, ((0, 0), (0, S), (0, 0)))
        kf_pad = _pad(ssm_k, ((0, 0), (0, S)))
        kv_f = (lambda x, axes=(-2,-1): torch.fft.rfft2(x.float(), dim=axes))(kv_pad[:, None, :, :], axes=(1, 2))
        kf_f = (lambda x, axes=(-2,-1): torch.fft.rfft2(x.float(), dim=axes))(kf_pad[:, None, :], axes=(1, 2))
        kf_f = (lambda x, *d: x.permute(*d))(kf_f, 1, 2, 0)
        y_f = kv_f * kf_f[None, :, :, :]
        y = (lambda x, s, axes=(-2,-1): torch.fft.irfft2(x, s=s, dim=axes).to(torch.bfloat16))(y_f, (1, L), axes=(1, 2))[:, 0, :S, :]
        y = y + kv * ssm_D[None, None, :]
        return q * y

    def _B_ref(x, w_gate, w_up, w_down):
        g = torch.einsum("bsd,df->bsf", x, w_gate)
        u = torch.einsum("bsd,df->bsf", x, w_up)
        h = _gelu(g) * u
        return torch.einsum("bsf,fd->bsd", h, w_down)

    x = A_q
    xn = _layernorm(x, axis=-1)
    return x + _A_ref(xn, A_k, A_v, A_shift_k, A_ssm_k, A_ssm_D) + _B_ref(xn, B_w_gate, B_w_up, B_w_down)
```

```python
import re, struct

def f2u(x):
    return struct.unpack('<I', struct.pack('<f', x))[0]

class Asm:
    def __init__(self):
        self.lines = []
    def __call__(self, s):
        for l in s.split("\n"):
            l = l.strip()
            if l:
                self.lines.append(l)
    def c(self, s):
        self.lines.append("; " + s)
    def label(self, s):
        self.lines.append(s + ":")
    def text(self):
        return "\n".join(self.lines) + "\n"

def vr(base, n):
    k, i = base
    if n == 1:
        return f"{k}{i}"
    return f"{k}[{i}:{i+n-1}]"

def V(i, n=1):
    return f"v{i}" if n == 1 else f"v[{i}:{i+n-1}]"
def A(i, n=1):
    return f"a{i}" if n == 1 else f"a[{i}:{i+n-1}]"
def S(i, n=1):
    return f"s{i}" if n == 1 else f"s[{i}:{i+n-1}]"

_reg_re = re.compile(r"\b([vas])(?:(\d+)|\[(\d+):(\d+)\])")
def regs_of(op):
    out = set()
    for m in _reg_re.finditer(op):
        k = m.group(1)
        if m.group(2) is not None:
            out.add((k, int(m.group(2))))
        else:
            for i in range(int(m.group(3)), int(m.group(4)) + 1):
                out.add((k, i))
    return out

TRANS = ("v_exp_f32", "v_log_f32", "v_rcp_f32", "v_rsq_f32", "v_sqrt_f32", "v_sin_f32", "v_cos_f32")

def parse(line):
    line = line.split(";")[0].strip()
    if not line or line.endswith(":") or line.startswith("."):
        return None
    parts = line.split(None, 1)
    mn = parts[0]
    ops = [o.strip() for o in parts[1].split(",")] if len(parts) > 1 else []
    return mn, ops

def is_valu(mn):
    return mn.startswith("v_") and not mn.startswith("v_mfma")

def mfma_passes(mn):
    if "32x32x16" in mn: return 8
    if "16x16x32" in mn: return 4
    raise ValueError(mn)

def check_hazards(lines, name=""):
    ins = []
    for l in lines:
        p = parse(l)
        if p: ins.append((p[0], p[1], l))
    pos = []
    t = 0
    for mn, ops, l in ins:
        pos.append(t)
        if mn == "s_nop":
            t += int(ops[0], 0) + 1
        else:
            t += 1
    need_rd_after_mfma = {8: 12, 4: 8}
    need_ab_after_mfma = {8: 12, 4: 8}
    need_c_overlap = {8: 10, 4: 6}
    war_c = {8: 7, 4: 3}
    errs = []
    last_mfma_write = {}
    last_mfma_cread = {}
    last_valu_write = {}
    last_trans_write = {}
    last_valu_sgpr_write = {}
    last_m0_write = -100
    last_wide_store = {}
    last_exec_valu = -100
    for idx, (mn, ops, l) in enumerate(ins):
        p = pos[idx]
        if mn.startswith("v_mfma"):
            D = regs_of(ops[0]); Aa = regs_of(ops[1]); B = regs_of(ops[2]); C = regs_of(ops[3]) if len(ops) > 3 else set()
            ps = mfma_passes(mn)
            for r in Aa | B | C:
                if r in last_valu_write and p - last_valu_write[r] - 1 < 2:
                    errs.append(f"VALU->MFMA operand {r}: {l}")
            for r in Aa | B:
                if r in last_mfma_write:
                    q, pp, _, _ = last_mfma_write[r]
                    if p - q - 1 < need_ab_after_mfma[pp]: errs.append(f"MFMA D->MFMA A/B {r}: {l}")
            for r in C:
                if r in last_mfma_write:
                    q, pp, DD, _ = last_mfma_write[r]
                    if DD != C or pp != ps:
                        if p - q - 1 < need_c_overlap[pp]: errs.append(f"MFMA D->MFMA C overlap {r}: {l}")
            for r in D:
                if r in last_mfma_write and r not in C:
                    q, pp, DD, _ = last_mfma_write[r]
                    if DD != D and p - q - 1 < need_c_overlap[pp]: errs.append(f"MFMA WAW {r}: {l}")
            for r in D: last_mfma_write[r] = (p, ps, D, idx)
            for r in C: last_mfma_cread[r] = (p, ps)
            if p - last_exec_valu - 1 < 4: errs.append(f"exec write -> mfma: {l}")
            continue
        allregs = set()
        for o in ops: allregs |= regs_of(o)
        if is_valu(mn):
            dst = regs_of(ops[0]) if ops else set()
            srcs = set()
            for o in ops[1:]: srcs |= regs_of(o)
            if mn.startswith("v_cmp"):
                dstv = set();
                srcs = set()
                for o in ops[1:]: srcs |= regs_of(o)
            else:
                dstv = {r for r in dst if r[0] in "va"}
            if mn in ("v_fmac_f32", "v_dot2c_f32_bf16", "v_fmac_f32_e32"): srcs |= dst
            if "permlane" in mn and "swap" in mn:
                srcs |= dst; dstv |= regs_of(ops[1])
            for r in srcs | dstv:
                if r in last_mfma_write and r[0] in "va":
                    q, pp, _, _ = last_mfma_write[r]
                    if p - q - 1 < need_rd_after_mfma[pp]: errs.append(f"MFMA D->VALU {r} dist {p-q-1}: {l}")
            for r in dstv:
                if r in last_mfma_cread:
                    q, pp = last_mfma_cread[r]
                    if p - q - 1 < war_c[pp]: errs.append(f"MFMA C read->VALU write WAR {r}: {l}")
                if r in last_wide_store and p - last_wide_store[r] - 1 < 2:
                    errs.append(f"wide store data WAR {r}: {l}")
            if mn not in TRANS:
                for r in srcs:
                    if r in last_trans_write and p - last_trans_write[r] - 1 < 1:
                        errs.append(f"trans->use {r}: {l}")
            if "permlane" in mn:
                for r in srcs:
                    if r in last_valu_write and p - last_valu_write[r] - 1 < 2: errs.append(f"VALU->permlane {r}: {l}")
            if "dpp" in l or "row_" in l or "quad_perm" in l:
                for r in srcs:
                    if r[0] == 'v' and r in last_valu_write and p - last_valu_write[r] - 1 < 2: errs.append(f"VALU->DPP {r}: {l}")
            if mn in ("v_readfirstlane_b32", "v_readlane_b32"):
                for r in srcs:
                    if r[0] == 'v' and r in last_valu_write and p - last_valu_write[r] - 1 < 1: errs.append(f"VALU->readlane {r}: {l}")
                for r in dst: last_valu_sgpr_write[r] = p
            else:
                for r in srcs:
                    if r[0] == 's' and r in last_valu_sgpr_write and p - last_valu_sgpr_write[r] - 1 < 2: errs.append(f"VALU sgpr write->VALU read {r}: {l}")
            if mn.startswith("v_cmp"):
                for r in dst: last_valu_sgpr_write[r] = p
                if ops[0] == "vcc": last_valu_sgpr_write[('vcc', 0)] = p
                if mn.startswith("v_cmpx"): last_exec_valu = p
            if "cndmask" in mn and ("vcc" in l):
                if ('vcc', 0) in last_valu_sgpr_write and p - last_valu_sgpr_write[('vcc', 0)] - 1 < 2: errs.append(f"vcc->cndmask: {l}")
            for r in dstv:
                last_valu_write[r] = p
                if mn in TRANS: last_trans_write[r] = p
                elif r in last_trans_write: del last_trans_write[r]
            continue
        if mn.startswith("buffer_") or mn.startswith("global_") or mn.startswith("ds_"):
            for r in allregs:
                if r in last_mfma_write and r[0] in "va":
                    q, pp, _, _ = last_mfma_write[r]
                    if p - q - 1 < need_rd_after_mfma[pp]: errs.append(f"MFMA D->MEM {r} dist {p-q-1}: {l}")
                if r[0] == 's' and r in last_valu_sgpr_write and p - last_valu_sgpr_write[r] - 1 < 5: errs.append(f"VALU sgpr->VMEM {r}: {l}")
            if " lds" in l and mn.startswith("buffer_") and p - last_m0_write - 1 < 1:
                errs.append(f"m0 write -> lds dma: {l}")
            if mn in ("buffer_store_dwordx4", "buffer_store_dwordx3", "global_store_dwordx4"):
                for r in regs_of(ops[0] if mn.startswith("buffer") else ops[1]): last_wide_store[r] = p
            continue
        if mn.startswith("s_"):
            if ops and ops[0] == "m0": last_m0_write = p
            for o in ops[1:]:
                for r in regs_of(o):
                    if r in last_valu_sgpr_write and p - last_valu_sgpr_write[r] - 1 < 1:
                        errs.append(f"VALU sgpr -> SALU read {r}: {l}")
    if errs:
        print(f"HAZARDS in {name}:")
        for e in errs[:40]: print("   ", e)
    return errs
```

```python
from asmlib import *
import math

WS_XNF   = 0x000000
WS_STATS = 0x240000
WS_KVR   = 0x250000
WS_ZT    = 0x490000
WS_PART  = 0x700000
WS_SIZE  = 0x10000000

SLOT = 24576
NSLOT = 6
HB   = 3*SLOT
LDS_K1 = NSLOT*SLOT

C0 = -2.0*math.sqrt(2.0/math.pi)*math.log2(math.e)
C1 = C0*0.044715

sSRDA, sSRDB, sSRDW = 4, 8, 12
sWD = 16
sW, sJ, sI = 20, 21, 22
sSOFF = 23
sM0 = 24
sCNT = 30
sINC, sINCW = 31, 32
sC1 = 33
sT0, sT1, sT2, sT3 = 34, 35, 36, 37
sPOFF = 38
sHIDX = 39
sEX = 40
sB2 = 42
sNREC = 43
vLANE = 1
vRA1 = 8
vRA2, vRA2b = 9, 10
vDG, vDU = 12, 15
VC0 = [18, 21]
VC1 = [22, 23]
vPST = 19
vHR = 20
ACC = [32, 64]
AF = 96
XE = 128
GT = 160
HP = 168
HREG = 176
NVGPR = 256

def xn_frag(f):
    return A(4*f, 4) if f < 64 else V(XE + 4*(f-64), 4)

class LgkmTracker:
    def __init__(self, a):
        self.a = a
        self.q = []
    def issue(self, tag, text):
        self.a(text); self.q.append(tag)
    def wait_for(self, tag):
        cand = [i for i, t in enumerate(self.q) if t == tag]
        if not cand:
            return
        idx = max(cand)
        n = len(self.q) - 1 - idx
        assert n <= 15, n
        self.a(f"s_waitcnt lgkmcnt({n})")
        self.q = self.q[idx+1:]
    def wait_all(self):
        self.q = []

def gelu_ops(accP, dst=HP):
    ops = []
    k = 0
    for n in range(2):
        for r in range(0, 8, 2):
            g0, g1 = accP + 16*n + r, accP + 16*n + r + 1
            u0, u1 = g0 + 8, g1 + 8
            tb = GT + 4*(k % 2)
            t0, t1, q0, q1 = tb, tb+1, tb+2, tb+3
            ops += [
                f"v_mul_f32 v{t0}, v{g0}, v{g0}",
                f"v_mul_f32 v{t1}, v{g1}, v{g1}",
                f"v_fma_f32 v{t0}, v{t0}, v{VC1[n]}, v{VC0[n]}",
                f"v_fma_f32 v{t1}, v{t1}, v{VC1[n]}, v{VC0[n]}",
                f"v_mul_f32 v{t0}, v{t0}, v{g0}",
                f"v_mul_f32 v{t1}, v{t1}, v{g1}",
                f"v_exp_f32 v{t0}, v{t0}",
                f"v_exp_f32 v{t1}, v{t1}",
                f"v_mul_f32 v{q0}, v{g0}, v{u0}",
                f"v_mul_f32 v{q1}, v{g1}, v{u1}",
                f"v_add_f32 v{t0}, 1.0, v{t0}",
                f"v_add_f32 v{t1}, 1.0, v{t1}",
                f"v_rcp_f32 v{t0}, v{t0}",
                f"v_rcp_f32 v{t1}, v{t1}",
                f"v_mul_f32 v{q0}, v{q0}, v{t0}",
                f"v_mul_f32 v{q1}, v{q1}, v{t1}",
                f"v_cvt_pk_bf16_f32 v{dst + 4*n + r//2}, v{q0}, v{q1}",
            ]
            k += 1
    return ops

def dma(a, which, k):
    srd = sSRDA if which == 0 else sSRDB
    vo = (vDG if which == 0 else vDU) + k
    off = f" offset:{1024*k}" if k else ""
    a(f"buffer_load_dwordx4 v{vo}, s[{srd}:{srd+3}], s{sSOFF} offen{off} lds")

def p1_read(lk, kk, buf, tag):
    st, ks = divmod(kk % 36, 6)
    off = st*SLOT + ks*2048
    base = [vRA1, 30, 31][off // 65536]
    off %= 65536
    assert off + 512 < 65536
    r = AF + 4*buf
    lk.issue(tag, f"ds_read_b64_tr_b16 v[{r}:{r+1}], v{base} offset:{off}")
    lk.issue(tag, f"ds_read_b64_tr_b16 v[{r+2}:{r+3}], v{base} offset:{off+512}")

VM_P1 = 24
def gen_round(a, lk, cur, prev, rname, switch_check=False, opts=None):
    opts = opts or {}
    nodma = opts.get("no_dma")
    accC, accP = ACC[cur], ACC[prev]
    gops = gelu_ops(accP) if not opts.get("no_gelu") else []
    G_START, G_END = 2, 33
    nslots = (G_END - G_START) * 2
    gi = 0
    def take_gelu(slot_idx):
        nonlocal gi
        tgt = (len(gops) * (slot_idx + 1) + nslots - 1) // nslots
        out = gops[gi:tgt]; gi = max(gi, tgt)
        return out
    for kk in range(36):
        st, ks = divmod(kk, 6)
        buf = kk % 4
        a.c(f"--- round {rname} kstep {kk} (stage {st}, ks {ks})")
        lk.wait_for(("A", kk))
        cz = "0" if kk == 0 else V(accC, 16)
        a(f"v_mfma_f32_32x32x16_bf16 {V(accC,16)}, {V(AF+4*buf,4)}, {xn_frag(kk)}, {cz}")
        fill0, fill1 = [], []
        if G_START <= kk < G_END:
            fill0 += take_gelu((kk - G_START)*2)
            fill1 += take_gelu((kk - G_START)*2 + 1)
        if ks >= 3:
            k = ks - 3; which = 0; gst = st
        else:
            k = ks; which = 1; gst = (st - 1) % 6
        for x in fill0: a(x)
        if ks == 3:
            a(f"s_waitcnt vmcnt({VM_P1}) lgkmcnt(0)") if not nodma else a("s_waitcnt lgkmcnt(0)")
            lk.wait_all()
            if not opts.get("no_barrier"): a("s_barrier")
        else:
            p1_read(lk, kk+3, (kk+3) % 4, ("A", (kk+3) % 36))
        cz = "0" if kk == 0 else V(accC+16, 16)
        a(f"v_mfma_f32_32x32x16_bf16 {V(accC+16,16)}, {V(AF+4*buf,4)}, {xn_frag(36+kk)}, {cz}")
        if ks == 3:
            p1_read(lk, kk+3, (kk+3) % 4, ("A", (kk+3) % 36))
            if switch_check and st in (0, 3):
                lab = f"L_nosw{st}"
                a(f"s_cmp_lg_u32 s{sCNT}, 0")
                a(f"s_cbranch_scc1 {lab}")
                if st == 0: gen_switch(a)
                else:
                    a(f"s_mov_b32 s{sSRDA+2}, 0")
                    a(f"s_mov_b32 s{sSRDB+2}, 0")
                a.label(lab)
            if not nodma:
                inc = sINCW if st == 0 else sINC
                a(f"s_add_u32 s{sSOFF}, s{sSOFF}, s{inc}")
        if rname == "A" and kk == 10:
            a(f"s_cmp_lg_u32 s{sCNT}, 2")
            a(f"s_cbranch_scc1 L_nopf")
            a(f"buffer_load_dword v253, v11, s[64:67], 0 offen")
            a.label("L_nopf")
        if kk == G_END and gops:
            assert gi == len(gops) and k == 0
            a(f"s_set_gpr_idx_on s{sHIDX}, gpr_idx(DST)")
            a("s_nop 0")
            for q in range(8): a(f"v_mov_b32 v{HREG+q}, v{HP+q}")
            a("s_set_gpr_idx_off")
            a(f"s_add_u32 s{sHIDX}, s{sHIDX}, 8")
        if not nodma:
            if k == 0:
                a(f"s_add_u32 m0, s{sM0 + which}, {gst*SLOT}")
                if fill1: a(fill1.pop(0))
                else: a("s_nop 0")
            dma(a, which, k)
        for x in fill1: a(x)

def gen_switch(a):
    a(f"s_mov_b32 s{sSRDA}, s{sWD}")
    a(f"s_mov_b32 s{sSRDA+1}, s{sWD+1}")
    a(f"s_mov_b32 s{sSRDB}, s{sWD}")
    a(f"s_mov_b32 s{sSRDB+1}, s{sWD+1}")
    for k in range(3):
        a(f"v_mov_b32 v{vDG+k}, v{24+k}")
        a(f"v_mov_b32 v{vDU+k}, v{27+k}")
    a(f"s_mul_i32 s{sSOFF}, s{sJ}, {576*1152}")
    a(f"s_mov_b32 s{sINCW}, 0")
    a(f"s_mov_b32 s{sINC}, {192*1152}")

def p2_read(lk, F, buf, tag):
    st, ks = divmod(F % 36, 12)
    off = st*SLOT + ks*2048
    base = vRA2
    if off + 1024 > 65535:
        base = vRA2b; off -= 32768
    r = AF + 4*buf
    lk.issue(tag, f"ds_read_b64_tr_b16 v[{r}:{r+1}], v{base} offset:{off}")
    lk.issue(tag, f"ds_read_b64_tr_b16 v[{r+2}:{r+3}], v{base} offset:{off+1024}")

P2_NB = 9
P2_BAR = 8
def p2_read_schedule():
    sched = {T: [] for T in range(36)}
    D2 = 6
    for F in range(36, 72):
        st, x = divmod(F, 12)
        t = F - D2
        tb = 12*(st-1) + P2_BAR
        lo = tb + [0, 0, 1, 1, 2, 3][x] if x < 6 else 0
        t = max(t, lo)
        sched[t % 36].append((F - 36) if t >= 36 else F)
    return sched

VM_P2 = 24
def gen_p2_chunk(a, lk, fp32_part=True, opts=None):
    opts = opts or {}
    nodma = opts.get("no_dma")
    sched = p2_read_schedule()
    acc = ACC[0]
    for T in range(36):
        st, ks = divmod(T, 12)
        a.c(f"--- p2 kstep {T}")
        lk.wait_for(("B", T))
        if ks == P2_BAR:
            a(f"s_waitcnt vmcnt({VM_P2}) lgkmcnt(0)") if not nodma else a("s_waitcnt lgkmcnt(0)")
            lk.wait_all()
            if not opts.get("no_barrier"): a("s_barrier")
        cz = "0" if T == 0 else V(acc, 16)
        a(f"v_mfma_f32_32x32x16_bf16 {V(acc,16)}, {V(AF+4*(T % P2_NB),4)}, {A(4*T,4)}, {cz}")
        if T == 31:
            a(f"v_xor_b32 v{vRA2}, {3*SLOT}, v{vRA2}")
            a(f"v_xor_b32 v{vRA2b}, {3*SLOT}, v{vRA2b}")
        for F in sched[T]:
            p2_read(lk, F, (F % 36) % P2_NB, ("B", F % 36))
        if not nodma:
            q = None
            if ks in (9, 10, 11): q = ks - 9; gst = st
            elif ks in (1, 2, 3): q = ks + 2; gst = (st - 1) % 3
            if q is not None:
                which, k = divmod(q, 3)
                if q == 0:
                    if gst == 0:
                        a(f"s_add_u32 s{sSOFF}, s{sSOFF}, s{sINCW}")
                        a(f"s_cmp_le_u32 s{sCNT}, 2")
                        a(f"s_cselect_b32 s{sSRDA+2}, 0, s{sSRDA+2}")
                        a(f"s_cselect_b32 s{sSRDB+2}, 0, s{sSRDB+2}")
                    else:
                        a(f"s_add_u32 s{sSOFF}, s{sSOFF}, s{sINC}")
                if k == 0:
                    if which == 1 and gst == 2:
                        a(f"s_xor_b32 s{sT0}, s{sB2}, {3*SLOT}")
                        a(f"s_add_u32 s{sT0}, s{sT0}, s{sM0+1}")
                        a(f"s_add_u32 m0, s{sT0}, {gst*SLOT}")
                    else:
                        a(f"s_add_u32 s{sT0}, s{sB2}, s{sM0+which}")
                        a(f"s_add_u32 m0, s{sT0}, {gst*SLOT}")
                    a("s_nop 0")
                dma(a, which, k)
    a.c("--- p2 chunk epilogue")
    a(f"s_xor_b32 s{sB2}, s{sB2}, {3*SLOT}")
    a("s_nop 7")
    a("s_nop 1")
    if fp32_part:
        for q in range(4):
            off = f" offset:{1024*q}" if q else ""
            a(f"buffer_store_dwordx4 {V(acc+4*q,4)}, v{vPST}, s[{sSRDW}:{sSRDW+3}], s{sPOFF} offen{off}")
        a(f"s_add_u32 s{sPOFF}, s{sPOFF}, {4*4096}")
    else:
        for q in range(8):
            a(f"v_cvt_pk_bf16_f32 v{GT+q}, v{acc+2*q}, v{acc+2*q+1}")
        for q in range(2):
            off = f" offset:{1024*q}" if q else ""
            a(f"buffer_store_dwordx4 {V(GT+4*q,4)}, v{vPST}, s[{sSRDW}:{sSRDW+3}], s{sPOFF} offen{off}")
        a(f"s_add_u32 s{sPOFF}, s{sPOFF}, {4*2048}")

def dma_group(a, slot, nparts=6, q0=0):
    for q in range(q0, nparts):
        which, k = divmod(q, 3)
        if k == 0 or q == q0:
            a(f"s_add_u32 m0, s{sM0+which}, {slot*SLOT}")
            a("s_nop 0")
        dma(a, which, k)

def gen_prefetch_w1(a, mapping, nshare=32):
    nw = nshare*4
    per = -(-5184 // nw)
    assert per <= 64
    if mapping == "32x1":
        a(f"s_lshl_b32 s{sT0}, s{sI}, 2")
    else:
        a(f"s_and_b32 s{sT0}, s{sI}, {nshare-1}\ns_lshl_b32 s{sT0}, s{sT0}, 2")
    a(f"s_add_u32 s{sT0}, s{sT0}, s{sW}")
    a(f"s_mul_i32 s{sT0}, s{sT0}, {per}")
    a(f"v_min_u32 v2, {per-1}, v{vLANE}")
    a(f"v_add_u32 v2, s{sT0}, v2")
    a(f"v_min_u32 v2, 5183, v2")
    a(f"s_mov_b32 s{sT1}, {(2**32 + 575)//576}")
    a(f"v_mul_hi_u32 v3, v2, s{sT1}")
    a(f"v_mul_u32_u24 v4, 576, v3")
    a(f"v_sub_u32 v4, v2, v4")
    a(f"v_mul_u32_u24 v4, 9216, v4")
    a(f"v_lshl_add_u32 v4, v3, 7, v4")
    a(f"s_mul_i32 s{sT1}, s{sJ}, 1152")
    a(f"buffer_load_dword v254, v4, s[{sSRDA}:{sSRDA+3}], s{sT1} offen")
    a(f"buffer_load_dword v255, v4, s[{sSRDB}:{sSRDB+3}], s{sT1} offen")

def gen_prefetch_wd(a, mapping, vo, nshare=32):
    nw = nshare*4
    per = -(-5184 // nw)
    if mapping == "32x1":
        a(f"s_lshl_b32 s{sT0}, s{sI}, 2")
    else:
        a(f"s_and_b32 s{sT0}, s{sI}, {nshare-1}\ns_lshl_b32 s{sT0}, s{sT0}, 2")
    a(f"s_add_u32 s{sT0}, s{sT0}, s{sW}")
    a(f"s_mul_i32 s{sT0}, s{sT0}, {per}")
    a(f"v_min_u32 v2, {per-1}, v{vLANE}")
    a(f"v_add_u32 v2, s{sT0}, v2")
    a(f"v_min_u32 v2, 5183, v2")
    a(f"v_lshlrev_b32 v2, 7, v2")
    a(f"s_mul_i32 s{sT1}, s{sJ}, {576*1152}")
    a(f"v_add_u32 v{vo}, s{sT1}, v2")


def gen_k1(name="k1_kernel", fp32_part=False, opts=None, stamps=False, mapping="32x1", conv=True):
    import parts as PT
    opts = opts or {}
    nodma = opts.get("no_dma")
    a = Asm()
    a(f".globl {name}\n.p2align 8\n.type {name},@function\n{name}:")
    a("s_cmp_ge_u32 s2, 256\ns_cbranch_scc1 L_k1_done")
    a("s_load_dwordx2 s[4:5], s[0:1], 56")
    a("s_load_dwordx2 s[8:9], s[0:1], 64")
    a("s_load_dwordx2 s[16:17], s[0:1], 72")
    a("s_load_dwordx2 s[12:13], s[0:1], 96")
    a("s_load_dwordx2 s[44:45], s[0:1], 88")
    a("s_load_dwordx2 s[80:81], s[0:1], 0")
    a("s_load_dwordx2 s[84:85], s[0:1], 8")
    a("s_load_dwordx2 s[88:89], s[0:1], 16")
    a("s_load_dwordx2 s[92:93], s[0:1], 24")
    a("s_load_dwordx2 s[68:69], s[0:1], 32")
    a("s_load_dwordx2 s[96:97], s[0:1], 40")
    if stamps:
        a("s_memrealtime s[58:59]")
    a(f"v_lshrrev_b32 v2, 6, v0")
    a(f"v_and_b32 v{vLANE}, 63, v0")
    a(f"v_readfirstlane_b32 s{sW}, v2")
    assert mapping == "32x1"
    a(f"s_and_b32 s{sJ}, s2, 7")
    a(f"s_lshr_b32 s{sI}, s2, 3")
    a("s_waitcnt lgkmcnt(0)")
    for srd, n in ((sSRDA, 576*4608*2), (sSRDB, 576*4608*2), (sSRDW, WS_SIZE), (44, 256), (80, 2048*576*2), (84, 2048*576*2), (88, 2048*576*2), (92, 576*4*2), (96, 576*2)):
        a(f"s_mov_b32 s{srd+2}, {n}")
        a(f"s_mov_b32 s{srd+3}, 0x00020000")
    a(f"s_mov_b32 s64, s{sWD}\ns_mov_b32 s65, s{sWD+1}\ns_mov_b32 s66, {576*4608*2}\ns_mov_b32 s67, 0x00020000")
    if stamps:
        a("s_memtime s[48:49]")
    QREG, KREG = 96, 168
    PT.gen_q_loads(a, QREG, 80)
    PT.gen_kv_loads(a, KREG, 84, 88, 92)
    a(f"v_mov_b32 v250, v4\nv_mov_b32 v251, v5")
    a(f"v_lshrrev_b32 v2, 3, v{vLANE}")
    a(f"v_and_b32 v3, 7, v{vLANE}")
    a(f"v_lshrrev_b32 v4, 1, v3")
    a(f"v_and_b32 v5, 1, v3")
    a(f"v_lshlrev_b32 v5, 4, v5")
    a(f"v_bfe_u32 v6, v{vLANE}, 4, 1")
    a(f"v_lshlrev_b32 v7, 1, v6")
    a(f"s_mul_i32 s{sT0}, s{sW}, 24")
    a(f"v_add_u32 v2, s{sT0}, v2")
    a(f"s_movk_i32 s{sT1}, 9216")
    a(f"v_mul_lo_u32 v21, v2, s{sT1}")
    for p, vd in ((0, vDG), (1, vDU)):
        a(f"v_or_b32 v22, {p}, v7")
        a(f"v_xor_b32 v22, v4, v22")
        a(f"v_lshlrev_b32 v22, 5, v22")
        a(f"v_add3_u32 v22, v21, v22, v5")
        for k in range(3):
            a(f"v_add_u32 v{vd+k}, {8*k*9216 - 1024*k}, v22")
    a(f"s_mul_i32 s{sM0}, s{sW}, 3072")
    a(f"s_add_u32 s{sM0+1}, s{sM0}, 12288")
    a(f"s_mul_i32 s{sSOFF}, s{sJ}, {576*2}")
    a(f"s_mov_b32 s{sINC}, {96*9216}")
    a(f"s_mov_b32 s{sINCW}, {(-5*96*9216 + (0 if opts.get('same_cols') else 128)) & 0xffffffff}")
    for st in range(3):
        if st: a(f"s_add_u32 s{sSOFF}, s{sSOFF}, s{sINC}")
        dma_group(a, st)
    a(f"s_movk_i32 s{sT1}, 1152")
    a(f"v_mul_lo_u32 v21, v2, s{sT1}")
    a(f"v_lshrrev_b32 v22, 2, v3")
    a(f"v_xor_b32 v22, v22, v6")
    a(f"v_lshlrev_b32 v22, 6, v22")
    a(f"v_and_b32 v23, 3, v3")
    a(f"v_lshlrev_b32 v23, 4, v23")
    a(f"v_add3_u32 v22, v21, v22, v23")
    for k in range(3):
        a(f"v_add_u32 v{24+k}, {8*k*1152 - 1024*k}, v22")
        a(f"v_add_u32 v{27+k}, {(96+8*k)*1152 - 1024*k}, v22")
    gen_prefetch_w1(a, mapping)
    gen_prefetch_wd(a, mapping, 11)
    a(f"v_and_b32 v2, 15, v{vLANE}")
    a(f"v_bfe_u32 v3, v{vLANE}, 4, 1")
    a(f"v_lshrrev_b32 v4, 5, v{vLANE}")
    a(f"v_lshrrev_b32 v5, 2, v2")
    a(f"v_bfe_u32 v6, v2, 3, 1")
    a(f"v_lshl_add_u32 v7, v4, 3, v5")
    a(f"v_lshlrev_b32 v7, 7, v7")
    a(f"v_lshl_add_u32 v21, v6, 1, v3")
    a(f"v_xor_b32 v21, s{sW}, v21")
    a(f"v_lshlrev_b32 v21, 5, v21")
    a(f"v_and_b32 v22, 3, v2")
    a(f"v_lshlrev_b32 v22, 3, v22")
    a(f"v_add3_u32 v{vRA1}, v7, v21, v22")
    a(f"v_mul_u32_u24 v21, 12288, v3")
    a(f"v_add_u32 v{vRA1}, v{vRA1}, v21")
    a(f"v_add_u32 v30, 65536, v{vRA1}")
    a(f"v_add_u32 v31, 131072, v{vRA1}")
    a(f"v_lshl_add_u32 v7, v4, 2, v5")
    a(f"v_lshlrev_b32 v7, 7, v7")
    a(f"s_and_b32 s{sT0}, s{sW}, 1")
    a(f"v_xor_b32 v21, s{sT0}, v6")
    a(f"v_lshlrev_b32 v21, 6, v21")
    a(f"v_lshlrev_b32 v2, 5, v3")
    a(f"v_add3_u32 v{vRA2}, v7, v21, v2")
    a(f"v_add_u32 v{vRA2}, v{vRA2}, v22")
    a(f"v_add_u32 v{vRA2b}, 32768, v{vRA2}")
    a(f"v_lshlrev_b32 v{vPST}, 4, v{vLANE}")
    a(f"s_mov_b32 s{sHIDX}, 0")
    a(f"s_mov_b32 s{sB2}, 0")
    isz = 4096 if fp32_part else 2048
    a(f"s_lshl_b32 s{sT0}, s{sJ}, 5")
    a(f"s_add_u32 s{sT0}, s{sT0}, s{sI}")
    a(f"s_mul_i32 s{sT0}, s{sT0}, {9*4*isz}")
    a(f"s_mul_i32 s{sT1}, s{sW}, {isz}")
    a(f"s_add_u32 s{sT0}, s{sT0}, s{sT1}")
    a(f"s_add_u32 s{sPOFF}, s{sT0}, {WS_PART}")
    l0 = len(a.lines)
    PT.gen_ln(a, QREG, 80)
    a.lines[l0:] = [x.replace("@LNWAIT0@", str(9+15+18+2)).replace("@LNWAIT1@", str(15+18+2+1)) for x in a.lines[l0:]]
    a(f"s_waitcnt vmcnt({18+2+2})")
    a("v_mov_b32 v4, v250\nv_mov_b32 v5, v251")
    PT.gen_kv_compute(a, KREG)
    a("s_waitcnt lgkmcnt(0)")
    a("s_barrier")
    a(f"v_add_u32 v{vHR}, {HB}, v{vPST}")
    a(f"v_add_u32 v2, {65536}, v{vHR}")
    for f in range(72):
        if f < 64: a(f"ds_read_b128 {xn_frag(f)}, v{vHR} offset:{f*1024}")
        else: a(f"ds_read_b128 {xn_frag(f)}, v2 offset:{(f-64)*1024}")
    a(f"v_and_b32 v2, 31, v{vLANE}\nv_lshlrev_b32 v2, 2, v2\nv_add_u32 v2, {PT.LDS_STAT}, v2")
    a(f"ds_read_b32 v3, v2\nds_read_b32 v4, v2 offset:128")
    a("s_waitcnt lgkmcnt(0)")
    for n, src in ((0, 3), (1, 4)):
        a(f"v_mul_f32 v5, v{src}, v{src}")
        a(f"v_mul_f32 v{VC0[n]}, {hex(f2u(C0))}, v{src}")
        a(f"v_mul_f32 v5, v5, v{src}")
        a(f"v_mul_f32 v{VC1[n]}, {hex(f2u(C1))}, v5")
    PT.gen_kv_store(a)
    a("s_barrier")
    for st in (3, 4):
        a(f"s_add_u32 s{sSOFF}, s{sSOFF}, s{sINC}")
        dma_group(a, st)
    a(f"s_add_u32 s{sSOFF}, s{sSOFF}, s{sINC}")
    dma_group(a, 5, nparts=3)
    a("s_waitcnt vmcnt(15)")
    a("s_barrier")
    lk = LgkmTracker(a)
    for kk in range(3):
        p1_read(lk, kk, kk % 4, ("A", kk))
    a(f"s_cmp_lg_u32 s{sW}, 0\ns_cbranch_scc1 L_noflag")
    a(f"s_lshl_b32 s{sT0}, s{sJ}, 2\nv_mov_b32 v2, s{sT0}\nv_mov_b32 v3, 1")
    a(f"v_cmp_eq_u32 vcc, 0, v{vLANE}\ns_and_saveexec_b64 s[{sEX}:{sEX+1}], vcc")
    a("buffer_atomic_add v3, v2, s[44:47], 0 offen sc1")
    a(f"s_mov_b64 exec, s[{sEX}:{sEX+1}]")
    a.label("L_noflag")
    a(f"s_mov_b32 s{sCNT}, 4")
    if stamps:
        a("s_memtime s[50:51]")
    a("s_branch L_roundB")
    pre = list(lk.q)
    a.label("L_roundA")
    body_start = len(a.lines)
    gen_round(a, lk, 1, 0, "A", opts=opts)
    a.label("L_roundB")
    gen_round(a, lk, 0, 1, "B", switch_check=True, opts=opts)
    assert lk.q == pre, (lk.q, pre)
    a(f"s_sub_u32 s{sCNT}, s{sCNT}, 1")
    a(f"s_cmp_ge_i32 s{sCNT}, 0")
    a("s_cbranch_scc1 L_roundA")
    body = a.lines[body_start:]
    check_hazards(body + body, "phase1")
    if stamps:
        a("s_memtime s[52:53]")
    a("s_nop 7\ns_nop 3")
    for x in gelu_ops(ACC[0]): a(x)
    a("s_waitcnt vmcnt(0)")
    a("s_barrier")
    a(f"s_lshl_b32 s{sT0}, s{sW}, 10")
    a(f"v_add_u32 v2, s{sT0}, v{vHR}")
    a(f"v_add_u32 v3, {36*1024}, v2")
    for rho in range(9):
        src = HREG + 8*(rho+1) if rho < 8 else HP
        a(f"ds_write_b128 v2, {V(src,4)} offset:{rho*4096}")
        a(f"ds_write_b128 v3, {V(src+4,4)} offset:{rho*4096}")
    a("s_waitcnt lgkmcnt(0)")
    a("s_barrier")
    a(f"s_lshr_b32 s{sT0}, s{sW}, 1")
    a(f"s_mul_i32 s{sT0}, s{sT0}, {36*1024}")
    a(f"v_add_u32 v2, s{sT0}, v{vHR}")
    for f in range(36):
        a(f"ds_read_b128 {A(4*f,4)}, v2 offset:{f*1024}")
    a("s_waitcnt lgkmcnt(0)")
    a("s_barrier")
    a(f"s_mov_b32 s{sSRDA+2}, {576*4608*2}")
    a(f"s_mov_b32 s{sSRDB+2}, {576*4608*2}")
    a(f"s_mul_i32 s{sSOFF}, s{sJ}, {576*1152}")
    a(f"s_add_u32 s{sSOFF}, s{sSOFF}, {0 if opts.get('same_cols') else 128}")
    if not nodma:
        dma_group(a, 3)
        a(f"s_add_u32 s{sSOFF}, s{sSOFF}, s{sINC}")
        dma_group(a, 4)
        a(f"s_add_u32 s{sSOFF}, s{sSOFF}, s{sINC}")
        dma_group(a, 5, nparts=3)
    a(f"s_mov_b32 s{sINCW}, {(-2*192*1152 + (0 if opts.get('same_cols') else 128)) & 0xffffffff}")
    lk = LgkmTracker(a)
    sched = p2_read_schedule()
    pend = []
    for T in range(36):
        for F in sched[T]:
            if F >= 36: pend.append(F - 36)
    for F in pend:
        p2_read(lk, F, F % P2_NB, ("B", F))
    pre2 = list(lk.q)
    a(f"s_mov_b32 s{sCNT}, 9")
    if stamps:
        a("s_memtime s[54:55]")
    a.label("L_p2")
    bs = len(a.lines)
    gen_p2_chunk(a, lk, fp32_part, opts)
    assert lk.q == pre2, (lk.q, pre2)
    a(f"s_sub_u32 s{sCNT}, s{sCNT}, 1")
    a(f"s_cmp_gt_i32 s{sCNT}, 0")
    a("s_cbranch_scc1 L_p2")
    body = a.lines[bs:]
    check_hazards(body + body, "phase2")
    a("s_waitcnt vmcnt(0) lgkmcnt(0)")
    if stamps:
        a("s_memtime s[56:57]")
    if conv:
        a("s_barrier")
        c0 = len(a.lines)
        PT.gen_conv(a, 68, 96, "L_conv_done")
        check_hazards(a.lines[c0:], "conv")
        a.label("L_conv_done")
    if stamps:
        a("s_waitcnt vmcnt(0)")
        a("s_memtime s[62:63]")
        a("s_memrealtime s[60:61]")
        a("s_waitcnt lgkmcnt(0)")
        a("s_cmp_eq_u32 s2, 0\ns_cbranch_scc1 L_st\ns_cmp_eq_u32 s2, 133\ns_cbranch_scc0 L_k1_done\nL_st:")
        a("s_cmp_lg_u32 s20, 0\ns_cbranch_scc1 L_k1_done")
        a("s_sub_u32 s50, s50, s48\ns_sub_u32 s52, s52, s48\ns_sub_u32 s54, s54, s48\ns_sub_u32 s56, s56, s48\ns_sub_u32 s60, s60, s58\ns_sub_u32 s62, s62, s48")
        a("v_mov_b32 v2, s50\nv_mov_b32 v3, s52\nv_mov_b32 v4, s54\nv_mov_b32 v5, s56\nv_mov_b32 v8, s60\nv_mov_b32 v9, s62")
        a("s_cmp_eq_u32 s2, 0\ns_cselect_b32 s34, 64, 96\nv_mov_b32 v6, s34")
        a(f"v_cmp_eq_u32 vcc, 0, v{vLANE}\ns_and_saveexec_b64 s[40:41], vcc")
        a("buffer_store_dwordx4 v[2:5], v6, s[44:47], 0 offen")
        a("buffer_store_dwordx2 v[8:9], v6, s[44:47], 0 offen offset:16")
        a("s_waitcnt vmcnt(0)")
    a.label("L_k1_done")
    a("s_endpgm")
    return a

def kd(name, nvgpr_arch, nagpr, nsgpr=96):
    acc_off = (nvgpr_arch + 3)//4*4
    tot = acc_off + nagpr if nagpr else nvgpr_arch
    return f""".section .rodata,"a"
.p2align 6
.amdhsa_kernel {name}
  .amdhsa_next_free_vgpr {tot}
  .amdhsa_next_free_sgpr {nsgpr}
  .amdhsa_accum_offset {acc_off}
  .amdhsa_group_segment_fixed_size 0
  .amdhsa_kernarg_size 104
  .amdhsa_user_sgpr_count 2
  .amdhsa_user_sgpr_kernarg_segment_ptr 1
  .amdhsa_system_sgpr_workgroup_id_x 1
  .amdhsa_float_denorm_mode_32 3
.end_amdhsa_kernel
.text
"""

def write_k1(fn, **kw):
    import parts as PT
    a = gen_k1(**kw)
    hdr = f"; @launch kernel=k1_kernel grid=(256,1,1) block=(256,1,1) lds={PT.LDS_TOTAL}\n.amdgcn_target \"amdgcn-amd-amdhsa--gfx950\"\n.text\n"
    open(fn, "w").write(hdr + a.text() + kd("k1_kernel", 256, 256, nsgpr=100))

if __name__ == "__main__":
    write_k1("k1_test.s", stamps=True)
```

```python
from asmlib import *
import k1 as K

def gen_k2(name="k2_kernel", fp32_part=False):
    a = Asm()
    a(f".globl {name}\n.p2align 8\n.type {name},@function\n{name}:")
    a("s_cmp_ge_u32 s2, 288\ns_cbranch_scc1 L_k2_done")
    a("s_load_dwordx2 s[4:5], s[0:1], 0")
    a("s_load_dwordx2 s[8:9], s[0:1], 80")
    a("s_load_dwordx2 s[12:13], s[0:1], 96")
    a("v_lshrrev_b32 v2, 6, v0\nv_and_b32 v1, 63, v0")
    a("v_readfirstlane_b32 s20, v2")
    a(f"s_mul_i32 s21, s2, {(2**16+8)//9}\ns_lshr_b32 s21, s21, 16")
    a("s_mul_i32 s22, s21, 9\ns_sub_u32 s22, s2, s22")
    a("s_lshr_b32 s23, s20, 1\ns_and_b32 s24, s20, 1")
    a("v_and_b32 v3, 31, v1\nv_lshrrev_b32 v4, 5, v1")
    a("s_lshl_b32 s25, s21, 6\ns_lshl_b32 s26, s23, 5\ns_add_u32 s25, s25, s26")
    a("v_add_u32 v5, s25, v3")
    a("s_lshl_b32 s26, s22, 6\ns_lshl_b32 s27, s24, 5\ns_add_u32 s26, s26, s27")
    a("v_lshlrev_b32 v6, 2, v4\nv_add_u32 v6, s26, v6")
    a("v_mul_u32_u24 v7, 1152, v5\nv_lshl_add_u32 v7, v6, 1, v7")
    a(f"v_lshlrev_b32 v8, 12, v6\nv_lshl_add_u32 v8, v5, 1, v8\nv_add_u32 v8, {K.WS_ZT}, v8")
    a(f"v_lshlrev_b32 v9, 3, v5\nv_add_u32 v9, {K.WS_STATS}, v9")
    a("v_lshlrev_b32 v10, 4, v1")
    isz = 4096 if fp32_part else 2048
    a(f"s_mul_i32 s27, s21, 9\ns_add_u32 s27, s27, s22\ns_lshl_b32 s27, s27, 2\ns_add_u32 s27, s27, s20\ns_mul_i32 s27, s27, {isz}\ns_add_u32 s27, s27, {K.WS_PART}")
    a("s_waitcnt lgkmcnt(0)")
    for srd, n in ((4, 2048*576*2), (8, 2048*576*2), (12, K.WS_SIZE)):
        a(f"s_mov_b32 s{srd+2}, {n}\ns_mov_b32 s{srd+3}, 0x00020000")
    P = 32
    nq = 4 if fp32_part else 2
    for j in range(8):
        for q in range(nq):
            r = P + (j*nq + q)*4
            off = f" offset:{1024*q}" if q else ""
            a(f"buffer_load_dwordx4 v[{r}:{r+3}], v10, s[12:15], s27 offen{off}")
        if j < 7: a(f"s_add_u32 s27, s27, {32*9*4*isz}")
    X = P + 8*nq*4
    Z = X + 8
    ST = Z + 16
    for aa in range(4):
        off = f" offset:{16*aa}" if aa else ""
        a(f"buffer_load_dwordx2 v[{X+2*aa}:{X+2*aa+1}], v7, s[4:7], 0 offen{off}")
    a(f"buffer_load_dwordx2 v[{ST}:{ST+1}], v9, s[12:15], 0 offen")
    for aa in range(4):
        for e in range(4):
            a(f"s_mov_b32 s28, {(8*aa+e)*4096}")
            a(f"buffer_load_ushort v{Z+4*aa+e}, v8, s[12:15], s28 offen")
    S = ST + 2
    T = S + 16
    a(f"s_waitcnt vmcnt({4+1+16})")
    if fp32_part:
        for r in range(16):
            a(f"v_add_f32 v{S+r}, v{P+r}, v{P+16+r}")
        for j in range(2, 8):
            for r in range(16): a(f"v_add_f32 v{S+r}, v{S+r}, v{P+16*j+r}")
    else:
        for j in range(8):
            for D in range(8):
                src = P + 8*j + D
                if j == 0:
                    a(f"v_lshlrev_b32 v{S+2*D}, 16, v{src}\nv_and_b32 v{S+2*D+1}, 0xffff0000, v{src}")
                else:
                    a(f"v_lshlrev_b32 v{T}, 16, v{src}\nv_and_b32 v{T+1}, 0xffff0000, v{src}")
                    a(f"v_add_f32 v{S+2*D}, v{S+2*D}, v{T}\nv_add_f32 v{S+2*D+1}, v{S+2*D+1}, v{T+1}")
    a("s_waitcnt vmcnt(0)")
    a(f"v_rcp_f32 v{T+2}, v{ST+1}")
    a("s_nop 0")
    a(f"v_mul_f32 v{T+3}, v{T+2}, v{T+2}")
    for aa in range(4):
        U = T+4
        a(f"v_lshlrev_b32 v{U}, 16, v{X+2*aa}\nv_and_b32 v{U+1}, 0xffff0000, v{X+2*aa}")
        a(f"v_lshlrev_b32 v{U+2}, 16, v{X+2*aa+1}\nv_and_b32 v{U+3}, 0xffff0000, v{X+2*aa+1}")
        for e in range(4): a(f"v_sub_f32 v{U+4+e}, v{U+e}, v{ST}")
        a(f"v_cvt_pk_bf16_f32 v{U+8}, v{U+4}, v{U+5}\nv_cvt_pk_bf16_f32 v{U+9}, v{U+6}, v{U+7}")
        a(f"v_lshlrev_b32 v{U+4}, 16, v{U+8}\nv_and_b32 v{U+5}, 0xffff0000, v{U+8}\nv_lshlrev_b32 v{U+6}, 16, v{U+9}\nv_and_b32 v{U+7}, 0xffff0000, v{U+9}")
        for e in range(4): a(f"v_mul_f32 v{U+4+e}, v{U+4+e}, v{T+2}")
        a(f"v_cvt_pk_bf16_f32 v{U+8}, v{U+4}, v{U+5}\nv_cvt_pk_bf16_f32 v{U+9}, v{U+6}, v{U+7}")
        a(f"v_lshlrev_b32 v{U+4}, 16, v{U+8}\nv_and_b32 v{U+5}, 0xffff0000, v{U+8}\nv_lshlrev_b32 v{U+6}, 16, v{U+9}\nv_and_b32 v{U+7}, 0xffff0000, v{U+9}")
        for e in range(4):
            a(f"v_lshlrev_b32 v{U+10}, 16, v{Z+4*aa+e}")
            a(f"v_mul_f32 v{U+4+e}, v{U+4+e}, v{U+10}")
        a(f"v_cvt_pk_bf16_f32 v{U+8}, v{U+4}, v{U+5}\nv_cvt_pk_bf16_f32 v{U+9}, v{U+6}, v{U+7}")
        a(f"v_lshlrev_b32 v{U+4}, 16, v{U+8}\nv_and_b32 v{U+5}, 0xffff0000, v{U+8}\nv_lshlrev_b32 v{U+6}, 16, v{U+9}\nv_and_b32 v{U+7}, 0xffff0000, v{U+9}")
        for e in range(4): a(f"v_add_f32 v{U+4+e}, v{U+4+e}, v{U+e}")
        a(f"v_cvt_pk_bf16_f32 v{U+8}, v{U+4}, v{U+5}\nv_cvt_pk_bf16_f32 v{U+9}, v{U+6}, v{U+7}")
        a(f"v_lshlrev_b32 v{U+4}, 16, v{U+8}\nv_and_b32 v{U+5}, 0xffff0000, v{U+8}\nv_lshlrev_b32 v{U+6}, 16, v{U+9}\nv_and_b32 v{U+7}, 0xffff0000, v{U+9}")
        for e in range(4): a(f"v_mul_f32 v{U+e}, v{S+4*aa+e}, v{T+3}")
        a(f"v_cvt_pk_bf16_f32 v{U+8}, v{U}, v{U+1}\nv_cvt_pk_bf16_f32 v{U+9}, v{U+2}, v{U+3}")
        a(f"v_lshlrev_b32 v{U}, 16, v{U+8}\nv_and_b32 v{U+1}, 0xffff0000, v{U+8}\nv_lshlrev_b32 v{U+2}, 16, v{U+9}\nv_and_b32 v{U+3}, 0xffff0000, v{U+9}")
        for e in range(4): a(f"v_add_f32 v{U+4+e}, v{U+4+e}, v{U+e}")
        a(f"v_cvt_pk_bf16_f32 v{U+12+2*(aa%2)}, v{U+4}, v{U+5}\nv_cvt_pk_bf16_f32 v{U+13+2*(aa%2)}, v{U+6}, v{U+7}")
        off = f" offset:{16*aa}" if aa else ""
        a(f"buffer_store_dwordx2 v[{U+12+2*(aa%2)}:{U+13+2*(aa%2)}], v7, s[8:11], 0 offen{off}")
    a.label("L_k2_done")
    a("s_endpgm")
    check_hazards(a.lines, "k2")
    nv = T + 4 + 16
    return a, ((nv + 7)//8)*8
```

```python
from asmlib import *
import k1 as K

ONES_BF = 0x3f803f80
OFF4 = 0x8C2EA450

LDS_STAT = 147456
LDS_KV   = 147456 + 256
LDS_TOTAL = LDS_KV + 64*160

def gen_ln(a, QREG, sQ, sStatSRD_ok=True):
    T = 32
    vS, vQ2 = T, T+4
    a(f"s_mov_b32 s{K.sT2}, {hex(ONES_BF)}")
    a(f"s_mov_b32 s{K.sT3}, 0x00003f80")
    a(f"s_mov_b32 s{K.sEX}, 0x3f800000")
    vB = T+10
    a(f"v_lshrrev_b32 v{T+8}, 3, v{K.vLANE}")
    a(f"v_lshrrev_b32 v{T+9}, 1, v{T+8}")
    a(f"v_lshlrev_b32 v{vB}, 10, v{T+9}")
    a(f"v_and_b32 v{T+9}, 1, v{T+8}")
    a(f"v_lshl_add_u32 v{vB}, v{T+9}, 9, v{vB}")
    a(f"v_and_b32 v{T+9}, 7, v{K.vLANE}")
    a(f"v_lshl_add_u32 v{vB}, v{T+9}, 4, v{vB}")
    a(f"s_lshr_b32 s{K.sT0}, s{K.sW}, 1\ns_mul_i32 s{K.sT0}, s{K.sT0}, 36864")
    a(f"s_and_b32 s{K.sT1}, s{K.sW}, 1\ns_lshl_b32 s{K.sT1}, s{K.sT1}, 8")
    a(f"s_add_u32 s{K.sT0}, s{K.sT0}, s{K.sT1}\ns_add_u32 s{K.sT0}, s{K.sT0}, {K.HB}")
    a(f"v_add_u32 v{vB}, s{K.sT0}, v{vB}")
    vSt = T+11
    a(f"s_lshl_b32 s{K.sT0}, s{K.sW}, 6\ns_add_u32 s{K.sT0}, s{K.sT0}, {LDS_STAT}")
    a(f"v_lshlrev_b32 v{vSt}, 2, v{T+9}")
    a(f"v_add_u32 v{vSt}, s{K.sT0}, v{vSt}")
    vG = T+12
    a(f"s_lshl_b32 s{K.sT0}, s{K.sI}, 6\ns_lshl_b32 s{K.sT1}, s{K.sW}, 4\ns_add_u32 s{K.sT0}, s{K.sT0}, s{K.sT1}")
    a(f"v_add_u32 v{vG}, s{K.sT0}, v{T+9}")
    a(f"v_lshlrev_b32 v{vG}, 3, v{vG}")
    a(f"v_add_u32 v{vG}, {K.WS_STATS}, v{vG}")
    for p in range(2):
        X = QREG + 36*p
        a(f"s_waitcnt vmcnt(@LNWAIT{p}@)")
        for k in range(4):
            a(f"v_mov_b32 v{vS+k}, 0"); a(f"v_mov_b32 v{vQ2+k}, 0")
        for d in range(36):
            a(f"v_dot2c_f32_bf16 v{vS+d%4}, s{K.sT2}, v{X+d}")
            a(f"v_dot2c_f32_bf16 v{vQ2+d%4}, v{X+d}, v{X+d}")
        a("s_nop 2")
        a(f"v_add_f32 v{vS}, v{vS}, v{vS+1}\nv_add_f32 v{vS+2}, v{vS+2}, v{vS+3}")
        a(f"v_add_f32 v{vQ2}, v{vQ2}, v{vQ2+1}\nv_add_f32 v{vQ2+2}, v{vQ2+2}, v{vQ2+3}")
        a(f"v_add_f32 v{vS}, v{vS}, v{vS+2}\nv_add_f32 v{vQ2}, v{vQ2}, v{vQ2+2}")
        a("s_nop 1")
        a(f"v_add_f32_dpp v{vS}, v{vS}, v{vS} row_ror:8 row_mask:0xf bank_mask:0xf")
        a(f"v_add_f32_dpp v{vQ2}, v{vQ2}, v{vQ2} row_ror:8 row_mask:0xf bank_mask:0xf")
        for sw in ("v_permlane16_swap_b32", "v_permlane32_swap_b32"):
            a(f"v_mov_b32 v{vS+1}, v{vS}\nv_mov_b32 v{vQ2+1}, v{vQ2}")
            a("s_nop 1")
            a(f"{sw} v{vS}, v{vS+1}\n{sw} v{vQ2}, v{vQ2+1}")
            a("s_nop 1")
            a(f"v_add_f32 v{vS}, v{vS}, v{vS+1}\nv_add_f32 v{vQ2}, v{vQ2}, v{vQ2+1}")
        inv = hex(f2u(1.0/576.0))
        a(f"v_mul_f32 v{vS}, {inv}, v{vS}")
        a(f"v_mul_f32 v{vQ2}, {inv}, v{vQ2}")
        a(f"v_fma_f32 v{vQ2}, -v{vS}, v{vS}, v{vQ2}")
        a(f"v_max_f32 v{vQ2}, 0, v{vQ2}")
        a(f"v_cvt_pk_bf16_f32 v{vS+1}, v{vS}, v{vQ2}")
        a(f"v_and_b32 v{vQ2}, 0xffff0000, v{vS+1}")
        a(f"v_lshlrev_b32 v{vS}, 16, v{vS+1}")
        a(f"v_add_f32 v{vQ2}, {hex(f2u(1e-5))}, v{vQ2}")
        a(f"v_cvt_pk_bf16_f32 v{vQ2}, v{vQ2}, v{vQ2}")
        a(f"v_lshlrev_b32 v{vQ2}, 16, v{vQ2}")
        a(f"v_sqrt_f32 v{vQ2}, v{vQ2}")
        a("s_nop 0")
        a(f"v_cvt_pk_bf16_f32 v{vQ2}, v{vQ2}, v{vQ2}")
        a(f"v_lshlrev_b32 v{vS+1}, 16, v{vQ2}")
        a(f"v_rcp_f32 v{vQ2}, v{vS+1}")
        a(f"v_sub_f32 v{vS+2}, 0, v{vS}")
        a(f"ds_write_b32 v{vSt}, v{vQ2} offset:{32*p}")
        a(f"s_cmp_eq_u32 s{K.sJ}, 0\ns_cselect_b32 s{K.sT0}, {64*p}, 0x7ff00000")
        a(f"buffer_store_dwordx2 v[{vS}:{vS+1}], v{vG}, s[{K.sSRDW}:{K.sSRDW+3}], s{K.sT0} offen sc1")
        D = T+16
        for m in range(9):
            tb = D + 12*(m % 2)
            for e in range(4):
                a(f"v_dot2_f32_bf16 v{tb+2*e}, v{X+4*m+e}, s{K.sT3}, v{vS+2}")
                a(f"v_dot2_f32_bf16 v{tb+2*e+1}, v{X+4*m+e}, s{K.sEX}, v{vS+2}")
            if m > 0:
                pb = D + 12*((m-1) % 2)
                for e in range(4): a(f"v_cvt_pk_bf16_f32 v{pb+8+e}, v{pb+2*e}, v{pb+2*e+1}")
                a(f"ds_write_b128 v{vB}, v[{pb+8}:{pb+11}] offset:{(m-1)*4096 + 128*p}")
        pb = D + 12*(8 % 2)
        a("s_nop 2")
        for e in range(4): a(f"v_cvt_pk_bf16_f32 v{pb+8+e}, v{pb+2*e}, v{pb+2*e+1}")
        a(f"ds_write_b128 v{vB}, v[{pb+8}:{pb+11}] offset:{8*4096 + 128*p}")

def gen_q_loads(a, QREG, sSRDQ):
    a(f"v_and_b32 v2, 7, v{K.vLANE}")
    a(f"v_mul_u32_u24 v2, 1152, v2")
    a(f"v_lshrrev_b32 v3, 3, v{K.vLANE}")
    a(f"v_lshl_add_u32 v2, v3, 4, v2")
    a(f"s_lshl_b32 s{K.sT0}, s{K.sI}, 6\ns_lshl_b32 s{K.sT1}, s{K.sW}, 4\ns_add_u32 s{K.sT0}, s{K.sT0}, s{K.sT1}")
    a(f"s_mul_i32 s{K.sT0}, s{K.sT0}, 1152")
    for p in range(2):
        if p: a(f"s_add_u32 s{K.sT0}, s{K.sT0}, {8*1152}")
        for m in range(9):
            off = f" offset:{128*m}" if m else ""
            a(f"buffer_load_dwordx4 v[{QREG+36*p+4*m}:{QREG+36*p+4*m+3}], v2, s[{sSRDQ}:{sSRDQ+3}], s{K.sT0} offen{off}")

def gen_kv_loads(a, KREG, sSRDK, sSRDV, sSRDS):
    a(f"s_mul_i32 s{K.sT0}, s{K.sW}, 36")
    a(f"v_min_u32 v2, 35, v{K.vLANE}")
    a(f"v_add_u32 v2, s{K.sT0}, v2")
    a(f"s_mov_b32 s{K.sT1}, {(2**32 + 8)//9}")
    a(f"v_mul_hi_u32 v5, v2, s{K.sT1}")
    a(f"v_mul_u32_u24 v4, 9, v5")
    a(f"v_sub_u32 v4, v2, v4")
    a(f"s_lshl_b32 s{K.sT0}, s{K.sI}, 6")
    a(f"v_lshlrev_b32 v3, 2, v5")
    a(f"v_add_u32 v3, s{K.sT0}, v3")
    a(f"v_mul_u32_u24 v3, 1152, v3")
    a(f"s_mul_i32 s{K.sT0}, s{K.sJ}, 144")
    a(f"v_lshl_add_u32 v6, v4, 4, v3")
    a(f"v_add_u32 v6, s{K.sT0}, v6")
    for r in range(7):
        if r < 3:
            a(f"v_add_u32 v3, {(r-3)*1152 & 0xffffffff}, v6")
            a(f"buffer_load_dwordx4 v[{KREG+4*r}:{KREG+4*r+3}], v3, s[{sSRDK}:{sSRDK+3}], 0 offen")
        else:
            off = f" offset:{1152*(r-3)}" if r > 3 else ""
            a(f"buffer_load_dwordx4 v[{KREG+4*r}:{KREG+4*r+3}], v6, s[{sSRDK}:{sSRDK+3}], 0 offen{off}")
    for r in range(4):
        off = f" offset:{1152*r}" if r else ""
        a(f"buffer_load_dwordx4 v[{KREG+28+4*r}:{KREG+28+4*r+3}], v6, s[{sSRDV}:{sSRDV+3}], 0 offen{off}")
    a(f"s_mul_i32 s{K.sT0}, s{K.sJ}, 576")
    a(f"v_lshlrev_b32 v3, 6, v4")
    for r in range(4):
        off = f" offset:{16*r}" if r else ""
        a(f"buffer_load_dwordx4 v[{KREG+44+4*r}:{KREG+44+4*r+3}], v3, s[{sSRDS}:{sSRDS+3}], s{K.sT0} offen{off}")

def gen_kv_compute(a, KREG):
    KU = 32
    SU = 88
    AC = 120
    VU = 152
    for r in range(7):
        for e in range(4):
            a(f"v_lshlrev_b32 v{KU+8*r+2*e}, 16, v{KREG+4*r+e}")
            a(f"v_and_b32 v{KU+8*r+2*e+1}, 0xffff0000, v{KREG+4*r+e}")
    for c in range(8):
        for jj in range(2):
            src = KREG + 44 + 2*c + jj
            a(f"v_lshlrev_b32 v{SU+8*(2*jj)+c}, 16, v{src}")
            a(f"v_and_b32 v{SU+8*(2*jj+1)+c}, 0xffff0000, v{src}")
    a(f"v_lshlrev_b32 v6, 2, v5")
    a(f"v_sub_u32 v6, 63, v6")
    a(f"v_mul_u32_u24 v6, 160, v6")
    a(f"v_lshl_add_u32 v6, v4, 4, v6")
    a(f"v_add_u32 v6, {LDS_KV - 3*160}, v6")
    for tok in range(4):
        for jj in (3, 2, 1, 0):
            for pr in range(4):
                d = f"v[{AC+8*tok+2*pr}:{AC+8*tok+2*pr+1}]"
                kk = f"v[{KU+8*(tok+3-jj)+2*pr}:{KU+8*(tok+3-jj)+2*pr+1}]"
                ss = f"v[{SU+8*jj+2*pr}:{SU+8*jj+2*pr+1}]"
                if jj == 3: a(f"v_pk_mul_f32 {d}, {kk}, {ss}")
                else: a(f"v_pk_fma_f32 {d}, {kk}, {ss}, {d}")
        for e in range(4):
            a(f"v_lshlrev_b32 v{VU+2*e}, 16, v{KREG+28+4*tok+e}")
            a(f"v_and_b32 v{VU+2*e+1}, 0xffff0000, v{KREG+28+4*tok+e}")
        for pr in range(4):
            d = f"v[{AC+8*tok+2*pr}:{AC+8*tok+2*pr+1}]"
            a(f"v_pk_mul_f32 {d}, {d}, v[{VU+2*pr}:{VU+2*pr+1}]")
        for e in range(4):
            a(f"v_cvt_pk_bf16_f32 v{VU+8+e}, v{AC+8*tok+2*e}, v{AC+8*tok+2*e+1}")
        a(f"ds_write_b128 v6, v[{VU+8}:{VU+11}] offset:{(3-tok)*160}")

def gen_kv_store(a):
    a(f"v_and_b32 v2, 15, v{K.vLANE}")
    a(f"v_lshrrev_b32 v3, 4, v{K.vLANE}")
    a(f"v_lshrrev_b32 v4, 2, v2")
    a(f"v_lshl_add_u32 v4, v3, 3, v4")
    a(f"v_mul_u32_u24 v4, 160, v4")
    a(f"v_and_b32 v5, 3, v2")
    a(f"v_lshl_add_u32 v4, v5, 3, v4")
    a(f"v_add_u32 v4, {LDS_KV}, v4")
    a(f"s_mul_i32 s{K.sT0}, s{K.sJ}, 72")
    a(f"v_add_u32 v5, s{K.sT0}, v2")
    a(f"v_lshlrev_b32 v5, 12, v5")
    a(f"v_lshl_add_u32 v5, v3, 4, v5")
    a(f"s_lshl_b32 s{K.sT0}, s{K.sI}, 7")
    a(f"s_sub_u32 s{K.sT0}, {K.WS_KVR + 1984*2}, s{K.sT0}")
    a(f"v_add_u32 v5, s{K.sT0}, v5")
    for u in range(3):
        lab = f"L_kvs{u}"
        a(f"s_add_u32 s{K.sT0}, s{K.sW}, {4*u}")
        a(f"s_cmp_ge_u32 s{K.sT0}, 10\ns_cbranch_scc1 {lab}")
        a(f"s_lshr_b32 s{K.sT1}, s{K.sT0}, 1")
        a(f"s_and_b32 s{K.sT2}, s{K.sT0}, 1")
        a(f"s_mul_i32 s{K.sT3}, s{K.sT2}, {32*160}")
        a(f"s_lshl_b32 s{K.sT0}, s{K.sT1}, 5")
        a(f"s_add_u32 s{K.sT3}, s{K.sT3}, s{K.sT0}")
        a(f"v_add_u32 v6, s{K.sT3}, v4")
        a(f"ds_read_b64_tr_b16 v[32:33], v6")
        a(f"ds_read_b64_tr_b16 v[34:35], v6 offset:{4*160}")
        a(f"s_lshl_b32 s{K.sT1}, s{K.sT1}, 16")
        a(f"s_lshl_b32 s{K.sT2}, s{K.sT2}, 6")
        a(f"s_add_u32 s{K.sT1}, s{K.sT1}, s{K.sT2}")
        a(f"v_add_u32 v7, s{K.sT1}, v5")
        a(f"s_cmp_eq_u32 s{K.sT0}, {4 << 5}\ns_cselect_b32 s{K.sT0}, 8, 16")
        a(f"v_cmp_gt_u32 vcc, s{K.sT0}, v2")
        a(f"v_mov_b32 v36, 0x7ff00000")
        a("s_nop 0")
        a(f"v_cndmask_b32 v7, v36, v7, vcc")
        a("s_waitcnt lgkmcnt(0)")
        a(f"buffer_store_dwordx4 v[32:35], v7, s[{K.sSRDW}:{K.sSRDW+3}], 0 offen sc1")
        a("s_nop 1")
        a.label(lab)


CV_WAVE = 39936
CV_XR = 34816
def gen_conv(a, sSRDH, sSRDD, label_done):
    sC = K.sT0+20
    sC, sBase, sT, sU = 70, 71, 72, 73
    a(f"s_lshl_b32 s{sC}, s{K.sW}, 8\ns_add_u32 s{sC}, s{sC}, s2")
    a(f"s_cmp_ge_u32 s{sC}, 576\ns_cbranch_scc1 {label_done}")
    a(f"s_mul_i32 s{sBase}, s{K.sW}, {CV_WAVE}")
    a(f"s_mul_i32 s{sT}, s{sC}, {(2**16 + 71)//72}\ns_lshr_b32 s{sT}, s{sT}, 16\ns_lshl_b32 s{sT}, s{sT}, 2")
    a(f"v_mov_b32 v2, s{sT}")
    a(f"s_mov_b32 s{sU}, 0")
    a.label("L_poll")
    a(f"buffer_load_dword v3, v2, s[44:47], 0 offen sc1")
    a("s_waitcnt vmcnt(0)")
    a(f"v_readfirstlane_b32 s{sT}, v3")
    a(f"s_add_u32 s{sU}, s{sU}, 1")
    a(f"s_cmp_ge_u32 s{sT}, 32\ns_cbranch_scc1 L_pollok")
    a(f"s_cmp_lt_u32 s{sU}, 200000\ns_cbranch_scc0 L_pollok")
    a("s_sleep 4\ns_branch L_poll")
    a.label("L_pollok")
    a(f"s_lshl_b32 s{sT}, s{sC}, 12")
    a(f"s_add_u32 s76, s{sSRDH}, s{sT}\ns_addc_u32 s77, s{sSRDH+1}, 0\ns_mov_b32 s78, 4096\ns_mov_b32 s79, 0x00020000")
    HP_, H1 = 96, 128
    a(f"v_lshlrev_b32 v4, 4, v{K.vLANE}")
    for o in range(4):
        a(f"v_add_u32 v5, {(1024*o - 16) & 0xffffffff}, v4")
        a(f"buffer_load_dwordx4 v[{HP_+8*o}:{HP_+8*o+3}], v5, s[76:79], 0 offen")
        a(f"v_add_u32 v6, {1024*o}, v4")
        a(f"buffer_load_dwordx4 v[{HP_+8*o+4}:{HP_+8*o+7}], v6, s[76:79], 0 offen")
        a(f"v_add_u32 v7, {(1024*o - 12) & 0xffffffff}, v4")
        a(f"buffer_load_dwordx4 v[{H1+8*o}:{H1+8*o+3}], v7, s[76:79], 0 offen")
        a(f"buffer_load_dwordx4 v[{H1+8*o+4}:{H1+8*o+7}], v6, s[76:79], 0 offen offset:4")
    a(f"s_lshl_b32 s{sT}, s{sC}, 12\ns_add_u32 s{sT}, s{sT}, {K.WS_KVR}")
    a(f"s_add_u32 m0, s{sBase}, {CV_XR}")
    a("s_nop 0")
    for k in range(4):
        off = f" offset:{1024*k}" if k else ""
        a(f"buffer_load_dwordx4 v4, s[{K.sSRDW}:{K.sSRDW+3}], s{sT} offen{off} sc1 lds")
    a(f"s_lshl_b32 s{sT}, s{sC}, 1\nv_mov_b32 v8, s{sT}")
    a(f"buffer_load_ushort v9, v8, s[{sSRDD}:{sSRDD+3}], 0 offen")
    for r in range(4): a(f"v_mov_b32 v{32+r}, 0")
    a(f"v_add_u32 v10, s{sBase}, v4")
    a(f"v_cmp_gt_u32 vcc, 32, v{K.vLANE}\ns_and_saveexec_b64 s[{K.sEX}:{K.sEX+1}], vcc")
    a(f"ds_write_b128 v10, v[32:35] offset:{CV_XR + 4096}")
    a(f"s_mov_b64 exec, s[{K.sEX}:{K.sEX+1}]")
    a(f"v_and_b32 v11, 7, v{K.vLANE}")
    a(f"s_mov_b32 s{sT}, {hex(OFF4)}")
    a(f"v_lshlrev_b32 v12, 2, v11")
    a(f"v_lshrrev_b32 v12, v12, s{sT}")
    a(f"v_and_b32 v12, 15, v12")
    a(f"v_mul_u32_u24 v13, 4352, v11")
    a(f"v_lshl_add_u32 v13, v12, 4, v13")
    a(f"v_lshrrev_b32 v12, 3, v{K.vLANE}")
    a(f"v_lshl_add_u32 v13, v12, 4, v13")
    a(f"v_add_u32 v13, s{sBase}, v13")
    a(f"v_cmp_gt_u32 vcc, 9, v{K.vLANE}\ns_and_saveexec_b64 s[{K.sEX}:{K.sEX+1}], vcc")
    a(f"ds_write_b128 v13, v[32:35]")
    a(f"s_mov_b64 exec, s[{K.sEX}:{K.sEX+1}]")
    offs = [(OFF4 >> (4*s)) & 15 for s in range(8)]
    a("s_waitcnt vmcnt(0)")
    Q, Q1 = 40, 48
    a(f"v_mov_b32 v{H1+3}, v{HP_+4}")
    for o in range(4):
        P, P1 = HP_+8*o, H1+8*o
        for n in range(6):
            a(f"v_alignbit_b32 v{Q+n}, v{P+n+1}, v{P+n}, 16")
            a(f"v_alignbit_b32 v{Q1+n}, v{P1+n+1}, v{P1+n}, 16")
        src = {1: Q, 2: P1, 3: Q1, 4: P+2, 5: Q+2, 6: P1+2, 7: Q1+2, 8: P+4}
        for s_ in range(1, 9):
            cb = (s_ & 7)*4352 + 16*offs[s_ & 7] + 16 + (16 if s_ == 8 else 0) + 1024*o
            a(f"ds_write_b128 v10, v[{src[s_]}:{src[s_]+3}] offset:{cb}")
    a("s_waitcnt lgkmcnt(0)")
    a(f"v_and_b32 v14, 15, v{K.vLANE}")
    a(f"v_lshrrev_b32 v15, 4, v{K.vLANE}")
    a(f"v_lshlrev_b32 v16, 5, v14")
    a(f"v_lshlrev_b32 v17, 4, v15")
    a(f"v_sub_u32 v16, v17, v16")
    a(f"s_add_u32 s{sT}, s{sBase}, {CV_XR + 2*(2032 - 32*56)}")
    a(f"v_add_u32 v16, s{sT}, v16")
    for i in range(56, -8, -1):
        a(f"ds_read_b128 {A(4*(i+7),4)}, v16 offset:{(56-i)*64}")
    a(f"v_add_u32 v18, 1, v14")
    a(f"v_and_b32 v19, 7, v18")
    a(f"s_mov_b32 s{sT}, {hex(OFF4)}")
    a(f"v_lshlrev_b32 v20, 2, v19")
    a(f"v_lshrrev_b32 v20, v20, s{sT}")
    a(f"v_and_b32 v20, 15, v20")
    a(f"v_mul_u32_u24 v19, 4352, v19")
    a(f"v_lshl_add_u32 v19, v20, 4, v19")
    a(f"v_lshrrev_b32 v18, 3, v18")
    a(f"v_add_u32 v18, v18, v15")
    a(f"v_lshl_add_u32 v19, v18, 4, v19")
    a(f"v_add_u32 v19, s{sBase}, v19")
    lk = K.LgkmTracker(a)
    NB = 6; FB = 64; ACCB = 32
    a("s_waitcnt lgkmcnt(0)")
    D = 4
    for m in range(D): lk.issue(("F", m), f"ds_read_b128 v[{FB+4*(m%NB)}:{FB+4*(m%NB)+3}], v19 offset:{64*m}")
    for m in range(64):
        lk.wait_for(("F", m))
        T0 = max(0, -(-(m-7)//8))
        for T in range(T0, 8):
            first = (m == 0)
            c_ = "0" if first else f"v[{ACCB+4*T}:{ACCB+4*T+3}]"
            a(f"v_mfma_f32_16x16x32_bf16 v[{ACCB+4*T}:{ACCB+4*T+3}], v[{FB+4*(m%NB)}:{FB+4*(m%NB)+3}], {A(4*(8*T-m+7),4)}, {c_}")
            if T == T0 and m + D < 64:
                lk.issue(("F", m+D), f"ds_read_b128 v[{FB+4*((m+D)%NB)}:{FB+4*((m+D)%NB)+3}], v19 offset:{64*(m+D)}")
    a(f"v_lshlrev_b32 v20, 5, v14\nv_lshlrev_b32 v21, 3, v15\nv_add_u32 v20, v20, v21")
    a(f"s_add_u32 s{sT}, s{sBase}, {CV_XR + 2*2044 - 7*512}")
    a(f"v_sub_u32 v21, s{sT}, v20")
    for T in range(8):
        a(f"ds_read_b64 v[{96+2*T}:{97+2*T}], v21 offset:{(7-T)*512}")
    a(f"v_lshlrev_b32 v9, 16, v9")
    a(f"s_lshl_b32 s{sT}, s{sC}, 12\ns_add_u32 s{sT}, s{sT}, {K.WS_ZT}")
    a("s_waitcnt lgkmcnt(0)")
    for T in range(8):
        kv = 96+2*T; ac = ACCB+4*T; t = 120
        a(f"v_and_b32 v{t}, 0xffff0000, v{kv+1}")
        a(f"v_lshlrev_b32 v{t+1}, 16, v{kv+1}")
        a(f"v_and_b32 v{t+2}, 0xffff0000, v{kv}")
        a(f"v_lshlrev_b32 v{t+3}, 16, v{kv}")
        for r in range(4): a(f"v_mul_f32 v{t+r}, v{t+r}, v9")
        a(f"v_cvt_pk_bf16_f32 v{t+4}, v{t}, v{t+1}\nv_cvt_pk_bf16_f32 v{t+5}, v{t+2}, v{t+3}")
        a(f"v_cvt_pk_bf16_f32 v{t+6}, v{ac}, v{ac+1}\nv_cvt_pk_bf16_f32 v{t+7}, v{ac+2}, v{ac+3}")
        for h in range(2):
            a(f"v_lshlrev_b32 v{t+2*h}, 16, v{t+4+h}\nv_and_b32 v{t+2*h+1}, 0xffff0000, v{t+4+h}")
            a(f"v_lshlrev_b32 v{t+8}, 16, v{t+6+h}\nv_and_b32 v{t+9}, 0xffff0000, v{t+6+h}")
            a(f"v_add_f32 v{t+2*h}, v{t+2*h}, v{t+8}\nv_add_f32 v{t+2*h+1}, v{t+2*h+1}, v{t+9}")
        a(f"v_cvt_pk_bf16_f32 v{t+10}, v{t}, v{t+1}\nv_cvt_pk_bf16_f32 v{t+11}, v{t+2}, v{t+3}")
        off = f" offset:{512*T}" if T else ""
        a(f"buffer_store_dwordx2 v[{t+10}:{t+11}], v20, s[{K.sSRDW}:{K.sSRDW+3}], s{sT} offen{off}")
```

```python
import sys
sys.path.insert(0, "gen")
import k1 as K, k2 as K2, parts as PT
def build(fn, fp32_part=False, stamps=False, opts=None):
    a1 = K.gen_k1(fp32_part=fp32_part, stamps=stamps, opts=opts)
    a2, nv2 = K2.gen_k2(fp32_part=fp32_part)
    ref = open("parallel_sum__ssm_conv_h3__glu_gated_geglu__prompt.s.ref").read()
    hdr = []
    for l in ref.splitlines():
        if l.startswith("; Override launch"): break
        hdr.append(l)
    hdr = "\n".join(hdr) + "\n"
    hdr += f"; @launch kernel=k1_kernel grid=(256,1,1) block=(256,1,1) lds={PT.LDS_TOTAL}\n"
    hdr += f"; @launch kernel=k2_kernel grid=(288,1,1) block=(256,1,1) lds=0\n"
    hdr += '.amdgcn_target "amdgcn-amd-amdhsa--gfx950"\n.text\n'
    src = hdr + a1.text() + a2.text() + K.kd("k1_kernel", 256, 256, nsgpr=100) + K.kd("k2_kernel", nv2, 0, nsgpr=40)
    open(fn, "w").write(src)
if __name__ == "__main__":
    build("parallel_sum__ssm_conv_h3__glu_gated_geglu__prompt.s")
    build("full_st.s", stamps=True)
    build("full_st32.s", stamps=True, fp32_part=True)
```

```python
from asmlib import *
import math

WS_STATS = 0x240000
WS_KVR   = 0x250000
WS_ZT    = 0x490000
WS_STAMP = 0x6D0000
WS_FLAG  = 0x6F0000
WS_ZFLAG = 0x6F2000
WS_PART  = 0x700000
WS_SIZE  = 0x10000000

SLOT = 24576
HB   = 3*SLOT
LDS_STAT = 147456
LDS_KV   = 147456 + 256
LDS_XR   = 147456 + 256
LDS_TOTAL = 147456 + 256 + 3*4608

C0 = -2.0*math.sqrt(2.0/math.pi)*math.log2(math.e)
C1 = C0*0.044715

sSRDA, sSRDB, sSRDW = 4, 8, 12
sWD = 16
sW, sJ, sI = 20, 21, 22
sSOFF = 23
sM0 = 24
sPFO = 26
sOM = 27
sCNT = 30
sINC, sINCW = 31, 32
sT0, sT1, sT2, sT3 = 34, 35, 36, 37
sPOFF = 38
sHIDX = 39
sEX = 40
sB2 = 42
sDBG = 44
sPFA, sPFB = 80, 84
sQ, sK, sV, sSK, sD = 80, 84, 88, 92, 96
sHK = 68
sOUT = 64
sX = 72
vLANE = 1
vRA1, vRA1b, vRA1c = 8, 30, 31
vRA2, vRA2b = 9, 10
vPF = 11
vDG, vDU = 12, 15
VC0, VC1 = [18, 21], [22, 23]
vPST = 19
vHR = 20
vD2 = 24
vPF2 = 28
ACC = [32, 64]
AF = 96
XE = 128
GT = 160
HP = 168
HREG = 176
vDUM = 252

def xn_frag(f):
    return A(4*f, 4) if f < 64 else V(XE + 4*(f-64), 4)

class Lgkm:
    def __init__(self, a):
        self.a = a; self.q = []
    def issue(self, tag, text):
        self.a(text); self.q.append(tag)
    def wait_for(self, tag):
        cand = [i for i, t in enumerate(self.q) if t == tag]
        if not cand: return
        idx = max(cand); n = len(self.q) - 1 - idx
        assert n <= 15, n
        self.a(f"s_waitcnt lgkmcnt({n})")
        self.q = self.q[idx+1:]
    def wait_all(self): self.q = []

def stamp(a, idx, on):
    if not on: return
    a("s_memtime s[48:49]")
    a("s_waitcnt lgkmcnt(0)")
    a(f"v_writelane_b32 v249, s48, {idx}")

def gelu_ops(accP, dst=HP):
    ops = []; k = 0
    for n in range(2):
        for r in range(0, 8, 2):
            g0, g1 = accP + 16*n + r, accP + 16*n + r + 1
            u0, u1 = g0 + 8, g1 + 8
            tb = GT + 4*(k % 2)
            t0, t1, q0, q1 = tb, tb+1, tb+2, tb+3
            ops += [
                f"v_mul_f32 v{t0}, v{g0}, v{g0}", f"v_mul_f32 v{t1}, v{g1}, v{g1}",
                f"v_fma_f32 v{t0}, v{t0}, v{VC1[n]}, v{VC0[n]}", f"v_fma_f32 v{t1}, v{t1}, v{VC1[n]}, v{VC0[n]}",
                f"v_mul_f32 v{t0}, v{t0}, v{g0}", f"v_mul_f32 v{t1}, v{t1}, v{g1}",
                f"v_exp_f32 v{t0}, v{t0}", f"v_exp_f32 v{t1}, v{t1}",
                f"v_mul_f32 v{q0}, v{g0}, v{u0}", f"v_mul_f32 v{q1}, v{g1}, v{u1}",
                f"v_add_f32 v{t0}, 1.0, v{t0}", f"v_add_f32 v{t1}, 1.0, v{t1}",
                f"v_rcp_f32 v{t0}, v{t0}", f"v_rcp_f32 v{t1}, v{t1}",
                f"v_mul_f32 v{q0}, v{q0}, v{t0}", f"v_mul_f32 v{q1}, v{q1}, v{t1}",
                f"v_cvt_pk_bf16_f32 v{dst + 4*n + r//2}, v{q0}, v{q1}",
            ]
            k += 1
    return ops

def dma1(a, which, k):
    srd = sSRDA if which == 0 else sSRDB
    vo = (vDG if which == 0 else vDU) + k
    off = f" offset:{1024*k}" if k else ""
    a(f"buffer_load_dwordx4 v{vo}, s[{srd}:{srd+3}], s{sSOFF} offen{off} lds")

def dma1_group(a, slot, q0=0, q1=6):
    for q in range(q0, q1):
        which, k = divmod(q, 3)
        if k == 0 or q == q0:
            a(f"s_add_u32 m0, s{sM0+which}, {slot*SLOT}")
            a("s_nop 0")
        dma1(a, which, k)

def p1_read(lk, kk, buf, tag):
    st, ks = divmod(kk % 36, 6)
    off = st*SLOT + ks*2048
    base = [vRA1, vRA1b, vRA1c][off // 65536]
    off %= 65536
    r = AF + 4*buf
    lk.issue(tag, f"ds_read_b64_tr_b16 v[{r}:{r+1}], v{base} offset:{off}")
    lk.issue(tag, f"ds_read_b64_tr_b16 v[{r+2}:{r+3}], v{base} offset:{off+512}")

P1_BAR = 9
def gen_round(a, lk, cur, prev, rname, last_check=False, opts=None):
    opts = opts or {}
    nodma = opts.get("no_dma")
    accC, accP = ACC[cur], ACC[prev]
    gops = gelu_ops(accP) if not opts.get("no_gelu") else []
    G_START, G_END = 2, 33
    nslots = (G_END - G_START) * 2
    gi = 0
    def take_gelu(slot_idx):
        nonlocal gi
        tgt = (len(gops) * (slot_idx + 1) + nslots - 1) // nslots
        out = gops[gi:tgt]; gi = max(gi, tgt)
        return out
    for kk in range(36):
        pr, ks = divmod(kk, 12)
        buf = kk % 4
        a.c(f"--- round {rname} kstep {kk}")
        lk.wait_for(("A", kk))
        cz = "0" if kk == 0 else V(accC, 16)
        a(f"v_mfma_f32_32x32x16_bf16 {V(accC,16)}, {V(AF+4*buf,4)}, {xn_frag(kk)}, {cz}")
        fill0, fill1 = [], []
        if G_START <= kk < G_END:
            fill0 += take_gelu((kk - G_START)*2)
            fill1 += take_gelu((kk - G_START)*2 + 1)
        if ks >= P1_BAR: q12 = ks - P1_BAR; gp = pr
        else: q12 = ks + (12 - P1_BAR); gp = (pr - 1) % 3
        half, q = divmod(q12, 6); which, k = divmod(q, 3)
        slot = 2*gp + half
        for x in fill0: a(x)
        if ks == P1_BAR:
            a("s_waitcnt vmcnt(12) lgkmcnt(0)") if not nodma else a("s_waitcnt lgkmcnt(0)")
            lk.wait_all()
            if not opts.get("no_barrier"): a("s_barrier")
        else:
            p1_read(lk, kk+3, (kk+3) % 4, ("A", (kk+3) % 36))
        cz = "0" if kk == 0 else V(accC+16, 16)
        a(f"v_mfma_f32_32x32x16_bf16 {V(accC+16,16)}, {V(AF+4*buf,4)}, {xn_frag(36+kk)}, {cz}")
        if ks == P1_BAR:
            p1_read(lk, kk+3, (kk+3) % 4, ("A", (kk+3) % 36))
            if last_check and pr == 0:
                a(f"s_cmp_lg_u32 s{sCNT}, 0\ns_cbranch_scc1 L_nosw")
                gen_switch(a)
                a.label("L_nosw")
        if not nodma and q == 0:
            inc = sINCW if slot == 0 else sINC
            a(f"s_add_u32 s{sSOFF}, s{sSOFF}, s{inc}")
            if last_check and slot == 3:
                a(f"s_cmp_eq_u32 s{sCNT}, 0")
                a(f"s_cselect_b32 s{sSRDA+2}, 0, s{sSRDA+2}\ns_cselect_b32 s{sSRDB+2}, 0, s{sSRDB+2}")
        if kk == G_END and gops:
            assert gi == len(gops) and k == 0, (gi, len(gops), k)
            a(f"s_set_gpr_idx_on s{sHIDX}, gpr_idx(DST)")
            a("s_nop 0")
            for qq in range(8): a(f"v_mov_b32 v{HREG+qq}, v{HP+qq}")
            a("s_set_gpr_idx_off")
            a(f"s_add_u32 s{sHIDX}, s{sHIDX}, 8")
        if rname == "A" and kk == 23:
            a(f"s_cmp_lg_u32 s{sCNT}, 3\ns_cbranch_scc1 L_noflag\ns_cmp_lg_u32 s{sW}, 0\ns_cbranch_scc1 L_noflag")
            a(f"s_lshl_b32 s{sT0}, s{sJ}, 2\nv_mov_b32 v2, s{sT0}\nv_mov_b32 v3, 1")
            a(f"v_cmp_eq_u32 vcc, 0, v{vLANE}\ns_and_saveexec_b64 s[{sEX}:{sEX+1}], vcc")
            a(f"buffer_atomic_add v3, v2, s[{sDBG}:{sDBG+3}], 0 offen sc1")
            a(f"s_mov_b64 exec, s[{sEX}:{sEX+1}]")
            a.label("L_noflag")
        if kk == 14 and not nodma and not opts.get("no_pf"):
            a(f"buffer_load_dword v{vDUM}, v{vPF}, s[{sPFA}:{sPFA+3}], s{sPFO} offen")
            a(f"buffer_load_dword v{vDUM+1}, v{vPF}, s[{sPFB}:{sPFB+3}], s{sPFO} offen")
            a(f"s_add_u32 s{sPFO}, s{sPFO}, 128")
            a(f"s_cmp_lg_u32 s{sCNT}, {1 if rname == 'B' else 99}")
            lab = f"L_pfsw{rname}"
            a(f"s_cbranch_scc1 {lab}")
            gen_pf_switch(a)
            a.label(lab)
        if not nodma:
            if k == 0:
                a(f"s_add_u32 m0, s{sM0 + which}, {slot*SLOT}")
                if fill1: a(fill1.pop(0))
                else: a("s_nop 0")
            dma1(a, which, k)
        for x in fill1: a(x)

def gen_switch(a):
    a(f"s_mov_b32 s{sSRDA}, s{sWD}\ns_mov_b32 s{sSRDA+1}, s{sWD+1}\ns_mov_b32 s{sSRDB}, s{sWD}\ns_mov_b32 s{sSRDB+1}, s{sWD+1}")
    a(f"s_mul_i32 s{sT0}, s{sW}, {48*1152}")
    a(f"s_sub_u32 s{sT1}, {96*1152}, s{sT0}")
    for k in range(3):
        a(f"v_subrev_u32 v{vDG+k}, s{sT0}, v{vD2+k}")
        a(f"v_add_u32 v{vDU+k}, s{sT1}, v{vD2+k}")
    a(f"s_mul_i32 s{sSOFF}, s{sJ}, {576*1152}")
    a(f"s_mov_b32 s{sINCW}, 0")
    a(f"s_mov_b32 s{sINC}, {192*1152}")

def gen_pf_switch(a):
    a(f"s_mov_b32 s{sPFA}, s{sWD}\ns_mov_b32 s{sPFA+1}, s{sWD+1}")
    a(f"s_add_u32 s{sPFB}, s{sWD}, 256\ns_addc_u32 s{sPFB+1}, s{sWD+1}, 0")
    a(f"s_sub_u32 s{sPFB+2}, s{sPFA+2}, 256")
    a(f"v_mov_b32 v{vPF}, v{vPF2}")
    a(f"s_mul_i32 s{sPFO}, s{sJ}, {576*1152}")

S2 = 36864
def dma2(a, k):
    off = f" offset:{1024*(k%4)}" if k % 4 else ""
    a(f"buffer_load_dwordx4 v{vD2 + k%4}, s[{sSRDA}:{sSRDA+3}], s{sT3} offen{off} lds")

def dma2_pre(a, k, m0expr):
    if k % 4 == 0:
        a(m0expr(k//4))
        a(f"s_add_u32 s{sT3}, s{sSOFF}, {32*1152*(k//4)}")

def dma2_group(a, slot):
    for k in range(9):
        dma2_pre(a, k, lambda g: f"s_add_u32 m0, s{sM0}, {slot*S2 + 4096*g}")
        dma2(a, k)

def p2_read(lk, F, buf, tag):
    st, ks = divmod(F % 36, 18)
    off = st*S2 + ks*2048
    base = vRA2
    if off + 1024 > 65535:
        base = vRA2b; off -= 32768
    r = AF + 4*buf
    lk.issue(tag, f"ds_read_b64_tr_b16 v[{r}:{r+1}], v{base} offset:{off}")
    lk.issue(tag, f"ds_read_b64_tr_b16 v[{r+2}:{r+3}], v{base} offset:{off+1024}")

P2_NB = 9
P2_BAR = 14
def p2_read_schedule():
    sched = {T: [] for T in range(36)}
    D2 = 6
    for F in range(36, 72):
        st, x = divmod(F, 18)
        t = F - D2
        tb = 18*(st-1) + P2_BAR
        lo = tb + [0, 0, 1, 1, 2, 3][x] if x < 6 else 0
        t = max(t, lo)
        sched[t % 36].append((F - 36) if t >= 36 else F)
    return sched

def gen_p2_chunk(a, lk, fp32_part, opts):
    nodma = opts.get("no_dma")
    sched = p2_read_schedule()
    acc = ACC[0]
    for T in range(36):
        st, ks = divmod(T, 18)
        a.c(f"--- p2 kstep {T}")
        lk.wait_for(("B", T))
        if ks == P2_BAR:
            a("s_waitcnt vmcnt(18) lgkmcnt(0)") if not nodma else a("s_waitcnt lgkmcnt(0)")
            lk.wait_all()
            if not opts.get("no_barrier"): a("s_barrier")
        cz = "0" if T == 0 else V(acc, 16)
        a(f"v_mfma_f32_32x32x16_bf16 {V(acc,16)}, {V(AF+4*(T % P2_NB),4)}, {A(4*T,4)}, {cz}")
        if T == 31:
            a(f"v_xor_b32 v{vRA2}, {2*S2}, v{vRA2}")
            a(f"v_xor_b32 v{vRA2b}, {2*S2}, v{vRA2b}")
        for F in sched[T]:
            p2_read(lk, F, (F % 36) % P2_NB, ("B", F % 36))
        if not nodma:
            k = None
            if ks in (15, 16, 17): k = ks - 15; gst = st
            elif ks in (1, 3, 5, 7, 9, 11): k = 3 + (ks - 1)//2; gst = (st - 1) % 2
            if k is not None:
                if k == 0:
                    if gst == 0:
                        a(f"s_add_u32 s{sSOFF}, s{sSOFF}, s{sINCW}")
                        a(f"s_cmp_le_u32 s{sCNT}, 2")
                        a(f"s_cselect_b32 s{sSRDA+2}, 0, s{sSRDA+2}")
                    else:
                        a(f"s_add_u32 s{sSOFF}, s{sSOFF}, s{sINC}")
                    a(f"s_add_u32 s{sT2}, s{sB2}, s{sM0}")
                    if gst: a(f"s_add_u32 s{sT2}, s{sT2}, {S2}")
                if k % 4 == 0:
                    a(f"s_add_u32 m0, s{sT2}, {4096*(k//4)}")
                    a(f"s_add_u32 s{sT3}, s{sSOFF}, {32*1152*(k//4)}")
                dma2(a, k)
        if (T == 20) and not nodma and not opts.get("no_pf"):
            a(f"buffer_load_dword v{vDUM}, v{vPF}, s[{sPFB}:{sPFB+3}], s{sPFO} offen")
            a(f"s_add_u32 s{sPFO}, s{sPFO}, 128")
    a.c("--- p2 chunk epilogue")
    a(f"s_xor_b32 s{sB2}, s{sB2}, {2*S2}")
    a("s_nop 7")
    a("s_nop 1")
    if fp32_part:
        for q in range(4):
            off = f" offset:{1024*q}" if q else ""
            a(f"buffer_store_dwordx4 {V(acc+4*q,4)}, v{vPST}, s[{sSRDW}:{sSRDW+3}], s{sPOFF} offen{off} sc1")
        a(f"s_add_u32 s{sPOFF}, s{sPOFF}, {4*4096}")
    else:
        for q in range(8):
            a(f"v_cvt_pk_bf16_f32 v{GT+q}, v{acc+2*q}, v{acc+2*q+1}")
        for q in range(2):
            off = f" offset:{1024*q}" if q else ""
            a(f"buffer_store_dwordx4 {V(GT+4*q,4)}, v{vPST}, s[{sSRDW}:{sSRDW+3}], s{sPOFF} offen{off} sc1")
        a(f"s_add_u32 s{sPOFF}, s{sPOFF}, {4*2048}")

ONES_BF = 0x3f803f80
sPAR = 28
sPP = 29
def gen_q_loads(a, QREG, p):
    if p == 0:
        a(f"v_and_b32 v2, 7, v{vLANE}\nv_mul_u32_u24 v2, 1152, v2\nv_lshrrev_b32 v3, 3, v{vLANE}\nv_lshl_add_u32 v248, v3, 4, v2")
    a(f"s_xor_b32 s{sPP}, s{sPAR}, {p}")
    a(f"s_lshl_b32 s{sT0}, s{sI}, 6\ns_lshl_b32 s{sT1}, s{sW}, 4\ns_add_u32 s{sT0}, s{sT0}, s{sT1}\ns_lshl_b32 s{sT1}, s{sPP}, 3\ns_add_u32 s{sT0}, s{sT0}, s{sT1}\ns_mul_i32 s{sT0}, s{sT0}, 1152")
    for m in range(9):
        off = f" offset:{128*m}" if m else ""
        a(f"buffer_load_dwordx4 v[{QREG+36*p+4*m}:{QREG+36*p+4*m+3}], v248, s[{sQ}:{sQ+3}], s{sT0} offen{off}")

LT = 32
def gen_ln_setup(a):
    T = LT
    vB = T+10
    a(f"v_lshrrev_b32 v{T+8}, 3, v{vLANE}\nv_lshrrev_b32 v{T+9}, 1, v{T+8}\nv_lshlrev_b32 v{vB}, 10, v{T+9}")
    a(f"v_and_b32 v{T+9}, 1, v{T+8}\nv_lshl_add_u32 v{vB}, v{T+9}, 9, v{vB}")
    a(f"v_and_b32 v{T+9}, 7, v{vLANE}\nv_lshl_add_u32 v{vB}, v{T+9}, 4, v{vB}")
    a(f"s_lshr_b32 s{sT0}, s{sW}, 1\ns_mul_i32 s{sT0}, s{sT0}, 36864")
    a(f"s_and_b32 s{sT1}, s{sW}, 1\ns_lshl_b32 s{sT1}, s{sT1}, 8")
    a(f"s_add_u32 s{sT0}, s{sT0}, s{sT1}\ns_add_u32 s{sT0}, s{sT0}, {HB}")
    a(f"v_add_u32 v{vB}, s{sT0}, v{vB}")
    vSt = T+11
    a(f"s_lshl_b32 s{sT0}, s{sW}, 6\ns_add_u32 s{sT0}, s{sT0}, {LDS_STAT}")
    a(f"v_lshlrev_b32 v{vSt}, 2, v{T+9}\nv_add_u32 v{vSt}, s{sT0}, v{vSt}")
    vG = T+12
    a(f"s_lshl_b32 s{sT0}, s{sI}, 6\ns_lshl_b32 s{sT1}, s{sW}, 4\ns_add_u32 s{sT0}, s{sT0}, s{sT1}")
    a(f"v_add_u32 v{vG}, s{sT0}, v{T+9}\nv_lshlrev_b32 v{vG}, 3, v{vG}\nv_add_u32 v{vG}, {WS_STATS}, v{vG}")

def gen_ln_pass(a, QREG, p):
    T = LT
    vS, vQ2, vB, vSt, vG = T, T+4, T+10, T+11, T+12
    X = QREG + 36*p
    a(f"s_mov_b32 s{sT2}, {hex(ONES_BF)}\ns_mov_b32 s{sT3}, 0x00003f80\ns_mov_b32 s{sEX}, 0x3f800000")
    a(f"s_xor_b32 s{sPP}, s{sPAR}, {p}")
    a(f"s_lshl_b32 s{sT0}, s{sPP}, 7\nv_add_u32 v{T+13}, s{sT0}, v{vB}\ns_lshl_b32 s{sT0}, s{sPP}, 5\nv_add_u32 v{T+14}, s{sT0}, v{vSt}")
    for k in range(4): a(f"v_mov_b32 v{vS+k}, 0\nv_mov_b32 v{vQ2+k}, 0")
    for d in range(36):
        a(f"v_dot2c_f32_bf16 v{vS+d%4}, s{sT2}, v{X+d}")
        a(f"v_dot2c_f32_bf16 v{vQ2+d%4}, v{X+d}, v{X+d}")
    a("s_nop 2")
    a(f"v_add_f32 v{vS}, v{vS}, v{vS+1}\nv_add_f32 v{vS+2}, v{vS+2}, v{vS+3}")
    a(f"v_add_f32 v{vQ2}, v{vQ2}, v{vQ2+1}\nv_add_f32 v{vQ2+2}, v{vQ2+2}, v{vQ2+3}")
    a(f"v_add_f32 v{vS}, v{vS}, v{vS+2}\nv_add_f32 v{vQ2}, v{vQ2}, v{vQ2+2}")
    a("s_nop 1")
    a(f"v_add_f32_dpp v{vS}, v{vS}, v{vS} row_ror:8 row_mask:0xf bank_mask:0xf")
    a(f"v_add_f32_dpp v{vQ2}, v{vQ2}, v{vQ2} row_ror:8 row_mask:0xf bank_mask:0xf")
    for sw in ("v_permlane16_swap_b32", "v_permlane32_swap_b32"):
        a(f"v_mov_b32 v{vS+1}, v{vS}\nv_mov_b32 v{vQ2+1}, v{vQ2}")
        a("s_nop 1")
        a(f"{sw} v{vS}, v{vS+1}\n{sw} v{vQ2}, v{vQ2+1}")
        a("s_nop 1")
        a(f"v_add_f32 v{vS}, v{vS}, v{vS+1}\nv_add_f32 v{vQ2}, v{vQ2}, v{vQ2+1}")
    inv = hex(f2u(1.0/576.0))
    a(f"v_mul_f32 v{vS}, {inv}, v{vS}\nv_mul_f32 v{vQ2}, {inv}, v{vQ2}")
    a(f"v_fma_f32 v{vQ2}, -v{vS}, v{vS}, v{vQ2}\nv_max_f32 v{vQ2}, 0, v{vQ2}")
    a(f"v_cvt_pk_bf16_f32 v{vS+1}, v{vS}, v{vQ2}")
    a(f"v_and_b32 v{vQ2}, 0xffff0000, v{vS+1}\nv_lshlrev_b32 v{vS}, 16, v{vS+1}")
    a(f"v_add_f32 v{vQ2}, {hex(f2u(1e-5))}, v{vQ2}")
    a(f"v_cvt_pk_bf16_f32 v{vQ2}, v{vQ2}, v{vQ2}\nv_lshlrev_b32 v{vQ2}, 16, v{vQ2}")
    a(f"v_sqrt_f32 v{vQ2}, v{vQ2}\ns_nop 0")
    a(f"v_cvt_pk_bf16_f32 v{vQ2}, v{vQ2}, v{vQ2}\nv_lshlrev_b32 v{vS+1}, 16, v{vQ2}")
    a(f"v_rcp_f32 v{vQ2}, v{vS+1}\nv_sub_f32 v{vS+2}, 0, v{vS}")
    a(f"ds_write_b32 v{T+14}, v{vQ2}")
    a(f"s_lshl_b32 s{sT0}, s{sPP}, 6\ns_cmp_eq_u32 s{sJ}, 0\ns_cselect_b32 s{sT0}, s{sT0}, 0x7ff00000")
    a(f"buffer_store_dwordx2 v[{vS}:{vS+1}], v{vG}, s[{sSRDW}:{sSRDW+3}], s{sT0} offen sc1")
    D = T+16
    for m in range(9):
        tb = D + 12*(m % 2)
        for e in range(4):
            a(f"v_dot2_f32_bf16 v{tb+2*e}, v{X+4*m+e}, s{sT3}, v{vS+2}")
            a(f"v_dot2_f32_bf16 v{tb+2*e+1}, v{X+4*m+e}, s{sEX}, v{vS+2}")
        if m > 0:
            pb = D + 12*((m-1) % 2)
            for e in range(4): a(f"v_cvt_pk_bf16_f32 v{pb+8+e}, v{pb+2*e}, v{pb+2*e+1}")
            a(f"ds_write_b128 v{T+13}, v[{pb+8}:{pb+11}] offset:{(m-1)*4096}")
    pb = D
    a("s_nop 2")
    for e in range(4): a(f"v_cvt_pk_bf16_f32 v{pb+8+e}, v{pb+2*e}, v{pb+2*e+1}")
    a(f"ds_write_b128 v{T+13}, v[{pb+8}:{pb+11}] offset:{8*4096}")

KCO = 160
def interleave(a, main_lines, side_groups, start=8):
    n = len(main_lines); g = len(side_groups)
    pos = [start + (n - start - 4) * k // max(g, 1) for k in range(g)]
    lab = None
    k = 0
    for idx, l in enumerate(main_lines):
        if idx > 0 and main_lines[idx-1].startswith("s_cmp"):
            pos = [p + 1 if p == idx else p for p in pos]
        while k < g and pos[k] <= idx and not (idx > 0 and main_lines[idx-1].startswith("s_cmp")):
            for x in side_groups[k]: a.lines.append(x)
            k += 1
        a.lines.append(l)
    while k < g:
        for x in side_groups[k]: a.lines.append(x)
        k += 1

def groups_of(lines):
    out, cur = [], []
    for l in lines:
        cur.append(l)
        if l.startswith("buffer_") or l.startswith("global_"):
            out.append(cur); cur = []
    if cur: out.append(cur)
    return out

def gen_kv_loads(a, KREG, vP9, vRUN):
    a(f"s_mul_i32 s52, s{sW}, 36\nv_min_u32 v120, 35, v{vLANE}\nv_add_u32 v120, s52, v120")
    a(f"s_mov_b32 s53, {(2**32 + 8)//9}\nv_mul_hi_u32 v{vRUN}, v120, s53")
    a(f"v_mul_u32_u24 v{vP9}, 9, v{vRUN}\nv_sub_u32 v{vP9}, v120, v{vP9}")
    a(f"s_lshl_b32 s52, s{sI}, 6\nv_lshlrev_b32 v121, 2, v{vRUN}\nv_add_u32 v121, s52, v121\nv_mul_u32_u24 v121, 1152, v121")
    a(f"s_mul_i32 s52, s{sJ}, 144\nv_lshl_add_u32 v122, v{vP9}, 4, v121\nv_add_u32 v122, s52, v122")
    for r in range(7):
        if r < 3:
            a(f"v_add_u32 v121, {(r-3)*1152 & 0xffffffff}, v122")
            a(f"buffer_load_dwordx4 v[{KREG+4*r}:{KREG+4*r+3}], v121, s[{sK}:{sK+3}], 0 offen")
        else:
            off = f" offset:{1152*(r-3)}" if r > 3 else ""
            a(f"buffer_load_dwordx4 v[{KREG+4*r}:{KREG+4*r+3}], v122, s[{sK}:{sK+3}], 0 offen{off}")
    for r in range(4):
        off = f" offset:{1152*r}" if r else ""
        a(f"buffer_load_dwordx4 v[{KREG+28+4*r}:{KREG+28+4*r+3}], v122, s[{sV}:{sV+3}], 0 offen{off}")
    a(f"s_mul_i32 s52, s{sJ}, 576\nv_lshlrev_b32 v121, 6, v{vP9}")
    for r in range(4):
        off = f" offset:{16*r}" if r else ""
        a(f"buffer_load_dwordx4 v[{KCO+4*r}:{KCO+4*r+3}], v121, s[{sSK}:{sSK+3}], s52 offen{off}")

def gen_kv_compute(a, KREG, vP9, vRUN):
    KU, SU, AC, VU = 32, 88, 120, 152
    a(f"s_mov_b32 s52, 0xffff0000")
    for r in range(7):
        for e in range(4):
            a(f"v_lshlrev_b32 v{KU+8*r+2*e}, 16, v{KREG+4*r+e}\nv_and_b32 v{KU+8*r+2*e+1}, s52, v{KREG+4*r+e}")
    for c in range(8):
        for jj in range(2):
            src = KREG + 44 + 2*c + jj
            a(f"v_lshlrev_b32 v{SU+8*(2*jj)+c}, 16, v{src}\nv_and_b32 v{SU+8*(2*jj+1)+c}, s52, v{src}")
    a(f"v_lshlrev_b32 v62, 2, v{vRUN}\nv_sub_u32 v62, 63, v62\nv_mul_u32_u24 v62, 160, v62")
    a(f"v_lshl_add_u32 v62, v{vP9}, 4, v62\nv_add_u32 v62, {LDS_KV - 3*160}, v62")
    for tok in range(4):
        for jj in (3, 2, 1, 0):
            for pr in range(4):
                d = f"v[{AC+8*tok+2*pr}:{AC+8*tok+2*pr+1}]"
                kk = f"v[{KU+8*(tok+3-jj)+2*pr}:{KU+8*(tok+3-jj)+2*pr+1}]"
                ss = f"v[{SU+8*jj+2*pr}:{SU+8*jj+2*pr+1}]"
                a(f"v_pk_mul_f32 {d}, {kk}, {ss}" if jj == 3 else f"v_pk_fma_f32 {d}, {kk}, {ss}, {d}")
        for e in range(4):
            a(f"v_lshlrev_b32 v{VU+2*e}, 16, v{KREG+28+4*tok+e}\nv_and_b32 v{VU+2*e+1}, s52, v{KREG+28+4*tok+e}")
        for pr in range(4):
            d = f"v[{AC+8*tok+2*pr}:{AC+8*tok+2*pr+1}]"
            a(f"v_pk_mul_f32 {d}, {d}, v[{VU+2*pr}:{VU+2*pr+1}]")
        for e in range(4):
            a(f"v_cvt_pk_bf16_f32 v{VU+8+e}, v{AC+8*tok+2*e}, v{AC+8*tok+2*e+1}")
        a(f"ds_write_b128 v62, v[{VU+8}:{VU+11}] offset:{(3-tok)*160}")

def gen_kv_store(a):
    a(f"v_and_b32 v2, 15, v{vLANE}\nv_lshrrev_b32 v3, 4, v{vLANE}\nv_lshrrev_b32 v4, 2, v2")
    a(f"v_lshl_add_u32 v4, v3, 3, v4\nv_mul_u32_u24 v4, 160, v4\nv_and_b32 v5, 3, v2\nv_lshl_add_u32 v4, v5, 3, v4\nv_add_u32 v4, {LDS_KV}, v4")
    a(f"s_mul_i32 s{sT0}, s{sJ}, 72\nv_add_u32 v5, s{sT0}, v2\nv_lshlrev_b32 v5, 12, v5\nv_lshl_add_u32 v5, v3, 4, v5")
    a(f"s_lshl_b32 s{sT0}, s{sI}, 7\ns_sub_u32 s{sT0}, {WS_KVR + 1984*2}, s{sT0}\nv_add_u32 v5, s{sT0}, v5")
    a("v_mov_b32 v7, 0x7ff00000")
    for u in range(3):
        a(f"s_add_u32 s{sT0}, s{sW}, {4*u}")
        a(f"s_lshr_b32 s{sT1}, s{sT0}, 1\ns_and_b32 s{sT2}, s{sT0}, 1")
        a(f"s_mul_i32 s{sT3}, s{sT2}, {32*160}\ns_lshl_b32 s{sEX}, s{sT1}, 5\ns_add_u32 s{sT3}, s{sT3}, s{sEX}")
        a(f"v_add_u32 v6, s{sT3}, v4")
        r = 32 + 4*u
        a(f"ds_read_b64_tr_b16 v[{r}:{r+1}], v6\nds_read_b64_tr_b16 v[{r+2}:{r+3}], v6 offset:{4*160}")
        a(f"s_lshl_b32 s{sT3}, s{sT1}, 16\ns_lshl_b32 s{sT2}, s{sT2}, 6\ns_add_u32 s{sT3}, s{sT3}, s{sT2}")
        a(f"v_add_u32 v{44+u}, s{sT3}, v5")
        a(f"s_cmp_eq_u32 s{sT1}, 4\ns_cselect_b32 s{sT2}, 8, 16\ns_cmp_gt_u32 s{sT1}, 4\ns_cselect_b32 s{sT2}, 0, s{sT2}")
        a(f"v_cmp_gt_u32 vcc, s{sT2}, v2\ns_nop 1\nv_cndmask_b32 v{44+u}, v7, v{44+u}, vcc")
    a("s_waitcnt lgkmcnt(0)")
    for u in range(3):
        a(f"buffer_store_dwordx4 v[{32+4*u}:{35+4*u}], v{44+u}, s[{sSRDW}:{sSRDW+3}], 0 offen sc1")

def gen_pf_setup(a, nshare):
    nw = nshare*4
    NL = -(-576 // nw)
    a(f"s_mul_i32 s{sT0}, s{sOM}, {NL}\nv_min_u32 v2, {NL-1}, v{vLANE}\nv_add_u32 v2, s{sT0}, v2\nv_min_u32 v2, 575, v2")
    a(f"v_mul_u32_u24 v{vPF}, 9216, v2\nv_mul_u32_u24 v{vPF2}, 1152, v2")

CV_CP = 4160
CV_WAVE = 4*CV_CP
sC, sCB, sCT, sCU, sXR = 70, 71, 76, 77, 78
HL = 96
def poll(a, name, voff_reg, srd, soff, target, scnt, cmp="ge"):
    a(f"s_mov_b32 s{scnt}, 0")
    a.label(f"L_poll_{name}")
    a(f"buffer_load_dword v3, v{voff_reg}, s[{srd}:{srd+3}], {soff} offen sc1")
    a("s_waitcnt vmcnt(0)")
    a(f"v_cmp_{'le' if cmp == 'ge' else 'eq'}_u32 vcc, {target}, v3")
    a(f"s_add_u32 s{scnt}, s{scnt}, 1")
    a(f"s_cmp_eq_u64 vcc, exec\ns_cbranch_scc1 L_pollok_{name}")
    a(f"s_cmp_lt_u32 s{scnt}, 60000\ns_cbranch_scc0 L_pollok_{name}")
    a(f"s_sleep 1\ns_branch L_poll_{name}")
    a.label(f"L_pollok_{name}")

def gen_conv_issue(a, stamps):
    a(f"s_lshl_b32 s{sC}, s{sW}, 8\ns_add_u32 s{sC}, s{sC}, s2")
    a(f"v_and_b32 v2, 7, v{vLANE}\nv_lshlrev_b32 v2, 2, v2")
    poll(a, "kv", 2, sDBG, 0, 32, sCU)
    a(f"s_cmp_ge_u32 s{sC}, 576\ns_cbranch_scc1 L_conv_skip1")
    a(f"s_mul_i32 s{sCB}, s{sW}, {CV_WAVE}\ns_add_u32 s{sCB}, s{sCB}, {HB}")
    a(f"s_mul_i32 s{sXR}, s{sW}, 4608\ns_add_u32 s{sXR}, s{sXR}, {LDS_XR}")
    a(f"s_lshl_b32 s{sCT}, s{sC}, 12")
    a(f"s_add_u32 s88, s{sHK}, s{sCT}\ns_addc_u32 s89, s{sHK+1}, 0\ns_mov_b32 s90, 4096\ns_mov_b32 s91, 0x00020000")
    for o in range(5):
        a(f"v_add_u32 v5, {(1024*o - 16) & 0xffffffff}, v{vPST}")
        a(f"buffer_load_dwordx4 v[{HL+6*o}:{HL+6*o+3}], v5, s[88:91], 0 offen")
        a(f"v_add_u32 v6, {1024*o}, v{vPST}")
        a(f"buffer_load_dwordx2 v[{HL+6*o+4}:{HL+6*o+5}], v6, s[88:91], 0 offen")
    a(f"s_lshl_b32 s{sCT}, s{sC}, 1\nv_mov_b32 v4, s{sCT}")
    a(f"buffer_load_ushort v126, v4, s[{sD}:{sD+3}], 0 offen")
    a(f"s_lshl_b32 s{sCT}, s{sC}, 12\ns_add_u32 s{sCT}, s{sCT}, {WS_KVR}")
    a(f"s_mov_b32 m0, s{sXR}\ns_nop 0")
    for k in range(4):
        off = f" offset:{1024*k}" if k else ""
        a(f"buffer_load_dwordx4 v{vPST}, s[{sSRDW}:{sSRDW+3}], s{sCT} offen{off} sc1 lds")
    a.label("L_conv_skip1")

def gen_conv_main(a, stamps):
    a(f"s_cmp_ge_u32 s{sC}, 576\ns_cbranch_scc1 L_conv_done")
    for r in range(4): a(f"v_mov_b32 v{32+r}, 0")
    a(f"v_add_u32 v5, s{sXR}, v{vPST}")
    a(f"v_cmp_gt_u32 vcc, 32, v{vLANE}\ns_and_saveexec_b64 s[{sEX}:{sEX+1}], vcc")
    a(f"ds_write_b128 v5, v[32:35] offset:4096")
    a(f"s_mov_b64 exec, s[{sEX}:{sEX+1}]")
    a(f"v_mul_u32_u24 v6, {CV_CP}, v{vLANE}\nv_add_u32 v6, s{sCB}, v6")
    a(f"v_cmp_gt_u32 vcc, 4, v{vLANE}\ns_and_saveexec_b64 s[{sEX}:{sEX+1}], vcc")
    a(f"ds_write_b128 v6, v[32:35]")
    a(f"s_mov_b64 exec, s[{sEX}:{sEX+1}]")
    a(f"v_add_u32 v7, s{sCB}, v{vPST}")
    stamp(a, 17, stamps)
    a("s_waitcnt vmcnt(0)")
    stamp(a, 18, stamps)
    for o in range(5):
        P = HL + 6*o
        t = 40 + 16*(o % 2)
        if o == 4:
            a(f"v_cmp_eq_u32 vcc, 0, v{vLANE}\ns_and_saveexec_b64 s[{sEX}:{sEX+1}], vcc")
        for n in range(4):
            a(f"v_mov_b32 v{t+n}, v{P+n}")
            a(f"v_alignbit_b32 v{t+4+n}, v{P+n+1}, v{P+n}, 16")
            a(f"v_mov_b32 v{t+8+n}, v{P+n+1}")
            a(f"v_alignbit_b32 v{t+12+n}, v{P+n+2}, v{P+n+1}, 16")
        for s_ in range(4):
            a(f"ds_write_b128 v7, v[{t+4*s_}:{t+4*s_+3}] offset:{s_*CV_CP + 16 + 1024*o}")
        if o == 4: a(f"s_mov_b64 exec, s[{sEX}:{sEX+1}]")
    a(f"v_and_b32 v14, 15, v{vLANE}\nv_lshrrev_b32 v15, 4, v{vLANE}")
    a(f"v_lshlrev_b32 v16, 5, v14\nv_lshlrev_b32 v17, 4, v15\nv_sub_u32 v16, v17, v16")
    a(f"s_add_u32 s{sCT}, s{sXR}, {2*(2032 - 32*56)}\nv_add_u32 v16, s{sCT}, v16")
    a(f"v_add_u32 v2, 1, v14\nv_and_b32 v3, 3, v2\nv_mul_u32_u24 v3, {CV_CP}, v3\nv_lshrrev_b32 v2, 2, v2")
    a(f"v_lshl_add_u32 v3, v2, 3, v3\nv_lshl_add_u32 v3, v15, 4, v3\nv_add_u32 v3, s{sCB}, v3")
    a("s_waitcnt lgkmcnt(0)")
    stamp(a, 19, stamps)
    lk = Lgkm(a)
    NB = 6; FB = 64; ACCB = 32
    def rdF(m):
        r = FB + 4*(m % NB)
        lk.issue(("F", m), f"ds_read_b64 v[{r}:{r+1}], v3 offset:{64*m}")
        lk.issue(("F", m), f"ds_read_b64 v[{r+2}:{r+3}], v3 offset:{64*m+8}")
    def rdG(i):
        lk.issue(("G", i), f"ds_read_b128 {A(4*(i+7),4)}, v16 offset:{(56-i)*64}")
    rdF(0)
    for T in range(8): rdG(8*T)
    rdF(1)
    for m in range(64):
        T0 = max(0, -(-(m-7)//8))
        lk.wait_for(("F", m))
        pend = []
        if m + 1 < 8: pend += [("G", 8*T - (m+1)) for T in range(8)]
        if m + 2 < 64: pend += [("F", m+2)]
        for T in range(T0, 8):
            if m < 8: lk.wait_for(("G", 8*T - m))
            c_ = "0" if m == 0 else f"v[{ACCB+4*T}:{ACCB+4*T+3}]"
            a(f"v_mfma_f32_16x16x32_bf16 v[{ACCB+4*T}:{ACCB+4*T+3}], v[{FB+4*(m%NB)}:{FB+4*(m%NB)+3}], {A(4*(8*T-m+7),4)}, {c_}")
            if pend:
                k, x = pend.pop(0)
                (rdG if k == "G" else rdF)(x)
        for k, x in pend: (rdG if k == "G" else rdF)(x)
    stamp(a, 21, stamps)
    a(f"v_lshlrev_b32 v5, 5, v14\nv_lshlrev_b32 v17, 3, v15\nv_add_u32 v17, v5, v17")
    a(f"s_add_u32 s{sCT}, s{sXR}, {2*2044 - 7*512}\nv_sub_u32 v2, s{sCT}, v17")
    for T in range(8): a(f"ds_read_b64 v[{96+2*T}:{97+2*T}], v2 offset:{(7-T)*512}")
    a(f"v_lshlrev_b32 v126, 16, v126")
    a(f"s_lshl_b32 s{sCT}, s{sC}, 12\ns_add_u32 s{sCT}, s{sCT}, {WS_ZT}\ns_mov_b32 s{sCU}, 0xffff0000")
    a("s_waitcnt lgkmcnt(0)")
    for T in range(8):
        kv = 96+2*T; ac = ACCB+4*T; t = 112 + 6*(T % 2)
        a(f"v_and_b32 v{t}, s{sCU}, v{kv+1}\nv_lshlrev_b32 v{t+1}, 16, v{kv+1}\nv_and_b32 v{t+2}, s{sCU}, v{kv}\nv_lshlrev_b32 v{t+3}, 16, v{kv}")
        for r in range(4): a(f"v_fmac_f32 v{ac+r}, v{t+r}, v126")
        a(f"v_cvt_pk_bf16_f32 v{t+4}, v{ac}, v{ac+1}\nv_cvt_pk_bf16_f32 v{t+5}, v{ac+2}, v{ac+3}")
        off = f" offset:{512*T}" if T else ""
        a(f"buffer_store_dwordx2 v[{t+4}:{t+5}], v17, s[{sSRDW}:{sSRDW+3}], s{sCT} offen{off} sc1")
    a("s_waitcnt vmcnt(0)")
    a(f"s_lshl_b32 s{sCT}, s{sC}, 2\ns_add_u32 s{sCT}, s{sCT}, {WS_ZFLAG}\nv_mov_b32 v2, 0\nv_mov_b32 v3, 1")
    a(f"v_cmp_eq_u32 vcc, 0, v{vLANE}\ns_and_saveexec_b64 s[{sEX}:{sEX+1}], vcc")
    a(f"buffer_store_dword v3, v2, s[{sSRDW}:{sSRDW+3}], s{sCT} offen sc1")
    a(f"s_mov_b64 exec, s[{sEX}:{sEX+1}]")
    a.label("L_conv_done")

def gen_final(a, fp32_part, stamps):
    isz = 4096 if fp32_part else 2048
    nq = 4 if fp32_part else 2
    a(f"s_lshr_b32 s{sT0}, s{sW}, 1\ns_and_b32 s{sT1}, s{sW}, 1")
    a(f"v_and_b32 v3, 31, v{vLANE}\nv_lshrrev_b32 v4, 5, v{vLANE}")
    a(f"s_lshl_b32 s{sT2}, s{sI}, 6\ns_lshl_b32 s{sT0}, s{sT0}, 5\ns_add_u32 s{sT2}, s{sT2}, s{sT0}\nv_add_u32 v5, s{sT2}, v3")
    a(f"s_lshl_b32 s{sT2}, s{sC}, 6\ns_lshl_b32 s{sT1}, s{sT1}, 5\ns_add_u32 s{sT2}, s{sT2}, s{sT1}")
    a(f"v_lshlrev_b32 v6, 2, v4\nv_add_u32 v6, s{sT2}, v6")
    a(f"v_mul_u32_u24 v7, 1152, v5\nv_lshl_add_u32 v7, v6, 1, v7")
    a(f"v_lshlrev_b32 v8, 12, v6\nv_lshl_add_u32 v8, v5, 1, v8\nv_add_u32 v8, {WS_ZT}, v8")
    a(f"v_lshlrev_b32 v9, 3, v5\nv_add_u32 v9, {WS_STATS}, v9")
    a(f"s_mul_i32 s{sT2}, s{sI}, 9\ns_add_u32 s{sT2}, s{sT2}, s{sC}\ns_lshl_b32 s{sT2}, s{sT2}, 2\ns_add_u32 s{sT2}, s{sT2}, s{sW}\ns_mul_i32 s{sT2}, s{sT2}, {isz}\ns_add_u32 s{sT2}, s{sT2}, {WS_PART}")
    P = 32
    for j in range(8):
        for q in range(nq):
            r = P + (j*nq + q)*4
            off = f" offset:{1024*q}" if q else ""
            a(f"buffer_load_dwordx4 v[{r}:{r+3}], v{vPST}, s[{sSRDW}:{sSRDW+3}], s{sT2} offen{off} sc1")
        if j < 7: a(f"s_add_u32 s{sT2}, s{sT2}, {32*9*4*isz}")
    X = P + 8*nq*4; Z = X + 8; ST = Z + 16
    for aa in range(4):
        off = f" offset:{16*aa}" if aa else ""
        a(f"buffer_load_dwordx2 v[{X+2*aa}:{X+2*aa+1}], v7, s[{sX}:{sX+3}], 0 offen{off}")
    a(f"buffer_load_dwordx2 v[{ST}:{ST+1}], v9, s[{sSRDW}:{sSRDW+3}], 0 offen sc1")
    for aa in range(4):
        for e in range(4):
            a(f"s_mov_b32 s{sT3}, {(8*aa+e)*4096}")
            a(f"buffer_load_ushort v{Z+4*aa+e}, v8, s[{sSRDW}:{sSRDW+3}], s{sT3} offen sc1")
    S = ST + 2; T = S + 16
    a(f"s_mov_b32 s{sT3}, 0xffff0000")
    if fp32_part:
        a(f"s_waitcnt vmcnt({4+1+16})")
        for r in range(16): a(f"v_add_f32 v{S+r}, v{P+r}, v{P+16+r}")
        for j in range(2, 8):
            for r in range(16): a(f"v_add_f32 v{S+r}, v{S+r}, v{P+16*j+r}")
    else:
        for j in range(8):
            a(f"s_waitcnt vmcnt({4+1+16 + 2*(7-j)})")
            for D in range(8):
                src = P + 8*j + D
                if j == 0:
                    a(f"v_lshlrev_b32 v{S+2*D}, 16, v{src}\nv_and_b32 v{S+2*D+1}, s{sT3}, v{src}")
                else:
                    tt = T + 2*(D % 2)
                    a(f"v_lshlrev_b32 v{tt}, 16, v{src}\nv_and_b32 v{tt+1}, s{sT3}, v{src}")
                    a(f"v_pk_add_f32 v[{S+2*D}:{S+2*D+1}], v[{S+2*D}:{S+2*D+1}], v[{tt}:{tt+1}]")
    a("s_waitcnt vmcnt(0)")
    a(f"v_rcp_f32 v{T+4}, v{ST+1}\ns_nop 0\nv_mul_f32 v{T+5}, v{T+4}, v{T+4}")
    M = sT3
    def unp(dst, src):
        a(f"v_lshlrev_b32 v{dst}, 16, v{src}\nv_and_b32 v{dst+1}, s{M}, v{src}\nv_lshlrev_b32 v{dst+2}, 16, v{src+1}\nv_and_b32 v{dst+3}, s{M}, v{src+1}")
    def pk(dst, src):
        a(f"v_cvt_pk_bf16_f32 v{dst}, v{src}, v{src+1}\nv_cvt_pk_bf16_f32 v{dst+1}, v{src+2}, v{src+3}")
    for aa in range(4):
        U = T + 6
        unp(U, X+2*aa)
        for e in range(4): a(f"v_sub_f32 v{U+4+e}, v{U+e}, v{ST}")
        pk(U+8, U+4); unp(U+4, U+8)
        for e in range(4): a(f"v_mul_f32 v{U+4+e}, v{U+4+e}, v{T+4}")
        pk(U+8, U+4); unp(U+4, U+8)
        for e in range(4):
            a(f"v_lshlrev_b32 v{U+10}, 16, v{Z+4*aa+e}\nv_mul_f32 v{U+4+e}, v{U+4+e}, v{U+10}")
        pk(U+8, U+4); unp(U+4, U+8)
        for e in range(4): a(f"v_add_f32 v{U+4+e}, v{U+4+e}, v{U+e}")
        pk(U+8, U+4); unp(U+4, U+8)
        for e in range(4): a(f"v_mul_f32 v{U+e}, v{S+4*aa+e}, v{T+5}")
        pk(U+8, U); unp(U, U+8)
        for e in range(4): a(f"v_add_f32 v{U+4+e}, v{U+4+e}, v{U+e}")
        pk(U+12+2*(aa % 2), U+4)
        off = f" offset:{16*aa}" if aa else ""
        a(f"buffer_store_dwordx2 v[{U+12+2*(aa%2)}:{U+13+2*(aa%2)}], v7, s[{sOUT}:{sOUT+3}], 0 offen{off}")

def gen_kernel(name, fp32_part=False, opts=None, stamps=False, mapping="32x1"):
    opts = opts or {}
    nodma = opts.get("no_dma")
    a = Asm()
    a(f".globl {name}\n.p2align 8\n.type {name},@function\n{name}:")
    a("s_cmp_ge_u32 s2, 256\ns_cbranch_scc1 L_done")
    a("s_load_dwordx4 s[80:83], s[0:1], 0")
    a("s_load_dwordx4 s[88:91], s[0:1], 16")
    a("s_load_dwordx4 s[68:71], s[0:1], 32")
    a("s_load_dwordx4 s[4:7], s[0:1], 56")
    a("s_load_dwordx4 s[16:19], s[0:1], 72")
    a("s_load_dwordx4 s[44:47], s[0:1], 88")
    if stamps:
        a("s_memrealtime s[58:59]\ns_memtime s[50:51]")
    a(f"v_lshrrev_b32 v2, 6, v0\nv_and_b32 v{vLANE}, 63, v0")
    a(f"v_readfirstlane_b32 s{sW}, v2")
    if mapping == "32x1":
        a(f"s_and_b32 s{sJ}, s2, 7\ns_lshr_b32 s{sI}, s2, 3"); nshare = 32
        a(f"s_lshl_b32 s{sOM}, s{sI}, 2")
    elif mapping == "16x2":
        a(f"s_and_b32 s{sT0}, s2, 3\ns_lshl_b32 s{sT0}, s{sT0}, 1\ns_bfe_u32 s{sT1}, s2, 0x10003\ns_add_u32 s{sJ}, s{sT0}, s{sT1}")
        a(f"s_bfe_u32 s{sT0}, s2, 0x10002\ns_lshl_b32 s{sT0}, s{sT0}, 4\ns_lshr_b32 s{sT1}, s2, 4\ns_add_u32 s{sI}, s{sT0}, s{sT1}"); nshare = 16
        a(f"s_lshl_b32 s{sOM}, s{sT1}, 2")
    elif mapping == "8x4":
        a(f"s_and_b32 s{sT0}, s2, 1\ns_lshl_b32 s{sT0}, s{sT0}, 2\ns_bfe_u32 s{sT1}, s2, 0x20003\ns_add_u32 s{sJ}, s{sT0}, s{sT1}")
        a(f"s_bfe_u32 s{sT0}, s2, 0x20001\ns_lshl_b32 s{sT0}, s{sT0}, 3\ns_lshr_b32 s{sT1}, s2, 5\ns_add_u32 s{sI}, s{sT0}, s{sT1}"); nshare = 8
        a(f"s_lshl_b32 s{sOM}, s{sT1}, 2")
    a(f"v_lshlrev_b32 v{vPST}, 4, v{vLANE}")
    a(f"s_add_u32 s{sOM}, s{sOM}, s{sW}") if False else None
    a("s_waitcnt lgkmcnt(0)")
    a(f"s_add_u32 s{sOM}, s{sOM}, s{sW}")
    a("s_mov_b32 s84, s82\ns_mov_b32 s85, s83")
    a("s_mov_b32 s92, s90\ns_mov_b32 s93, s91")
    a("s_mov_b32 s96, s70\ns_mov_b32 s97, s71")
    a("s_mov_b32 s8, s6\ns_mov_b32 s9, s7")
    a("s_mov_b32 s64, s18\ns_mov_b32 s65, s19")
    a("s_mov_b32 s12, s46\ns_mov_b32 s13, s47")
    a("s_mov_b32 s72, s80\ns_mov_b32 s73, s81")
    for srd, n in ((sSRDA, 576*4608*2), (sSRDB, 576*4608*2), (sSRDW, WS_SIZE), (sDBG, 256), (sQ, 2048*576*2), (sK, 2048*576*2), (sV, 2048*576*2), (sSK, 576*4*2), (sD, 576*2), (sOUT, 2048*576*2), (sX, 2048*576*2)):
        a(f"s_mov_b32 s{srd+2}, {n}\ns_mov_b32 s{srd+3}, 0x00020000")
    if stamps:
        a("v_mov_b32 v249, 0\nv_writelane_b32 v249, s50, 0")
    stamp(a, 1, stamps)
    a(f"s_lshl_b32 s{sT0}, s{sI}, 7\ns_lshl_b32 s{sT1}, s{sJ}, 2\ns_add_u32 s{sT1}, s{sT1}, s{sT0}\ns_add_u32 s{sT1}, s{sT1}, {WS_FLAG}")
    a(f"s_lshl_b32 s{sT2}, s2, 2\ns_add_u32 s{sT2}, s{sT2}, {WS_ZFLAG}")
    a(f"v_mov_b32 v2, s{sT2}\nv_lshlrev_b32 v3, 10, v{vLANE}\nv_add_u32 v2, v2, v3\nv_subrev_u32 v2, 1024, v2")
    a(f"v_mov_b32 v3, s{sT1}\nv_cmp_eq_u32 vcc, 0, v{vLANE}\ns_nop 1\nv_cndmask_b32 v2, v2, v3, vcc")
    a(f"s_cmp_lt_u32 s2, 64\ns_cselect_b32 s{sT0}, 4, 3\ns_cmp_eq_u32 s{sW}, 0\ns_cselect_b32 s{sT0}, s{sT0}, 0")
    a(f"v_cmp_gt_u32 vcc, s{sT0}, v{vLANE}\nv_mov_b32 v3, 0x7ff00000\nv_mov_b32 v4, 0\nv_cndmask_b32 v2, v3, v2, vcc")
    a(f"buffer_store_dword v4, v2, s[{sSRDW}:{sSRDW+3}], 0 offen sc1")
    gen_pf_setup(a, nshare)
    a(f"s_mul_i32 s{sPFO}, s{sJ}, 1152")
    a(f"buffer_load_dword v{vDUM}, v{vPF}, s[{sSRDA}:{sSRDA+3}], s{sPFO} offen")
    a(f"buffer_load_dword v{vDUM+1}, v{vPF}, s[{sSRDB}:{sSRDB+3}], s{sPFO} offen")
    a(f"s_add_u32 s{sPFO}, s{sPFO}, 128")
    QREG, KREG, vP9, vRUN = 176, 72, 250, 251
    a(f"s_and_b32 s{sPAR}, s{sJ}, {0 if mapping == '32x1' else 1}")
    gen_q_loads(a, QREG, 0)
    a(f"v_lshrrev_b32 v2, 3, v{vLANE}\nv_and_b32 v3, 7, v{vLANE}\nv_lshrrev_b32 v4, 1, v3\nv_and_b32 v5, 1, v3\nv_lshlrev_b32 v5, 4, v5")
    a(f"v_bfe_u32 v6, v{vLANE}, 4, 1\nv_lshlrev_b32 v7, 1, v6")
    a(f"s_mul_i32 s{sT0}, s{sW}, 24\nv_add_u32 v29, s{sT0}, v2\ns_movk_i32 s{sT1}, 9216\nv_mul_lo_u32 v21, v29, s{sT1}")
    for p, vd in ((0, vDG), (1, vDU)):
        a(f"v_or_b32 v22, {p}, v7\nv_xor_b32 v22, v4, v22\nv_lshlrev_b32 v22, 5, v22\nv_add3_u32 v22, v21, v22, v5")
        for k in range(3): a(f"v_add_u32 v{vd+k}, {8*k*9216 - 1024*k}, v22")
    a(f"s_mul_i32 s{sM0}, s{sW}, 3072\ns_add_u32 s{sM0+1}, s{sM0}, 12288")
    a(f"s_mul_i32 s{sT0}, s{sW}, 72\nv_add_u32 v29, s{sT0}, v2\ns_movk_i32 s{sT1}, 1152\nv_mul_lo_u32 v21, v29, s{sT1}")
    a(f"v_lshrrev_b32 v22, 2, v3\nv_xor_b32 v22, v22, v6\nv_lshlrev_b32 v22, 6, v22\nv_and_b32 v23, 3, v3\nv_lshlrev_b32 v23, 4, v23\nv_add3_u32 v22, v21, v22, v23")
    for k in range(4): a(f"v_add_u32 v{vD2+k}, {8*k*1152 - 1024*k}, v22")
    a(f"v_and_b32 v2, 15, v{vLANE}\nv_bfe_u32 v3, v{vLANE}, 4, 1\nv_lshrrev_b32 v4, 5, v{vLANE}\nv_lshrrev_b32 v5, 2, v2\nv_bfe_u32 v6, v2, 3, 1")
    a(f"v_lshl_add_u32 v7, v4, 3, v5\nv_lshlrev_b32 v7, 7, v7\nv_lshl_add_u32 v21, v6, 1, v3\nv_xor_b32 v21, s{sW}, v21\nv_lshlrev_b32 v21, 5, v21")
    a(f"v_and_b32 v22, 3, v2\nv_lshlrev_b32 v22, 3, v22\nv_add3_u32 v{vRA1}, v7, v21, v22\nv_mul_u32_u24 v21, 12288, v3\nv_add_u32 v{vRA1}, v{vRA1}, v21")
    a(f"v_add_u32 v{vRA1b}, 65536, v{vRA1}\nv_add_u32 v{vRA1c}, 131072, v{vRA1}")
    a(f"v_lshl_add_u32 v7, v4, 2, v5\nv_lshlrev_b32 v7, 7, v7\ns_and_b32 s{sT0}, s{sW}, 1\nv_xor_b32 v21, s{sT0}, v6\nv_lshlrev_b32 v21, 6, v21")
    a(f"v_lshlrev_b32 v2, 5, v3\nv_add3_u32 v{vRA2}, v7, v21, v2\nv_add_u32 v{vRA2}, v{vRA2}, v22\nv_add_u32 v{vRA2b}, 32768, v{vRA2}")
    a(f"s_mov_b32 s{sHIDX}, 0\ns_mov_b32 s{sB2}, 0")
    isz = 4096 if fp32_part else 2048
    a(f"s_lshl_b32 s{sT0}, s{sJ}, 5\ns_add_u32 s{sT0}, s{sT0}, s{sI}\ns_mul_i32 s{sT0}, s{sT0}, {9*4*isz}\ns_mul_i32 s{sT1}, s{sW}, {isz}\ns_add_u32 s{sT0}, s{sT0}, s{sT1}\ns_add_u32 s{sPOFF}, s{sT0}, {WS_PART}")
    stamp(a, 2, stamps)
    gen_ln_setup(a)
    a("s_waitcnt vmcnt(0)")
    stamp(a, 3, stamps)
    gen_q_loads(a, QREG, 1)
    stamp(a, 5, stamps)
    a(f"s_mul_i32 s{sSOFF}, s{sJ}, {576*2}\ns_mov_b32 s{sINC}, {96*9216}")
    a(f"s_mov_b32 s{sINCW}, {(-5*96*9216 + (0 if opts.get('same_cols') else 128)) & 0xffffffff}")
    side = Asm()
    for st in range(3):
        if st: side(f"s_add_u32 s{sSOFF}, s{sSOFF}, s{sINC}")
        dma1_group(side, st)
    main = Asm(); gen_ln_pass(main, QREG, 0)
    interleave(a, main.lines, groups_of(side.lines), start=30)
    stamp(a, 6, stamps)
    a(f"s_waitcnt vmcnt({1+18})")
    side = Asm()
    gen_kv_loads(side, KREG, vP9, vRUN)
    side(f"buffer_load_dword v{vDUM}, v{vPF}, s[{sSRDA}:{sSRDA+3}], s{sPFO} offen")
    side(f"buffer_load_dword v{vDUM+1}, v{vPF}, s[{sSRDB}:{sSRDB+3}], s{sPFO} offen")
    side(f"s_add_u32 s{sPFO}, s{sPFO}, 128")
    main = Asm(); gen_ln_pass(main, QREG, 1)
    interleave(a, main.lines, groups_of(side.lines), start=30)
    a("s_waitcnt lgkmcnt(0)")
    stamp(a, 4, stamps)
    a("s_barrier")
    stamp(a, 7, stamps)
    a(f"v_add_u32 v{vHR}, {HB}, v{vPST}\nv_add_u32 v2, {65536}, v{vHR}")
    for f in range(72):
        if f < 64: a(f"ds_read_b128 {xn_frag(f)}, v{vHR} offset:{f*1024}")
        else: a(f"ds_read_b128 {xn_frag(f)}, v2 offset:{(f-64)*1024}")
    a(f"v_and_b32 v2, 31, v{vLANE}\nv_lshlrev_b32 v2, 2, v2\nv_add_u32 v2, {LDS_STAT}, v2")
    a(f"ds_read_b32 v3, v2\nds_read_b32 v4, v2 offset:128")
    a("s_waitcnt lgkmcnt(0)")
    for n, src in ((0, 3), (1, 4)):
        a(f"v_mul_f32 v5, v{src}, v{src}\nv_mul_f32 v{VC0[n]}, {hex(f2u(C0))}, v{src}\nv_mul_f32 v5, v5, v{src}\nv_mul_f32 v{VC1[n]}, {hex(f2u(C1))}, v5")
    stamp(a, 8, stamps)
    a("s_barrier")
    a(f"s_add_u32 s{sSOFF}, s{sSOFF}, s{sINC}")
    dma1_group(a, 3)
    a(f"s_add_u32 s{sSOFF}, s{sSOFF}, s{sINC}")
    dma1_group(a, 4, 0, 3)
    a(f"s_mov_b32 s{sPFA}, s{sSRDA}\ns_mov_b32 s{sPFA+1}, s{sSRDA+1}\ns_mov_b32 s{sPFA+2}, s{sSRDA+2}\ns_mov_b32 s{sPFA+3}, 0x00020000")
    a(f"s_mov_b32 s{sPFB}, s{sSRDB}\ns_mov_b32 s{sPFB+1}, s{sSRDB+1}\ns_mov_b32 s{sPFB+2}, s{sSRDB+2}\ns_mov_b32 s{sPFB+3}, 0x00020000")
    stamp(a, 9, stamps)
    a(f"s_waitcnt vmcnt({2+9})")
    gen_kv_compute2(a, KREG, vP9, vRUN)
    a("s_waitcnt lgkmcnt(0)")
    a("s_barrier")
    gen_kv_store(a)
    stamp(a, 10, stamps)
    a(f"s_waitcnt vmcnt({9+3})")
    stamp(a, 11, stamps)
    a("s_barrier")
    lk = Lgkm(a)
    for kk in range(3): p1_read(lk, kk, kk % 4, ("A", kk))
    a(f"s_mov_b32 s{sCNT}, 4")
    stamp(a, 12, stamps)
    a("s_branch L_roundB")
    pre = list(lk.q)
    a.label("L_roundA")
    b0 = len(a.lines)
    gen_round(a, lk, 1, 0, "A", opts=opts)
    a.label("L_roundB")
    gen_round(a, lk, 0, 1, "B", last_check=True, opts=opts)
    assert lk.q == pre, (lk.q, pre)
    a(f"s_sub_u32 s{sCNT}, s{sCNT}, 1\ns_cmp_ge_i32 s{sCNT}, 0\ns_cbranch_scc1 L_roundA")
    body = a.lines[b0:]
    check_hazards(body + body, "phase1")
    a("s_waitcnt lgkmcnt(0)")
    stamp(a, 13, stamps)
    gen_conv_issue(a, stamps)
    a("s_nop 7")
    for x in gelu_ops(ACC[0]): a(x)
    stamp(a, 16, stamps)
    a("s_waitcnt vmcnt(0)")
    a("s_barrier")
    c0 = len(a.lines)
    gen_conv_main(a, stamps)
    check_hazards(a.lines[c0:], "conv")
    stamp(a, 20, stamps)
    a("s_barrier")
    a(f"s_lshl_b32 s{sT0}, s{sW}, 10\nv_add_u32 v2, s{sT0}, v{vHR}\nv_add_u32 v3, {36*1024}, v2")
    for rho in range(9):
        src = HREG + 8*(rho+1) if rho < 8 else HP
        a(f"ds_write_b128 v2, {V(src,4)} offset:{rho*4096}\nds_write_b128 v3, {V(src+4,4)} offset:{rho*4096}")
    a("s_waitcnt lgkmcnt(0)\ns_barrier")
    a(f"s_lshr_b32 s{sT0}, s{sW}, 1\ns_mul_i32 s{sT0}, s{sT0}, {36*1024}\nv_add_u32 v2, s{sT0}, v{vHR}")
    for f in range(36): a(f"ds_read_b128 {A(4*f,4)}, v2 offset:{f*1024}")
    a("s_waitcnt lgkmcnt(0)\ns_barrier")
    a(f"s_mov_b32 s{sSRDA+2}, {576*4608*2}")
    a(f"s_mul_i32 s{sM0}, s{sW}, 9216")
    a(f"s_mul_i32 s{sSOFF}, s{sJ}, {576*1152}\ns_add_u32 s{sSOFF}, s{sSOFF}, {0 if opts.get('same_cols') else 128}")
    a(f"s_mov_b32 s{sINC}, {288*1152}")
    if not nodma:
        dma2_group(a, 2)
        a(f"s_add_u32 s{sSOFF}, s{sSOFF}, s{sINC}")
        a(f"s_add_u32 s{sT2}, s{sM0}, {3*S2}")
        a(f"s_mov_b32 m0, s{sT2}\ns_mov_b32 s{sT3}, s{sSOFF}")
        for k in range(3): dma2(a, k)
    a(f"s_mov_b32 s{sINCW}, {(-288*1152 + (0 if opts.get('same_cols') else 128)) & 0xffffffff}")
    lk = Lgkm(a)
    sched = p2_read_schedule()
    pend = []
    for T in range(36):
        for F in sched[T]:
            if F >= 36: pend.append(F - 36)
    for F in pend: p2_read(lk, F, F % P2_NB, ("B", F))
    pre2 = list(lk.q)
    a(f"s_mov_b32 s{sCNT}, 9")
    stamp(a, 14, stamps)
    a.label("L_p2")
    bs = len(a.lines)
    gen_p2_chunk(a, lk, fp32_part, opts)
    assert lk.q == pre2, (lk.q, pre2)
    a(f"s_sub_u32 s{sCNT}, s{sCNT}, 1\ns_cmp_gt_i32 s{sCNT}, 0\ns_cbranch_scc1 L_p2")
    body = a.lines[bs:]
    check_hazards(body + body, "phase2")
    stamp(a, 15, stamps)
    a("s_waitcnt vmcnt(0) lgkmcnt(0)")
    a("s_barrier")
    a(f"s_cmp_lg_u32 s{sW}, 0\ns_cbranch_scc1 L_nopub")
    a(f"s_lshl_b32 s{sT0}, s{sI}, 7\ns_lshl_b32 s{sT1}, s{sJ}, 2\ns_add_u32 s{sT1}, s{sT1}, s{sT0}\ns_add_u32 s{sT1}, s{sT1}, {WS_FLAG}")
    a(f"v_mov_b32 v2, 0\nv_mov_b32 v3, 1")
    a(f"v_cmp_eq_u32 vcc, 0, v{vLANE}\ns_and_saveexec_b64 s[{sEX}:{sEX+1}], vcc")
    a(f"buffer_store_dword v3, v2, s[{sSRDW}:{sSRDW+3}], s{sT1} offen sc1")
    a(f"s_mov_b64 exec, s[{sEX}:{sEX+1}]")
    a(f"s_add_u32 s{sT0}, s{sT0}, {WS_FLAG}\nv_and_b32 v2, 7, v{vLANE}\nv_lshlrev_b32 v2, 2, v2")
    poll(a, "tile", 2, sSRDW, f"s{sT0}", 1, sCU, cmp="eq")
    a(f"s_lshl_b32 s{sT0}, s{sJ}, 8\ns_add_u32 s{sT0}, s{sT0}, {WS_ZFLAG}\nv_lshlrev_b32 v2, 2, v{vLANE}")
    poll(a, "z", 2, sSRDW, f"s{sT0}", 1, sCU, cmp="eq")
    a(f"s_mov_b32 s{sT0}, {WS_ZFLAG + 8*256}")
    poll(a, "z8", 2, sSRDW, f"s{sT0}", 1, sCU, cmp="eq")
    a.label("L_nopub")
    a("s_barrier")
    stamp(a, 22, stamps)
    a(f"s_mov_b32 s{sC}, s{sJ}")
    a.label("L_final")
    f0 = len(a.lines)
    gen_final(a, fp32_part, stamps)
    check_hazards(a.lines[f0:], "final")
    a(f"s_cmp_eq_u32 s{sC}, 8\ns_cbranch_scc1 L_final_done")
    a(f"s_and_b32 s{sT0}, s{sI}, 7\ns_cmp_lg_u32 s{sT0}, s{sJ}\ns_cbranch_scc1 L_final_done")
    a(f"s_mov_b32 s{sC}, 8\ns_nop 1\ns_branch L_final")
    a.label("L_final_done")
    if stamps:
        a("s_waitcnt vmcnt(0)")
        stamp(a, 23, stamps)
        a("s_memrealtime s[60:61]\ns_waitcnt lgkmcnt(0)\ns_sub_u32 s60, s60, s58\nv_writelane_b32 v249, s60, 24")
        a(f"s_lshl_b32 s34, s2, 2\ns_add_u32 s34, s34, s{sW}\ns_lshl_b32 s34, s34, 7\ns_add_u32 s34, s34, {WS_STAMP}")
        a(f"v_lshlrev_b32 v6, 2, v{vLANE}\nv_cmp_gt_u32 vcc, 32, v{vLANE}\ns_and_saveexec_b64 s[40:41], vcc")
        a(f"buffer_store_dword v249, v6, s[{sSRDW}:{sSRDW+3}], s34 offen\ns_waitcnt vmcnt(0)")
    a.label("L_done")
    a("s_endpgm")
    return a

def gen_kv_compute2(a, KREG, vP9, vRUN):
    SU, KU, AC, VU = 176, 208, 240, 32
    a(f"s_mov_b32 s{sT0}, 0xffff0000")
    def unrow(r):
        for e in range(4):
            a(f"v_lshlrev_b32 v{KU+8*(r%4)+2*e}, 16, v{KREG+4*r+e}\nv_and_b32 v{KU+8*(r%4)+2*e+1}, s{sT0}, v{KREG+4*r+e}")
    for c in range(8):
        for jj in range(2):
            src = KCO + 2*c + jj
            a(f"v_lshlrev_b32 v{SU+8*(2*jj)+c}, 16, v{src}\nv_and_b32 v{SU+8*(2*jj+1)+c}, s{sT0}, v{src}")
    for r in range(3): unrow(r)
    a(f"v_lshlrev_b32 v6, 2, v{vRUN}\nv_sub_u32 v6, 63, v6\nv_mul_u32_u24 v6, 160, v6")
    a(f"v_lshl_add_u32 v6, v{vP9}, 4, v6\nv_add_u32 v6, {LDS_KV - 3*160}, v6")
    for tok in range(4):
        unrow(tok + 3)
        for jj in (3, 2, 1, 0):
            for pr in range(4):
                d = f"v[{AC+2*pr}:{AC+2*pr+1}]"
                rr = (tok + 3 - jj) % 4
                kk = f"v[{KU+8*rr+2*pr}:{KU+8*rr+2*pr+1}]"
                ss = f"v[{SU+8*jj+2*pr}:{SU+8*jj+2*pr+1}]"
                a(f"v_pk_mul_f32 {d}, {kk}, {ss}" if jj == 3 else f"v_pk_fma_f32 {d}, {kk}, {ss}, {d}")
        for e in range(4):
            a(f"v_lshlrev_b32 v{VU+2*e}, 16, v{KREG+28+4*tok+e}\nv_and_b32 v{VU+2*e+1}, s{sT0}, v{KREG+28+4*tok+e}")
        for pr in range(4):
            d = f"v[{AC+2*pr}:{AC+2*pr+1}]"
            a(f"v_pk_mul_f32 {d}, {d}, v[{VU+2*pr}:{VU+2*pr+1}]")
        for e in range(4):
            a(f"v_cvt_pk_bf16_f32 v{VU+8+e}, v{AC+2*e}, v{AC+2*e+1}")
        a(f"ds_write_b128 v6, v[{VU+8}:{VU+11}] offset:{(3-tok)*160}")
        a("s_nop 0")

def kd(name, nvgpr_arch, nagpr, nsgpr=100):
    acc_off = (nvgpr_arch + 3)//4*4
    tot = acc_off + nagpr if nagpr else nvgpr_arch
    return f""".section .rodata,"a"
.p2align 6
.amdhsa_kernel {name}
  .amdhsa_next_free_vgpr {tot}
  .amdhsa_next_free_sgpr {nsgpr}
  .amdhsa_accum_offset {acc_off}
  .amdhsa_group_segment_fixed_size 0
  .amdhsa_kernarg_size 104
  .amdhsa_user_sgpr_count 2
  .amdhsa_user_sgpr_kernarg_segment_ptr 1
  .amdhsa_system_sgpr_workgroup_id_x 1
  .amdhsa_float_denorm_mode_32 3
.end_amdhsa_kernel
"""

NAME = "parallel_sum__ssm_conv_h3__glu_gated_geglu__prompt_kernel"
def build(fn, single_launch=True, **kw):
    a = gen_kernel(NAME, **kw)
    ref = open("parallel_sum__ssm_conv_h3__glu_gated_geglu__prompt.s.ref").read()
    hdr = []
    for l in ref.splitlines():
        if l.startswith("; Override launch"): break
        hdr.append(l)
    hdr = "\n".join(hdr) + "\n"
    hdr += f"; @launch grid=(256,1,1) block=(256,1,1) lds={LDS_TOTAL}\n"
    hdr += '.amdgcn_target "amdgcn-amd-amdhsa--gfx950"\n.text\n'
    open(fn, "w").write(hdr + a.text() + kd(NAME, 256, 256))

if __name__ == "__main__":
    import sys
    build("s_st.s", stamps=True)
    build("s_st16.s", stamps=True, mapping="16x2")
    build("s_st84.s", stamps=True, mapping="8x4")
    build("s_plain.s")
```

```python
from asmlib import *
import math

WS_STATS = 0x240000
WS_KVR   = 0x250000
WS_ZT    = 0x490000
WS_STAMP = 0x6D0000
WS_STAMP2 = 0x3000000
WS_FLAG  = 0x6F0000
WS_ZFLAG = 0x6F2000
WS_PART  = 0x700000
WS_SIZE  = 0x10000000

SLOT = 24576
HB   = 3*SLOT
LDS_STAT = 147456
LDS_KV   = 147456 + 256
LDS_XR   = 147456 + 256
LDS_TOTAL = 147456 + 256 + 3*4608

C0 = -2.0*math.sqrt(2.0/math.pi)*math.log2(math.e)
C1 = C0*0.044715

sSRDA, sSRDB, sSRDW = 4, 8, 12
sWD = 16
sWDS = 16
sW, sJ, sI = 20, 21, 22
sSOFF = 23
sM0 = 24
sPFO = 26
sOM = 27
sCNT = 30
sINC, sINCW = 31, 32
sT0, sT1, sT2, sT3 = 34, 35, 36, 37
sPOFF = 38
sHIDX = 39
sEX = 40
sB2 = 42
sDBG = 44
sPFA, sPFB = 80, 84
sQ, sK, sV, sSK, sD = 80, 84, 88, 92, 96
sHK = 68
sOUT = 64
sX = 72
vLANE = 1
vRA1, vRA1b, vRA1c = 8, 30, 31
vRA2, vRA2b = 9, 10
vPF = 11
VDG, VDU = [12, 13, 14], [15, 16, 17]
VC0, VC1 = [18, 21], [22, 23]
vPST = 19
vHR = 20
vD2 = 24
vPF2 = 28
sPFU = 63
ACC = [32, 64]
AF = 96
XE = 128
GT = 160
HP = 168
HREG = 176
vDUM = 252

def xn_frag(f):
    return A(4*f, 4) if f < 64 else V(XE + 4*(f-64), 4)

class Lgkm:
    def __init__(self, a):
        self.a = a; self.q = []
    def issue(self, tag, text):
        self.a(text); self.q.append(tag)
    def wait_for(self, tag):
        cand = [i for i, t in enumerate(self.q) if t == tag]
        if not cand: return
        idx = max(cand); n = len(self.q) - 1 - idx
        assert n <= 15, n
        self.a(f"s_waitcnt lgkmcnt({n})")
        self.q = self.q[idx+1:]
    def wait_all(self): self.q = []

NT = {'pf': '', 'kv': ' nt', 'q': '', 'h': ' nt'}
def stamp(a, idx, on):
    if not on: return
    a("s_memtime s[48:49]")
    a("s_waitcnt lgkmcnt(0)")
    a(f"v_writelane_b32 v249, s48, {idx}")

def gelu_ops(accP, dst=HP):
    ops = []; k = 0
    for n in range(2):
        for r in range(0, 8, 2):
            g0, g1 = accP + 16*n + r, accP + 16*n + r + 1
            u0, u1 = g0 + 8, g1 + 8
            tb = GT + 4*(k % 2)
            t0, t1, q0, q1 = tb, tb+1, tb+2, tb+3
            ops += [
                f"v_mul_f32 v{t0}, v{g0}, v{g0}", f"v_mul_f32 v{t1}, v{g1}, v{g1}",
                f"v_fma_f32 v{t0}, v{t0}, v{VC1[n]}, v{VC0[n]}", f"v_fma_f32 v{t1}, v{t1}, v{VC1[n]}, v{VC0[n]}",
                f"v_mul_f32 v{t0}, v{t0}, v{g0}", f"v_mul_f32 v{t1}, v{t1}, v{g1}",
                f"v_exp_f32 v{t0}, v{t0}", f"v_exp_f32 v{t1}, v{t1}",
                f"v_mul_f32 v{q0}, v{g0}, v{u0}", f"v_mul_f32 v{q1}, v{g1}, v{u1}",
                f"v_add_f32 v{t0}, 1.0, v{t0}", f"v_add_f32 v{t1}, 1.0, v{t1}",
                f"v_rcp_f32 v{t0}, v{t0}", f"v_rcp_f32 v{t1}, v{t1}",
                f"v_mul_f32 v{q0}, v{q0}, v{t0}", f"v_mul_f32 v{q1}, v{q1}, v{t1}",
                f"v_cvt_pk_bf16_f32 v{dst + 4*n + r//2}, v{q0}, v{q1}",
            ]
            k += 1
    return ops

def dma1(a, which, k):
    srd = sSRDA if which == 0 else sSRDB
    vo = (VDG if which == 0 else VDU)[k]
    off = f" offset:{1024*k}" if k else ""
    a(f"buffer_load_dwordx4 v{vo}, s[{srd}:{srd+3}], s{sSOFF} offen{off} lds")

def dma1_group(a, slot, q0=0, q1=6):
    for q in range(q0, q1):
        which, k = divmod(q, 3)
        if k == 0 or q == q0:
            a(f"s_add_u32 m0, s{sM0+which}, {slot*SLOT}")
            a("s_nop 0")
        dma1(a, which, k)

def p1_read(lk, kk, buf, tag):
    st, ks = divmod(kk % 36, 6)
    off = st*SLOT + ks*2048
    base = [vRA1, vRA1b, vRA1c][off // 65536]
    off %= 65536
    r = AF + 4*buf
    lk.issue(tag, f"ds_read_b64_tr_b16 v[{r}:{r+1}], v{base} offset:{off}")
    lk.issue(tag, f"ds_read_b64_tr_b16 v[{r+2}:{r+3}], v{base} offset:{off+512}")

P1_BAR = 9
def gen_round(a, lk, cur, prev, rname, last_check=False, opts=None):
    opts = opts or {}
    nodma = opts.get("no_dma")
    accC, accP = ACC[cur], ACC[prev]
    gops = gelu_ops(accP) if not opts.get("no_gelu") else []
    G_START, G_END = 2, 33
    nslots = (G_END - G_START) * 2
    gi = 0
    def take_gelu(slot_idx):
        nonlocal gi
        tgt = (len(gops) * (slot_idx + 1) + nslots - 1) // nslots
        out = gops[gi:tgt]; gi = max(gi, tgt)
        return out
    for kk in range(36):
        pr, ks = divmod(kk, 12)
        buf = kk % 4
        a.c(f"--- round {rname} kstep {kk}")
        if opts.get("rstamp") and kk == 0: a("s_memtime s[50:51]")
        lk.wait_for(("A", kk))
        cz = "0" if kk == 0 else V(accC, 16)
        a(f"v_mfma_f32_32x32x16_bf16 {V(accC,16)}, {V(AF+4*buf,4)}, {xn_frag(kk)}, {cz}")
        fill0, fill1 = [], []
        if G_START <= kk < G_END:
            fill0 += take_gelu((kk - G_START)*2)
            fill1 += take_gelu((kk - G_START)*2 + 1)
        if ks >= P1_BAR: q12 = ks - P1_BAR; gp = pr
        else: q12 = ks + (12 - P1_BAR); gp = (pr - 1) % 3
        half, q = divmod(q12, 6); which, k = divmod(q, 3)
        slot = 2*gp + half
        for x in fill0: a(x)
        if ks == P1_BAR:
            a("s_waitcnt vmcnt(12) lgkmcnt(0)") if not nodma else a("s_waitcnt lgkmcnt(0)")
            lk.wait_all()
            if opts.get("rstamp") and kk == 9:
                a("v_mov_b32 v2, s50\nv_cmp_eq_u32 vcc, s62, v1\ns_add_u32 s62, s62, 1\ns_nop 0\nv_cndmask_b32 v249, v249, v2, vcc")
            if not opts.get("no_barrier"): a("s_barrier")
        else:
            p1_read(lk, kk+3, (kk+3) % 4, ("A", (kk+3) % 36))
        cz = "0" if kk == 0 else V(accC+16, 16)
        a(f"v_mfma_f32_32x32x16_bf16 {V(accC+16,16)}, {V(AF+4*buf,4)}, {xn_frag(36+kk)}, {cz}")
        if ks == P1_BAR:
            p1_read(lk, kk+3, (kk+3) % 4, ("A", (kk+3) % 36))
            if last_check and pr == 0:
                a(f"s_cmp_lg_u32 s{sCNT}, 0\ns_cbranch_scc1 L_nosw")
                gen_switch(a)
                a.label("L_nosw")
        if not nodma and q == 0:
            inc = sINCW if slot == 0 else sINC
            a(f"s_add_u32 s{sSOFF}, s{sSOFF}, s{inc}")
            if last_check and slot == 3:
                a(f"s_cmp_eq_u32 s{sCNT}, 0")
                a(f"s_cselect_b32 s{sSRDA+2}, 0, s{sSRDA+2}\ns_cselect_b32 s{sSRDB+2}, 0, s{sSRDB+2}")
        if kk == G_END and gops:
            assert gi == len(gops) and k == 0
            a(f"s_set_gpr_idx_on s{sHIDX}, gpr_idx(DST)")
            a("s_nop 0")
            for qq in range(8): a(f"v_mov_b32 v{HREG+qq}, v{HP+qq}")
            a("s_set_gpr_idx_off")
            a(f"s_add_u32 s{sHIDX}, s{sHIDX}, 8")
        if rname == "A" and kk == 23:
            a(f"s_cmp_lg_u32 s{sCNT}, 3\ns_cbranch_scc1 L_noflag\ns_cmp_lg_u32 s{sW}, 0\ns_cbranch_scc1 L_noflag")
            a(f"s_lshl_b32 s{sT0}, s{sJ}, 2\nv_mov_b32 v2, s{sT0}\nv_mov_b32 v3, 1")
            a(f"v_cmp_eq_u32 vcc, 0, v{vLANE}\ns_and_saveexec_b64 s[{sEX}:{sEX+1}], vcc")
            a(f"buffer_atomic_add v3, v2, s[{sDBG}:{sDBG+3}], 0 offen sc1")
            a(f"s_mov_b64 exec, s[{sEX}:{sEX+1}]")
            a.label("L_noflag")
        if not nodma:
            if k == 0:
                a(f"s_add_u32 m0, s{sM0 + which}, {slot*SLOT}")
                if fill1: a(fill1.pop(0))
                else: a("s_nop 0")
            dma1(a, which, k)
        if kk == 20 and not nodma and not opts.get("no_pf"):
            a(f"s_sub_u32 s{sPFU}, s{sPFU}, 1\ns_cmp_lg_u32 s{sPFU}, -1\ns_cbranch_scc1 L_nopf{rname}")
            a(f"buffer_load_dword v{vDUM}, v{vPF}, s[{sPFA}:{sPFA+3}], s{sPFO} offen")
            a(f"buffer_load_dword v{vDUM+1}, v{vPF2}, s[{sPFB}:{sPFB+3}], s{sPFO} offen")
            a.label(f"L_nopf{rname}")
        for x in fill1: a(x)

def gen_switch(a):
    a(f"s_mov_b32 s{sSRDA}, s{sWD}\ns_mov_b32 s{sSRDA+1}, s{sWD+1}\ns_mov_b32 s{sSRDB}, s{sWD}\ns_mov_b32 s{sSRDB+1}, s{sWD+1}")
    a(f"s_mul_i32 s{sT0}, s{sW}, {48*1152}")
    a(f"s_sub_u32 s{sT1}, {96*1152}, s{sT0}")
    for k in range(3):
        a(f"v_subrev_u32 v{VDG[k]}, s{sT0}, v{vD2+k}")
        a(f"v_add_u32 v{VDU[k]}, s{sT1}, v{vD2+k}")
    a(f"s_mul_i32 s{sSOFF}, s{sJ}, {576*1152}")
    a(f"s_mov_b32 s{sINCW}, 0")
    a(f"s_mov_b32 s{sINC}, {192*1152}")

def gen_pf_switch(a):
    a(f"s_mov_b32 s{sPFA}, s{sWD}\ns_mov_b32 s{sPFA+1}, s{sWD+1}")
    a(f"s_add_u32 s{sPFB}, s{sWD}, 256\ns_addc_u32 s{sPFB+1}, s{sWD+1}, 0")
    a(f"s_sub_u32 s{sPFB+2}, s{sPFA+2}, 256")
    a(f"v_mov_b32 v{vPF}, v{vPF2}")
    a(f"s_mul_i32 s{sPFO}, s{sJ}, {576*1152}")

S2 = 36864
def dma2(a, k):
    off = f" offset:{1024*(k%4)}" if k % 4 else ""
    a(f"buffer_load_dwordx4 v{vD2 + k%4}, s[{sSRDA}:{sSRDA+3}], s{sT3} offen{off} lds")

def dma2_pre(a, k, m0expr):
    if k % 4 == 0:
        a(m0expr(k//4))
        a(f"s_add_u32 s{sT3}, s{sSOFF}, {32*1152*(k//4)}")

def dma2_group(a, slot):
    for k in range(9):
        dma2_pre(a, k, lambda g: f"s_add_u32 m0, s{sM0}, {slot*S2 + 4096*g}")
        dma2(a, k)

def p2_read(lk, F, buf, tag):
    st, ks = divmod(F % 36, 18)
    off = st*S2 + ks*2048
    base = vRA2
    if off + 1024 > 65535:
        base = vRA2b; off -= 32768
    r = AF + 4*buf
    lk.issue(tag, f"ds_read_b64_tr_b16 v[{r}:{r+1}], v{base} offset:{off}")
    lk.issue(tag, f"ds_read_b64_tr_b16 v[{r+2}:{r+3}], v{base} offset:{off+1024}")

P2_NB = 9
P2_BAR = 14
def p2_read_schedule():
    sched = {T: [] for T in range(36)}
    D2 = 6
    for F in range(36, 72):
        st, x = divmod(F, 18)
        t = F - D2
        tb = 18*(st-1) + P2_BAR
        lo = tb + [0, 0, 1, 1, 2, 3][x] if x < 6 else 0
        t = max(t, lo)
        sched[t % 36].append((F - 36) if t >= 36 else F)
    return sched

def gen_p2_chunk(a, lk, fp32_part, opts):
    nodma = opts.get("no_dma")
    sched = p2_read_schedule()
    acc = ACC[0]
    for T in range(36):
        st, ks = divmod(T, 18)
        a.c(f"--- p2 kstep {T}")
        if opts.get("rstamp") and T == 0: a("s_memtime s[50:51]")
        lk.wait_for(("B", T))
        if ks == P2_BAR:
            a("s_waitcnt vmcnt(18) lgkmcnt(0)") if not nodma else a("s_waitcnt lgkmcnt(0)")
            lk.wait_all()
            if opts.get("rstamp") and T == 14:
                a("v_mov_b32 v2, s50\nv_cmp_eq_u32 vcc, s62, v1\ns_add_u32 s62, s62, 1\ns_nop 0\nv_cndmask_b32 v249, v249, v2, vcc")
            if not opts.get("no_barrier"): a("s_barrier")
        cz = "0" if T == 0 else V(acc, 16)
        a(f"v_mfma_f32_32x32x16_bf16 {V(acc,16)}, {V(AF+4*(T % P2_NB),4)}, {A(4*T,4)}, {cz}")
        if T == 31:
            a(f"v_xor_b32 v{vRA2}, {2*S2}, v{vRA2}")
            a(f"v_xor_b32 v{vRA2b}, {2*S2}, v{vRA2b}")
        for F in sched[T]:
            p2_read(lk, F, (F % 36) % P2_NB, ("B", F % 36))
        if not nodma:
            k = None
            if ks in (15, 16, 17): k = ks - 15; gst = st
            elif ks in (1, 3, 5, 7, 9, 11): k = 3 + (ks - 1)//2; gst = (st - 1) % 2
            if k is not None:
                if k == 0:
                    if gst == 0:
                        a(f"s_add_u32 s{sSOFF}, s{sSOFF}, s{sINCW}")
                        a(f"s_cmp_le_u32 s{sCNT}, 2")
                        a(f"s_cselect_b32 s{sSRDA+2}, 0, s{sSRDA+2}")
                    else:
                        a(f"s_add_u32 s{sSOFF}, s{sSOFF}, s{sINC}")
                    a(f"s_add_u32 s{sT2}, s{sB2}, s{sM0}")
                    if gst: a(f"s_add_u32 s{sT2}, s{sT2}, {S2}")
                if k % 4 == 0:
                    a(f"s_add_u32 m0, s{sT2}, {4096*(k//4)}")
                    a(f"s_add_u32 s{sT3}, s{sSOFF}, {32*1152*(k//4)}")
                dma2(a, k)
        if False:
            a(f"buffer_load_dword v{vDUM}, v{vPF}, s[{sPFB}:{sPFB+3}], s{sPFO} offen{NT['pf']}")
            a(f"s_add_u32 s{sPFO}, s{sPFO}, 128")
    a.c("--- p2 chunk epilogue")
    a(f"s_xor_b32 s{sB2}, s{sB2}, {2*S2}")
    a("s_nop 7")
    a("s_nop 1")
    if fp32_part:
        for q in range(4):
            off = f" offset:{1024*q}" if q else ""
            a(f"buffer_store_dwordx4 {V(acc+4*q,4)}, v{vPST}, s[{sSRDW}:{sSRDW+3}], s{sPOFF} offen{off} sc1")
        a(f"s_add_u32 s{sPOFF}, s{sPOFF}, {4*4096}")
    else:
        for q in range(8):
            a(f"v_cvt_pk_bf16_f32 v{GT+q}, v{acc+2*q}, v{acc+2*q+1}")
        for q in range(2):
            off = f" offset:{1024*q}" if q else ""
            a(f"buffer_store_dwordx4 {V(GT+4*q,4)}, v{vPST}, s[{sSRDW}:{sSRDW+3}], s{sPOFF} offen{off} sc1")
        a(f"s_add_u32 s{sPOFF}, s{sPOFF}, {4*2048}")

ONES_BF = 0x3f803f80
sPFLG = 56
sPAR = 28
sPP = 29
def gen_q_loads(a, QREG, p):
    if p == 0:
        a(f"v_and_b32 v2, 7, v{vLANE}\nv_mul_u32_u24 v2, 1152, v2\nv_lshrrev_b32 v3, 3, v{vLANE}\nv_lshl_add_u32 v248, v3, 4, v2")
    a(f"s_xor_b32 s{sPP}, s{sPAR}, {p}")
    a(f"s_lshl_b32 s{sT0}, s{sI}, 6\ns_lshl_b32 s{sT1}, s{sW}, 4\ns_add_u32 s{sT0}, s{sT0}, s{sT1}\ns_lshl_b32 s{sT1}, s{sPP}, 3\ns_add_u32 s{sT0}, s{sT0}, s{sT1}\ns_mul_i32 s{sT0}, s{sT0}, 1152")
    for m in range(9):
        off = f" offset:{128*m}" if m else ""
        a(f"buffer_load_dwordx4 v[{QREG+36*p+4*m}:{QREG+36*p+4*m+3}], v248, s[{sQ}:{sQ+3}], s{sT0} offen{off}{NT['q']}")

LT = 32
def gen_ln_setup(a):
    T = LT
    vB = T+10
    a(f"v_lshrrev_b32 v{T+8}, 3, v{vLANE}\nv_lshrrev_b32 v{T+9}, 1, v{T+8}\nv_lshlrev_b32 v{vB}, 10, v{T+9}")
    a(f"v_and_b32 v{T+9}, 1, v{T+8}\nv_lshl_add_u32 v{vB}, v{T+9}, 9, v{vB}")
    a(f"v_and_b32 v{T+9}, 7, v{vLANE}\nv_lshl_add_u32 v{vB}, v{T+9}, 4, v{vB}")
    a(f"s_lshr_b32 s{sT0}, s{sW}, 1\ns_mul_i32 s{sT0}, s{sT0}, 36864")
    a(f"s_and_b32 s{sT1}, s{sW}, 1\ns_lshl_b32 s{sT1}, s{sT1}, 8")
    a(f"s_add_u32 s{sT0}, s{sT0}, s{sT1}\ns_add_u32 s{sT0}, s{sT0}, {HB}")
    a(f"v_add_u32 v{vB}, s{sT0}, v{vB}")
    vSt = T+11
    a(f"s_lshl_b32 s{sT0}, s{sW}, 6\ns_add_u32 s{sT0}, s{sT0}, {LDS_STAT}")
    a(f"v_lshlrev_b32 v{vSt}, 2, v{T+9}\nv_add_u32 v{vSt}, s{sT0}, v{vSt}")
    vG = T+12
    a(f"s_lshl_b32 s{sT0}, s{sI}, 6\ns_lshl_b32 s{sT1}, s{sW}, 4\ns_add_u32 s{sT0}, s{sT0}, s{sT1}")
    a(f"v_add_u32 v{vG}, s{sT0}, v{T+9}\nv_lshlrev_b32 v{vG}, 3, v{vG}\nv_add_u32 v{vG}, {WS_STATS}, v{vG}")

def gen_ln_pass(a, QREG, p):
    T = LT
    vS, vQ2, vB, vSt, vG = T, T+4, T+10, T+11, T+12
    X = QREG + 36*p
    a(f"s_mov_b32 s{sT2}, {hex(ONES_BF)}\ns_mov_b32 s{sT3}, 0x00003f80\ns_mov_b32 s{sEX}, 0x3f800000")
    a(f"s_xor_b32 s{sPP}, s{sPAR}, {p}")
    a(f"s_lshl_b32 s{sT0}, s{sPP}, 7\nv_add_u32 v{T+13}, s{sT0}, v{vB}\ns_lshl_b32 s{sT0}, s{sPP}, 5\nv_add_u32 v{T+14}, s{sT0}, v{vSt}")
    for k in range(4): a(f"v_mov_b32 v{vS+k}, 0\nv_mov_b32 v{vQ2+k}, 0")
    for d in range(36):
        a(f"v_dot2c_f32_bf16 v{vS+d%4}, s{sT2}, v{X+d}")
        a(f"v_dot2c_f32_bf16 v{vQ2+d%4}, v{X+d}, v{X+d}")
    a("s_nop 2")
    a(f"v_add_f32 v{vS}, v{vS}, v{vS+1}\nv_add_f32 v{vS+2}, v{vS+2}, v{vS+3}")
    a(f"v_add_f32 v{vQ2}, v{vQ2}, v{vQ2+1}\nv_add_f32 v{vQ2+2}, v{vQ2+2}, v{vQ2+3}")
    a(f"v_add_f32 v{vS}, v{vS}, v{vS+2}\nv_add_f32 v{vQ2}, v{vQ2}, v{vQ2+2}")
    a("s_nop 1")
    a(f"v_add_f32_dpp v{vS}, v{vS}, v{vS} row_ror:8 row_mask:0xf bank_mask:0xf")
    a(f"v_add_f32_dpp v{vQ2}, v{vQ2}, v{vQ2} row_ror:8 row_mask:0xf bank_mask:0xf")
    for sw in ("v_permlane16_swap_b32", "v_permlane32_swap_b32"):
        a(f"v_mov_b32 v{vS+1}, v{vS}\nv_mov_b32 v{vQ2+1}, v{vQ2}")
        a("s_nop 1")
        a(f"{sw} v{vS}, v{vS+1}\n{sw} v{vQ2}, v{vQ2+1}")
        a("s_nop 1")
        a(f"v_add_f32 v{vS}, v{vS}, v{vS+1}\nv_add_f32 v{vQ2}, v{vQ2}, v{vQ2+1}")
    inv = hex(f2u(1.0/576.0))
    a(f"v_mul_f32 v{vS}, {inv}, v{vS}\nv_mul_f32 v{vQ2}, {inv}, v{vQ2}")
    a(f"v_fma_f32 v{vQ2}, -v{vS}, v{vS}, v{vQ2}\nv_max_f32 v{vQ2}, 0, v{vQ2}")
    a(f"v_cvt_pk_bf16_f32 v{vS+1}, v{vS}, v{vQ2}")
    a(f"v_and_b32 v{vQ2}, 0xffff0000, v{vS+1}\nv_lshlrev_b32 v{vS}, 16, v{vS+1}")
    a(f"v_add_f32 v{vQ2}, {hex(f2u(1e-5))}, v{vQ2}")
    a(f"v_cvt_pk_bf16_f32 v{vQ2}, v{vQ2}, v{vQ2}\nv_lshlrev_b32 v{vQ2}, 16, v{vQ2}")
    a(f"v_sqrt_f32 v{vQ2}, v{vQ2}\ns_nop 0")
    a(f"v_cvt_pk_bf16_f32 v{vQ2}, v{vQ2}, v{vQ2}\nv_lshlrev_b32 v{vS+1}, 16, v{vQ2}")
    a(f"v_rcp_f32 v{vQ2}, v{vS+1}\nv_sub_f32 v{vS+2}, 0, v{vS}")
    a(f"ds_write_b32 v{T+14}, v{vQ2}")
    a(f"s_lshl_b32 s{sT0}, s{sPP}, 6\ns_cmp_eq_u32 s{sJ}, 0\ns_cselect_b32 s{sT0}, s{sT0}, 0x7ff00000")
    a(f"buffer_store_dwordx2 v[{vS}:{vS+1}], v{vG}, s[{sSRDW}:{sSRDW+3}], s{sT0} offen sc1")
    D = T+16
    for m in range(9):
        tb = D + 12*(m % 2)
        for e in range(4):
            a(f"v_dot2_f32_bf16 v{tb+2*e}, v{X+4*m+e}, s{sT3}, v{vS+2}")
            a(f"v_dot2_f32_bf16 v{tb+2*e+1}, v{X+4*m+e}, s{sEX}, v{vS+2}")
        if m > 0:
            pb = D + 12*((m-1) % 2)
            for e in range(4): a(f"v_cvt_pk_bf16_f32 v{pb+8+e}, v{pb+2*e}, v{pb+2*e+1}")
            a(f"ds_write_b128 v{T+13}, v[{pb+8}:{pb+11}] offset:{(m-1)*4096}")
    pb = D
    a("s_nop 2")
    for e in range(4): a(f"v_cvt_pk_bf16_f32 v{pb+8+e}, v{pb+2*e}, v{pb+2*e+1}")
    a(f"ds_write_b128 v{T+13}, v[{pb+8}:{pb+11}] offset:{8*4096}")

KCO = 160
def interleave(a, main_lines, side_groups, start=8):
    n = len(main_lines); g = len(side_groups)
    pos = [start + (n - start - 4) * k // max(g, 1) for k in range(g)]
    lab = None
    k = 0
    for idx, l in enumerate(main_lines):
        if idx > 0 and main_lines[idx-1].startswith("s_cmp"):
            pos = [p + 1 if p == idx else p for p in pos]
        while k < g and pos[k] <= idx and not (idx > 0 and main_lines[idx-1].startswith("s_cmp")):
            for x in side_groups[k]: a.lines.append(x)
            k += 1
        a.lines.append(l)
    while k < g:
        for x in side_groups[k]: a.lines.append(x)
        k += 1

def groups_of(lines):
    out, cur = [], []
    for l in lines:
        cur.append(l)
        if l.startswith("buffer_") or l.startswith("global_"):
            out.append(cur); cur = []
    if cur: out.append(cur)
    return out

def gen_kv_loads(a, KREG, vP9, vRUN):
    a(f"s_mul_i32 s52, s{sW}, 36\nv_min_u32 v120, 35, v{vLANE}\nv_add_u32 v120, s52, v120")
    a(f"s_mov_b32 s53, {(2**32 + 8)//9}\nv_mul_hi_u32 v{vRUN}, v120, s53")
    a(f"v_mul_u32_u24 v{vP9}, 9, v{vRUN}\nv_sub_u32 v{vP9}, v120, v{vP9}")
    a(f"s_lshl_b32 s52, s{sI}, 6\nv_lshlrev_b32 v121, 2, v{vRUN}\nv_add_u32 v121, s52, v121\nv_mul_u32_u24 v121, 1152, v121")
    a(f"s_mul_i32 s52, s{sJ}, 144\nv_lshl_add_u32 v122, v{vP9}, 4, v121\nv_add_u32 v122, s52, v122")
    for r in range(7):
        if r < 3:
            a(f"v_add_u32 v121, {(r-3)*1152 & 0xffffffff}, v122")
            a(f"buffer_load_dwordx4 v[{KREG+4*r}:{KREG+4*r+3}], v121, s[{sK}:{sK+3}], 0 offen{NT['kv']}")
        else:
            off = f" offset:{1152*(r-3)}" if r > 3 else ""
            a(f"buffer_load_dwordx4 v[{KREG+4*r}:{KREG+4*r+3}], v122, s[{sK}:{sK+3}], 0 offen{off}{NT['kv']}")
    for r in range(4):
        off = f" offset:{1152*r}" if r else ""
        a(f"buffer_load_dwordx4 v[{KREG+28+4*r}:{KREG+28+4*r+3}], v122, s[{sV}:{sV+3}], 0 offen{off}{NT['kv']}")
    a(f"s_mul_i32 s52, s{sJ}, 576\nv_lshlrev_b32 v121, 6, v{vP9}")
    for r in range(4):
        off = f" offset:{16*r}" if r else ""
        a(f"buffer_load_dwordx4 v[{KCO+4*r}:{KCO+4*r+3}], v121, s[{sSK}:{sSK+3}], s52 offen{off}")

def gen_kv_compute(a, KREG, vP9, vRUN):
    KU, SU, AC, VU = 32, 88, 120, 152
    a(f"s_mov_b32 s52, 0xffff0000")
    for r in range(7):
        for e in range(4):
            a(f"v_lshlrev_b32 v{KU+8*r+2*e}, 16, v{KREG+4*r+e}\nv_and_b32 v{KU+8*r+2*e+1}, s52, v{KREG+4*r+e}")
    for c in range(8):
        for jj in range(2):
            src = KREG + 44 + 2*c + jj
            a(f"v_lshlrev_b32 v{SU+8*(2*jj)+c}, 16, v{src}\nv_and_b32 v{SU+8*(2*jj+1)+c}, s52, v{src}")
    a(f"v_lshlrev_b32 v62, 2, v{vRUN}\nv_sub_u32 v62, 63, v62\nv_mul_u32_u24 v62, 160, v62")
    a(f"v_lshl_add_u32 v62, v{vP9}, 4, v62\nv_add_u32 v62, {LDS_KV - 3*160}, v62")
    for tok in range(4):
        for jj in (3, 2, 1, 0):
            for pr in range(4):
                d = f"v[{AC+8*tok+2*pr}:{AC+8*tok+2*pr+1}]"
                kk = f"v[{KU+8*(tok+3-jj)+2*pr}:{KU+8*(tok+3-jj)+2*pr+1}]"
                ss = f"v[{SU+8*jj+2*pr}:{SU+8*jj+2*pr+1}]"
                a(f"v_pk_mul_f32 {d}, {kk}, {ss}" if jj == 3 else f"v_pk_fma_f32 {d}, {kk}, {ss}, {d}")
        for e in range(4):
            a(f"v_lshlrev_b32 v{VU+2*e}, 16, v{KREG+28+4*tok+e}\nv_and_b32 v{VU+2*e+1}, s52, v{KREG+28+4*tok+e}")
        for pr in range(4):
            d = f"v[{AC+8*tok+2*pr}:{AC+8*tok+2*pr+1}]"
            a(f"v_pk_mul_f32 {d}, {d}, v[{VU+2*pr}:{VU+2*pr+1}]")
        for e in range(4):
            a(f"v_cvt_pk_bf16_f32 v{VU+8+e}, v{AC+8*tok+2*e}, v{AC+8*tok+2*e+1}")
        a(f"ds_write_b128 v62, v[{VU+8}:{VU+11}] offset:{(3-tok)*160}")

def gen_kv_store(a):
    a(f"v_and_b32 v2, 15, v{vLANE}\nv_lshrrev_b32 v3, 4, v{vLANE}\nv_lshrrev_b32 v4, 2, v2")
    a(f"v_lshl_add_u32 v4, v3, 3, v4\nv_mul_u32_u24 v4, 160, v4\nv_and_b32 v5, 3, v2\nv_lshl_add_u32 v4, v5, 3, v4\nv_add_u32 v4, {LDS_KV}, v4")
    a(f"s_mul_i32 s{sT0}, s{sJ}, 72\nv_add_u32 v5, s{sT0}, v2\nv_lshlrev_b32 v5, 12, v5\nv_lshl_add_u32 v5, v3, 4, v5")
    a(f"s_lshl_b32 s{sT0}, s{sI}, 7\ns_sub_u32 s{sT0}, {WS_KVR + 1984*2}, s{sT0}\nv_add_u32 v5, s{sT0}, v5")
    a("v_mov_b32 v7, 0x7ff00000")
    for u in range(3):
        a(f"s_add_u32 s{sT0}, s{sW}, {4*u}")
        a(f"s_lshr_b32 s{sT1}, s{sT0}, 1\ns_and_b32 s{sT2}, s{sT0}, 1")
        a(f"s_mul_i32 s{sT3}, s{sT2}, {32*160}\ns_lshl_b32 s{sEX}, s{sT1}, 5\ns_add_u32 s{sT3}, s{sT3}, s{sEX}")
        a(f"v_add_u32 v6, s{sT3}, v4")
        r = 32 + 4*u
        a(f"ds_read_b64_tr_b16 v[{r}:{r+1}], v6\nds_read_b64_tr_b16 v[{r+2}:{r+3}], v6 offset:{4*160}")
        a(f"s_lshl_b32 s{sT3}, s{sT1}, 16\ns_lshl_b32 s{sT2}, s{sT2}, 6\ns_add_u32 s{sT3}, s{sT3}, s{sT2}")
        a(f"v_add_u32 v{44+u}, s{sT3}, v5")
        a(f"s_cmp_eq_u32 s{sT1}, 4\ns_cselect_b32 s{sT2}, 8, 16\ns_cmp_gt_u32 s{sT1}, 4\ns_cselect_b32 s{sT2}, 0, s{sT2}")
        a(f"v_cmp_gt_u32 vcc, s{sT2}, v2\ns_nop 1\nv_cndmask_b32 v{44+u}, v7, v{44+u}, vcc")
    a("s_waitcnt lgkmcnt(0)")
    for u in range(3):
        a(f"buffer_store_dwordx4 v[{32+4*u}:{35+4*u}], v{44+u}, s[{sSRDW}:{sSRDW+3}], 0 offen sc1")

def gen_bulk_pf(a, nshare, opts):
    nw = nshare*4
    per = -(-4608 // nw)
    n_ins = -(-per // 64)
    assert n_ins == 1 or True
    for it in range(n_ins):
        cnt = min(64, per - 64*it)
        a(f"s_mul_i32 s54, s{sOM}, {per}\ns_add_u32 s54, s54, {64*it}\nv_min_u32 v123, {cnt-1}, v{vLANE}\nv_add_u32 v123, s54, v123\nv_min_u32 v123, 4607, v123")
        a(f"s_mov_b32 s55, {(2**32 + 575)//576}\nv_mul_hi_u32 v124, v123, s55\nv_mul_u32_u24 v125, 576, v124\nv_sub_u32 v125, v123, v125\nv_mul_u32_u24 v125, 9216, v125\nv_lshl_add_u32 v125, v124, 7, v125")
        a(f"s_mul_i32 s55, s{sJ}, 1152\ns_add_u32 s55, s55, 128")
        a(f"buffer_load_dword v{vDUM}, v125, s[{sSRDA}:{sSRDA+3}], s55 offen{NT['pf']}")
        a(f"buffer_load_dword v{vDUM+1}, v125, s[{sSRDB}:{sSRDB+3}], s55 offen{NT['pf']}")


def gen_wd_pf(a, nshare, c0, c1):
    nw = nshare*4
    nc = c1 - c0
    tot = 576*nc
    per = -(-tot // nw)
    assert per <= 64
    a(f"s_mul_i32 s54, s{sOM}, {per}\nv_min_u32 v123, {per-1}, v1\nv_add_u32 v123, s54, v123\nv_min_u32 v123, {tot-1}, v123")
    a(f"s_mov_b32 s55, {(2**32 + 575)//576}\nv_mul_hi_u32 v124, v123, s55\nv_mul_u32_u24 v125, 576, v124\nv_sub_u32 v125, v123, v125\nv_mul_u32_u24 v125, 1152, v125\nv_lshl_add_u32 v125, v124, 7, v125")
    a(f"s_mul_i32 s55, s{sJ}, {576*1152}\ns_add_u32 s55, s55, {128*c0}")
    a(f"buffer_load_dword v{vDUM+2}, v125, s[{sWDS}:{sWDS+3}], s55 offen")

def gen_pf_setup(a, nshare):
    nw = nshare*4
    NL = -(-576 // nw)
    a(f"s_mul_i32 s{sT0}, s{sOM}, {NL}\nv_min_u32 v2, {NL-1}, v{vLANE}\nv_add_u32 v2, s{sT0}, v2\nv_min_u32 v2, 575, v2")
    a(f"v_mul_u32_u24 v{vPF}, 9216, v2")

def gen_pf_unit(a, nshare):
    nparts = nshare // 8
    NL = -(-576 // (nparts*4))
    assert NL <= 64
    a(f"s_lshr_b32 s{sT0}, s{sOM}, 2\ns_and_b32 s{sPFU}, s{sT0}, 7\ns_lshr_b32 s{sT0}, s{sT0}, 3")
    a(f"s_lshl_b32 s{sT0}, s{sT0}, 2\ns_add_u32 s{sT0}, s{sT0}, s{sW}\ns_mul_i32 s{sT0}, s{sT0}, {NL}")
    a(f"v_min_u32 v2, {NL-1}, v{vLANE}\nv_add_u32 v2, s{sT0}, v2\nv_min_u32 v2, 575, v2")
    a(f"s_cmp_lt_u32 s{sPFU}, 6\ns_cbranch_scc0 L_pfwd")
    a(f"v_mul_u32_u24 v{vPF}, 9216, v2\nv_mov_b32 v{vPF2}, v{vPF}")
    a(f"s_mov_b32 s{sPFA}, s{sSRDA}\ns_mov_b32 s{sPFA+1}, s{sSRDA+1}\ns_mov_b32 s{sPFB}, s{sSRDB}\ns_mov_b32 s{sPFB+1}, s{sSRDB+1}")
    a(f"s_mul_i32 s{sPFO}, s{sJ}, 1152\ns_add_u32 s{sT0}, s{sPFU}, 3\ns_lshl_b32 s{sT0}, s{sT0}, 7\ns_add_u32 s{sPFO}, s{sPFO}, s{sT0}")
    a("s_branch L_pfok")
    a.label("L_pfwd")
    a(f"v_mul_u32_u24 v{vPF}, 1152, v2\nv_add_u32 v{vPF2}, 128, v{vPF}")
    a(f"s_mov_b32 s{sPFA}, s{sWD}\ns_mov_b32 s{sPFA+1}, s{sWD+1}\ns_mov_b32 s{sPFB}, s{sWD}\ns_mov_b32 s{sPFB+1}, s{sWD+1}")
    a(f"s_mul_i32 s{sPFO}, s{sJ}, {576*1152}\ns_sub_u32 s{sT0}, s{sPFU}, 6\ns_lshl_b32 s{sT0}, s{sT0}, 8\ns_add_u32 s{sPFO}, s{sPFO}, s{sT0}")
    a.label("L_pfok")
    a(f"s_mov_b32 s{sPFA+2}, {576*4608*2}\ns_mov_b32 s{sPFA+3}, 0x00020000\ns_mov_b32 s{sPFB+2}, {576*4608*2}\ns_mov_b32 s{sPFB+3}, 0x00020000")

CV_CP = 4160
CV_WAVE = 4*CV_CP
sC, sCB, sCT, sCU, sXR = 70, 71, 76, 77, 78
HL = 64
vDC = 94
def poll(a, name, voff_reg, srd, soff, target, scnt, cmp="ge", sleep=8):
    a(f"s_mov_b32 s{scnt}, 0")
    a.label(f"L_poll_{name}")
    a(f"buffer_load_dword v3, v{voff_reg}, s[{srd}:{srd+3}], {soff} offen sc1")
    a("s_waitcnt vmcnt(0)")
    a(f"v_cmp_{'le' if cmp == 'ge' else 'eq'}_u32 vcc, {target}, v3")
    a(f"s_add_u32 s{scnt}, s{scnt}, 1")
    a(f"s_cmp_eq_u64 vcc, exec\ns_cbranch_scc1 L_pollok_{name}")
    a(f"s_cmp_lt_u32 s{scnt}, 20000\ns_cbranch_scc0 L_pollok_{name}")
    a(f"s_sleep {sleep}\ns_branch L_poll_{name}")
    a.label(f"L_pollok_{name}")

def gen_conv_issue(a, stamps):
    a(f"v_and_b32 v2, 7, v{vLANE}\nv_lshlrev_b32 v2, 2, v2")
    poll(a, "kv", 2, sDBG, 0, 32, sCU)
    a(f"s_cmp_ge_u32 s{sC}, 576\ns_cbranch_scc1 L_conv_skip1")
    a(f"s_mul_i32 s{sCB}, s{sW}, {CV_WAVE}\ns_add_u32 s{sCB}, s{sCB}, {HB}")
    a(f"s_mul_i32 s{sXR}, s{sW}, 4608\ns_add_u32 s{sXR}, s{sXR}, {LDS_XR}")
    a(f"s_lshl_b32 s{sCT}, s{sC}, 12")
    a(f"s_add_u32 s88, s{sHK}, s{sCT}\ns_addc_u32 s89, s{sHK+1}, 0\ns_mov_b32 s90, 4096\ns_mov_b32 s91, 0x00020000")
    for o in range(5):
        a(f"v_add_u32 v5, {(1024*o - 16) & 0xffffffff}, v{vPST}")
        a(f"buffer_load_dwordx4 v[{HL+6*o}:{HL+6*o+3}], v5, s[88:91], 0 offen{NT['h']}")
        a(f"v_add_u32 v6, {1024*o}, v{vPST}")
        a(f"buffer_load_dwordx2 v[{HL+6*o+4}:{HL+6*o+5}], v6, s[88:91], 0 offen{NT['h']}")
    a(f"s_lshl_b32 s{sCT}, s{sC}, 1\nv_mov_b32 v4, s{sCT}")
    a(f"buffer_load_ushort v{vDC}, v4, s[{sD}:{sD+3}], 0 offen")
    a(f"s_lshl_b32 s{sCT}, s{sC}, 12\ns_add_u32 s{sCT}, s{sCT}, {WS_KVR}")
    a(f"s_mov_b32 m0, s{sXR}\ns_nop 0")
    for k in range(4):
        off = f" offset:{1024*k}" if k else ""
        a(f"buffer_load_dwordx4 v{vPST}, s[{sSRDW}:{sSRDW+3}], s{sCT} offen{off} sc1 lds")
    a.label("L_conv_skip1")

def publish_partial(a):
    a("s_waitcnt vmcnt(0)")
    a(f"v_mov_b32 v4, 0\nv_mov_b32 v5, 1")
    a(f"v_cmp_eq_u32 vcc, 0, v{vLANE}\ns_and_saveexec_b64 s[{sEX}:{sEX+1}], vcc")
    a(f"buffer_store_dword v5, v4, s[{sSRDW}:{sSRDW+3}], s{sPFLG} offen sc1")
    a(f"s_mov_b64 exec, s[{sEX}:{sEX+1}]")

def gen_conv_main(a, stamps):
    a(f"s_cmp_ge_u32 s{sC}, 576\ns_cbranch_scc1 L_noconv")
    for r in range(4): a(f"v_mov_b32 v{32+r}, 0")
    a(f"v_add_u32 v5, s{sXR}, v{vPST}")
    a(f"v_cmp_gt_u32 vcc, 32, v{vLANE}\ns_and_saveexec_b64 s[{sEX}:{sEX+1}], vcc")
    a(f"ds_write_b128 v5, v[32:35] offset:4096")
    a(f"s_mov_b64 exec, s[{sEX}:{sEX+1}]")
    a(f"v_mul_u32_u24 v6, {CV_CP}, v{vLANE}\nv_add_u32 v6, s{sCB}, v6")
    a(f"v_cmp_gt_u32 vcc, 4, v{vLANE}\ns_and_saveexec_b64 s[{sEX}:{sEX+1}], vcc")
    a(f"ds_write_b128 v6, v[32:35]")
    a(f"s_mov_b64 exec, s[{sEX}:{sEX+1}]")
    a(f"v_add_u32 v7, s{sCB}, v{vPST}")
    stamp(a, 17, stamps)
    for o in range(5):
        P = HL + 6*o
        t = 96 + 16*(o % 2)
        if o == 4:
            a(f"v_cmp_eq_u32 vcc, 0, v{vLANE}\ns_and_saveexec_b64 s[{sEX}:{sEX+1}], vcc")
        for n in range(4):
            a(f"v_mov_b32 v{t+n}, v{P+n}")
            a(f"v_alignbit_b32 v{t+4+n}, v{P+n+1}, v{P+n}, 16")
            a(f"v_mov_b32 v{t+8+n}, v{P+n+1}")
            a(f"v_alignbit_b32 v{t+12+n}, v{P+n+2}, v{P+n+1}, 16")
        for s_ in range(4):
            a(f"ds_write_b128 v7, v[{t+4*s_}:{t+4*s_+3}] offset:{s_*CV_CP + 16 + 1024*o}")
        if o == 4: a(f"s_mov_b64 exec, s[{sEX}:{sEX+1}]")
    a(f"v_and_b32 v14, 15, v{vLANE}\nv_lshrrev_b32 v15, 4, v{vLANE}")
    a(f"v_lshlrev_b32 v16, 5, v14\nv_lshlrev_b32 v17, 4, v15\nv_sub_u32 v16, v17, v16")
    a(f"s_add_u32 s{sCT}, s{sXR}, {2*(2032 - 32*56)}\nv_add_u32 v16, s{sCT}, v16")
    a(f"v_add_u32 v2, 1, v14\nv_and_b32 v3, 3, v2\nv_mul_u32_u24 v3, {CV_CP}, v3\nv_lshrrev_b32 v2, 2, v2")
    a(f"v_lshl_add_u32 v3, v2, 3, v3\nv_lshl_add_u32 v3, v15, 4, v3\nv_add_u32 v13, s{sCB}, v3")
    a("s_waitcnt lgkmcnt(0)")
    stamp(a, 19, stamps)
    lk = Lgkm(a)
    NB = 6; FB = 96; ACCB = 32
    def rdF(m):
        r = FB + 4*(m % NB)
        lk.issue(("F", m), f"ds_read_b64 v[{r}:{r+1}], v13 offset:{64*m}")
        lk.issue(("F", m), f"ds_read_b64 v[{r+2}:{r+3}], v13 offset:{64*m+8}")
    def rdG(i):
        lk.issue(("G", i), f"ds_read_b128 {A(4*(i+7),4)}, v16 offset:{(56-i)*64}")
    rdF(0)
    for T in range(8): rdG(8*T)
    rdF(1)
    for m in range(64):
        T0 = max(0, -(-(m-7)//8))
        if m == 9: publish_partial(a)
        if m == 22:
            gen_pflag_addr(a, 12, f"s{sW}")
            a(f"buffer_load_dword v11, v12, s[{sSRDW}:{sSRDW+3}], 0 offen sc1")
        if m == 36:
            a("s_waitcnt vmcnt(0)")
            a(f"v_cmp_eq_u32 vcc, 1, v11\ns_nop 0\ns_cmp_eq_u64 vcc, exec\ns_cbranch_scc1 L_pf_ok")
            poll(a, "pA", 12, sSRDW, "0", 1, sT0, cmp="eq", sleep=4)
            a.label("L_pf_ok")
            gen_final_addr(a)
            gen_final_loads(a)
        lk.wait_for(("F", m))
        pend = []
        if m + 1 < 8: pend += [("G", 8*T - (m+1)) for T in range(8)]
        if m + 2 < 64: pend += [("F", m+2)]
        for T in range(T0, 8):
            if m < 8: lk.wait_for(("G", 8*T - m))
            c_ = "0" if m == 0 else f"v[{ACCB+4*T}:{ACCB+4*T+3}]"
            a(f"v_mfma_f32_16x16x32_bf16 v[{ACCB+4*T}:{ACCB+4*T+3}], v[{FB+4*(m%NB)}:{FB+4*(m%NB)+3}], {A(4*(8*T-m+7),4)}, {c_}")
            if pend:
                k, x = pend.pop(0)
                (rdG if k == "G" else rdF)(x)
        for k, x in pend: (rdG if k == "G" else rdF)(x)
    stamp(a, 21, stamps)
    a(f"v_lshlrev_b32 v5, 5, v14\nv_lshlrev_b32 v17, 3, v15\nv_add_u32 v17, v5, v17")
    a(f"s_add_u32 s{sCT}, s{sXR}, {2*2044 - 7*512}\nv_sub_u32 v2, s{sCT}, v17")
    for T in range(8): a(f"ds_read_b64 v[{96+2*T}:{97+2*T}], v2 offset:{(7-T)*512}")
    a(f"v_lshlrev_b32 v{vDC}, 16, v{vDC}")
    a(f"s_lshl_b32 s{sCT}, s{sC}, 12\ns_add_u32 s{sCT}, s{sCT}, {WS_ZT}\ns_mov_b32 s{sCU}, 0xffff0000")
    a("s_waitcnt lgkmcnt(0)")
    for T in range(8):
        kv = 96+2*T; ac = ACCB+4*T; t = 112 + 6*(T % 2)
        a(f"v_and_b32 v{t}, s{sCU}, v{kv+1}\nv_lshlrev_b32 v{t+1}, 16, v{kv+1}\nv_and_b32 v{t+2}, s{sCU}, v{kv}\nv_lshlrev_b32 v{t+3}, 16, v{kv}")
        for r in range(4): a(f"v_fmac_f32 v{ac+r}, v{t+r}, v{vDC}")
        a(f"v_cvt_pk_bf16_f32 v{t+4}, v{ac}, v{ac+1}\nv_cvt_pk_bf16_f32 v{t+5}, v{ac+2}, v{ac+3}")
        off = f" offset:{512*T}" if T else ""
        a(f"buffer_store_dwordx2 v[{t+4}:{t+5}], v17, s[{sSRDW}:{sSRDW+3}], s{sCT} offen{off} sc1")

def gen_pflag_addr(a, vdst, swave):
    a(f"s_lshl_b32 s{sT0}, s{sI}, 7\ns_lshl_b32 s{sT1}, {swave}, 2\ns_add_u32 s{sT0}, s{sT0}, s{sT1}\ns_add_u32 s{sT0}, s{sT0}, {WS_FLAG}")
    a(f"v_and_b32 v{vdst}, 7, v{vLANE}\nv_lshlrev_b32 v{vdst}, 4, v{vdst}\nv_add_u32 v{vdst}, s{sT0}, v{vdst}")

sFC, sFW, sST = 57, 55, 54
FP, FS, FX, FZ, FST = 128, 192, 208, 216, 232
def gen_final_addr(a):
    a(f"s_lshr_b32 s{sT0}, s{sFW}, 1\ns_and_b32 s{sT1}, s{sFW}, 1")
    a(f"v_and_b32 v3, 31, v{vLANE}\nv_lshrrev_b32 v4, 5, v{vLANE}")
    a(f"s_lshl_b32 s{sT2}, s{sI}, 6\ns_lshl_b32 s{sT0}, s{sT0}, 5\ns_add_u32 s{sT2}, s{sT2}, s{sT0}\nv_add_u32 v5, s{sT2}, v3")
    a(f"s_lshl_b32 s{sT2}, s{sFC}, 6\ns_lshl_b32 s{sT1}, s{sT1}, 5\ns_add_u32 s{sT2}, s{sT2}, s{sT1}")
    a(f"v_lshlrev_b32 v6, 2, v4\nv_add_u32 v6, s{sT2}, v6")
    a(f"v_mul_u32_u24 v7, 1152, v5\nv_lshl_add_u32 v7, v6, 1, v7")
    a(f"v_lshlrev_b32 v8, 12, v6\nv_lshl_add_u32 v8, v5, 1, v8\nv_add_u32 v8, {WS_ZT}, v8")
    a(f"v_lshlrev_b32 v9, 3, v5\nv_add_u32 v9, {WS_STATS}, v9")

def gen_final_loads(a):
    isz = 2048
    a(f"s_mul_i32 s{sT2}, s{sI}, 9\ns_add_u32 s{sT2}, s{sT2}, s{sFC}\ns_lshl_b32 s{sT2}, s{sT2}, 2\ns_add_u32 s{sT2}, s{sT2}, s{sFW}\ns_mul_i32 s{sT2}, s{sT2}, {isz}\ns_add_u32 s{sT2}, s{sT2}, {WS_PART}")
    for j in range(8):
        for q in range(2):
            r = FP + (j*2 + q)*4
            off = f" offset:{1024*q}" if q else ""
            a(f"buffer_load_dwordx4 v[{r}:{r+3}], v{vPST}, s[{sSRDW}:{sSRDW+3}], s{sT2} offen{off} sc1")
        if j < 7: a(f"s_add_u32 s{sT2}, s{sT2}, {32*9*4*isz}")
    for aa in range(4):
        off = f" offset:{16*aa}" if aa else ""
        a(f"buffer_load_dwordx2 v[{FX+2*aa}:{FX+2*aa+1}], v7, s[{sX}:{sX+3}], 0 offen{off}")
    a(f"buffer_load_dwordx2 v[{FST}:{FST+1}], v9, s[{sSRDW}:{sSRDW+3}], 0 offen sc1")

def gen_final_z(a, tag, stamps=False):
    a(f"s_mov_b32 s{sCU}, 0")
    a.label(f"L_zre_{tag}")
    for aa in range(4):
        for e in range(4):
            a(f"s_mov_b32 s{sT3}, {(8*aa+e)*4096}")
            a(f"buffer_load_ushort v{FZ+4*aa+e}, v8, s[{sSRDW}:{sSRDW+3}], s{sT3} offen sc1")
    a("s_waitcnt vmcnt(0)")
    a(f"v_max3_u32 v2, v{FZ}, v{FZ+1}, v{FZ+2}")
    for k in range(3, 15, 2): a(f"v_max3_u32 v2, v2, v{FZ+k}, v{FZ+k+1}")
    a(f"v_max_u32 v2, v2, v{FZ+15}")
    a(f"v_cmp_eq_u32 vcc, 0xffff, v2\ns_add_u32 s{sCU}, s{sCU}, 1\ns_nop 0\ns_cmp_eq_u64 vcc, 0\ns_cbranch_scc1 L_zok_{tag}")
    a(f"s_cmp_lt_u32 s{sCU}, 5000\ns_cbranch_scc0 L_zok_{tag}\ns_sleep 4\ns_branch L_zre_{tag}")
    a.label(f"L_zok_{tag}")
    stamp(a, 29, stamps)

def gen_final_sum(a):
    a(f"s_mov_b32 s{sT3}, 0xffff0000")
    T = 234
    for j in range(8):
        for D in range(8):
            src = FP + 8*j + D
            if j == 0:
                a(f"v_lshlrev_b32 v{FS+2*D}, 16, v{src}\nv_and_b32 v{FS+2*D+1}, s{sT3}, v{src}")
            else:
                tt = T + 2*(D % 2)
                a(f"v_lshlrev_b32 v{tt}, 16, v{src}\nv_and_b32 v{tt+1}, s{sT3}, v{src}")
                a(f"v_pk_add_f32 v[{FS+2*D}:{FS+2*D+1}], v[{FS+2*D}:{FS+2*D+1}], v[{tt}:{tt+1}]")

def gen_final_combine(a):
    T = 128
    a(f"s_mov_b32 s{sT3}, 0xffff0000")
    a(f"v_rcp_f32 v{T+4}, v{FST+1}\ns_nop 0\nv_mul_f32 v{T+5}, v{T+4}, v{T+4}")
    M = sT3
    def unp(dst, src):
        a(f"v_lshlrev_b32 v{dst}, 16, v{src}\nv_and_b32 v{dst+1}, s{M}, v{src}\nv_lshlrev_b32 v{dst+2}, 16, v{src+1}\nv_and_b32 v{dst+3}, s{M}, v{src+1}")
    def pk(dst, src):
        a(f"v_cvt_pk_bf16_f32 v{dst}, v{src}, v{src+1}\nv_cvt_pk_bf16_f32 v{dst+1}, v{src+2}, v{src+3}")
    for aa in range(4):
        U = T + 6
        unp(U, FX+2*aa)
        for e in range(4): a(f"v_sub_f32 v{U+4+e}, v{U+e}, v{FST}")
        pk(U+8, U+4); unp(U+4, U+8)
        for e in range(4): a(f"v_mul_f32 v{U+4+e}, v{U+4+e}, v{T+4}")
        pk(U+8, U+4); unp(U+4, U+8)
        for e in range(4):
            a(f"v_lshlrev_b32 v{U+10}, 16, v{FZ+4*aa+e}\nv_mul_f32 v{U+4+e}, v{U+4+e}, v{U+10}")
        pk(U+8, U+4); unp(U+4, U+8)
        for e in range(4): a(f"v_add_f32 v{U+4+e}, v{U+4+e}, v{U+e}")
        pk(U+8, U+4); unp(U+4, U+8)
        for e in range(4): a(f"v_mul_f32 v{U+e}, v{FS+4*aa+e}, v{T+5}")
        pk(U+8, U); unp(U, U+8)
        for e in range(4): a(f"v_add_f32 v{U+4+e}, v{U+4+e}, v{U+e}")
        pk(U+12+2*(aa % 2), U+4)
        off = f" offset:{16*aa}" if aa else ""
        a(f"buffer_store_dwordx2 v[{U+12+2*(aa%2)}:{U+13+2*(aa%2)}], v7, s[{sOUT}:{sOUT+3}], 0 offen{off}")

def gen_kernel(name, fp32_part=False, opts=None, stamps=False, mapping="32x1"):
    opts = opts or {}
    nodma = opts.get("no_dma")
    a = Asm()
    a(f".globl {name}\n.p2align 8\n.type {name},@function\n{name}:")
    a("s_cmp_ge_u32 s2, 256\ns_cbranch_scc1 L_done")
    a("s_load_dwordx4 s[80:83], s[0:1], 0")
    a("s_load_dwordx4 s[88:91], s[0:1], 16")
    a("s_load_dwordx4 s[68:71], s[0:1], 32")
    a("s_load_dwordx4 s[4:7], s[0:1], 56")
    a("s_load_dwordx4 s[16:19], s[0:1], 72")
    a("s_load_dwordx4 s[44:47], s[0:1], 88")
    if stamps:
        a("s_memrealtime s[58:59]\ns_memtime s[50:51]")
    a(f"v_lshrrev_b32 v2, 6, v0\nv_and_b32 v{vLANE}, 63, v0")
    a(f"v_readfirstlane_b32 s{sW}, v2")
    if mapping == "32x1":
        a(f"s_and_b32 s{sJ}, s2, 7\ns_lshr_b32 s{sI}, s2, 3"); nshare = 32
        a(f"s_lshl_b32 s{sOM}, s{sI}, 2")
    elif mapping == "16x2":
        a(f"s_and_b32 s{sT0}, s2, 3\ns_lshl_b32 s{sT0}, s{sT0}, 1\ns_bfe_u32 s{sT1}, s2, 0x10003\ns_add_u32 s{sJ}, s{sT0}, s{sT1}")
        a(f"s_bfe_u32 s{sT0}, s2, 0x10002\ns_lshl_b32 s{sT0}, s{sT0}, 4\ns_lshr_b32 s{sT1}, s2, 4\ns_add_u32 s{sI}, s{sT0}, s{sT1}"); nshare = 16
        a(f"s_lshl_b32 s{sOM}, s{sT1}, 2")
    elif mapping == "8x4":
        a(f"s_and_b32 s{sT0}, s2, 1\ns_lshl_b32 s{sT0}, s{sT0}, 2\ns_bfe_u32 s{sT1}, s2, 0x20003\ns_add_u32 s{sJ}, s{sT0}, s{sT1}")
        a(f"s_bfe_u32 s{sT0}, s2, 0x20001\ns_lshl_b32 s{sT0}, s{sT0}, 3\ns_lshr_b32 s{sT1}, s2, 5\ns_add_u32 s{sI}, s{sT0}, s{sT1}"); nshare = 8
        a(f"s_lshl_b32 s{sOM}, s{sT1}, 2")
    a(f"v_lshlrev_b32 v{vPST}, 4, v{vLANE}")
    if not opts.get("no_codepf"):
        a("s_getpc_b64 s[52:53]")
        a.label("L_pc")
        a(f"s_sub_u32 s52, s52, L_pc-{name}\ns_subb_u32 s53, s53, 0")
        a(f"s_lshr_b32 s54, s2, 3\ns_and_b32 s54, s54, 3\ns_cmp_lg_u32 s54, s{sW}\ns_cbranch_scc1 L_nocpf")
        a(f"s_lshl_b32 s54, s{sW}, 13\nv_lshlrev_b32 v2, 7, v{vLANE}\nv_add_u32 v2, s54, v2\nv_min_u32 v2, L_done-{name}, v2")
        a(f"global_load_dword v{vDUM+3}, v2, s[52:53]")
        a.label("L_nocpf")
    a("s_waitcnt lgkmcnt(0)")
    a(f"s_add_u32 s{sOM}, s{sOM}, s{sW}")
    a("s_mov_b32 s84, s82\ns_mov_b32 s85, s83")
    a("s_mov_b32 s92, s90\ns_mov_b32 s93, s91")
    a("s_mov_b32 s96, s70\ns_mov_b32 s97, s71")
    a("s_mov_b32 s8, s6\ns_mov_b32 s9, s7")
    a("s_mov_b32 s64, s18\ns_mov_b32 s65, s19")
    a("s_mov_b32 s12, s46\ns_mov_b32 s13, s47")
    a("s_mov_b32 s72, s80\ns_mov_b32 s73, s81")
    a(f"s_mov_b32 s18, {576*4608*2}\ns_mov_b32 s19, 0x00020000")
    for srd, n in ((sSRDA, 576*4608*2), (sSRDB, 576*4608*2), (sSRDW, WS_SIZE), (sDBG, 256), (sQ, 2048*576*2), (sK, 2048*576*2), (sV, 2048*576*2), (sSK, 576*4*2), (sD, 576*2), (sOUT, 2048*576*2), (sX, 2048*576*2)):
        a(f"s_mov_b32 s{srd+2}, {n}\ns_mov_b32 s{srd+3}, 0x00020000")
    if stamps:
        a("v_mov_b32 v249, 0\nv_writelane_b32 v249, s50, 0")
    stamp(a, 1, stamps)
    a(f"s_lshl_b32 s{sT0}, s{sI}, 7\ns_lshl_b32 s{sT1}, s{sJ}, 4\ns_add_u32 s{sT1}, s{sT1}, s{sT0}\ns_lshl_b32 s{sT0}, s{sW}, 2\ns_add_u32 s{sT1}, s{sT1}, s{sT0}\ns_add_u32 s{sPFLG}, s{sT1}, {WS_FLAG}")
    a(f"s_lshl_b32 s{sC}, s{sW}, 8\ns_add_u32 s{sC}, s{sC}, s2")
    gen_pf_setup(a, nshare)
    a(f"s_mul_i32 s{sPFO}, s{sJ}, 1152")
    a(f"buffer_load_dword v{vDUM}, v{vPF}, s[{sSRDA}:{sSRDA+3}], s{sPFO} offen{NT['pf']}")
    a(f"buffer_load_dword v{vDUM+1}, v{vPF}, s[{sSRDB}:{sSRDB+3}], s{sPFO} offen{NT['pf']}")
    a(f"s_add_u32 s{sPFO}, s{sPFO}, 128")
    QREG, KREG, vP9, vRUN = 176, 72, 250, 251
    a(f"s_and_b32 s{sPAR}, s{sJ}, {0 if mapping == '32x1' else 1}")
    gen_q_loads(a, QREG, 0)
    a(f"v_lshrrev_b32 v2, 3, v{vLANE}\nv_and_b32 v3, 7, v{vLANE}\nv_lshrrev_b32 v4, 1, v3\nv_and_b32 v5, 1, v3\nv_lshlrev_b32 v5, 4, v5")
    a(f"v_bfe_u32 v6, v{vLANE}, 4, 1\nv_lshlrev_b32 v7, 1, v6")
    a(f"s_mul_i32 s{sT0}, s{sW}, 24\nv_add_u32 v23, s{sT0}, v2\ns_movk_i32 s{sT1}, 9216\nv_mul_lo_u32 v21, v23, s{sT1}")
    for p, vd in ((0, VDG), (1, VDU)):
        a(f"v_or_b32 v22, {p}, v7\nv_xor_b32 v22, v4, v22\nv_lshlrev_b32 v22, 5, v22\nv_add3_u32 v22, v21, v22, v5")
        for k in range(3): a(f"v_add_u32 v{vd[k]}, {8*k*9216 - 1024*k}, v22")
    a(f"s_mul_i32 s{sM0}, s{sW}, 3072\ns_add_u32 s{sM0+1}, s{sM0}, 12288")
    a(f"s_mul_i32 s{sT0}, s{sW}, 72\nv_add_u32 v23, s{sT0}, v2\ns_movk_i32 s{sT1}, 1152\nv_mul_lo_u32 v21, v23, s{sT1}")
    a(f"v_lshrrev_b32 v22, 2, v3\nv_xor_b32 v22, v22, v6\nv_lshlrev_b32 v22, 6, v22\nv_and_b32 v23, 3, v3\nv_lshlrev_b32 v23, 4, v23\nv_add3_u32 v22, v21, v22, v23")
    for k in range(4): a(f"v_add_u32 v{vD2+k}, {8*k*1152 - 1024*k}, v22")
    a(f"v_and_b32 v2, 15, v{vLANE}\nv_bfe_u32 v3, v{vLANE}, 4, 1\nv_lshrrev_b32 v4, 5, v{vLANE}\nv_lshrrev_b32 v5, 2, v2\nv_bfe_u32 v6, v2, 3, 1")
    a(f"v_lshl_add_u32 v7, v4, 3, v5\nv_lshlrev_b32 v7, 7, v7\nv_lshl_add_u32 v21, v6, 1, v3\nv_xor_b32 v21, s{sW}, v21\nv_lshlrev_b32 v21, 5, v21")
    a(f"v_and_b32 v22, 3, v2\nv_lshlrev_b32 v22, 3, v22\nv_add3_u32 v{vRA1}, v7, v21, v22\nv_mul_u32_u24 v21, 12288, v3\nv_add_u32 v{vRA1}, v{vRA1}, v21")
    a(f"v_add_u32 v{vRA1b}, 65536, v{vRA1}\nv_add_u32 v{vRA1c}, 131072, v{vRA1}")
    a(f"v_lshl_add_u32 v7, v4, 2, v5\nv_lshlrev_b32 v7, 7, v7\ns_and_b32 s{sT0}, s{sW}, 1\nv_xor_b32 v21, s{sT0}, v6\nv_lshlrev_b32 v21, 6, v21")
    a(f"v_lshlrev_b32 v2, 5, v3\nv_add3_u32 v{vRA2}, v7, v21, v2\nv_add_u32 v{vRA2}, v{vRA2}, v22\nv_add_u32 v{vRA2b}, 32768, v{vRA2}")
    a(f"s_mov_b32 s{sHIDX}, 0\ns_mov_b32 s{sB2}, 0")
    isz = 4096 if fp32_part else 2048
    a(f"s_lshl_b32 s{sT0}, s{sJ}, 5\ns_add_u32 s{sT0}, s{sT0}, s{sI}\ns_mul_i32 s{sT0}, s{sT0}, {9*4*isz}\ns_mul_i32 s{sT1}, s{sW}, {isz}\ns_add_u32 s{sT0}, s{sT0}, s{sT1}\ns_add_u32 s{sPOFF}, s{sT0}, {WS_PART}")
    stamp(a, 2, stamps)
    gen_ln_setup(a)
    a("s_waitcnt vmcnt(0)")
    stamp(a, 3, stamps)
    gen_q_loads(a, QREG, 1)
    for r in range(2):
        a(f"buffer_load_dword v{vDUM}, v{vPF}, s[{sSRDA}:{sSRDA+3}], s{sPFO} offen")
        a(f"buffer_load_dword v{vDUM+1}, v{vPF}, s[{sSRDB}:{sSRDB+3}], s{sPFO} offen")
        a(f"s_add_u32 s{sPFO}, s{sPFO}, 128")
    a(f"v_mov_b32 v2, s{sPFLG}\nv_mov_b32 v3, 0x7ff00000\nv_cmp_eq_u32 vcc, 0, v{vLANE}\nv_mov_b32 v4, 0\ns_nop 0\nv_cndmask_b32 v2, v3, v2, vcc")
    a(f"buffer_store_dword v4, v2, s[{sSRDW}:{sSRDW+3}], 0 offen sc1")
    a(f"s_lshl_b32 s{sT2}, s{sC}, 12\ns_add_u32 s{sT2}, s{sT2}, {WS_ZT}\ns_cmp_lt_u32 s{sC}, 576\ns_cselect_b32 s{sT2}, s{sT2}, 0x7ff00000")
    for r in range(4): a(f"v_mov_b32 v{116+r}, -1")
    for k in range(4):
        off = f" offset:{1024*k}" if k else ""
        a(f"buffer_store_dwordx4 v[116:119], v{vPST}, s[{sSRDW}:{sSRDW+3}], s{sT2} offen{off} sc1")
    stamp(a, 5, stamps)
    gen_ln_pass(a, QREG, 0)
    stamp(a, 6, stamps)
    a(f"s_waitcnt vmcnt({4+5+1})")
    a(f"s_mul_i32 s{sSOFF}, s{sJ}, {576*2}\ns_mov_b32 s{sINC}, {96*9216}")
    a(f"s_mov_b32 s{sINCW}, {(-5*96*9216 + (0 if opts.get('same_cols') else 128)) & 0xffffffff}")
    side = Asm()
    gen_kv_loads(side, KREG, vP9, vRUN)
    for st in range(3):
        if st: side(f"s_add_u32 s{sSOFF}, s{sSOFF}, s{sINC}")
        dma1_group(side, st)
    main = Asm(); gen_ln_pass(main, QREG, 1)
    interleave(a, main.lines, groups_of(side.lines), start=20)
    a("s_waitcnt lgkmcnt(0)")
    stamp(a, 4, stamps)
    a("s_barrier")
    stamp(a, 7, stamps)
    a(f"v_add_u32 v{vHR}, {HB}, v{vPST}\nv_add_u32 v2, {65536}, v{vHR}")
    for f in range(72):
        if f < 64: a(f"ds_read_b128 {xn_frag(f)}, v{vHR} offset:{f*1024}")
        else: a(f"ds_read_b128 {xn_frag(f)}, v2 offset:{(f-64)*1024}")
    a(f"v_and_b32 v2, 31, v{vLANE}\nv_lshlrev_b32 v2, 2, v2\nv_add_u32 v2, {LDS_STAT}, v2")
    a(f"ds_read_b32 v3, v2\nds_read_b32 v4, v2 offset:128")
    a("s_waitcnt lgkmcnt(0)")
    for n, src in ((0, 3), (1, 4)):
        a(f"v_mul_f32 v5, v{src}, v{src}\nv_mul_f32 v{VC0[n]}, {hex(f2u(C0))}, v{src}\nv_mul_f32 v5, v5, v{src}\nv_mul_f32 v{VC1[n]}, {hex(f2u(C1))}, v5")
    stamp(a, 8, stamps)
    a("s_barrier")
    a(f"s_add_u32 s{sSOFF}, s{sSOFF}, s{sINC}")
    dma1_group(a, 3)
    a(f"s_add_u32 s{sSOFF}, s{sSOFF}, s{sINC}")
    dma1_group(a, 4, 0, 3)
    gen_pf_unit(a, nshare)
    stamp(a, 9, stamps)
    a(f"s_waitcnt vmcnt({18+9})")
    gen_kv_compute2(a, KREG, vP9, vRUN)
    a("s_waitcnt lgkmcnt(0)")
    a("s_barrier")
    gen_kv_store(a)
    stamp(a, 10, stamps)
    a(f"s_waitcnt vmcnt({6+9+3})")
    stamp(a, 11, stamps)
    a("s_barrier")
    lk = Lgkm(a)
    for kk in range(3): p1_read(lk, kk, kk % 4, ("A", kk))
    a(f"s_mov_b32 s{sCNT}, 4\ns_mov_b32 s62, 32")
    stamp(a, 12, stamps)
    a("s_branch L_roundB")
    pre = list(lk.q)
    a.label("L_roundA")
    b0 = len(a.lines)
    gen_round(a, lk, 1, 0, "A", opts=opts)
    a.label("L_roundB")
    gen_round(a, lk, 0, 1, "B", last_check=True, opts=opts)
    assert lk.q == pre, (lk.q, pre)
    a(f"s_sub_u32 s{sCNT}, s{sCNT}, 1\ns_cmp_ge_i32 s{sCNT}, 0\ns_cbranch_scc1 L_roundA")
    check_hazards(a.lines[b0:] + a.lines[b0:], "phase1")
    a("s_waitcnt lgkmcnt(0)")
    stamp(a, 13, stamps)
    gen_conv_issue(a, stamps)
    tmp = Asm(); gen_wd_pf(tmp, nshare, 4, 9)
    for l in tmp.lines: a(l.replace("v123", "v10X").replace("v124", "v127").replace("v125", "v5").replace("v10X", "v4"))
    a("s_nop 7")
    for x in gelu_ops(ACC[0]): a(x)
    stamp(a, 16, stamps)
    a("s_waitcnt vmcnt(0)")
    a("s_barrier")
    a(f"s_lshl_b32 s{sT0}, s{sW}, 10\nv_add_u32 v2, s{sT0}, v{vHR}\nv_add_u32 v3, {36*1024}, v2")
    for rho in range(9):
        src = HREG + 8*(rho+1) if rho < 8 else HP
        a(f"ds_write_b128 v2, {V(src,4)} offset:{rho*4096}\nds_write_b128 v3, {V(src+4,4)} offset:{rho*4096}")
    a("s_waitcnt lgkmcnt(0)\ns_barrier")
    a(f"s_lshr_b32 s{sT0}, s{sW}, 1\ns_mul_i32 s{sT0}, s{sT0}, {36*1024}\nv_add_u32 v2, s{sT0}, v{vHR}")
    for f in range(36): a(f"ds_read_b128 {A(4*f,4)}, v2 offset:{f*1024}")
    a("s_waitcnt lgkmcnt(0)\ns_barrier")
    a(f"s_mov_b32 s{sSRDA+2}, {576*4608*2}")
    a(f"s_mul_i32 s{sM0}, s{sW}, 9216")
    a(f"s_mul_i32 s{sSOFF}, s{sJ}, {576*1152}\ns_add_u32 s{sSOFF}, s{sSOFF}, {0 if opts.get('same_cols') else 128}")
    a(f"s_mov_b32 s{sINC}, {288*1152}")
    if not nodma:
        dma2_group(a, 2)
        a(f"s_add_u32 s{sSOFF}, s{sSOFF}, s{sINC}")
        a(f"s_add_u32 s{sT2}, s{sM0}, {3*S2}")
        a(f"s_mov_b32 m0, s{sT2}\ns_mov_b32 s{sT3}, s{sSOFF}")
        for k in range(3): dma2(a, k)
    a(f"s_mov_b32 s{sINCW}, {(-288*1152 + (0 if opts.get('same_cols') else 128)) & 0xffffffff}")
    lk = Lgkm(a)
    sched = p2_read_schedule()
    pend = []
    for T in range(36):
        for F in sched[T]:
            if F >= 36: pend.append(F - 36)
    for F in pend: p2_read(lk, F, F % P2_NB, ("B", F))
    pre2 = list(lk.q)
    a(f"s_mov_b32 s{sCNT}, 9")
    stamp(a, 14, stamps)
    a.label("L_p2")
    bs = len(a.lines)
    gen_p2_chunk(a, lk, fp32_part, opts)
    assert lk.q == pre2, (lk.q, pre2)
    a(f"s_sub_u32 s{sCNT}, s{sCNT}, 1\ns_cmp_gt_i32 s{sCNT}, 0\ns_cbranch_scc1 L_p2")
    body = a.lines[bs:]
    check_hazards(body + body, "phase2")
    stamp(a, 15, stamps)
    a("s_waitcnt vmcnt(2) lgkmcnt(0)")
    a("s_barrier")
    a(f"s_mov_b32 s{sFC}, s{sJ}\ns_mov_b32 s{sFW}, s{sW}")
    c0 = len(a.lines)
    gen_conv_main(a, stamps)
    check_hazards(a.lines[c0:], "conv")
    stamp(a, 20, stamps)
    a(f"s_mov_b32 s{sST}, 3")
    a("s_waitcnt vmcnt(8)")
    a("s_branch L_fin2")
    a.label("L_noconv")
    publish_partial(a)
    a("s_sleep 24")
    a(f"s_mov_b32 s{sST}, 3")
    a(f"s_cmp_lg_u32 s{sW}, 3\ns_cbranch_scc1 L_pass")
    a(f"s_lshr_b32 s{sT0}, s{sJ}, 2\ns_and_b32 s{sT1}, s{sI}, 1\ns_cmp_lg_u32 s{sT0}, s{sT1}\ns_cbranch_scc1 L_pass")
    a(f"s_mov_b32 s{sST}, 0")
    a.label("L_pass")
    gen_pflag_addr(a, 12, f"s{sFW}")
    poll(a, "pB", 12, sSRDW, "0", 1, sCU, cmp="eq")
    gen_final_addr(a)
    gen_final_loads(a)
    a.label("L_fin")
    f0 = len(a.lines)
    a("s_waitcnt vmcnt(0)")
    a.label("L_fin2")
    stamp(a, 22, stamps)
    gen_final_sum(a)
    a(f"s_cmp_lg_u32 s{sST}, 0\ns_cbranch_scc1 L_zbar")
    SAVE = [(FS+k, 48+k) for k in range(16)] + [(FX+k, 64+k) for k in range(8)] + [(FST, 72), (FST+1, 73), (7, 74), (8, 75)]
    for src, dst in SAVE: a(f"v_mov_b32 v{dst}, v{src}")
    a(f"s_mov_b32 s{sST}, 1\ns_mov_b32 s{sFC}, 8\ns_and_b32 s{sFW}, s{sJ}, 3\ns_branch L_pass")
    a.label("L_zbar")
    a(f"s_barrier")
    a.label("L_z")
    stamp(a, 28, stamps)
    gen_final_z(a, "A", stamps)
    a("s_waitcnt vmcnt(0)")
    stamp(a, 30, stamps)
    gen_final_combine(a)
    stamp(a, 31, stamps)
    check_hazards(a.lines[f0:], "final")
    a(f"s_cmp_lg_u32 s{sST}, 1\ns_cbranch_scc1 L_final_done")
    a("s_nop 1")
    for src, dst in SAVE: a(f"v_mov_b32 v{src}, v{dst}")
    a(f"s_mov_b32 s{sST}, 2\ns_mov_b32 s{sFC}, s{sJ}\ns_mov_b32 s{sFW}, s{sW}\ns_branch L_z")
    a.label("L_final_done")
    if stamps:
        a("s_waitcnt vmcnt(0)")
        stamp(a, 23, stamps)
        a("s_memrealtime s[60:61]\ns_waitcnt lgkmcnt(0)\ns_sub_u32 s60, s60, s58\nv_writelane_b32 v249, s60, 24")
        a(f"s_lshl_b32 s34, s2, 2\ns_add_u32 s34, s34, s{sW}\ns_lshl_b32 s34, s34, 8\ns_add_u32 s34, s34, {WS_STAMP2}")
        a(f"v_lshlrev_b32 v6, 2, v{vLANE}")
        a(f"buffer_store_dword v249, v6, s[{sSRDW}:{sSRDW+3}], s34 offen\ns_waitcnt vmcnt(0)")
    a.label("L_done")
    a("s_endpgm")
    return a

def gen_kv_compute2(a, KREG, vP9, vRUN):
    SU, KU, AC, VU = 176, 208, 240, 32
    a(f"s_mov_b32 s{sT0}, 0xffff0000")
    def unrow(r):
        for e in range(4):
            a(f"v_lshlrev_b32 v{KU+8*(r%4)+2*e}, 16, v{KREG+4*r+e}\nv_and_b32 v{KU+8*(r%4)+2*e+1}, s{sT0}, v{KREG+4*r+e}")
    for c in range(8):
        for jj in range(2):
            src = KCO + 2*c + jj
            a(f"v_lshlrev_b32 v{SU+8*(2*jj)+c}, 16, v{src}\nv_and_b32 v{SU+8*(2*jj+1)+c}, s{sT0}, v{src}")
    for r in range(3): unrow(r)
    a(f"v_lshlrev_b32 v6, 2, v{vRUN}\nv_sub_u32 v6, 63, v6\nv_mul_u32_u24 v6, 160, v6")
    a(f"v_lshl_add_u32 v6, v{vP9}, 4, v6\nv_add_u32 v6, {LDS_KV - 3*160}, v6")
    for tok in range(4):
        unrow(tok + 3)
        for jj in (3, 2, 1, 0):
            for pr in range(4):
                d = f"v[{AC+2*pr}:{AC+2*pr+1}]"
                rr = (tok + 3 - jj) % 4
                kk = f"v[{KU+8*rr+2*pr}:{KU+8*rr+2*pr+1}]"
                ss = f"v[{SU+8*jj+2*pr}:{SU+8*jj+2*pr+1}]"
                a(f"v_pk_mul_f32 {d}, {kk}, {ss}" if jj == 3 else f"v_pk_fma_f32 {d}, {kk}, {ss}, {d}")
        for e in range(4):
            a(f"v_lshlrev_b32 v{VU+2*e}, 16, v{KREG+28+4*tok+e}\nv_and_b32 v{VU+2*e+1}, s{sT0}, v{KREG+28+4*tok+e}")
        for pr in range(4):
            d = f"v[{AC+2*pr}:{AC+2*pr+1}]"
            a(f"v_pk_mul_f32 {d}, {d}, v[{VU+2*pr}:{VU+2*pr+1}]")
        for e in range(4):
            a(f"v_cvt_pk_bf16_f32 v{VU+8+e}, v{AC+2*e}, v{AC+2*e+1}")
        a(f"ds_write_b128 v6, v[{VU+8}:{VU+11}] offset:{(3-tok)*160}")
        a("s_nop 0")

def kd(name, nvgpr_arch, nagpr, nsgpr=100):
    acc_off = (nvgpr_arch + 3)//4*4
    tot = acc_off + nagpr if nagpr else nvgpr_arch
    return f""".section .rodata,"a"
.p2align 6
.amdhsa_kernel {name}
  .amdhsa_next_free_vgpr {tot}
  .amdhsa_next_free_sgpr {nsgpr}
  .amdhsa_accum_offset {acc_off}
  .amdhsa_group_segment_fixed_size 0
  .amdhsa_kernarg_size 104
  .amdhsa_user_sgpr_count 2
  .amdhsa_user_sgpr_kernarg_segment_ptr 1
  .amdhsa_system_sgpr_workgroup_id_x 1
  .amdhsa_float_denorm_mode_32 3
.end_amdhsa_kernel
"""

NAME = "parallel_sum__ssm_conv_h3__glu_gated_geglu__prompt_kernel"
def build(fn, single_launch=True, **kw):
    a = gen_kernel(NAME, **kw)
    ref = open("parallel_sum__ssm_conv_h3__glu_gated_geglu__prompt.s.ref").read()
    hdr = []
    for l in ref.splitlines():
        if l.startswith("; Override launch"): break
        hdr.append(l)
    hdr = "\n".join(hdr) + "\n"
    hdr += f"; @launch grid=(256,1,1) block=(256,1,1) lds={LDS_TOTAL}\n"
    hdr += '.amdgcn_target "amdgcn-amd-amdhsa--gfx950"\n.text\n'
    open(fn, "w").write(hdr + a.text() + kd(NAME, 256, 256))

if __name__ == "__main__":
    import sys
    build("s_plain.s")
    build("s_st.s", stamps=True, opts={"rstamp": True})
    build("s_nocpf.s", stamps=True, opts={"rstamp": True, "no_codepf": True})
```

```python
from asmlib import *
import math

WS_STATS = 0x240000
WS_KVR   = 0x250000
WS_ZT    = 0x490000
WS_STAMP = 0x6D0000
WS_STAMP2 = 0x3000000
WS_FLAG  = 0x6F0000
WS_ZFLAG = 0x6F2000
WS_PART  = 0x700000
WS_SIZE  = 0x10000000

SLOT = 24576
HB   = 3*SLOT
LDS_STAT = 147456
LDS_KV   = 147456 + 256
LDS_XR   = 147456 + 256
LDS_TOTAL = 147456 + 256 + 3*4608

C0 = -2.0*math.sqrt(2.0/math.pi)*math.log2(math.e)
C1 = C0*0.044715

sSRDA, sSRDB, sSRDW = 4, 8, 12
sWD = 16
sWDS = 16
sW, sJ, sI = 20, 21, 22
sSOFF = 23
sM0 = 24
sPFO = 26
sOM = 27
sCNT = 30
sINC, sINCW = 31, 32
sT0, sT1, sT2, sT3 = 34, 35, 36, 37
sPOFF = 38
sHIDX = 39
sEX = 40
sB2 = 42
sDBG = 44
sPFA, sPFB = 80, 84
sQ, sK, sV, sSK, sD = 80, 84, 88, 92, 96
sHK = 68
sOUT = 64
sX = 72
vLANE = 1
vRA1, vRA1b, vRA1c = 8, 30, 31
vRA2, vRA2b = 9, 10
vPF = 11
VDG, VDU = [12, 13, 14], [15, 16, 17]
VC0, VC1 = [18, 21], [22, 23]
vPST = 19
vHR = 20
vD2 = 24
vPF2 = 28
sPFU = 63
ACC = [32, 64]
AF = 96
XE = 128
GT = 160
HP = 168
HREG = 176
vDUM = 252

def xn_frag(f):
    return A(4*f, 4) if f < 64 else V(XE + 4*(f-64), 4)

class Lgkm:
    def __init__(self, a):
        self.a = a; self.q = []
    def issue(self, tag, text):
        self.a(text); self.q.append(tag)
    def wait_for(self, tag):
        cand = [i for i, t in enumerate(self.q) if t == tag]
        if not cand: return
        idx = max(cand); n = len(self.q) - 1 - idx
        assert n <= 15, n
        self.a(f"s_waitcnt lgkmcnt({n})")
        self.q = self.q[idx+1:]
    def wait_all(self): self.q = []

NT = {'pf': '', 'kv': ' nt', 'q': '', 'h': ' nt'}
def resolve_vm(lines):
    out = []; ops = []
    for l in lines:
        body = l.split(";")[0].strip()
        if body.startswith("buffer_") or body.startswith("global_"):
            tag = l.split("; vm:")[1].strip() if "; vm:" in l else None
            ops.append(tag)
        if "vmcnt(@" in l:
            tag = l.split("vmcnt(@")[1].split(")")[0]
            idx = max(i for i, t in enumerate(ops) if t == tag)
            n = len(ops) - 1 - idx
            assert n <= 63
            l = l.replace(f"vmcnt(@{tag})", f"vmcnt({n})")
        out.append(l)
    return out

def tag_vm(lines, tag):
    return [l + f" ; vm:{tag}" if (l.startswith("buffer_") or l.startswith("global_")) else l for l in lines]

def stamp(a, idx, on):
    if not on: return
    a("s_memtime s[48:49]")
    a("s_waitcnt lgkmcnt(0)")
    a(f"v_writelane_b32 v249, s48, {idx}")

def gelu_ops(accP, dst=HP):
    ops = []; k = 0
    for n in range(2):
        for r in range(0, 8, 2):
            g0, g1 = accP + 16*n + r, accP + 16*n + r + 1
            u0, u1 = g0 + 8, g1 + 8
            tb = GT + 4*(k % 2)
            t0, t1, q0, q1 = tb, tb+1, tb+2, tb+3
            ops += [
                f"v_mul_f32 v{t0}, v{g0}, v{g0}", f"v_mul_f32 v{t1}, v{g1}, v{g1}",
                f"v_fma_f32 v{t0}, v{t0}, v{VC1[n]}, v{VC0[n]}", f"v_fma_f32 v{t1}, v{t1}, v{VC1[n]}, v{VC0[n]}",
                f"v_mul_f32 v{t0}, v{t0}, v{g0}", f"v_mul_f32 v{t1}, v{t1}, v{g1}",
                f"v_exp_f32 v{t0}, v{t0}", f"v_exp_f32 v{t1}, v{t1}",
                f"v_mul_f32 v{q0}, v{g0}, v{u0}", f"v_mul_f32 v{q1}, v{g1}, v{u1}",
                f"v_add_f32 v{t0}, 1.0, v{t0}", f"v_add_f32 v{t1}, 1.0, v{t1}",
                f"v_rcp_f32 v{t0}, v{t0}", f"v_rcp_f32 v{t1}, v{t1}",
                f"v_mul_f32 v{q0}, v{q0}, v{t0}", f"v_mul_f32 v{q1}, v{q1}, v{t1}",
                f"v_cvt_pk_bf16_f32 v{dst + 4*n + r//2}, v{q0}, v{q1}",
            ]
            k += 1
    return ops

def dma1(a, which, k):
    srd = sSRDA if which == 0 else sSRDB
    vo = (VDG if which == 0 else VDU)[k]
    off = f" offset:{1024*k}" if k else ""
    a(f"buffer_load_dwordx4 v{vo}, s[{srd}:{srd+3}], s{sSOFF} offen{off} lds")

def dma1_group(a, slot, q0=0, q1=6):
    for q in range(q0, q1):
        which, k = divmod(q, 3)
        if k == 0 or q == q0:
            a(f"s_add_u32 m0, s{sM0+which}, {slot*SLOT}")
            a("s_nop 0")
        dma1(a, which, k)

def p1_read(lk, kk, buf, tag):
    st, ks = divmod(kk % 36, 6)
    off = st*SLOT + ks*2048
    base = [vRA1, vRA1b, vRA1c][off // 65536]
    off %= 65536
    r = AF + 4*buf
    lk.issue(tag, f"ds_read_b64_tr_b16 v[{r}:{r+1}], v{base} offset:{off}")
    lk.issue(tag, f"ds_read_b64_tr_b16 v[{r+2}:{r+3}], v{base} offset:{off+512}")

P1_D = 3
P1_NB = 4
P1_BAR = 9
def set_p1(D):
    global P1_D, P1_NB, P1_BAR
    P1_D = D; P1_NB = {3: 4, 4: 6, 5: 6}[D]; P1_BAR = 12 - D
def gen_round(a, lk, cur, prev, rname, last_check=False, opts=None):
    opts = opts or {}
    nodma = opts.get("no_dma")
    accC, accP = ACC[cur], ACC[prev]
    gops = gelu_ops(accP) if not opts.get("no_gelu") else []
    G_START, G_END = 2, 24 + P1_BAR
    nslots = (G_END - G_START) * 2
    gi = 0
    def take_gelu(slot_idx):
        nonlocal gi
        tgt = (len(gops) * (slot_idx + 1) + nslots - 1) // nslots
        out = gops[gi:tgt]; gi = max(gi, tgt)
        return out
    for kk in range(36):
        pr, ks = divmod(kk, 12)
        buf = kk % P1_NB
        a.c(f"--- round {rname} kstep {kk}")
        if opts.get("rstamp") and kk == 0: a("s_memtime s[50:51]")
        lk.wait_for(("A", kk))
        cz = "0" if kk == 0 else V(accC, 16)
        a(f"v_mfma_f32_32x32x16_bf16 {V(accC,16)}, {V(AF+4*buf,4)}, {xn_frag(kk)}, {cz}")
        fill0, fill1 = [], []
        if G_START <= kk < G_END:
            fill0 += take_gelu((kk - G_START)*2)
            fill1 += take_gelu((kk - G_START)*2 + 1)
        if ks >= P1_BAR: q12 = ks - P1_BAR; gp = pr
        else: q12 = ks + (12 - P1_BAR); gp = (pr - 1) % 3
        half, q = divmod(q12, 6); which, k = divmod(q, 3)
        slot = 2*gp + half
        for x in fill0: a(x)
        if ks == P1_BAR:
            a("s_waitcnt vmcnt(12) lgkmcnt(0)") if not nodma else a("s_waitcnt lgkmcnt(0)")
            lk.wait_all()
            if opts.get("rstamp") and kk == P1_BAR:
                a("v_mov_b32 v2, s50\nv_cmp_eq_u32 vcc, s62, v1\ns_add_u32 s62, s62, 1\ns_nop 0\nv_cndmask_b32 v249, v249, v2, vcc")
            if not opts.get("no_barrier"): a("s_barrier")
        else:
            p1_read(lk, kk+P1_D, (kk+P1_D) % P1_NB, ("A", (kk+P1_D) % 36))
        cz = "0" if kk == 0 else V(accC+16, 16)
        a(f"v_mfma_f32_32x32x16_bf16 {V(accC+16,16)}, {V(AF+4*buf,4)}, {xn_frag(36+kk)}, {cz}")
        if ks == P1_BAR:
            p1_read(lk, kk+P1_D, (kk+P1_D) % P1_NB, ("A", (kk+P1_D) % 36))
            if last_check and pr == 0:
                a(f"s_cmp_lg_u32 s{sCNT}, 0\ns_cbranch_scc1 L_nosw")
                gen_switch(a)
                a.label("L_nosw")
        if not nodma and q == 0:
            inc = sINCW if slot == 0 else sINC
            a(f"s_add_u32 s{sSOFF}, s{sSOFF}, s{inc}")
            if last_check and slot == 3:
                a(f"s_cmp_eq_u32 s{sCNT}, 0")
                a(f"s_cselect_b32 s{sSRDA+2}, 0, s{sSRDA+2}\ns_cselect_b32 s{sSRDB+2}, 0, s{sSRDB+2}")
        if kk == G_END and gops:
            assert gi == len(gops) and k == 0
            a(f"s_set_gpr_idx_on s{sHIDX}, gpr_idx(DST)")
            a("s_nop 0")
            for qq in range(8): a(f"v_mov_b32 v{HREG+qq}, v{HP+qq}")
            a("s_set_gpr_idx_off")
            a(f"s_add_u32 s{sHIDX}, s{sHIDX}, 8")
        if rname == "A" and kk == 26:
            a(f"s_cmp_lg_u32 s{sCNT}, 3\ns_cbranch_scc1 L_noflag\ns_cmp_lg_u32 s{sW}, 0\ns_cbranch_scc1 L_noflag")
            a(f"s_lshl_b32 s{sT0}, s{sJ}, 2\nv_mov_b32 v2, s{sT0}\nv_mov_b32 v3, 1")
            a(f"v_cmp_eq_u32 vcc, 0, v{vLANE}\ns_and_saveexec_b64 s[{sEX}:{sEX+1}], vcc")
            a(f"buffer_atomic_add v3, v2, s[{sDBG}:{sDBG+3}], 0 offen sc1")
            a(f"s_mov_b64 exec, s[{sEX}:{sEX+1}]")
            a.label("L_noflag")
        if not nodma:
            if k == 0:
                a(f"s_add_u32 m0, s{sM0 + which}, {slot*SLOT}")
                if fill1: a(fill1.pop(0))
                else: a("s_nop 0")
            dma1(a, which, k)
        if kk == P1_BAR + 11 and not nodma and not opts.get("no_pf"):
            a(f"s_sub_u32 s{sPFU}, s{sPFU}, 1\ns_cmp_lg_u32 s{sPFU}, -1\ns_cbranch_scc1 L_nopf{rname}")
            a(f"buffer_load_dword v{vDUM}, v{vPF}, s[{sPFA}:{sPFA+3}], s{sPFO} offen")
            a(f"buffer_load_dword v{vDUM+1}, v{vPF2}, s[{sPFB}:{sPFB+3}], s{sPFO} offen")
            a.label(f"L_nopf{rname}")
        for x in fill1: a(x)

def gen_switch(a):
    a(f"s_mov_b32 s{sSRDA}, s{sWD}\ns_mov_b32 s{sSRDA+1}, s{sWD+1}\ns_mov_b32 s{sSRDB}, s{sWD}\ns_mov_b32 s{sSRDB+1}, s{sWD+1}")
    a(f"s_mul_i32 s{sT0}, s{sW}, {48*1152}")
    a(f"s_sub_u32 s{sT1}, {96*1152}, s{sT0}")
    for k in range(3):
        a(f"v_subrev_u32 v{VDG[k]}, s{sT0}, v{vD2+k}")
        a(f"v_add_u32 v{VDU[k]}, s{sT1}, v{vD2+k}")
    a(f"s_mul_i32 s{sSOFF}, s{sJ}, {576*1152}")
    a(f"s_mov_b32 s{sINCW}, 0")
    a(f"s_mov_b32 s{sINC}, {192*1152}")

def gen_pf_switch(a):
    a(f"s_mov_b32 s{sPFA}, s{sWD}\ns_mov_b32 s{sPFA+1}, s{sWD+1}")
    a(f"s_add_u32 s{sPFB}, s{sWD}, 256\ns_addc_u32 s{sPFB+1}, s{sWD+1}, 0")
    a(f"s_sub_u32 s{sPFB+2}, s{sPFA+2}, 256")
    a(f"v_mov_b32 v{vPF}, v{vPF2}")
    a(f"s_mul_i32 s{sPFO}, s{sJ}, {576*1152}")

S2 = 36864
def dma2(a, k):
    off = f" offset:{1024*(k%4)}" if k % 4 else ""
    a(f"buffer_load_dwordx4 v{vD2 + k%4}, s[{sSRDA}:{sSRDA+3}], s{sT3} offen{off} lds")

def dma2_pre(a, k, m0expr):
    if k % 4 == 0:
        a(m0expr(k//4))
        a(f"s_add_u32 s{sT3}, s{sSOFF}, {32*1152*(k//4)}")

def dma2_group(a, slot):
    for k in range(9):
        dma2_pre(a, k, lambda g: f"s_add_u32 m0, s{sM0}, {slot*S2 + 4096*g}")
        dma2(a, k)

def p2_read(lk, F, buf, tag):
    st, ks = divmod(F % 36, 18)
    off = st*S2 + ks*2048
    base = vRA2
    if off + 1024 > 65535:
        base = vRA2b; off -= 32768
    r = AF + 4*buf
    lk.issue(tag, f"ds_read_b64_tr_b16 v[{r}:{r+1}], v{base} offset:{off}")
    lk.issue(tag, f"ds_read_b64_tr_b16 v[{r+2}:{r+3}], v{base} offset:{off+1024}")

P2_NB = 9
P2_BAR = 8
P2_D = 7
def gen_p2_chunk(a, lk, opts, dma=True, tag=""):
    nodma = opts.get("no_dma")
    acc = ACC[0]
    for T in range(36):
        st, ks = divmod(T, 18)
        a.c(f"--- p2{tag} kstep {T}")
        if opts.get("rstamp") and T == 0: a("s_memtime s[50:51]")
        if opts.get("p2w2"):
            if T % 2 == 0: lk.wait_for(("B", T+1))
        else:
            lk.wait_for(("B", T))
        if ks == P2_BAR:
            if not nodma:
                if dma or st == 1: a("s_waitcnt vmcnt(11)") if (dma or True) else None
                else:
                    a(f"s_cmp_eq_u32 s{sCNT}, 2\ns_cbranch_scc1 L_p2w11\ns_waitcnt vmcnt(2)\ns_branch L_p2wj")
                    a.label("L_p2w11"); a("s_waitcnt vmcnt(11)"); a.label("L_p2wj")
            if opts.get("rstamp") and T == P2_BAR:
                a("s_waitcnt lgkmcnt(0)"); lk.wait_all()
                a("v_mov_b32 v2, s50\nv_cmp_eq_u32 vcc, s62, v1\ns_add_u32 s62, s62, 1\ns_nop 0\nv_cndmask_b32 v249, v249, v2, vcc")
            if not opts.get("no_barrier"): a("s_barrier")
        cz = "0" if T == 0 else V(acc, 16)
        a(f"v_mfma_f32_32x32x16_bf16 {V(acc,16)}, {V(AF+4*(T % P2_NB),4)}, {A(4*T,4)}, {cz}")
        if T == 36 - P2_D:
            a(f"v_xor_b32 v{vRA2}, {2*S2}, v{vRA2}")
            a(f"v_xor_b32 v{vRA2b}, {2*S2}, v{vRA2b}")
        F = T + P2_D
        p2_read(lk, F, (F % 36) % P2_NB, ("B", F % 36))
        def group_setup():
            if st == 0:
                a(f"s_add_u32 s{sSOFF}, s{sSOFF}, s{sINC}")
                a(f"s_xor_b32 s{sT2}, s{sB2}, {2*S2}\ns_add_u32 s{sT2}, s{sT2}, s{sM0}\ns_add_u32 s{sT2}, s{sT2}, {S2}")
            else:
                a(f"s_add_u32 s{sSOFF}, s{sSOFF}, s{sINCW}")
                a(f"s_add_u32 s{sT2}, s{sB2}, s{sM0}")
        if not nodma and dma and ks >= 9:
            k = ks - 9
            if k == 0: group_setup()
            if k % 4 == 0:
                a(f"s_add_u32 m0, s{sT2}, {4096*(k//4)}")
                a(f"s_add_u32 s{sT3}, s{sSOFF}, {32*1152*(k//4)}")
            dma2(a, k)
        if not nodma and not dma and st == 0 and ks == 9:
            a(f"s_cmp_lg_u32 s{sCNT}, 2\ns_cbranch_scc1 L_p2nog")
            group_setup()
            for k in range(9):
                if k % 4 == 0:
                    a(f"s_add_u32 m0, s{sT2}, {4096*(k//4)}")
                    a(f"s_add_u32 s{sT3}, s{sSOFF}, {32*1152*(k//4)}")
                dma2(a, k)
            a.label("L_p2nog")
    a.c("--- p2 chunk epilogue")
    a(f"s_xor_b32 s{sB2}, s{sB2}, {2*S2}")
    a(f"s_sub_u32 s{sCNT}, s{sCNT}, 1")
    a("s_nop 7")
    for q in range(8):
        a(f"v_cvt_pk_bf16_f32 v{GT+q}, v{acc+2*q}, v{acc+2*q+1}")
    for q in range(2):
        off = f" offset:{1024*q}" if q else ""
        a(f"buffer_store_dwordx4 {V(GT+4*q,4)}, v{vPST}, s[{sSRDW}:{sSRDW+3}], s{sPOFF} offen{off} sc1")
    a(f"s_add_u32 s{sPOFF}, s{sPOFF}, {4*2048}")

ONES_BF = 0x3f803f80
sPFLG = 56
sPAR = 28
sPP = 29
def gen_q_addr(a, p):
    if p == 0:
        a(f"v_and_b32 v2, 7, v{vLANE}\nv_mul_u32_u24 v2, 1152, v2\nv_lshrrev_b32 v3, 3, v{vLANE}\nv_lshl_add_u32 v248, v3, 4, v2")
    a(f"s_xor_b32 s{sPP}, s{sPAR}, {p}")
    a(f"s_lshl_b32 s{sT0}, s{sI}, 6\ns_lshl_b32 s{sT1}, s{sW}, 4\ns_add_u32 s{sT0}, s{sT0}, s{sT1}\ns_lshl_b32 s{sT1}, s{sPP}, 3\ns_add_u32 s{sT0}, s{sT0}, s{sT1}\ns_mul_i32 s{sT0}, s{sT0}, 1152")

def gen_q_loads(a, QREG, p, addr=True):
    if addr: gen_q_addr(a, p)
    for m in range(9):
        off = f" offset:{128*m}" if m else ""
        a(f"buffer_load_dwordx4 v[{QREG+36*p+4*m}:{QREG+36*p+4*m+3}], v248, s[{sQ}:{sQ+3}], s{sT0} offen{off}{NT['q']}")

LT = 32
def gen_ln_setup(a):
    T = LT
    vB = T+10
    a(f"v_lshrrev_b32 v{T+8}, 3, v{vLANE}\nv_lshrrev_b32 v{T+9}, 1, v{T+8}\nv_lshlrev_b32 v{vB}, 10, v{T+9}")
    a(f"v_and_b32 v{T+9}, 1, v{T+8}\nv_lshl_add_u32 v{vB}, v{T+9}, 9, v{vB}")
    a(f"v_and_b32 v{T+9}, 7, v{vLANE}\nv_lshl_add_u32 v{vB}, v{T+9}, 4, v{vB}")
    a(f"s_lshr_b32 s{sT0}, s{sW}, 1\ns_mul_i32 s{sT0}, s{sT0}, 36864")
    a(f"s_and_b32 s{sT1}, s{sW}, 1\ns_lshl_b32 s{sT1}, s{sT1}, 8")
    a(f"s_add_u32 s{sT0}, s{sT0}, s{sT1}\ns_add_u32 s{sT0}, s{sT0}, {HB}")
    a(f"v_add_u32 v{vB}, s{sT0}, v{vB}")
    vSt = T+11
    a(f"s_lshl_b32 s{sT0}, s{sW}, 6\ns_add_u32 s{sT0}, s{sT0}, {LDS_STAT}")
    a(f"v_lshlrev_b32 v{vSt}, 2, v{T+9}\nv_add_u32 v{vSt}, s{sT0}, v{vSt}")
    vG = T+12
    a(f"s_lshl_b32 s{sT0}, s{sI}, 6\ns_lshl_b32 s{sT1}, s{sW}, 4\ns_add_u32 s{sT0}, s{sT0}, s{sT1}")
    a(f"v_add_u32 v{vG}, s{sT0}, v{T+9}\nv_lshlrev_b32 v{vG}, 3, v{vG}\nv_add_u32 v{vG}, {WS_STATS}, v{vG}")

def gen_ln_pass(a, QREG, p):
    T = LT
    vS, vQ2, vB, vSt, vG = T, T+4, T+10, T+11, T+12
    X = QREG + 36*p
    a(f"s_mov_b32 s{sT2}, {hex(ONES_BF)}\ns_mov_b32 s{sT3}, 0x00003f80\ns_mov_b32 s{sEX}, 0x3f800000")
    a(f"s_xor_b32 s{sPP}, s{sPAR}, {p}")
    a(f"s_lshl_b32 s{sT0}, s{sPP}, 7\nv_add_u32 v{T+13}, s{sT0}, v{vB}\ns_lshl_b32 s{sT0}, s{sPP}, 5\nv_add_u32 v{T+14}, s{sT0}, v{vSt}")
    for k in range(4): a(f"v_mov_b32 v{vS+k}, 0\nv_mov_b32 v{vQ2+k}, 0")
    for d in range(36):
        a(f"v_dot2c_f32_bf16 v{vS+d%4}, s{sT2}, v{X+d}")
        a(f"v_dot2c_f32_bf16 v{vQ2+d%4}, v{X+d}, v{X+d}")
    a("s_nop 2")
    a(f"v_add_f32 v{vS}, v{vS}, v{vS+1}\nv_add_f32 v{vS+2}, v{vS+2}, v{vS+3}")
    a(f"v_add_f32 v{vQ2}, v{vQ2}, v{vQ2+1}\nv_add_f32 v{vQ2+2}, v{vQ2+2}, v{vQ2+3}")
    a(f"v_add_f32 v{vS}, v{vS}, v{vS+2}\nv_add_f32 v{vQ2}, v{vQ2}, v{vQ2+2}")
    a("s_nop 1")
    a(f"v_add_f32_dpp v{vS}, v{vS}, v{vS} row_ror:8 row_mask:0xf bank_mask:0xf")
    a(f"v_add_f32_dpp v{vQ2}, v{vQ2}, v{vQ2} row_ror:8 row_mask:0xf bank_mask:0xf")
    for sw in ("v_permlane16_swap_b32", "v_permlane32_swap_b32"):
        a(f"v_mov_b32 v{vS+1}, v{vS}\nv_mov_b32 v{vQ2+1}, v{vQ2}")
        a("s_nop 1")
        a(f"{sw} v{vS}, v{vS+1}\n{sw} v{vQ2}, v{vQ2+1}")
        a("s_nop 1")
        a(f"v_add_f32 v{vS}, v{vS}, v{vS+1}\nv_add_f32 v{vQ2}, v{vQ2}, v{vQ2+1}")
    inv = hex(f2u(1.0/576.0))
    a(f"v_mul_f32 v{vS}, {inv}, v{vS}\nv_mul_f32 v{vQ2}, {inv}, v{vQ2}")
    a(f"v_fma_f32 v{vQ2}, -v{vS}, v{vS}, v{vQ2}\nv_max_f32 v{vQ2}, 0, v{vQ2}")
    a(f"v_cvt_pk_bf16_f32 v{vS+1}, v{vS}, v{vQ2}")
    a(f"v_and_b32 v{vQ2}, 0xffff0000, v{vS+1}\nv_lshlrev_b32 v{vS}, 16, v{vS+1}")
    a(f"v_add_f32 v{vQ2}, {hex(f2u(1e-5))}, v{vQ2}")
    a(f"v_cvt_pk_bf16_f32 v{vQ2}, v{vQ2}, v{vQ2}\nv_lshlrev_b32 v{vQ2}, 16, v{vQ2}")
    a(f"v_sqrt_f32 v{vQ2}, v{vQ2}\ns_nop 0")
    a(f"v_cvt_pk_bf16_f32 v{vQ2}, v{vQ2}, v{vQ2}\nv_lshlrev_b32 v{vS+1}, 16, v{vQ2}")
    a(f"v_rcp_f32 v{vQ2}, v{vS+1}\nv_sub_f32 v{vS+2}, 0, v{vS}")
    a(f"ds_write_b32 v{T+14}, v{vQ2}")
    a(f"s_lshl_b32 s{sT0}, s{sPP}, 6\ns_cmp_eq_u32 s{sJ}, 0\ns_cselect_b32 s{sT0}, s{sT0}, 0x7ff00000")
    a(f"buffer_store_dwordx2 v[{vS}:{vS+1}], v{vG}, s[{sSRDW}:{sSRDW+3}], s{sT0} offen sc1")
    D = T+16
    for m in range(9):
        tb = D + 12*(m % 2)
        for e in range(4):
            a(f"v_dot2_f32_bf16 v{tb+2*e}, v{X+4*m+e}, s{sT3}, v{vS+2}")
            a(f"v_dot2_f32_bf16 v{tb+2*e+1}, v{X+4*m+e}, s{sEX}, v{vS+2}")
        if m > 0:
            pb = D + 12*((m-1) % 2)
            for e in range(4): a(f"v_cvt_pk_bf16_f32 v{pb+8+e}, v{pb+2*e}, v{pb+2*e+1}")
            a(f"ds_write_b128 v{T+13}, v[{pb+8}:{pb+11}] offset:{(m-1)*4096}")
    pb = D
    a("s_nop 2")
    for e in range(4): a(f"v_cvt_pk_bf16_f32 v{pb+8+e}, v{pb+2*e}, v{pb+2*e+1}")
    a(f"ds_write_b128 v{T+13}, v[{pb+8}:{pb+11}] offset:{8*4096}")

KCO = 160
def interleave(a, main_lines, side_groups, start=8):
    n = len(main_lines); g = len(side_groups)
    pos = [start + (n - start - 4) * k // max(g, 1) for k in range(g)]
    lab = None
    k = 0
    for idx, l in enumerate(main_lines):
        if idx > 0 and main_lines[idx-1].startswith("s_cmp"):
            pos = [p + 1 if p == idx else p for p in pos]
        while k < g and pos[k] <= idx and not (idx > 0 and main_lines[idx-1].startswith("s_cmp")):
            for x in side_groups[k]: a.lines.append(x)
            k += 1
        a.lines.append(l)
    while k < g:
        for x in side_groups[k]: a.lines.append(x)
        k += 1

def groups_of(lines):
    out, cur = [], []
    for l in lines:
        cur.append(l)
        if l.startswith("buffer_") or l.startswith("global_"):
            out.append(cur); cur = []
    if cur: out.append(cur)
    return out

def gen_kv_loads(a, KREG, vP9, vRUN):
    a(f"s_mul_i32 s52, s{sW}, 36\nv_min_u32 v120, 35, v{vLANE}\nv_add_u32 v120, s52, v120")
    a(f"s_mov_b32 s53, {(2**32 + 8)//9}\nv_mul_hi_u32 v{vRUN}, v120, s53")
    a(f"v_mul_u32_u24 v{vP9}, 9, v{vRUN}\nv_sub_u32 v{vP9}, v120, v{vP9}")
    a(f"s_lshl_b32 s52, s{sI}, 6\nv_lshlrev_b32 v121, 2, v{vRUN}\nv_add_u32 v121, s52, v121\nv_mul_u32_u24 v121, 1152, v121")
    a(f"s_mul_i32 s52, s{sJ}, 144\nv_lshl_add_u32 v122, v{vP9}, 4, v121\nv_add_u32 v122, s52, v122")
    for r in range(7):
        if r < 3:
            a(f"v_add_u32 v121, {(r-3)*1152 & 0xffffffff}, v122")
            a(f"buffer_load_dwordx4 v[{KREG+4*r}:{KREG+4*r+3}], v121, s[{sK}:{sK+3}], 0 offen{NT['kv']}")
        else:
            off = f" offset:{1152*(r-3)}" if r > 3 else ""
            a(f"buffer_load_dwordx4 v[{KREG+4*r}:{KREG+4*r+3}], v122, s[{sK}:{sK+3}], 0 offen{off}{NT['kv']}")
    for r in range(4):
        off = f" offset:{1152*r}" if r else ""
        a(f"buffer_load_dwordx4 v[{KREG+28+4*r}:{KREG+28+4*r+3}], v122, s[{sV}:{sV+3}], 0 offen{off}{NT['kv']}")
    a(f"s_mul_i32 s52, s{sJ}, 576\nv_lshlrev_b32 v121, 6, v{vP9}")
    for r in range(4):
        off = f" offset:{16*r}" if r else ""
        a(f"buffer_load_dwordx4 v[{KCO+4*r}:{KCO+4*r+3}], v121, s[{sSK}:{sSK+3}], s52 offen{off}")

def gen_kv_compute(a, KREG, vP9, vRUN):
    KU, SU, AC, VU = 32, 88, 120, 152
    a(f"s_mov_b32 s52, 0xffff0000")
    for r in range(7):
        for e in range(4):
            a(f"v_lshlrev_b32 v{KU+8*r+2*e}, 16, v{KREG+4*r+e}\nv_and_b32 v{KU+8*r+2*e+1}, s52, v{KREG+4*r+e}")
    for c in range(8):
        for jj in range(2):
            src = KREG + 44 + 2*c + jj
            a(f"v_lshlrev_b32 v{SU+8*(2*jj)+c}, 16, v{src}\nv_and_b32 v{SU+8*(2*jj+1)+c}, s52, v{src}")
    a(f"v_lshlrev_b32 v62, 2, v{vRUN}\nv_sub_u32 v62, 63, v62\nv_mul_u32_u24 v62, 160, v62")
    a(f"v_lshl_add_u32 v62, v{vP9}, 4, v62\nv_add_u32 v62, {LDS_KV - 3*160}, v62")
    for tok in range(4):
        for jj in (3, 2, 1, 0):
            for pr in range(4):
                d = f"v[{AC+8*tok+2*pr}:{AC+8*tok+2*pr+1}]"
                kk = f"v[{KU+8*(tok+3-jj)+2*pr}:{KU+8*(tok+3-jj)+2*pr+1}]"
                ss = f"v[{SU+8*jj+2*pr}:{SU+8*jj+2*pr+1}]"
                a(f"v_pk_mul_f32 {d}, {kk}, {ss}" if jj == 3 else f"v_pk_fma_f32 {d}, {kk}, {ss}, {d}")
        for e in range(4):
            a(f"v_lshlrev_b32 v{VU+2*e}, 16, v{KREG+28+4*tok+e}\nv_and_b32 v{VU+2*e+1}, s52, v{KREG+28+4*tok+e}")
        for pr in range(4):
            d = f"v[{AC+8*tok+2*pr}:{AC+8*tok+2*pr+1}]"
            a(f"v_pk_mul_f32 {d}, {d}, v[{VU+2*pr}:{VU+2*pr+1}]")
        for e in range(4):
            a(f"v_cvt_pk_bf16_f32 v{VU+8+e}, v{AC+8*tok+2*e}, v{AC+8*tok+2*e+1}")
        a(f"ds_write_b128 v62, v[{VU+8}:{VU+11}] offset:{(3-tok)*160}")

def gen_kv_store(a):
    a(f"v_and_b32 v2, 15, v{vLANE}\nv_lshrrev_b32 v3, 4, v{vLANE}\nv_lshrrev_b32 v4, 2, v2")
    a(f"v_lshl_add_u32 v4, v3, 3, v4\nv_mul_u32_u24 v4, 160, v4\nv_and_b32 v5, 3, v2\nv_lshl_add_u32 v4, v5, 3, v4\nv_add_u32 v4, {LDS_KV}, v4")
    a(f"s_mul_i32 s{sT0}, s{sJ}, 72\nv_add_u32 v5, s{sT0}, v2\nv_lshlrev_b32 v5, 12, v5\nv_lshl_add_u32 v5, v3, 4, v5")
    a(f"s_lshl_b32 s{sT0}, s{sI}, 7\ns_sub_u32 s{sT0}, {WS_KVR + 1984*2}, s{sT0}\nv_add_u32 v5, s{sT0}, v5")
    a("v_mov_b32 v7, 0x7ff00000")
    for u in range(3):
        a(f"s_add_u32 s{sT0}, s{sW}, {4*u}")
        a(f"s_lshr_b32 s{sT1}, s{sT0}, 1\ns_and_b32 s{sT2}, s{sT0}, 1")
        a(f"s_mul_i32 s{sT3}, s{sT2}, {32*160}\ns_lshl_b32 s{sEX}, s{sT1}, 5\ns_add_u32 s{sT3}, s{sT3}, s{sEX}")
        a(f"v_add_u32 v6, s{sT3}, v4")
        r = 32 + 4*u
        a(f"ds_read_b64_tr_b16 v[{r}:{r+1}], v6\nds_read_b64_tr_b16 v[{r+2}:{r+3}], v6 offset:{4*160}")
        a(f"s_lshl_b32 s{sT3}, s{sT1}, 16\ns_lshl_b32 s{sT2}, s{sT2}, 6\ns_add_u32 s{sT3}, s{sT3}, s{sT2}")
        a(f"v_add_u32 v{44+u}, s{sT3}, v5")
        a(f"s_cmp_eq_u32 s{sT1}, 4\ns_cselect_b32 s{sT2}, 8, 16\ns_cmp_gt_u32 s{sT1}, 4\ns_cselect_b32 s{sT2}, 0, s{sT2}")
        a(f"v_cmp_gt_u32 vcc, s{sT2}, v2\ns_nop 1\nv_cndmask_b32 v{44+u}, v7, v{44+u}, vcc")
    a("s_waitcnt lgkmcnt(0)")
    for u in range(3):
        a(f"buffer_store_dwordx4 v[{32+4*u}:{35+4*u}], v{44+u}, s[{sSRDW}:{sSRDW+3}], 0 offen sc1")

def gen_bulk_pf(a, nshare, opts):
    nw = nshare*4
    per = -(-4608 // nw)
    n_ins = -(-per // 64)
    assert n_ins == 1 or True
    for it in range(n_ins):
        cnt = min(64, per - 64*it)
        a(f"s_mul_i32 s54, s{sOM}, {per}\ns_add_u32 s54, s54, {64*it}\nv_min_u32 v123, {cnt-1}, v{vLANE}\nv_add_u32 v123, s54, v123\nv_min_u32 v123, 4607, v123")
        a(f"s_mov_b32 s55, {(2**32 + 575)//576}\nv_mul_hi_u32 v124, v123, s55\nv_mul_u32_u24 v125, 576, v124\nv_sub_u32 v125, v123, v125\nv_mul_u32_u24 v125, 9216, v125\nv_lshl_add_u32 v125, v124, 7, v125")
        a(f"s_mul_i32 s55, s{sJ}, 1152\ns_add_u32 s55, s55, 128")
        a(f"buffer_load_dword v{vDUM}, v125, s[{sSRDA}:{sSRDA+3}], s55 offen{NT['pf']}")
        a(f"buffer_load_dword v{vDUM+1}, v125, s[{sSRDB}:{sSRDB+3}], s55 offen{NT['pf']}")


def gen_wd_pf(a, nshare, c0, c1):
    nw = nshare*4
    nc = c1 - c0
    tot = 576*nc
    per = -(-tot // nw)
    assert per <= 64
    a(f"s_mul_i32 s54, s{sOM}, {per}\nv_min_u32 v123, {per-1}, v1\nv_add_u32 v123, s54, v123\nv_min_u32 v123, {tot-1}, v123")
    a(f"s_mov_b32 s55, {(2**32 + 575)//576}\nv_mul_hi_u32 v124, v123, s55\nv_mul_u32_u24 v125, 576, v124\nv_sub_u32 v125, v123, v125\nv_mul_u32_u24 v125, 1152, v125\nv_lshl_add_u32 v125, v124, 7, v125")
    a(f"s_mul_i32 s55, s{sJ}, {576*1152}\ns_add_u32 s55, s55, {128*c0}")
    a(f"buffer_load_dword v{vDUM+2}, v125, s[{sWDS}:{sWDS+3}], s55 offen")

def gen_pf_setup(a, nshare):
    nw = nshare*4
    NL = -(-576 // nw)
    a(f"s_mul_i32 s{sT0}, s{sOM}, {NL}\nv_min_u32 v2, {NL-1}, v{vLANE}\nv_add_u32 v2, s{sT0}, v2\nv_min_u32 v2, 575, v2")
    a(f"v_mul_u32_u24 v{vPF}, 9216, v2")

def gen_pf_unit(a, nshare):
    nparts = nshare // 8
    NL = -(-576 // (nparts*4))
    assert NL <= 64
    a(f"s_lshr_b32 s{sT0}, s{sOM}, 2\ns_and_b32 s{sPFU}, s{sT0}, 7\ns_lshr_b32 s{sT0}, s{sT0}, 3")
    a(f"s_lshl_b32 s{sT0}, s{sT0}, 2\ns_add_u32 s{sT0}, s{sT0}, s{sW}\ns_mul_i32 s{sT0}, s{sT0}, {NL}")
    a(f"v_min_u32 v2, {NL-1}, v{vLANE}\nv_add_u32 v2, s{sT0}, v2\nv_min_u32 v2, 575, v2")
    a(f"s_cmp_lt_u32 s{sPFU}, 6\ns_cbranch_scc0 L_pfwd")
    a(f"v_mul_u32_u24 v{vPF}, 9216, v2\nv_mov_b32 v{vPF2}, v{vPF}")
    a(f"s_mov_b32 s{sPFA}, s{sSRDA}\ns_mov_b32 s{sPFA+1}, s{sSRDA+1}\ns_mov_b32 s{sPFB}, s{sSRDB}\ns_mov_b32 s{sPFB+1}, s{sSRDB+1}")
    a(f"s_mul_i32 s{sPFO}, s{sJ}, 1152\ns_add_u32 s{sT0}, s{sPFU}, 3\ns_lshl_b32 s{sT0}, s{sT0}, 7\ns_add_u32 s{sPFO}, s{sPFO}, s{sT0}")
    a("s_branch L_pfok")
    a.label("L_pfwd")
    a(f"v_mul_u32_u24 v{vPF}, 1152, v2\nv_add_u32 v{vPF2}, 128, v{vPF}")
    a(f"s_mov_b32 s{sPFA}, s{sWD}\ns_mov_b32 s{sPFA+1}, s{sWD+1}\ns_mov_b32 s{sPFB}, s{sWD}\ns_mov_b32 s{sPFB+1}, s{sWD+1}")
    a(f"s_mul_i32 s{sPFO}, s{sJ}, {576*1152}\ns_sub_u32 s{sT0}, s{sPFU}, 6\ns_lshl_b32 s{sT0}, s{sT0}, 8\ns_add_u32 s{sPFO}, s{sPFO}, s{sT0}")
    a.label("L_pfok")
    a(f"s_mov_b32 s{sPFA+2}, {576*4608*2}\ns_mov_b32 s{sPFA+3}, 0x00020000\ns_mov_b32 s{sPFB+2}, {576*4608*2}\ns_mov_b32 s{sPFB+3}, 0x00020000")

CV_CP = 4160
CV_WAVE = 4*CV_CP
sC, sCB, sCT, sCU, sXR = 70, 71, 76, 77, 78
HL = 64
vDC = 94
def poll(a, name, voff_reg, srd, soff, target, scnt, cmp="ge", sleep=8):
    a(f"s_mov_b32 s{scnt}, 0")
    a.label(f"L_poll_{name}")
    a(f"buffer_load_dword v3, v{voff_reg}, s[{srd}:{srd+3}], {soff} offen sc1")
    a("s_waitcnt vmcnt(0)")
    a(f"v_cmp_{'le' if cmp == 'ge' else 'eq'}_u32 vcc, {target}, v3")
    a(f"s_add_u32 s{scnt}, s{scnt}, 1")
    a(f"s_cmp_eq_u64 vcc, exec\ns_cbranch_scc1 L_pollok_{name}")
    a(f"s_cmp_lt_u32 s{scnt}, 20000\ns_cbranch_scc0 L_pollok_{name}")
    a(f"s_sleep {sleep}\ns_branch L_poll_{name}")
    a.label(f"L_pollok_{name}")

def gen_conv_issue(a, stamps):
    a(f"v_and_b32 v11, 7, v{vLANE}\nv_lshlrev_b32 v11, 2, v11")
    a(f"buffer_load_dword v95, v11, s[{sDBG}:{sDBG+3}], 0 offen sc1")
    a(f"s_cmp_ge_u32 s{sC}, 576\ns_cbranch_scc1 L_conv_skip1")
    a(f"s_mul_i32 s{sCB}, s{sW}, {CV_WAVE}\ns_add_u32 s{sCB}, s{sCB}, {HB}")
    a(f"s_mul_i32 s{sXR}, s{sW}, 4608\ns_add_u32 s{sXR}, s{sXR}, {LDS_XR}")
    a(f"s_lshl_b32 s{sCT}, s{sC}, 12")
    a(f"s_add_u32 s88, s{sHK}, s{sCT}\ns_addc_u32 s89, s{sHK+1}, 0\ns_mov_b32 s90, 4096\ns_mov_b32 s91, 0x00020000")
    for o in range(5):
        a(f"v_add_u32 v5, {(1024*o - 16) & 0xffffffff}, v{vPST}")
        a(f"buffer_load_dwordx4 v[{HL+6*o}:{HL+6*o+3}], v5, s[88:91], 0 offen{NT['h']}")
        a(f"v_add_u32 v6, {1024*o}, v{vPST}")
        a(f"buffer_load_dwordx2 v[{HL+6*o+4}:{HL+6*o+5}], v6, s[88:91], 0 offen{NT['h']}")
    a(f"s_lshl_b32 s{sCT}, s{sC}, 1\nv_mov_b32 v4, s{sCT}")
    a(f"buffer_load_ushort v{vDC}, v4, s[{sD}:{sD+3}], 0 offen")
    a.label("L_conv_skip1")

def gen_conv_issue2(a):
    a(f"s_cmp_ge_u32 s{sC}, 576\ns_cbranch_scc1 L_ci2a")
    a("s_waitcnt vmcnt(12)")
    a("s_branch L_ci2b")
    a.label("L_ci2a")
    a("s_waitcnt vmcnt(1)")
    a.label("L_ci2b")
    a(f"v_cmp_le_u32 vcc, 32, v95\ns_nop 0\ns_cmp_eq_u64 vcc, exec\ns_cbranch_scc1 L_kvok")
    poll(a, "kv", 11, sDBG, 0, 32, sCU)
    a.label("L_kvok")
    a(f"s_cmp_ge_u32 s{sC}, 576\ns_cbranch_scc1 L_conv_skip2")
    a(f"s_lshl_b32 s{sCT}, s{sC}, 12\ns_add_u32 s{sCT}, s{sCT}, {WS_KVR}")
    a(f"s_mov_b32 m0, s{sXR}\ns_nop 0")
    for k in range(4):
        off = f" offset:{1024*k}" if k else ""
        a(f"buffer_load_dwordx4 v{vPST}, s[{sSRDW}:{sSRDW+3}], s{sCT} offen{off} sc1 lds")
    a.label("L_conv_skip2")

def publish_partial(a):
    a("s_waitcnt vmcnt(0)")
    a(f"v_mov_b32 v4, 0\nv_mov_b32 v5, 1")
    a(f"v_cmp_eq_u32 vcc, 0, v{vLANE}\ns_and_saveexec_b64 s[{sEX}:{sEX+1}], vcc")
    a(f"buffer_store_dword v5, v4, s[{sSRDW}:{sSRDW+3}], s{sPFLG} offen sc1")
    a(f"s_mov_b64 exec, s[{sEX}:{sEX+1}]")

def gen_conv_main(a, stamps):
    a(f"s_cmp_ge_u32 s{sC}, 576\ns_cbranch_scc1 L_noconv")
    for r in range(4): a(f"v_mov_b32 v{32+r}, 0")
    a(f"v_add_u32 v5, s{sXR}, v{vPST}")
    a(f"v_cmp_gt_u32 vcc, 32, v{vLANE}\ns_and_saveexec_b64 s[{sEX}:{sEX+1}], vcc")
    a(f"ds_write_b128 v5, v[32:35] offset:4096")
    a(f"s_mov_b64 exec, s[{sEX}:{sEX+1}]")
    a(f"v_mul_u32_u24 v6, {CV_CP}, v{vLANE}\nv_add_u32 v6, s{sCB}, v6")
    a(f"v_cmp_gt_u32 vcc, 4, v{vLANE}\ns_and_saveexec_b64 s[{sEX}:{sEX+1}], vcc")
    a(f"ds_write_b128 v6, v[32:35]")
    a(f"s_mov_b64 exec, s[{sEX}:{sEX+1}]")
    a(f"v_add_u32 v7, s{sCB}, v{vPST}")
    stamp(a, 17, stamps)
    for o in range(5):
        P = HL + 6*o
        t = 96 + 16*(o % 2)
        if o == 4:
            a(f"v_cmp_eq_u32 vcc, 0, v{vLANE}\ns_and_saveexec_b64 s[{sEX}:{sEX+1}], vcc")
        for n in range(4):
            a(f"v_mov_b32 v{t+n}, v{P+n}")
            a(f"v_alignbit_b32 v{t+4+n}, v{P+n+1}, v{P+n}, 16")
            a(f"v_mov_b32 v{t+8+n}, v{P+n+1}")
            a(f"v_alignbit_b32 v{t+12+n}, v{P+n+2}, v{P+n+1}, 16")
        for s_ in range(4):
            a(f"ds_write_b128 v7, v[{t+4*s_}:{t+4*s_+3}] offset:{s_*CV_CP + 16 + 1024*o}")
        if o == 4: a(f"s_mov_b64 exec, s[{sEX}:{sEX+1}]")
    a(f"v_and_b32 v14, 15, v{vLANE}\nv_lshrrev_b32 v15, 4, v{vLANE}")
    a(f"v_lshlrev_b32 v16, 5, v14\nv_lshlrev_b32 v17, 4, v15\nv_sub_u32 v16, v17, v16")
    a(f"s_add_u32 s{sCT}, s{sXR}, {2*(2032 - 32*56)}\nv_add_u32 v16, s{sCT}, v16")
    a(f"v_add_u32 v2, 1, v14\nv_and_b32 v3, 3, v2\nv_mul_u32_u24 v3, {CV_CP}, v3\nv_lshrrev_b32 v2, 2, v2")
    a(f"v_lshl_add_u32 v3, v2, 3, v3\nv_lshl_add_u32 v3, v15, 4, v3\nv_add_u32 v13, s{sCB}, v3")
    a("s_waitcnt lgkmcnt(0)")
    stamp(a, 19, stamps)
    lk = Lgkm(a)
    NB = 6; FB = 96; ACCB = 32
    def rdF(m):
        r = FB + 4*(m % NB)
        lk.issue(("F", m), f"ds_read_b64 v[{r}:{r+1}], v13 offset:{64*m}")
        lk.issue(("F", m), f"ds_read_b64 v[{r+2}:{r+3}], v13 offset:{64*m+8}")
    def rdG(i):
        lk.issue(("G", i), f"ds_read_b128 {A(4*(i+7),4)}, v16 offset:{(56-i)*64}")
    rdF(0)
    for T in range(8): rdG(8*T)
    rdF(1)
    for m in range(64):
        T0 = max(0, -(-(m-7)//8))
        if m == 9:
            stamp(a, 25, stamps); publish_partial(a); stamp(a, 26, stamps)
        if m == 32:
            gen_pflag_addr(a, 12, f"s{sW}")
            a(f"buffer_load_dword v11, v12, s[{sSRDW}:{sSRDW+3}], 0 offen sc1")
        if m == 48:
            stamp(a, 27, stamps)
            a("s_waitcnt vmcnt(0)")
            a(f"v_cmp_eq_u32 vcc, 1, v11\ns_nop 0\ns_cmp_eq_u64 vcc, exec\ns_cbranch_scc1 L_pf_ok")
            poll(a, "pA", 12, sSRDW, "0", 1, sT0, cmp="eq", sleep=4)
            a.label("L_pf_ok")
            stamp(a, 18, stamps)
            gen_final_addr(a)
            gen_final_loads(a)
            stamp(a, 9, stamps)
        lk.wait_for(("F", m))
        pend = []
        if m + 1 < 8: pend += [("G", 8*T - (m+1)) for T in range(8)]
        if m + 2 < 64: pend += [("F", m+2)]
        for T in range(T0, 8):
            if m < 8: lk.wait_for(("G", 8*T - m))
            c_ = "0" if m == 0 else f"v[{ACCB+4*T}:{ACCB+4*T+3}]"
            a(f"v_mfma_f32_16x16x32_bf16 v[{ACCB+4*T}:{ACCB+4*T+3}], v[{FB+4*(m%NB)}:{FB+4*(m%NB)+3}], {A(4*(8*T-m+7),4)}, {c_}")
            if pend:
                k, x = pend.pop(0)
                (rdG if k == "G" else rdF)(x)
        for k, x in pend: (rdG if k == "G" else rdF)(x)
    stamp(a, 21, stamps)
    a(f"v_lshlrev_b32 v5, 5, v14\nv_lshlrev_b32 v17, 3, v15\nv_add_u32 v17, v5, v17")
    a(f"s_add_u32 s{sCT}, s{sXR}, {2*2044 - 7*512}\nv_sub_u32 v2, s{sCT}, v17")
    for T in range(8): a(f"ds_read_b64 v[{96+2*T}:{97+2*T}], v2 offset:{(7-T)*512}")
    a(f"v_lshlrev_b32 v{vDC}, 16, v{vDC}")
    a(f"s_lshl_b32 s{sCT}, s{sC}, 12\ns_add_u32 s{sCT}, s{sCT}, {WS_ZT}\ns_mov_b32 s{sCU}, 0xffff0000")
    a("s_waitcnt lgkmcnt(0)")
    for T in range(8):
        kv = 96+2*T; ac = ACCB+4*T; t = 112 + 6*(T % 2)
        a(f"v_and_b32 v{t}, s{sCU}, v{kv+1}\nv_lshlrev_b32 v{t+1}, 16, v{kv+1}\nv_and_b32 v{t+2}, s{sCU}, v{kv}\nv_lshlrev_b32 v{t+3}, 16, v{kv}")
        for r in range(4): a(f"v_fmac_f32 v{ac+r}, v{t+r}, v{vDC}")
        a(f"v_cvt_pk_bf16_f32 v{t+4}, v{ac}, v{ac+1}\nv_cvt_pk_bf16_f32 v{t+5}, v{ac+2}, v{ac+3}")
        off = f" offset:{512*T}" if T else ""
        a(f"buffer_store_dwordx2 v[{t+4}:{t+5}], v17, s[{sSRDW}:{sSRDW+3}], s{sCT} offen{off} sc1")

def gen_pflag_addr(a, vdst, swave):
    a(f"s_lshl_b32 s{sT0}, s{sI}, 7\ns_lshl_b32 s{sT1}, {swave}, 2\ns_add_u32 s{sT0}, s{sT0}, s{sT1}\ns_add_u32 s{sT0}, s{sT0}, {WS_FLAG}")
    a(f"v_and_b32 v{vdst}, 7, v{vLANE}\nv_lshlrev_b32 v{vdst}, 4, v{vdst}\nv_add_u32 v{vdst}, s{sT0}, v{vdst}")

sFC, sFW, sST = 57, 55, 54
FP, FS, FX, FZ, FST = 128, 192, 208, 216, 232
def gen_final_addr(a):
    a(f"s_lshr_b32 s{sT0}, s{sFW}, 1\ns_and_b32 s{sT1}, s{sFW}, 1")
    a(f"v_and_b32 v3, 31, v{vLANE}\nv_lshrrev_b32 v4, 5, v{vLANE}")
    a(f"s_lshl_b32 s{sT2}, s{sI}, 6\ns_lshl_b32 s{sT0}, s{sT0}, 5\ns_add_u32 s{sT2}, s{sT2}, s{sT0}\nv_add_u32 v5, s{sT2}, v3")
    a(f"s_lshl_b32 s{sT2}, s{sFC}, 6\ns_lshl_b32 s{sT1}, s{sT1}, 5\ns_add_u32 s{sT2}, s{sT2}, s{sT1}")
    a(f"v_lshlrev_b32 v6, 2, v4\nv_add_u32 v6, s{sT2}, v6")
    a(f"v_mul_u32_u24 v7, 1152, v5\nv_lshl_add_u32 v7, v6, 1, v7")
    a(f"v_lshlrev_b32 v8, 12, v6\nv_lshl_add_u32 v8, v5, 1, v8\nv_add_u32 v8, {WS_ZT}, v8")
    a(f"v_lshlrev_b32 v9, 3, v5\nv_add_u32 v9, {WS_STATS}, v9")

def gen_final_loads(a):
    isz = 2048
    a(f"s_mul_i32 s{sT2}, s{sI}, 9\ns_add_u32 s{sT2}, s{sT2}, s{sFC}\ns_lshl_b32 s{sT2}, s{sT2}, 2\ns_add_u32 s{sT2}, s{sT2}, s{sFW}\ns_mul_i32 s{sT2}, s{sT2}, {isz}\ns_add_u32 s{sT2}, s{sT2}, {WS_PART}")
    for j in range(8):
        for q in range(2):
            r = FP + (j*2 + q)*4
            off = f" offset:{1024*q}" if q else ""
            a(f"buffer_load_dwordx4 v[{r}:{r+3}], v{vPST}, s[{sSRDW}:{sSRDW+3}], s{sT2} offen{off} sc1")
        if j < 7: a(f"s_add_u32 s{sT2}, s{sT2}, {32*9*4*isz}")
    for aa in range(4):
        off = f" offset:{16*aa}" if aa else ""
        a(f"buffer_load_dwordx2 v[{FX+2*aa}:{FX+2*aa+1}], v7, s[{sX}:{sX+3}], 0 offen{off}")
    a(f"buffer_load_dwordx2 v[{FST}:{FST+1}], v9, s[{sSRDW}:{sSRDW+3}], 0 offen sc1")

FZ2 = 104
def gen_final_z(a, tag, stamps=False):
    a(f"s_mov_b32 s{sCU}, 0")
    a.label(f"L_zre_{tag}")
    for aa in range(4):
        for e in range(4):
            a(f"s_mov_b32 s{sT3}, {(8*aa+e)*4096}")
            a(f"buffer_load_ushort v{FZ+4*aa+e}, v8, s[{sSRDW}:{sSRDW+3}], s{sT3} offen sc1")
    a(f"s_cmp_lg_u32 s{sST}, 1\ns_cbranch_scc1 L_z1_{tag}")
    for aa in range(4):
        for e in range(4):
            a(f"s_mov_b32 s{sT3}, {(8*aa+e)*4096}")
            a(f"buffer_load_ushort v{FZ2+4*aa+e}, v97, s[{sSRDW}:{sSRDW+3}], s{sT3} offen sc1")
    a("s_waitcnt vmcnt(0)")
    a(f"v_max3_u32 v2, v{FZ2}, v{FZ2+1}, v{FZ2+2}")
    for k in range(3, 15, 2): a(f"v_max3_u32 v2, v2, v{FZ2+k}, v{FZ2+k+1}")
    a(f"v_max_u32 v3, v2, v{FZ2+15}")
    a(f"s_branch L_z2_{tag}")
    a.label(f"L_z1_{tag}")
    a("s_waitcnt vmcnt(0)\nv_mov_b32 v3, 0")
    a.label(f"L_z2_{tag}")
    a(f"v_max3_u32 v2, v{FZ}, v{FZ+1}, v{FZ+2}")
    for k in range(3, 15, 2): a(f"v_max3_u32 v2, v2, v{FZ+k}, v{FZ+k+1}")
    a(f"v_max3_u32 v2, v2, v{FZ+15}, v3")
    a(f"v_cmp_eq_u32 vcc, 0xffff, v2\ns_add_u32 s{sCU}, s{sCU}, 1\ns_nop 0\ns_cmp_eq_u64 vcc, 0\ns_cbranch_scc1 L_zok_{tag}")
    a(f"s_cmp_lt_u32 s{sCU}, 5000\ns_cbranch_scc0 L_zok_{tag}\ns_sleep 2\ns_branch L_zre_{tag}")
    a.label(f"L_zok_{tag}")
    stamp(a, 29, stamps)

def gen_final_sum(a):
    a(f"s_mov_b32 s{sT3}, 0xffff0000")
    T = 234
    for j in range(8):
        for D in range(8):
            src = FP + 8*j + D
            if j == 0:
                a(f"v_lshlrev_b32 v{FS+2*D}, 16, v{src}\nv_and_b32 v{FS+2*D+1}, s{sT3}, v{src}")
            else:
                tt = T + 2*(D % 2)
                a(f"v_lshlrev_b32 v{tt}, 16, v{src}\nv_and_b32 v{tt+1}, s{sT3}, v{src}")
                a(f"v_pk_add_f32 v[{FS+2*D}:{FS+2*D+1}], v[{FS+2*D}:{FS+2*D+1}], v[{tt}:{tt+1}]")

XN, XF, FF = 128, 144, 160
def _unp(a, dst, src, M):
    a(f"v_lshlrev_b32 v{dst}, 16, v{src}\nv_and_b32 v{dst+1}, s{M}, v{src}\nv_lshlrev_b32 v{dst+2}, 16, v{src+1}\nv_and_b32 v{dst+3}, s{M}, v{src+1}")
def _pk(a, dst, src):
    a(f"v_cvt_pk_bf16_f32 v{dst}, v{src}, v{src+1}\nv_cvt_pk_bf16_f32 v{dst+1}, v{src+2}, v{src+3}")

def gen_final_pre(a):
    T = 176; M = sT3
    a(f"s_mov_b32 s{sT3}, 0xffff0000")
    a(f"v_rcp_f32 v{T}, v{FST+1}\ns_nop 0\nv_mul_f32 v{T+1}, v{T}, v{T}")
    for aa in range(4):
        P2 = T + 2 + 2*(aa % 2)
        _unp(a, XF+4*aa, FX+2*aa, M)
        for e in range(4): a(f"v_sub_f32 v{XN+4*aa+e}, v{XF+4*aa+e}, v{FST}")
        _pk(a, P2, XN+4*aa); _unp(a, XN+4*aa, P2, M)
        for e in range(4): a(f"v_mul_f32 v{XN+4*aa+e}, v{XN+4*aa+e}, v{T}")
        _pk(a, P2, XN+4*aa); _unp(a, XN+4*aa, P2, M)
        for e in range(4): a(f"v_mul_f32 v{FF+4*aa+e}, v{FS+4*aa+e}, v{T+1}")
        _pk(a, P2, FF+4*aa); _unp(a, FF+4*aa, P2, M)

def gen_final_combine(a):
    U = 176; M = sT3
    a(f"s_mov_b32 s{sT3}, 0xffff0000")
    for aa in range(4):
        V4 = U + 8*(aa % 2)
        for e in range(4):
            a(f"v_lshlrev_b32 v{V4+e}, 16, v{FZ+4*aa+e}")
        for e in range(4): a(f"v_mul_f32 v{V4+e}, v{V4+e}, v{XN+4*aa+e}")
        _pk(a, V4+4, V4); _unp(a, V4, V4+4, M)
        for e in range(4): a(f"v_add_f32 v{V4+e}, v{V4+e}, v{XF+4*aa+e}")
        _pk(a, V4+4, V4); _unp(a, V4, V4+4, M)
        for e in range(4): a(f"v_add_f32 v{V4+e}, v{V4+e}, v{FF+4*aa+e}")
        _pk(a, V4+6, V4)
        off = f" offset:{16*aa}" if aa else ""
        a(f"buffer_store_dwordx2 v[{V4+6}:{V4+7}], v7, s[{sOUT}:{sOUT+3}], 0 offen{off}")

def gen_kernel(name, fp32_part=False, opts=None, stamps=False, mapping="32x1"):
    opts = opts or {}
    nodma = opts.get("no_dma")
    set_p1(opts.get("p1d", 3))
    a = Asm()
    a(f".globl {name}\n.p2align 8\n.type {name},@function\n{name}:")
    a("s_cmp_ge_u32 s2, 256\ns_cbranch_scc1 L_done")
    a("s_load_dwordx4 s[80:83], s[0:1], 0")
    a("s_load_dwordx4 s[88:91], s[0:1], 16")
    a("s_load_dwordx4 s[68:71], s[0:1], 32")
    a("s_load_dwordx4 s[4:7], s[0:1], 56")
    a("s_load_dwordx4 s[16:19], s[0:1], 72")
    a("s_load_dwordx4 s[44:47], s[0:1], 88")
    if stamps:
        a("s_memrealtime s[58:59]\ns_memtime s[50:51]")
    a(f"v_lshrrev_b32 v2, 6, v0\nv_and_b32 v{vLANE}, 63, v0")
    a(f"v_readfirstlane_b32 s{sW}, v2")
    if mapping == "32x1":
        a(f"s_and_b32 s{sJ}, s2, 7\ns_lshr_b32 s{sI}, s2, 3"); nshare = 32
        a(f"s_lshl_b32 s{sOM}, s{sI}, 2")
    elif mapping == "16x2":
        a(f"s_and_b32 s{sT0}, s2, 3\ns_lshl_b32 s{sT0}, s{sT0}, 1\ns_bfe_u32 s{sT1}, s2, 0x10003\ns_add_u32 s{sJ}, s{sT0}, s{sT1}")
        a(f"s_bfe_u32 s{sT0}, s2, 0x10002\ns_lshl_b32 s{sT0}, s{sT0}, 4\ns_lshr_b32 s{sT1}, s2, 4\ns_add_u32 s{sI}, s{sT0}, s{sT1}"); nshare = 16
        a(f"s_lshl_b32 s{sOM}, s{sT1}, 2")
    elif mapping == "8x4":
        a(f"s_and_b32 s{sT0}, s2, 1\ns_lshl_b32 s{sT0}, s{sT0}, 2\ns_bfe_u32 s{sT1}, s2, 0x20003\ns_add_u32 s{sJ}, s{sT0}, s{sT1}")
        a(f"s_bfe_u32 s{sT0}, s2, 0x20001\ns_lshl_b32 s{sT0}, s{sT0}, 3\ns_lshr_b32 s{sT1}, s2, 5\ns_add_u32 s{sI}, s{sT0}, s{sT1}"); nshare = 8
        a(f"s_lshl_b32 s{sOM}, s{sT1}, 2")
    a(f"v_lshlrev_b32 v{vPST}, 4, v{vLANE}")
    if not opts.get("no_codepf"):
        a("s_getpc_b64 s[52:53]")
        a.label("L_pc")
        a(f"s_sub_u32 s52, s52, L_pc-{name}\ns_subb_u32 s53, s53, 0")
        a(f"s_lshr_b32 s54, s2, 3\ns_and_b32 s54, s54, 3\ns_cmp_lg_u32 s54, s{sW}\ns_cbranch_scc1 L_nocpf")
        a(f"s_lshl_b32 s54, s{sW}, 13\nv_lshlrev_b32 v2, 7, v{vLANE}\nv_add_u32 v2, s54, v2\nv_min_u32 v2, L_done-{name}, v2")
        a(f"global_load_dword v{vDUM+3}, v2, s[52:53]")
        a.label("L_nocpf")
    a(f"s_add_u32 s{sOM}, s{sOM}, s{sW}")
    a(f"s_and_b32 s{sPAR}, s{sJ}, {0 if mapping == '32x1' else 1}")
    gen_q_addr(a, 0)
    a(f"s_mov_b32 s99, s{sT0}")
    a("s_waitcnt lgkmcnt(0)")
    a("s_mov_b32 s84, s82\ns_mov_b32 s85, s83")
    a(f"s_mov_b32 s{sQ+2}, {2048*576*2}\ns_mov_b32 s{sQ+3}, 0x00020000\ns_mov_b32 s{sT0}, s99")
    QREG = 176
    q0l = Asm(); gen_q_loads(q0l, QREG, 0, addr=False)
    early0 = len(a.lines)
    a.lines += tag_vm(q0l.lines, "q0")
    a("s_mov_b32 s92, s90\ns_mov_b32 s93, s91")
    a("s_mov_b32 s96, s70\ns_mov_b32 s97, s71")
    a("s_mov_b32 s8, s6\ns_mov_b32 s9, s7")
    a("s_mov_b32 s64, s18\ns_mov_b32 s65, s19")
    a("s_mov_b32 s12, s46\ns_mov_b32 s13, s47")
    a("s_mov_b32 s72, s80\ns_mov_b32 s73, s81")
    a(f"s_mov_b32 s18, {576*4608*2}\ns_mov_b32 s19, 0x00020000")
    for srd, n in ((sSRDA, 576*4608*2), (sSRDB, 576*4608*2), (sSRDW, WS_SIZE), (sDBG, 256), (sK, 2048*576*2), (sV, 2048*576*2), (sSK, 576*4*2), (sD, 576*2), (sOUT, 2048*576*2), (sX, 2048*576*2)):
        a(f"s_mov_b32 s{srd+2}, {n}\ns_mov_b32 s{srd+3}, 0x00020000")
    if stamps:
        a("v_mov_b32 v249, 0\nv_writelane_b32 v249, s50, 0")
    stamp(a, 1, stamps)
    p0 = early0
    QREG, KREG, vP9, vRUN = 176, 72, 250, 251
    def blk(fn, tag=None):
        t = Asm(); fn(t)
        return tag_vm(t.lines, tag) if tag else t.lines
    def B_pf0(t):
        gen_pf_setup(t, nshare)
        t(f"s_mul_i32 s{sPFO}, s{sJ}, 1152")
        t(f"buffer_load_dword v{vDUM}, v{vPF}, s[{sSRDA}:{sSRDA+3}], s{sPFO} offen")
        t(f"buffer_load_dword v{vDUM+1}, v{vPF}, s[{sSRDB}:{sSRDB+3}], s{sPFO} offen")
        t(f"s_add_u32 s{sPFO}, s{sPFO}, 128")
    def B_pf12(t):
        for r in range(2):
            t(f"buffer_load_dword v{vDUM}, v{vPF}, s[{sSRDA}:{sSRDA+3}], s{sPFO} offen")
            t(f"buffer_load_dword v{vDUM+1}, v{vPF}, s[{sSRDB}:{sSRDB+3}], s{sPFO} offen")
            t(f"s_add_u32 s{sPFO}, s{sPFO}, 128")
    def B_clr(t):
        t(f"s_lshl_b32 s{sT0}, s{sI}, 7\ns_lshl_b32 s{sT1}, s{sJ}, 4\ns_add_u32 s{sT1}, s{sT1}, s{sT0}\ns_lshl_b32 s{sT0}, s{sW}, 2\ns_add_u32 s{sT1}, s{sT1}, s{sT0}\ns_add_u32 s{sPFLG}, s{sT1}, {WS_FLAG}")
        t(f"s_lshl_b32 s{sC}, s{sW}, 8\ns_add_u32 s{sC}, s{sC}, s2")
        t(f"v_mov_b32 v2, s{sPFLG}\nv_mov_b32 v3, 0x7ff00000\nv_cmp_eq_u32 vcc, 0, v{vLANE}\nv_mov_b32 v4, 0\ns_nop 0\nv_cndmask_b32 v2, v3, v2, vcc")
        t(f"buffer_store_dword v4, v2, s[{sSRDW}:{sSRDW+3}], 0 offen sc1")
        t(f"s_lshl_b32 s{sT2}, s{sC}, 12\ns_add_u32 s{sT2}, s{sT2}, {WS_ZT}\ns_cmp_lt_u32 s{sC}, 576\ns_cselect_b32 s{sT2}, s{sT2}, 0x7ff00000")
        for r in range(4): t(f"v_mov_b32 v{116+r}, -1")
        for k in range(4):
            off = f" offset:{1024*k}" if k else ""
            t(f"buffer_store_dwordx4 v[116:119], v{vPST}, s[{sSRDW}:{sSRDW+3}], s{sT2} offen{off} sc1")
    def B_setup(t):
        t(f"v_lshrrev_b32 v2, 3, v{vLANE}\nv_and_b32 v3, 7, v{vLANE}\nv_lshrrev_b32 v4, 1, v3\nv_and_b32 v5, 1, v3\nv_lshlrev_b32 v5, 4, v5")
        t(f"v_bfe_u32 v6, v{vLANE}, 4, 1\nv_lshlrev_b32 v7, 1, v6")
        t(f"s_mul_i32 s{sT0}, s{sW}, 24\nv_add_u32 v23, s{sT0}, v2\ns_movk_i32 s{sT1}, 9216\nv_mul_lo_u32 v21, v23, s{sT1}")
        for p, vd in ((0, VDG), (1, VDU)):
            t(f"v_or_b32 v22, {p}, v7\nv_xor_b32 v22, v4, v22\nv_lshlrev_b32 v22, 5, v22\nv_add3_u32 v22, v21, v22, v5")
            for k in range(3): t(f"v_add_u32 v{vd[k]}, {8*k*9216 - 1024*k}, v22")
        t(f"s_mul_i32 s{sM0}, s{sW}, 3072\ns_add_u32 s{sM0+1}, s{sM0}, 12288")
        t(f"s_mul_i32 s{sT0}, s{sW}, 72\nv_add_u32 v23, s{sT0}, v2\ns_movk_i32 s{sT1}, 1152\nv_mul_lo_u32 v21, v23, s{sT1}")
        t(f"v_lshrrev_b32 v22, 2, v3\nv_xor_b32 v22, v22, v6\nv_lshlrev_b32 v22, 6, v22\nv_and_b32 v23, 3, v3\nv_lshlrev_b32 v23, 4, v23\nv_add3_u32 v22, v21, v22, v23")
        for k in range(4): t(f"v_add_u32 v{vD2+k}, {8*k*1152 - 1024*k}, v22")
        t(f"v_and_b32 v2, 15, v{vLANE}\nv_bfe_u32 v3, v{vLANE}, 4, 1\nv_lshrrev_b32 v4, 5, v{vLANE}\nv_lshrrev_b32 v5, 2, v2\nv_bfe_u32 v6, v2, 3, 1")
        t(f"v_lshl_add_u32 v7, v4, 3, v5\nv_lshlrev_b32 v7, 7, v7\nv_lshl_add_u32 v21, v6, 1, v3\nv_xor_b32 v21, s{sW}, v21\nv_lshlrev_b32 v21, 5, v21")
        t(f"v_and_b32 v22, 3, v2\nv_lshlrev_b32 v22, 3, v22\nv_add3_u32 v{vRA1}, v7, v21, v22\nv_mul_u32_u24 v21, 12288, v3\nv_add_u32 v{vRA1}, v{vRA1}, v21")
        t(f"v_add_u32 v{vRA1b}, 65536, v{vRA1}\nv_add_u32 v{vRA1c}, 131072, v{vRA1}")
        t(f"v_lshl_add_u32 v7, v4, 2, v5\nv_lshlrev_b32 v7, 7, v7\ns_and_b32 s{sT0}, s{sW}, 1\nv_xor_b32 v21, s{sT0}, v6\nv_lshlrev_b32 v21, 6, v21")
        t(f"v_lshlrev_b32 v2, 5, v3\nv_add3_u32 v{vRA2}, v7, v21, v2\nv_add_u32 v{vRA2}, v{vRA2}, v22\nv_add_u32 v{vRA2b}, 32768, v{vRA2}")
        t(f"s_mov_b32 s{sHIDX}, 0\ns_mov_b32 s{sB2}, 0")
        t(f"s_lshl_b32 s{sT0}, s{sJ}, 5\ns_add_u32 s{sT0}, s{sT0}, s{sI}\ns_mul_i32 s{sT0}, s{sT0}, {9*4*2048}\ns_mul_i32 s{sT1}, s{sW}, 2048\ns_add_u32 s{sT0}, s{sT0}, s{sT1}\ns_add_u32 s{sPOFF}, s{sT0}, {WS_PART}")
        t(f"s_mul_i32 s{sSOFF}, s{sJ}, {576*2}\ns_mov_b32 s{sINC}, {96*9216}")
        t(f"s_mov_b32 s{sINCW}, {(-5*96*9216 + (0 if opts.get('same_cols') else 128)) & 0xffffffff}")
        gen_ln_setup(t)
    def B_dma012(t):
        for st in range(3):
            if st: t(f"s_add_u32 s{sSOFF}, s{sSOFF}, s{sINC}")
            tt = Asm(); dma1_group(tt, st)
            t.lines += tag_vm(tt.lines, "pair0") if st < 2 else tt.lines
    def B_frags(t):
        t(f"v_add_u32 v{vHR}, {HB}, v{vPST}\nv_add_u32 v2, {65536}, v{vHR}")
        for f in range(72):
            if f < 64: t(f"ds_read_b128 {xn_frag(f)}, v{vHR} offset:{f*1024}")
            else: t(f"ds_read_b128 {xn_frag(f)}, v2 offset:{(f-64)*1024}")
        t(f"v_and_b32 v2, 31, v{vLANE}\nv_lshlrev_b32 v2, 2, v2\nv_add_u32 v2, {LDS_STAT}, v2")
        t(f"ds_read_b32 v3, v2\nds_read_b32 v4, v2 offset:128")
    a.lines += blk(B_pf0)
    a.lines += blk(B_setup)
    stamp(a, 2, stamps)
    if mapping != "32x1": a("s_waitcnt vmcnt(@q0)")
    a.lines += blk(lambda t: gen_q_loads(t, QREG, 1), "q1")
    a("s_waitcnt vmcnt(@q0)")
    stamp(a, 3, stamps)
    gen_ln_pass(a, QREG, 0)
    stamp(a, 6, stamps)
    a("s_waitcnt vmcnt(@q1)")
    gen_ln_pass(a, QREG, 1)
    stamp(a, 5, stamps)
    a.lines += blk(lambda t: gen_kv_loads(t, KREG, vP9, vRUN), "kv")
    a.lines += blk(B_pf12)
    a("s_waitcnt lgkmcnt(0)")
    stamp(a, 4, stamps)
    a("s_barrier")
    stamp(a, 7, stamps)
    fr = blk(B_frags); dm = groups_of(blk(B_dma012))
    interleave(a, fr, dm, start=4)
    a("s_waitcnt lgkmcnt(0)")
    for n, src in ((0, 3), (1, 4)):
        a(f"v_mul_f32 v5, v{src}, v{src}\nv_mul_f32 v{VC0[n]}, {hex(f2u(C0))}, v{src}\nv_mul_f32 v5, v5, v{src}\nv_mul_f32 v{VC1[n]}, {hex(f2u(C1))}, v5")
    stamp(a, 8, stamps)
    a("s_barrier")
    a(f"s_add_u32 s{sSOFF}, s{sSOFF}, s{sINC}")
    dma1_group(a, 3)
    a(f"s_add_u32 s{sSOFF}, s{sSOFF}, s{sINC}")
    dma1_group(a, 4, 0, 12 - P1_BAR)
    gen_pf_unit(a, nshare)
    stamp(a, 9, stamps)
    a("s_waitcnt vmcnt(@kv)")
    gen_kv_compute2(a, KREG, vP9, vRUN)
    a("s_waitcnt lgkmcnt(0)")
    a("s_barrier")
    gen_kv_store(a)
    a.lines += blk(B_clr)
    stamp(a, 10, stamps)
    a("s_waitcnt vmcnt(@pair0)")
    stamp(a, 11, stamps)
    a("s_barrier")
    a.lines[p0:] = resolve_vm(a.lines[p0:])
    lk = Lgkm(a)
    for kk in range(P1_D): p1_read(lk, kk, kk % P1_NB, ("A", kk))
    a(f"s_mov_b32 s{sCNT}, 4\ns_mov_b32 s62, 32")
    stamp(a, 12, stamps)
    a("s_branch L_roundB")
    pre = list(lk.q)
    a.label("L_roundA")
    b0 = len(a.lines)
    gen_round(a, lk, 1, 0, "A", opts=opts)
    a.label("L_roundB")
    gen_round(a, lk, 0, 1, "B", last_check=True, opts=opts)
    assert lk.q == pre, (lk.q, pre)
    a(f"s_sub_u32 s{sCNT}, s{sCNT}, 1\ns_cmp_ge_i32 s{sCNT}, 0\ns_cbranch_scc1 L_roundA")
    check_hazards(a.lines[b0:] + a.lines[b0:], "phase1")
    a("s_waitcnt lgkmcnt(0)")
    stamp(a, 13, stamps)
    a("s_waitcnt vmcnt(0)")
    a("s_barrier")
    gen_conv_issue(a, stamps)
    tmp = Asm(); gen_wd_pf(tmp, nshare, 4, 9)
    for l in tmp.lines: a(l.replace("v123", "v10X").replace("v124", "v127").replace("v125", "v5").replace("v10X", "v4"))
    a(f"s_lshl_b32 s{sT0}, s{sW}, 10\nv_add_u32 v2, s{sT0}, v{vHR}\nv_add_u32 v3, {36*1024}, v2")
    hw = []
    for rho in range(8):
        src = HREG + 8*(rho+1)
        hw.append([f"ds_write_b128 v2, {V(src,4)} offset:{rho*4096}"]); hw.append([f"ds_write_b128 v3, {V(src+4,4)} offset:{rho*4096}"])
    interleave(a, gelu_ops(ACC[0]), hw, start=2)
    a(f"ds_write_b128 v2, {V(HP,4)} offset:{8*4096}\nds_write_b128 v3, {V(HP+4,4)} offset:{8*4096}")
    stamp(a, 16, stamps)
    a("s_waitcnt lgkmcnt(0)\ns_barrier")
    a(f"s_lshr_b32 s{sT0}, s{sW}, 1\ns_mul_i32 s{sT0}, s{sT0}, {36*1024}\nv_add_u32 v2, s{sT0}, v{vHR}")
    for f in range(36): a(f"ds_read_b128 {A(4*f,4)}, v2 offset:{f*1024}")
    gen_conv_issue2(a)
    a("s_waitcnt lgkmcnt(0)\ns_barrier")
    a(f"s_mov_b32 s{sSRDA+2}, {576*4608*2}")
    a(f"s_mul_i32 s{sM0}, s{sW}, 9216")
    a(f"s_mul_i32 s{sSOFF}, s{sJ}, {576*1152}\ns_add_u32 s{sSOFF}, s{sSOFF}, {0 if opts.get('same_cols') else 128}")
    a(f"s_mov_b32 s{sINC}, {288*1152}")
    a(f"s_mov_b32 s{sINCW}, {(-288*1152 + (0 if opts.get('same_cols') else 128)) & 0xffffffff}")
    if not nodma:
        dma2_group(a, 2)
        a(f"s_mov_b32 s{sT0}, 0x7ff00000")
        for k in range(2): a(f"buffer_load_dword v{vDUM+k}, v{vPST}, s[{sSRDA}:{sSRDA+3}], s{sT0} offen")
    lk = Lgkm(a)
    for F in range(P2_D): p2_read(lk, F, F % P2_NB, ("B", F))
    pre2 = list(lk.q)
    a(f"s_mov_b32 s{sCNT}, 9")
    stamp(a, 14, stamps)
    a.label("L_p2")
    bs = len(a.lines)
    gen_p2_chunk(a, lk, opts, dma=True)
    assert lk.q == pre2 or opts.get("rstamp"), (lk.q, pre2)
    a(f"s_cmp_gt_u32 s{sCNT}, 2\ns_cbranch_scc1 L_p2")
    check_hazards(a.lines[bs:] + a.lines[bs:], "phase2")
    a.label("L_p2b")
    bs = len(a.lines)
    lk.q = list(pre2)
    gen_p2_chunk(a, lk, opts, dma=False, tag="b")
    a(f"s_cmp_gt_u32 s{sCNT}, 0\ns_cbranch_scc1 L_p2b")
    check_hazards(a.lines[bs:] + a.lines[bs:], "phase2b")
    stamp(a, 15, stamps)
    a("s_waitcnt lgkmcnt(0)")
    a("s_barrier")
    a(f"s_mov_b32 s{sFC}, s{sJ}\ns_mov_b32 s{sFW}, s{sW}")
    c0 = len(a.lines)
    gen_conv_main(a, stamps)
    check_hazards(a.lines[c0:], "conv")
    stamp(a, 20, stamps)
    a(f"s_mov_b32 s{sST}, 3")
    a("s_waitcnt vmcnt(8)")
    a("s_branch L_fin2")
    a.label("L_noconv")
    publish_partial(a)
    a("s_sleep 24")
    a(f"s_mov_b32 s{sST}, 3")
    a(f"s_cmp_lg_u32 s{sW}, 3\ns_cbranch_scc1 L_pass")
    a(f"s_lshr_b32 s{sT0}, s{sJ}, 2\ns_and_b32 s{sT1}, s{sI}, 1\ns_cmp_lg_u32 s{sT0}, s{sT1}\ns_cbranch_scc1 L_pass")
    a(f"s_mov_b32 s{sST}, 0")
    a.label("L_pass")
    gen_pflag_addr(a, 12, f"s{sFW}")
    poll(a, "pB", 12, sSRDW, "0", 1, sCU, cmp="eq")
    gen_final_addr(a)
    gen_final_loads(a)
    a.label("L_fin")
    f0 = len(a.lines)
    a("s_waitcnt vmcnt(0)")
    a.label("L_fin2")
    stamp(a, 22, stamps)
    gen_final_sum(a)
    gen_final_pre(a)
    a(f"s_cmp_lg_u32 s{sST}, 0\ns_cbranch_scc1 L_zbar")
    SAVE = [(XN+k, 48+k) for k in range(48)] + [(7, 96), (8, 97)]
    for src, dst in SAVE: a(f"v_mov_b32 v{dst}, v{src}")
    a(f"s_mov_b32 s{sST}, 1\ns_mov_b32 s{sFC}, 8\ns_and_b32 s{sFW}, s{sJ}, 3\ns_branch L_pass")
    a.label("L_zbar")
    a(f"s_barrier")
    stamp(a, 28, stamps)
    gen_final_z(a, "A", stamps)
    a.label("L_comb")
    gen_final_combine(a)
    stamp(a, 31, stamps)
    check_hazards(a.lines[f0:], "final")
    a(f"s_cmp_lg_u32 s{sST}, 1\ns_cbranch_scc1 L_final_done")
    a("s_nop 1")
    for src, dst in SAVE: a(f"v_mov_b32 v{src}, v{dst}")
    for k in range(16): a(f"v_mov_b32 v{FZ+k}, v{FZ2+k}")
    a(f"s_mov_b32 s{sST}, 2\ns_branch L_comb")
    a.label("L_final_done")
    if stamps:
        a("s_waitcnt vmcnt(0)")
        stamp(a, 23, stamps)
        a("s_memrealtime s[60:61]\ns_waitcnt lgkmcnt(0)\ns_sub_u32 s60, s60, s58\nv_writelane_b32 v249, s60, 24")
        a(f"s_lshl_b32 s34, s2, 2\ns_add_u32 s34, s34, s{sW}\ns_lshl_b32 s34, s34, 8\ns_add_u32 s34, s34, {WS_STAMP2}")
        a(f"v_lshlrev_b32 v6, 2, v{vLANE}")
        a(f"buffer_store_dword v249, v6, s[{sSRDW}:{sSRDW+3}], s34 offen\ns_waitcnt vmcnt(0)")
    a.label("L_done")
    a("s_endpgm")
    return a

def gen_kv_compute2(a, KREG, vP9, vRUN):
    SU, KU, AC, VU = 176, 208, 240, 32
    a(f"s_mov_b32 s{sT0}, 0xffff0000")
    def unrow(r):
        for e in range(4):
            a(f"v_lshlrev_b32 v{KU+8*(r%4)+2*e}, 16, v{KREG+4*r+e}\nv_and_b32 v{KU+8*(r%4)+2*e+1}, s{sT0}, v{KREG+4*r+e}")
    for c in range(8):
        for jj in range(2):
            src = KCO + 2*c + jj
            a(f"v_lshlrev_b32 v{SU+8*(2*jj)+c}, 16, v{src}\nv_and_b32 v{SU+8*(2*jj+1)+c}, s{sT0}, v{src}")
    for r in range(3): unrow(r)
    a(f"v_lshlrev_b32 v6, 2, v{vRUN}\nv_sub_u32 v6, 63, v6\nv_mul_u32_u24 v6, 160, v6")
    a(f"v_lshl_add_u32 v6, v{vP9}, 4, v6\nv_add_u32 v6, {LDS_KV - 3*160}, v6")
    for tok in range(4):
        unrow(tok + 3)
        for jj in (3, 2, 1, 0):
            for pr in range(4):
                d = f"v[{AC+2*pr}:{AC+2*pr+1}]"
                rr = (tok + 3 - jj) % 4
                kk = f"v[{KU+8*rr+2*pr}:{KU+8*rr+2*pr+1}]"
                ss = f"v[{SU+8*jj+2*pr}:{SU+8*jj+2*pr+1}]"
                a(f"v_pk_mul_f32 {d}, {kk}, {ss}" if jj == 3 else f"v_pk_fma_f32 {d}, {kk}, {ss}, {d}")
        for e in range(4):
            a(f"v_lshlrev_b32 v{VU+2*e}, 16, v{KREG+28+4*tok+e}\nv_and_b32 v{VU+2*e+1}, s{sT0}, v{KREG+28+4*tok+e}")
        for pr in range(4):
            d = f"v[{AC+2*pr}:{AC+2*pr+1}]"
            a(f"v_pk_mul_f32 {d}, {d}, v[{VU+2*pr}:{VU+2*pr+1}]")
        for e in range(4):
            a(f"v_cvt_pk_bf16_f32 v{VU+8+e}, v{AC+2*e}, v{AC+2*e+1}")
        a(f"ds_write_b128 v6, v[{VU+8}:{VU+11}] offset:{(3-tok)*160}")
        a("s_nop 0")

def kd(name, nvgpr_arch, nagpr, nsgpr=100):
    acc_off = (nvgpr_arch + 3)//4*4
    tot = acc_off + nagpr if nagpr else nvgpr_arch
    return f""".section .rodata,"a"
.p2align 6
.amdhsa_kernel {name}
  .amdhsa_next_free_vgpr {tot}
  .amdhsa_next_free_sgpr {nsgpr}
  .amdhsa_accum_offset {acc_off}
  .amdhsa_group_segment_fixed_size 0
  .amdhsa_kernarg_size 104
  .amdhsa_user_sgpr_count 2
  .amdhsa_user_sgpr_kernarg_segment_ptr 1
  .amdhsa_system_sgpr_workgroup_id_x 1
  .amdhsa_float_denorm_mode_32 3
.end_amdhsa_kernel
"""

NAME = "parallel_sum__ssm_conv_h3__glu_gated_geglu__prompt_kernel"
def build(fn, single_launch=True, **kw):
    a = gen_kernel(NAME, **kw)
    ref = open("parallel_sum__ssm_conv_h3__glu_gated_geglu__prompt.s.ref").read()
    hdr = []
    for l in ref.splitlines():
        if l.startswith("; Override launch"): break
        hdr.append(l)
    hdr = "\n".join(hdr) + "\n"
    hdr += f"; @launch grid=(256,1,1) block=(256,1,1) lds={LDS_TOTAL}\n"
    hdr += '.amdgcn_target "amdgcn-amd-amdhsa--gfx950"\n.text\n'
    open(fn, "w").write(hdr + a.text() + kd(NAME, 256, 256))

if __name__ == "__main__":
    import sys
    build("s_plain.s")
    build("s_st.s", stamps=True, opts={})
    build("s_w2.s", stamps=True, opts={"p2w2": True})
```

```python
from asmlib import *
import math

WS_STATS = 0x240000
WS_KVR   = 0x250000
WS_ZT    = 0x490000
WS_STAMP = 0x6D0000
WS_STAMP2 = 0x3000000
WS_FLAG  = 0x6F0000
WS_ZFLAG = 0x6F2000
WS_PART  = 0x700000
WS_SIZE  = 0x10000000

SLOT = 24576
HB   = 3*SLOT
LDS_STAT = 147456
LDS_KV   = 147456 + 256
LDS_XR   = 147456 + 256
LDS_TOTAL = 147456 + 256 + 3*4608

C0 = -2.0*math.sqrt(2.0/math.pi)*math.log2(math.e)
C1 = C0*0.044715

sSRDA, sSRDB, sSRDW = 4, 8, 12
sWD = 16
sWDS = 16
sW, sJ, sI = 20, 21, 22
sSOFF = 23
sM0 = 24
sPFO = 26
sOM = 27
sCNT = 30
sINC, sINCW = 31, 32
sT0, sT1, sT2, sT3 = 34, 35, 36, 37
sPOFF = 38
sHIDX = 39
sEX = 40
sB2 = 42
sDBG = 44
sPFA, sPFB = 80, 84
sQ, sK, sV, sSK, sD = 80, 84, 88, 92, 96
sHK = 68
sOUT = 64
sX = 72
vLANE = 1
vRA1, vRA1b, vRA1c = 8, 30, 31
vRA2, vRA2b = 9, 10
vPF = 11
VDG, VDU = [12, 13, 14], [15, 16, 17]
VC0, VC1 = [18, 21], [22, 23]
vPST = 19
vHR = 20
vD2 = 24
vPF2 = 28
sPFU = 63
ACC = [32, 64]
AF = 96
XE = 128
GT = 160
HP = 168
HREG = 176
vDUM = 252

def xn_frag(f):
    return A(4*f, 4) if f < 64 else V(XE + 4*(f-64), 4)

class Lgkm:
    def __init__(self, a):
        self.a = a; self.q = []
    def issue(self, tag, text):
        self.a(text); self.q.append(tag)
    def wait_for(self, tag):
        cand = [i for i, t in enumerate(self.q) if t == tag]
        if not cand: return
        idx = max(cand); n = len(self.q) - 1 - idx
        assert n <= 15, n
        self.a(f"s_waitcnt lgkmcnt({n})")
        self.q = self.q[idx+1:]
    def wait_all(self): self.q = []

NT = {'pf': '', 'kv': ' nt', 'q': '', 'h': ' nt'}
def resolve_vm(lines):
    out = []; ops = []
    for l in lines:
        body = l.split(";")[0].strip()
        if body.startswith("buffer_") or body.startswith("global_"):
            tag = l.split("; vm:")[1].strip() if "; vm:" in l else None
            ops.append(tag)
        if "vmcnt(@" in l:
            tag = l.split("vmcnt(@")[1].split(")")[0]
            idx = max(i for i, t in enumerate(ops) if t == tag)
            n = len(ops) - 1 - idx
            assert n <= 63
            l = l.replace(f"vmcnt(@{tag})", f"vmcnt({n})")
        out.append(l)
    return out

def tag_vm(lines, tag):
    return [l + f" ; vm:{tag}" if (l.startswith("buffer_") or l.startswith("global_")) else l for l in lines]

def stamp(a, idx, on):
    if not on: return
    a("s_memtime s[48:49]")
    a("s_waitcnt lgkmcnt(0)")
    a(f"v_writelane_b32 v249, s48, {idx}")

def gelu_ops(accP, dst=HP):
    ops = []; k = 0
    for n in range(2):
        for r in range(0, 8, 2):
            g0, g1 = accP + 16*n + r, accP + 16*n + r + 1
            u0, u1 = g0 + 8, g1 + 8
            tb = GT + 4*(k % 2)
            t0, t1, q0, q1 = tb, tb+1, tb+2, tb+3
            ops += [
                f"v_mul_f32 v{t0}, v{g0}, v{g0}", f"v_mul_f32 v{t1}, v{g1}, v{g1}",
                f"v_fma_f32 v{t0}, v{t0}, v{VC1[n]}, v{VC0[n]}", f"v_fma_f32 v{t1}, v{t1}, v{VC1[n]}, v{VC0[n]}",
                f"v_mul_f32 v{t0}, v{t0}, v{g0}", f"v_mul_f32 v{t1}, v{t1}, v{g1}",
                f"v_exp_f32 v{t0}, v{t0}", f"v_exp_f32 v{t1}, v{t1}",
                f"v_mul_f32 v{q0}, v{g0}, v{u0}", f"v_mul_f32 v{q1}, v{g1}, v{u1}",
                f"v_add_f32 v{t0}, 1.0, v{t0}", f"v_add_f32 v{t1}, 1.0, v{t1}",
                f"v_rcp_f32 v{t0}, v{t0}", f"v_rcp_f32 v{t1}, v{t1}",
                f"v_mul_f32 v{q0}, v{q0}, v{t0}", f"v_mul_f32 v{q1}, v{q1}, v{t1}",
                f"v_cvt_pk_bf16_f32 v{dst + 4*n + r//2}, v{q0}, v{q1}",
            ]
            k += 1
    return ops

def dma1(a, which, k):
    srd = sSRDA if which == 0 else sSRDB
    vo = (VDG if which == 0 else VDU)[k]
    off = f" offset:{1024*k}" if k else ""
    a(f"buffer_load_dwordx4 v{vo}, s[{srd}:{srd+3}], s{sSOFF} offen{off} lds")

def dma1_group(a, slot, q0=0, q1=6):
    for q in range(q0, q1):
        which, k = divmod(q, 3)
        if k == 0 or q == q0:
            a(f"s_add_u32 m0, s{sM0+which}, {slot*SLOT}")
            a("s_nop 0")
        dma1(a, which, k)

def p1_read(lk, kk, buf, tag):
    st, ks = divmod(kk % 36, 6)
    off = st*SLOT + ks*2048
    base = [vRA1, vRA1b, vRA1c][off // 65536]
    off %= 65536
    r = AF + 4*buf
    lk.issue(tag, f"ds_read_b64_tr_b16 v[{r}:{r+1}], v{base} offset:{off}")
    lk.issue(tag, f"ds_read_b64_tr_b16 v[{r+2}:{r+3}], v{base} offset:{off+512}")

P1_D = 3
P1_NB = 4
P1_BAR = 9
def set_p1(D):
    global P1_D, P1_NB, P1_BAR
    P1_D = D; P1_NB = {3: 4, 4: 6, 5: 6}[D]; P1_BAR = 12 - D
def gen_round(a, lk, cur, prev, rname, last_check=False, opts=None, extra=None, post_bar=None):
    opts = opts or {}
    nodma = opts.get("no_dma")
    accC, accP = ACC[cur], ACC[prev]
    gops = gelu_ops(accP) if not opts.get("no_gelu") else []
    if extra is not None: gops = list(extra)
    G_START, G_END = (2, 24 + P1_BAR) if extra is None else (5, 24 + P1_BAR - 1)
    nslots = (G_END - G_START) * 2
    gi = 0
    def take_gelu(slot_idx):
        nonlocal gi
        tgt = (len(gops) * (slot_idx + 1) + nslots - 1) // nslots
        out = gops[gi:tgt]; gi = max(gi, tgt)
        return out
    for kk in range(36):
        pr, ks = divmod(kk, 12)
        buf = kk % P1_NB
        a.c(f"--- round {rname} kstep {kk}")
        if opts.get("rstamp") and kk == 0: a("s_memtime s[50:51]")
        lk.wait_for(("A", kk))
        cz = "0" if kk == 0 else V(accC, 16)
        a(f"v_mfma_f32_32x32x16_bf16 {V(accC,16)}, {V(AF+4*buf,4)}, {xn_frag(kk)}, {cz}")
        fill0, fill1 = [], []
        if G_START <= kk < G_END:
            fill0 += take_gelu((kk - G_START)*2)
            fill1 += take_gelu((kk - G_START)*2 + 1)
        if ks >= P1_BAR: q12 = ks - P1_BAR; gp = pr
        else: q12 = ks + (12 - P1_BAR); gp = (pr - 1) % 3
        half, q = divmod(q12, 6); which, k = divmod(q, 3)
        slot = 2*gp + half
        if extra is not None and kk == G_START: a("s_waitcnt vmcnt(@kv)")
        def emit(x):
            if isinstance(x, tuple): lk.issue(("X", x[1]), x[1])
            else: a(x)
        for x in fill0: emit(x)
        if ks == P1_BAR:
            a("s_waitcnt vmcnt(12) lgkmcnt(0)") if not nodma else a("s_waitcnt lgkmcnt(0)")
            lk.wait_all()
            if opts.get("rstamp") and kk == P1_BAR:
                a("v_mov_b32 v2, s50\nv_cmp_eq_u32 vcc, s62, v1\ns_add_u32 s62, s62, 1\ns_nop 0\nv_cndmask_b32 v249, v249, v2, vcc")
            if not opts.get("no_barrier"): a("s_barrier")
        else:
            p1_read(lk, kk+P1_D, (kk+P1_D) % P1_NB, ("A", (kk+P1_D) % 36))
        cz = "0" if kk == 0 else V(accC+16, 16)
        a(f"v_mfma_f32_32x32x16_bf16 {V(accC+16,16)}, {V(AF+4*buf,4)}, {xn_frag(36+kk)}, {cz}")
        if ks == P1_BAR:
            p1_read(lk, kk+P1_D, (kk+P1_D) % P1_NB, ("A", (kk+P1_D) % 36))
            if last_check and pr == 0:
                a(f"s_cmp_lg_u32 s{sCNT}, 0\ns_cbranch_scc1 L_nosw")
                gen_switch(a)
                a.label("L_nosw")
        if not nodma and q == 0:
            inc = sINCW if slot == 0 else sINC
            a(f"s_add_u32 s{sSOFF}, s{sSOFF}, s{inc}")
            if last_check and slot == 3:
                a(f"s_cmp_eq_u32 s{sCNT}, 0")
                a(f"s_cselect_b32 s{sSRDA+2}, 0, s{sSRDA+2}\ns_cselect_b32 s{sSRDB+2}, 0, s{sSRDB+2}")
        if extra is not None and kk == 24 + P1_BAR and post_bar is not None:
            post_bar(a, lk)
        if kk == G_END and gops and extra is None:
            assert gi == len(gops) and k == 0
            a(f"s_set_gpr_idx_on s{sHIDX}, gpr_idx(DST)")
            a("s_nop 0")
            for qq in range(8): a(f"v_mov_b32 v{HREG+qq}, v{HP+qq}")
            a("s_set_gpr_idx_off")
            a(f"s_add_u32 s{sHIDX}, s{sHIDX}, 8")
        if not nodma:
            if k == 0:
                a(f"s_add_u32 m0, s{sM0 + which}, {slot*SLOT}")
                if fill1: emit(fill1.pop(0))
                else: a("s_nop 0")
            dma1(a, which, k)
        if kk == P1_BAR + 11 and not nodma and not opts.get("no_pf"):
            a(f"s_sub_u32 s{sPFU}, s{sPFU}, 1\ns_cmp_lg_u32 s{sPFU}, -1\ns_cbranch_scc1 L_nopf{rname}")
            a(f"buffer_load_dword v{vDUM}, v{vPF}, s[{sPFA}:{sPFA+3}], s{sPFO} offen")
            a(f"buffer_load_dword v{vDUM+1}, v{vPF2}, s[{sPFB}:{sPFB+3}], s{sPFO} offen")
            a.label(f"L_nopf{rname}")
        for x in fill1: emit(x)

def gen_switch(a):
    a(f"s_mov_b32 s{sSRDA}, s{sWD}\ns_mov_b32 s{sSRDA+1}, s{sWD+1}\ns_mov_b32 s{sSRDB}, s{sWD}\ns_mov_b32 s{sSRDB+1}, s{sWD+1}")
    a(f"s_mul_i32 s{sT0}, s{sW}, {48*1152}")
    a(f"s_sub_u32 s{sT1}, {96*1152}, s{sT0}")
    for k in range(3):
        a(f"v_subrev_u32 v{VDG[k]}, s{sT0}, v{vD2+k}")
        a(f"v_add_u32 v{VDU[k]}, s{sT1}, v{vD2+k}")
    a(f"s_mul_i32 s{sSOFF}, s{sJ}, {576*1152}")
    a(f"s_mov_b32 s{sINCW}, 0")
    a(f"s_mov_b32 s{sINC}, {192*1152}")

def gen_pf_switch(a):
    a(f"s_mov_b32 s{sPFA}, s{sWD}\ns_mov_b32 s{sPFA+1}, s{sWD+1}")
    a(f"s_add_u32 s{sPFB}, s{sWD}, 256\ns_addc_u32 s{sPFB+1}, s{sWD+1}, 0")
    a(f"s_sub_u32 s{sPFB+2}, s{sPFA+2}, 256")
    a(f"v_mov_b32 v{vPF}, v{vPF2}")
    a(f"s_mul_i32 s{sPFO}, s{sJ}, {576*1152}")

S2 = 36864
def dma2(a, k):
    off = f" offset:{1024*(k%4)}" if k % 4 else ""
    a(f"buffer_load_dwordx4 v{vD2 + k%4}, s[{sSRDA}:{sSRDA+3}], s{sT3} offen{off} lds")

def dma2_pre(a, k, m0expr):
    if k % 4 == 0:
        a(m0expr(k//4))
        a(f"s_add_u32 s{sT3}, s{sSOFF}, {32*1152*(k//4)}")

def dma2_group(a, slot):
    for k in range(9):
        dma2_pre(a, k, lambda g: f"s_add_u32 m0, s{sM0}, {slot*S2 + 4096*g}")
        dma2(a, k)

def p2_read(lk, F, buf, tag):
    st, ks = divmod(F % 36, 18)
    off = st*S2 + ks*2048
    base = vRA2
    if off + 1024 > 65535:
        base = vRA2b; off -= 32768
    r = AF + 4*buf
    lk.issue(tag, f"ds_read_b64_tr_b16 v[{r}:{r+1}], v{base} offset:{off}")
    lk.issue(tag, f"ds_read_b64_tr_b16 v[{r+2}:{r+3}], v{base} offset:{off+1024}")

P2_NB = 9
P2_BAR = 8
P2_D = 7
def gen_p2_chunk(a, lk, opts, dma=True, tag=""):
    nodma = opts.get("no_dma")
    acc = ACC[0]
    for T in range(36):
        st, ks = divmod(T, 18)
        a.c(f"--- p2{tag} kstep {T}")
        if opts.get("rstamp") and T == 0: a("s_memtime s[50:51]")
        if opts.get("p2w2"):
            if T % 2 == 0: lk.wait_for(("B", T+1))
        else:
            lk.wait_for(("B", T))
        if ks == P2_BAR:
            if not nodma:
                if dma or st == 1: a("s_waitcnt vmcnt(11)") if (dma or True) else None
                else:
                    a(f"s_cmp_eq_u32 s{sCNT}, 2\ns_cbranch_scc1 L_p2w11\ns_waitcnt vmcnt(2)\ns_branch L_p2wj")
                    a.label("L_p2w11"); a("s_waitcnt vmcnt(11)"); a.label("L_p2wj")
            if opts.get("rstamp") and T == P2_BAR:
                a("s_waitcnt lgkmcnt(0)"); lk.wait_all()
                a("v_mov_b32 v2, s50\nv_cmp_eq_u32 vcc, s62, v1\ns_add_u32 s62, s62, 1\ns_nop 0\nv_cndmask_b32 v249, v249, v2, vcc")
            if not opts.get("no_barrier"): a("s_barrier")
        cz = "0" if T == 0 else V(acc, 16)
        a(f"v_mfma_f32_32x32x16_bf16 {V(acc,16)}, {V(AF+4*(T % P2_NB),4)}, {A(4*T,4)}, {cz}")
        if T == 36 - P2_D:
            a(f"v_xor_b32 v{vRA2}, {2*S2}, v{vRA2}")
            a(f"v_xor_b32 v{vRA2b}, {2*S2}, v{vRA2b}")
        F = T + P2_D
        p2_read(lk, F, (F % 36) % P2_NB, ("B", F % 36))
        def group_setup():
            if st == 0:
                a(f"s_add_u32 s{sSOFF}, s{sSOFF}, s{sINC}")
                a(f"s_xor_b32 s{sT2}, s{sB2}, {2*S2}\ns_add_u32 s{sT2}, s{sT2}, s{sM0}\ns_add_u32 s{sT2}, s{sT2}, {S2}")
            else:
                a(f"s_add_u32 s{sSOFF}, s{sSOFF}, s{sINCW}")
                a(f"s_add_u32 s{sT2}, s{sB2}, s{sM0}")
        if not nodma and dma and ks >= 9:
            k = ks - 9
            if k == 0: group_setup()
            if k % 4 == 0:
                a(f"s_add_u32 m0, s{sT2}, {4096*(k//4)}")
                a(f"s_add_u32 s{sT3}, s{sSOFF}, {32*1152*(k//4)}")
            dma2(a, k)
        if dma and T == 12:
            a(f"s_cmp_lg_u32 s{sCNT}, 8\ns_cbranch_scc1 L_nokvadd\ns_cmp_lg_u32 s{sW}, 0\ns_cbranch_scc1 L_nokvadd")
            a(f"v_mov_b32 v2, s2\nv_mov_b32 v3, 1")
            a(f"v_cmp_eq_u32 vcc, 0, v{vLANE}\ns_and_saveexec_b64 s[{sEX}:{sEX+1}], vcc")
            a(f"buffer_store_byte v3, v2, s[{sDBG}:{sDBG+3}], 0 offen sc1")
            a(f"s_mov_b64 exec, s[{sEX}:{sEX+1}]")
            a.label("L_nokvadd")
            a(f"s_cmp_lg_u32 s{sCNT}, 3\ns_cbranch_scc1 L_nokvprobe")
            a(f"buffer_load_dword v95, v11, s[{sDBG}:{sDBG+3}], 0 offen sc1")
            a.label("L_nokvprobe")
        if not nodma and not dma and st == 0 and ks == 9:
            a(f"s_cmp_lg_u32 s{sCNT}, 2\ns_cbranch_scc1 L_p2nog")
            group_setup()
            for k in range(9):
                if k % 4 == 0:
                    a(f"s_add_u32 m0, s{sT2}, {4096*(k//4)}")
                    a(f"s_add_u32 s{sT3}, s{sSOFF}, {32*1152*(k//4)}")
                dma2(a, k)
            a("s_waitcnt vmcnt(20)")
            gen_conv_issue2(a)
            a.label("L_p2nog")
    a.c("--- p2 chunk epilogue")
    a(f"s_xor_b32 s{sB2}, s{sB2}, {2*S2}")
    a(f"s_sub_u32 s{sCNT}, s{sCNT}, 1")
    a("s_nop 7")
    for q in range(8):
        a(f"v_cvt_pk_bf16_f32 v{GT+q}, v{acc+2*q}, v{acc+2*q+1}")
    for q in range(2):
        off = f" offset:{1024*q}" if q else ""
        a(f"buffer_store_dwordx4 {V(GT+4*q,4)}, v{vPST}, s[{sSRDW}:{sSRDW+3}], s{sPOFF} offen{off} sc1")
    a(f"s_add_u32 s{sPOFF}, s{sPOFF}, {4*2048}")

ONES_BF = 0x3f803f80
sPFLG = 56
sPAR = 28
sPP = 29
def gen_q_addr(a, p):
    if p == 0:
        a(f"v_and_b32 v2, 7, v{vLANE}\nv_mul_u32_u24 v2, 1152, v2\nv_lshrrev_b32 v3, 3, v{vLANE}\nv_lshl_add_u32 v248, v3, 4, v2")
    a(f"s_xor_b32 s{sPP}, s{sPAR}, {p}")
    a(f"s_lshl_b32 s{sT0}, s{sI}, 6\ns_lshl_b32 s{sT1}, s{sW}, 4\ns_add_u32 s{sT0}, s{sT0}, s{sT1}\ns_lshl_b32 s{sT1}, s{sPP}, 3\ns_add_u32 s{sT0}, s{sT0}, s{sT1}\ns_mul_i32 s{sT0}, s{sT0}, 1152")

def gen_q_loads(a, QREG, p, addr=True):
    if addr: gen_q_addr(a, p)
    for m in range(9):
        off = f" offset:{128*m}" if m else ""
        a(f"buffer_load_dwordx4 v[{QREG+36*p+4*m}:{QREG+36*p+4*m+3}], v248, s[{sQ}:{sQ+3}], s{sT0} offen{off}{NT['q']}")

LT = 32
def gen_ln_setup(a):
    T = LT
    vB = T+10
    a(f"v_lshrrev_b32 v{T+8}, 3, v{vLANE}\nv_lshrrev_b32 v{T+9}, 1, v{T+8}\nv_lshlrev_b32 v{vB}, 10, v{T+9}")
    a(f"v_and_b32 v{T+9}, 1, v{T+8}\nv_lshl_add_u32 v{vB}, v{T+9}, 9, v{vB}")
    a(f"v_and_b32 v{T+9}, 7, v{vLANE}\nv_lshl_add_u32 v{vB}, v{T+9}, 4, v{vB}")
    a(f"s_lshr_b32 s{sT0}, s{sW}, 1\ns_mul_i32 s{sT0}, s{sT0}, 36864")
    a(f"s_and_b32 s{sT1}, s{sW}, 1\ns_lshl_b32 s{sT1}, s{sT1}, 8")
    a(f"s_add_u32 s{sT0}, s{sT0}, s{sT1}\ns_add_u32 s{sT0}, s{sT0}, {HB}")
    a(f"v_add_u32 v{vB}, s{sT0}, v{vB}")
    vSt = T+11
    a(f"s_lshl_b32 s{sT0}, s{sW}, 6\ns_add_u32 s{sT0}, s{sT0}, {LDS_STAT}")
    a(f"v_lshlrev_b32 v{vSt}, 2, v{T+9}\nv_add_u32 v{vSt}, s{sT0}, v{vSt}")
    vG = T+12
    a(f"s_lshl_b32 s{sT0}, s{sI}, 6\ns_lshl_b32 s{sT1}, s{sW}, 4\ns_add_u32 s{sT0}, s{sT0}, s{sT1}")
    a(f"v_add_u32 v{vG}, s{sT0}, v{T+9}\nv_lshlrev_b32 v{vG}, 3, v{vG}\nv_add_u32 v{vG}, {WS_STATS}, v{vG}")

def gen_ln_pass(a, QREG, p):
    T = LT
    vS, vQ2, vB, vSt, vG = T, T+4, T+10, T+11, T+12
    X = QREG + 36*p
    a(f"s_mov_b32 s{sT2}, {hex(ONES_BF)}\ns_mov_b32 s{sT3}, 0x00003f80\ns_mov_b32 s{sEX}, 0x3f800000")
    a(f"s_xor_b32 s{sPP}, s{sPAR}, {p}")
    a(f"s_lshl_b32 s{sT0}, s{sPP}, 7\nv_add_u32 v{T+13}, s{sT0}, v{vB}\ns_lshl_b32 s{sT0}, s{sPP}, 5\nv_add_u32 v{T+14}, s{sT0}, v{vSt}")
    for k in range(4): a(f"v_mov_b32 v{vS+k}, 0\nv_mov_b32 v{vQ2+k}, 0")
    for d in range(36):
        a(f"v_dot2c_f32_bf16 v{vS+d%4}, s{sT2}, v{X+d}")
        a(f"v_dot2c_f32_bf16 v{vQ2+d%4}, v{X+d}, v{X+d}")
    a("s_nop 2")
    a(f"v_add_f32 v{vS}, v{vS}, v{vS+1}\nv_add_f32 v{vS+2}, v{vS+2}, v{vS+3}")
    a(f"v_add_f32 v{vQ2}, v{vQ2}, v{vQ2+1}\nv_add_f32 v{vQ2+2}, v{vQ2+2}, v{vQ2+3}")
    a(f"v_add_f32 v{vS}, v{vS}, v{vS+2}\nv_add_f32 v{vQ2}, v{vQ2}, v{vQ2+2}")
    a("s_nop 1")
    a(f"v_add_f32_dpp v{vS}, v{vS}, v{vS} row_ror:8 row_mask:0xf bank_mask:0xf")
    a(f"v_add_f32_dpp v{vQ2}, v{vQ2}, v{vQ2} row_ror:8 row_mask:0xf bank_mask:0xf")
    for sw in ("v_permlane16_swap_b32", "v_permlane32_swap_b32"):
        a(f"v_mov_b32 v{vS+1}, v{vS}\nv_mov_b32 v{vQ2+1}, v{vQ2}")
        a("s_nop 1")
        a(f"{sw} v{vS}, v{vS+1}\n{sw} v{vQ2}, v{vQ2+1}")
        a("s_nop 1")
        a(f"v_add_f32 v{vS}, v{vS}, v{vS+1}\nv_add_f32 v{vQ2}, v{vQ2}, v{vQ2+1}")
    inv = hex(f2u(1.0/576.0))
    a(f"v_mul_f32 v{vS}, {inv}, v{vS}\nv_mul_f32 v{vQ2}, {inv}, v{vQ2}")
    a(f"v_fma_f32 v{vQ2}, -v{vS}, v{vS}, v{vQ2}\nv_max_f32 v{vQ2}, 0, v{vQ2}")
    a(f"v_cvt_pk_bf16_f32 v{vS+1}, v{vS}, v{vQ2}")
    a(f"v_and_b32 v{vQ2}, 0xffff0000, v{vS+1}\nv_lshlrev_b32 v{vS}, 16, v{vS+1}")
    a(f"v_add_f32 v{vQ2}, {hex(f2u(1e-5))}, v{vQ2}")
    a(f"v_cvt_pk_bf16_f32 v{vQ2}, v{vQ2}, v{vQ2}\nv_lshlrev_b32 v{vQ2}, 16, v{vQ2}")
    a(f"v_sqrt_f32 v{vQ2}, v{vQ2}\ns_nop 0")
    a(f"v_cvt_pk_bf16_f32 v{vQ2}, v{vQ2}, v{vQ2}\nv_lshlrev_b32 v{vS+1}, 16, v{vQ2}")
    a(f"v_rcp_f32 v{vQ2}, v{vS+1}\nv_sub_f32 v{vS+2}, 0, v{vS}")
    a(f"ds_write_b32 v{T+14}, v{vQ2}")
    a(f"s_lshl_b32 s{sT0}, s{sPP}, 6\ns_cmp_eq_u32 s{sJ}, 0\ns_cselect_b32 s{sT0}, s{sT0}, 0x7ff00000")
    a(f"buffer_store_dwordx2 v[{vS}:{vS+1}], v{vG}, s[{sSRDW}:{sSRDW+3}], s{sT0} offen sc1")
    D = T+16
    for m in range(9):
        tb = D + 12*(m % 2)
        for e in range(4):
            a(f"v_dot2_f32_bf16 v{tb+2*e}, v{X+4*m+e}, s{sT3}, v{vS+2}")
            a(f"v_dot2_f32_bf16 v{tb+2*e+1}, v{X+4*m+e}, s{sEX}, v{vS+2}")
        if m > 0:
            pb = D + 12*((m-1) % 2)
            for e in range(4): a(f"v_cvt_pk_bf16_f32 v{pb+8+e}, v{pb+2*e}, v{pb+2*e+1}")
            a(f"ds_write_b128 v{T+13}, v[{pb+8}:{pb+11}] offset:{(m-1)*4096}")
    pb = D
    a("s_nop 2")
    for e in range(4): a(f"v_cvt_pk_bf16_f32 v{pb+8+e}, v{pb+2*e}, v{pb+2*e+1}")
    a(f"ds_write_b128 v{T+13}, v[{pb+8}:{pb+11}] offset:{8*4096}")

def interleave(a, main_lines, side_groups, start=8):
    n = len(main_lines); g = len(side_groups)
    pos = [start + (n - start - 4) * k // max(g, 1) for k in range(g)]
    lab = None
    k = 0
    for idx, l in enumerate(main_lines):
        if idx > 0 and main_lines[idx-1].startswith("s_cmp"):
            pos = [p + 1 if p == idx else p for p in pos]
        while k < g and pos[k] <= idx and not (idx > 0 and main_lines[idx-1].startswith("s_cmp")):
            for x in side_groups[k]: a.lines.append(x)
            k += 1
        a.lines.append(l)
    while k < g:
        for x in side_groups[k]: a.lines.append(x)
        k += 1

def groups_of(lines):
    out, cur = [], []
    for l in lines:
        cur.append(l)
        if l.startswith("buffer_") or l.startswith("global_"):
            out.append(cur); cur = []
    if cur: out.append(cur)
    return out

KRAW, VRAW, KCO = 176, 112, 72
def gen_kv_loads(a, KREG, vP9, vRUN):
    a(f"s_mul_i32 s52, s{sW}, 36\nv_min_u32 v120, 35, v{vLANE}\nv_add_u32 v120, s52, v120".replace("v120", "v2"))
    a(f"s_mov_b32 s53, {(2**32 + 8)//9}\nv_mul_hi_u32 v{vRUN}, v2, s53")
    a(f"v_mul_u32_u24 v{vP9}, 9, v{vRUN}\nv_sub_u32 v{vP9}, v2, v{vP9}")
    a(f"s_lshl_b32 s52, s{sI}, 6\nv_lshlrev_b32 v3, 2, v{vRUN}\nv_add_u32 v3, s52, v3\nv_mul_u32_u24 v3, 1152, v3")
    a(f"s_mul_i32 s52, s{sJ}, 144\nv_lshl_add_u32 v4, v{vP9}, 4, v3\nv_add_u32 v4, s52, v4")
    for r in range(7):
        if r < 3:
            a(f"v_add_u32 v3, {(r-3)*1152 & 0xffffffff}, v4")
            a(f"buffer_load_dwordx4 v[{KRAW+4*r}:{KRAW+4*r+3}], v3, s[{sK}:{sK+3}], 0 offen{NT['kv']}")
        else:
            off = f" offset:{1152*(r-3)}" if r > 3 else ""
            a(f"buffer_load_dwordx4 v[{KRAW+4*r}:{KRAW+4*r+3}], v4, s[{sK}:{sK+3}], 0 offen{off}{NT['kv']}")
    for r in range(4):
        off = f" offset:{1152*r}" if r else ""
        a(f"buffer_load_dwordx4 v[{VRAW+4*r}:{VRAW+4*r+3}], v4, s[{sV}:{sV+3}], 0 offen{off}{NT['kv']}")
    a(f"s_mul_i32 s52, s{sJ}, 576\nv_lshlrev_b32 v3, 6, v{vP9}")
    for r in range(4):
        off = f" offset:{16*r}" if r else ""
        a(f"buffer_load_dwordx4 v[{KCO+4*r}:{KCO+4*r+3}], v3, s[{sSK}:{sSK+3}], s52 offen{off}")

def gen_kv_compute(a, KREG, vP9, vRUN):
    KU, SU, AC, VU = 32, 88, 120, 152
    a(f"s_mov_b32 s52, 0xffff0000")
    for r in range(7):
        for e in range(4):
            a(f"v_lshlrev_b32 v{KU+8*r+2*e}, 16, v{KREG+4*r+e}\nv_and_b32 v{KU+8*r+2*e+1}, s52, v{KREG+4*r+e}")
    for c in range(8):
        for jj in range(2):
            src = KREG + 44 + 2*c + jj
            a(f"v_lshlrev_b32 v{SU+8*(2*jj)+c}, 16, v{src}\nv_and_b32 v{SU+8*(2*jj+1)+c}, s52, v{src}")
    a(f"v_lshlrev_b32 v62, 2, v{vRUN}\nv_sub_u32 v62, 63, v62\nv_mul_u32_u24 v62, 160, v62")
    a(f"v_lshl_add_u32 v62, v{vP9}, 4, v62\nv_add_u32 v62, {LDS_KV - 3*160}, v62")
    for tok in range(4):
        for jj in (3, 2, 1, 0):
            for pr in range(4):
                d = f"v[{AC+8*tok+2*pr}:{AC+8*tok+2*pr+1}]"
                kk = f"v[{KU+8*(tok+3-jj)+2*pr}:{KU+8*(tok+3-jj)+2*pr+1}]"
                ss = f"v[{SU+8*jj+2*pr}:{SU+8*jj+2*pr+1}]"
                a(f"v_pk_mul_f32 {d}, {kk}, {ss}" if jj == 3 else f"v_pk_fma_f32 {d}, {kk}, {ss}, {d}")
        for e in range(4):
            a(f"v_lshlrev_b32 v{VU+2*e}, 16, v{KREG+28+4*tok+e}\nv_and_b32 v{VU+2*e+1}, s52, v{KREG+28+4*tok+e}")
        for pr in range(4):
            d = f"v[{AC+8*tok+2*pr}:{AC+8*tok+2*pr+1}]"
            a(f"v_pk_mul_f32 {d}, {d}, v[{VU+2*pr}:{VU+2*pr+1}]")
        for e in range(4):
            a(f"v_cvt_pk_bf16_f32 v{VU+8+e}, v{AC+8*tok+2*e}, v{AC+8*tok+2*e+1}")
        a(f"ds_write_b128 v62, v[{VU+8}:{VU+11}] offset:{(3-tok)*160}")

def gen_kv_store(a):
    a(f"v_and_b32 v2, 15, v{vLANE}\nv_lshrrev_b32 v3, 4, v{vLANE}\nv_lshrrev_b32 v4, 2, v2")
    a(f"v_lshl_add_u32 v4, v3, 3, v4\nv_mul_u32_u24 v4, 160, v4\nv_and_b32 v5, 3, v2\nv_lshl_add_u32 v4, v5, 3, v4\nv_add_u32 v4, {LDS_KV}, v4")
    a(f"s_mul_i32 s{sT0}, s{sJ}, 72\nv_add_u32 v5, s{sT0}, v2\nv_lshlrev_b32 v5, 12, v5\nv_lshl_add_u32 v5, v3, 4, v5")
    a(f"s_lshl_b32 s{sT0}, s{sI}, 7\ns_sub_u32 s{sT0}, {WS_KVR + 1984*2}, s{sT0}\nv_add_u32 v5, s{sT0}, v5")
    a("v_mov_b32 v7, 0x7ff00000")
    for u in range(3):
        a(f"s_add_u32 s{sT0}, s{sW}, {4*u}")
        a(f"s_lshr_b32 s{sT1}, s{sT0}, 1\ns_and_b32 s{sT2}, s{sT0}, 1")
        a(f"s_mul_i32 s{sT3}, s{sT2}, {32*160}\ns_lshl_b32 s{sEX}, s{sT1}, 5\ns_add_u32 s{sT3}, s{sT3}, s{sEX}")
        a(f"v_add_u32 v6, s{sT3}, v4")
        r = 96 + 4*u
        a(f"ds_read_b64_tr_b16 v[{r}:{r+1}], v6\nds_read_b64_tr_b16 v[{r+2}:{r+3}], v6 offset:{4*160}")
        a(f"s_lshl_b32 s{sT3}, s{sT1}, 16\ns_lshl_b32 s{sT2}, s{sT2}, 6\ns_add_u32 s{sT3}, s{sT3}, s{sT2}")
        a(f"v_add_u32 v{108+u}, s{sT3}, v5")
        a(f"s_cmp_eq_u32 s{sT1}, 4\ns_cselect_b32 s{sT2}, 8, 16\ns_cmp_gt_u32 s{sT1}, 4\ns_cselect_b32 s{sT2}, 0, s{sT2}")
        a(f"v_cmp_gt_u32 vcc, s{sT2}, v2\ns_nop 1\nv_cndmask_b32 v{108+u}, v7, v{108+u}, vcc")
    a("s_waitcnt lgkmcnt(0)")
    for u in range(3):
        a(f"buffer_store_dwordx4 v[{96+4*u}:{99+4*u}], v{108+u}, s[{sSRDW}:{sSRDW+3}], 0 offen sc1")

def gen_bulk_pf(a, nshare, opts):
    nw = nshare*4
    per = -(-4608 // nw)
    n_ins = -(-per // 64)
    assert n_ins == 1 or True
    for it in range(n_ins):
        cnt = min(64, per - 64*it)
        a(f"s_mul_i32 s54, s{sOM}, {per}\ns_add_u32 s54, s54, {64*it}\nv_min_u32 v123, {cnt-1}, v{vLANE}\nv_add_u32 v123, s54, v123\nv_min_u32 v123, 4607, v123")
        a(f"s_mov_b32 s55, {(2**32 + 575)//576}\nv_mul_hi_u32 v124, v123, s55\nv_mul_u32_u24 v125, 576, v124\nv_sub_u32 v125, v123, v125\nv_mul_u32_u24 v125, 9216, v125\nv_lshl_add_u32 v125, v124, 7, v125")
        a(f"s_mul_i32 s55, s{sJ}, 1152\ns_add_u32 s55, s55, 128")
        a(f"buffer_load_dword v{vDUM}, v125, s[{sSRDA}:{sSRDA+3}], s55 offen{NT['pf']}")
        a(f"buffer_load_dword v{vDUM+1}, v125, s[{sSRDB}:{sSRDB+3}], s55 offen{NT['pf']}")


def gen_wd_pf(a, nshare, c0, c1):
    nw = nshare*4
    nc = c1 - c0
    tot = 576*nc
    per = -(-tot // nw)
    assert per <= 64
    a(f"s_mul_i32 s54, s{sOM}, {per}\nv_min_u32 v123, {per-1}, v1\nv_add_u32 v123, s54, v123\nv_min_u32 v123, {tot-1}, v123")
    a(f"s_mov_b32 s55, {(2**32 + 575)//576}\nv_mul_hi_u32 v124, v123, s55\nv_mul_u32_u24 v125, 576, v124\nv_sub_u32 v125, v123, v125\nv_mul_u32_u24 v125, 1152, v125\nv_lshl_add_u32 v125, v124, 7, v125")
    a(f"s_mul_i32 s55, s{sJ}, {576*1152}\ns_add_u32 s55, s55, {128*c0}")
    a(f"buffer_load_dword v{vDUM+2}, v125, s[{sWDS}:{sWDS+3}], s55 offen")

def gen_pf_setup(a, nshare):
    nw = nshare*4
    NL = -(-576 // nw)
    a(f"s_mul_i32 s{sT0}, s{sOM}, {NL}\nv_min_u32 v2, {NL-1}, v{vLANE}\nv_add_u32 v2, s{sT0}, v2\nv_min_u32 v2, 575, v2")
    a(f"v_mul_u32_u24 v{vPF}, 9216, v2")

def gen_pf_unit(a, nshare):
    nparts = nshare // 8
    NL = -(-576 // (nparts*4))
    assert NL <= 64
    a(f"s_lshr_b32 s{sT0}, s{sOM}, 2\ns_and_b32 s{sPFU}, s{sT0}, 7\ns_lshr_b32 s{sT0}, s{sT0}, 3")
    a(f"s_lshl_b32 s{sT0}, s{sT0}, 2\ns_add_u32 s{sT0}, s{sT0}, s{sW}\ns_mul_i32 s{sT0}, s{sT0}, {NL}")
    a(f"v_min_u32 v2, {NL-1}, v{vLANE}\nv_add_u32 v2, s{sT0}, v2\nv_min_u32 v2, 575, v2")
    a(f"s_cmp_lt_u32 s{sPFU}, 6\ns_cbranch_scc0 L_pfwd")
    a(f"v_mul_u32_u24 v{vPF}, 9216, v2\nv_mov_b32 v{vPF2}, v{vPF}")
    a(f"s_mov_b32 s{sPFA}, s{sSRDA}\ns_mov_b32 s{sPFA+1}, s{sSRDA+1}\ns_mov_b32 s{sPFB}, s{sSRDB}\ns_mov_b32 s{sPFB+1}, s{sSRDB+1}")
    a(f"s_mul_i32 s{sPFO}, s{sJ}, 1152\ns_add_u32 s{sT0}, s{sPFU}, 3\ns_lshl_b32 s{sT0}, s{sT0}, 7\ns_add_u32 s{sPFO}, s{sPFO}, s{sT0}")
    a("s_branch L_pfok")
    a.label("L_pfwd")
    a(f"v_mul_u32_u24 v{vPF}, 1152, v2\nv_add_u32 v{vPF2}, 128, v{vPF}")
    a(f"s_mov_b32 s{sPFA}, s{sWD}\ns_mov_b32 s{sPFA+1}, s{sWD+1}\ns_mov_b32 s{sPFB}, s{sWD}\ns_mov_b32 s{sPFB+1}, s{sWD+1}")
    a(f"s_mul_i32 s{sPFO}, s{sJ}, {576*1152}\ns_sub_u32 s{sT0}, s{sPFU}, 6\ns_lshl_b32 s{sT0}, s{sT0}, 8\ns_add_u32 s{sPFO}, s{sPFO}, s{sT0}")
    a.label("L_pfok")
    a(f"s_mov_b32 s{sPFA+2}, {576*4608*2}\ns_mov_b32 s{sPFA+3}, 0x00020000\ns_mov_b32 s{sPFB+2}, {576*4608*2}\ns_mov_b32 s{sPFB+3}, 0x00020000")

CV_CP = 4160
CV_WAVE = 4*CV_CP
sC, sCB, sCT, sCU, sXR = 70, 71, 76, 77, 78
HL = 64
vDC = 94
def poll(a, name, voff_reg, srd, soff, target, scnt, cmp="ge", sleep=8):
    a(f"s_mov_b32 s{scnt}, 0")
    a.label(f"L_poll_{name}")
    a(f"buffer_load_dword v3, v{voff_reg}, s[{srd}:{srd+3}], {soff} offen sc1")
    a("s_waitcnt vmcnt(0)")
    a(f"v_cmp_{'le' if cmp == 'ge' else 'eq'}_u32 vcc, {target}, v3")
    a(f"s_add_u32 s{scnt}, s{scnt}, 1")
    a(f"s_cmp_eq_u64 vcc, exec\ns_cbranch_scc1 L_pollok_{name}")
    a(f"s_cmp_lt_u32 s{scnt}, 20000\ns_cbranch_scc0 L_pollok_{name}")
    a(f"s_sleep {sleep}\ns_branch L_poll_{name}")
    a.label(f"L_pollok_{name}")

def gen_conv_issue(a, stamps):
    a(f"v_lshlrev_b32 v11, 2, v{vLANE}")
    a(f"s_cmp_ge_u32 s{sC}, 576\ns_cbranch_scc1 L_conv_skip1")
    a(f"s_mul_i32 s{sCB}, s{sW}, {CV_WAVE}\ns_add_u32 s{sCB}, s{sCB}, {HB}")
    a(f"s_mul_i32 s{sXR}, s{sW}, 4608\ns_add_u32 s{sXR}, s{sXR}, {LDS_XR}")
    a(f"s_lshl_b32 s{sCT}, s{sC}, 12")
    a(f"s_add_u32 s88, s{sHK}, s{sCT}\ns_addc_u32 s89, s{sHK+1}, 0\ns_mov_b32 s90, 4096\ns_mov_b32 s91, 0x00020000")
    for o in range(5):
        a(f"v_add_u32 v5, {(1024*o - 16) & 0xffffffff}, v{vPST}")
        a(f"buffer_load_dwordx4 v[{HL+6*o}:{HL+6*o+3}], v5, s[88:91], 0 offen{NT['h']}")
        a(f"v_add_u32 v6, {1024*o}, v{vPST}")
        a(f"buffer_load_dwordx2 v[{HL+6*o+4}:{HL+6*o+5}], v6, s[88:91], 0 offen{NT['h']}")
    a(f"s_lshl_b32 s{sCT}, s{sC}, 1\nv_mov_b32 v4, s{sCT}")
    a(f"buffer_load_ushort v{vDC}, v4, s[{sD}:{sD+3}], 0 offen")
    a.label("L_conv_skip1")

def gen_conv_issue2(a):
    a(f"v_cmp_eq_u32 vcc, 0x01010101, v95\ns_nop 0\ns_cmp_eq_u64 vcc, exec\ns_cbranch_scc1 L_kvok")
    poll(a, "kv", 11, sDBG, 0, "0x01010101", sCU, cmp="eq")
    a.label("L_kvok")
    a(f"s_cmp_ge_u32 s{sC}, 576\ns_cbranch_scc1 L_conv_skip2")
    a(f"s_lshl_b32 s{sCT}, s{sC}, 12\ns_add_u32 s{sCT}, s{sCT}, {WS_KVR}")
    a(f"s_mov_b32 m0, s{sXR}\ns_nop 0")
    for k in range(4):
        off = f" offset:{1024*k}" if k else ""
        a(f"buffer_load_dwordx4 v{vPST}, s[{sSRDW}:{sSRDW+3}], s{sCT} offen{off} sc1 lds")
    a.label("L_conv_skip2")

def publish_partial(a):
    a("s_waitcnt vmcnt(0)")
    a(f"v_mov_b32 v4, 0\nv_mov_b32 v5, 1")
    a(f"v_cmp_eq_u32 vcc, 0, v{vLANE}\ns_and_saveexec_b64 s[{sEX}:{sEX+1}], vcc")
    a(f"buffer_store_dword v5, v4, s[{sSRDW}:{sSRDW+3}], s{sPFLG} offen sc1")
    a(f"s_mov_b64 exec, s[{sEX}:{sEX+1}]")

def gen_conv_main(a, stamps):
    a(f"s_cmp_ge_u32 s{sC}, 576\ns_cbranch_scc1 L_noconv")
    for r in range(4): a(f"v_mov_b32 v{32+r}, 0")
    a(f"v_add_u32 v5, s{sXR}, v{vPST}")
    a(f"v_cmp_gt_u32 vcc, 32, v{vLANE}\ns_and_saveexec_b64 s[{sEX}:{sEX+1}], vcc")
    a(f"ds_write_b128 v5, v[32:35] offset:4096")
    a(f"s_mov_b64 exec, s[{sEX}:{sEX+1}]")
    a(f"v_mul_u32_u24 v6, {CV_CP}, v{vLANE}\nv_add_u32 v6, s{sCB}, v6")
    a(f"v_cmp_gt_u32 vcc, 4, v{vLANE}\ns_and_saveexec_b64 s[{sEX}:{sEX+1}], vcc")
    a(f"ds_write_b128 v6, v[32:35]")
    a(f"s_mov_b64 exec, s[{sEX}:{sEX+1}]")
    a(f"v_add_u32 v7, s{sCB}, v{vPST}")
    stamp(a, 17, stamps)
    for o in range(5):
        P = HL + 6*o
        t = 96 + 16*(o % 2)
        if o == 4:
            a(f"v_cmp_eq_u32 vcc, 0, v{vLANE}\ns_and_saveexec_b64 s[{sEX}:{sEX+1}], vcc")
        for n in range(4):
            a(f"v_mov_b32 v{t+n}, v{P+n}")
            a(f"v_alignbit_b32 v{t+4+n}, v{P+n+1}, v{P+n}, 16")
            a(f"v_mov_b32 v{t+8+n}, v{P+n+1}")
            a(f"v_alignbit_b32 v{t+12+n}, v{P+n+2}, v{P+n+1}, 16")
        for s_ in range(4):
            a(f"ds_write_b128 v7, v[{t+4*s_}:{t+4*s_+3}] offset:{s_*CV_CP + 16 + 1024*o}")
        if o == 4: a(f"s_mov_b64 exec, s[{sEX}:{sEX+1}]")
    a(f"v_and_b32 v14, 15, v{vLANE}\nv_lshrrev_b32 v15, 4, v{vLANE}")
    a(f"v_lshlrev_b32 v16, 5, v14\nv_lshlrev_b32 v17, 4, v15\nv_sub_u32 v16, v17, v16")
    a(f"s_add_u32 s{sCT}, s{sXR}, {2*(2032 - 32*56)}\nv_add_u32 v16, s{sCT}, v16")
    a(f"v_add_u32 v2, 1, v14\nv_and_b32 v3, 3, v2\nv_mul_u32_u24 v3, {CV_CP}, v3\nv_lshrrev_b32 v2, 2, v2")
    a(f"v_lshl_add_u32 v3, v2, 3, v3\nv_lshl_add_u32 v3, v15, 4, v3\nv_add_u32 v13, s{sCB}, v3")
    a("s_waitcnt lgkmcnt(0)")
    stamp(a, 19, stamps)
    lk = Lgkm(a)
    NB = 6; FB = 96; ACCB = 32
    def rdF(m):
        r = FB + 4*(m % NB)
        lk.issue(("F", m), f"ds_read_b64 v[{r}:{r+1}], v13 offset:{64*m}")
        lk.issue(("F", m), f"ds_read_b64 v[{r+2}:{r+3}], v13 offset:{64*m+8}")
    def rdG(i):
        lk.issue(("G", i), f"ds_read_b128 {A(4*(i+7),4)}, v16 offset:{(56-i)*64}")
    rdF(0)
    for T in range(8): rdG(8*T)
    rdF(1)
    for m in range(64):
        T0 = max(0, -(-(m-7)//8))
        if m == 9:
            stamp(a, 25, stamps); publish_partial(a); stamp(a, 26, stamps)
        if m == 32:
            gen_pflag_addr(a, 12, f"s{sW}")
            a(f"buffer_load_dword v11, v12, s[{sSRDW}:{sSRDW+3}], 0 offen sc1")
        if m == 48:
            stamp(a, 27, stamps)
            a("s_waitcnt vmcnt(0)")
            a(f"v_cmp_eq_u32 vcc, 1, v11\ns_nop 0\ns_cmp_eq_u64 vcc, exec\ns_cbranch_scc1 L_pf_ok")
            poll(a, "pA", 12, sSRDW, "0", 1, sT0, cmp="eq", sleep=4)
            a.label("L_pf_ok")
            stamp(a, 18, stamps)
            gen_final_addr(a)
            gen_final_loads(a)
            stamp(a, 9, stamps)
        lk.wait_for(("F", m))
        pend = []
        if m + 1 < 8: pend += [("G", 8*T - (m+1)) for T in range(8)]
        if m + 2 < 64: pend += [("F", m+2)]
        for T in range(T0, 8):
            if m < 8: lk.wait_for(("G", 8*T - m))
            c_ = "0" if m == 0 else f"v[{ACCB+4*T}:{ACCB+4*T+3}]"
            a(f"v_mfma_f32_16x16x32_bf16 v[{ACCB+4*T}:{ACCB+4*T+3}], v[{FB+4*(m%NB)}:{FB+4*(m%NB)+3}], {A(4*(8*T-m+7),4)}, {c_}")
            if pend:
                k, x = pend.pop(0)
                (rdG if k == "G" else rdF)(x)
        for k, x in pend: (rdG if k == "G" else rdF)(x)
    stamp(a, 21, stamps)
    a(f"v_lshlrev_b32 v5, 5, v14\nv_lshlrev_b32 v17, 3, v15\nv_add_u32 v17, v5, v17")
    a(f"s_add_u32 s{sCT}, s{sXR}, {2*2044 - 7*512}\nv_sub_u32 v2, s{sCT}, v17")
    for T in range(8): a(f"ds_read_b64 v[{96+2*T}:{97+2*T}], v2 offset:{(7-T)*512}")
    a(f"v_lshlrev_b32 v{vDC}, 16, v{vDC}")
    a(f"s_lshl_b32 s{sCT}, s{sC}, 12\ns_add_u32 s{sCT}, s{sCT}, {WS_ZT}\ns_mov_b32 s{sCU}, 0xffff0000")
    a("s_waitcnt lgkmcnt(0)")
    for T in range(8):
        kv = 96+2*T; ac = ACCB+4*T; t = 112 + 6*(T % 2)
        a(f"v_and_b32 v{t}, s{sCU}, v{kv+1}\nv_lshlrev_b32 v{t+1}, 16, v{kv+1}\nv_and_b32 v{t+2}, s{sCU}, v{kv}\nv_lshlrev_b32 v{t+3}, 16, v{kv}")
        for r in range(4): a(f"v_fmac_f32 v{ac+r}, v{t+r}, v{vDC}")
        a(f"v_cvt_pk_bf16_f32 v{t+4}, v{ac}, v{ac+1}\nv_cvt_pk_bf16_f32 v{t+5}, v{ac+2}, v{ac+3}")
        off = f" offset:{512*T}" if T else ""
        a(f"buffer_store_dwordx2 v[{t+4}:{t+5}], v17, s[{sSRDW}:{sSRDW+3}], s{sCT} offen{off} sc1")

def gen_pflag_addr(a, vdst, swave):
    a(f"s_lshl_b32 s{sT0}, s{sI}, 7\ns_lshl_b32 s{sT1}, {swave}, 2\ns_add_u32 s{sT0}, s{sT0}, s{sT1}\ns_add_u32 s{sT0}, s{sT0}, {WS_FLAG}")
    a(f"v_and_b32 v{vdst}, 7, v{vLANE}\nv_lshlrev_b32 v{vdst}, 4, v{vdst}\nv_add_u32 v{vdst}, s{sT0}, v{vdst}")

sFC, sFW, sST = 57, 55, 54
FP, FS, FX, FZ, FST = 128, 192, 208, 216, 232
def gen_final_addr(a):
    a(f"s_lshr_b32 s{sT0}, s{sFW}, 1\ns_and_b32 s{sT1}, s{sFW}, 1")
    a(f"v_and_b32 v3, 31, v{vLANE}\nv_lshrrev_b32 v4, 5, v{vLANE}")
    a(f"s_lshl_b32 s{sT2}, s{sI}, 6\ns_lshl_b32 s{sT0}, s{sT0}, 5\ns_add_u32 s{sT2}, s{sT2}, s{sT0}\nv_add_u32 v5, s{sT2}, v3")
    a(f"s_lshl_b32 s{sT2}, s{sFC}, 6\ns_lshl_b32 s{sT1}, s{sT1}, 5\ns_add_u32 s{sT2}, s{sT2}, s{sT1}")
    a(f"v_lshlrev_b32 v6, 2, v4\nv_add_u32 v6, s{sT2}, v6")
    a(f"v_mul_u32_u24 v7, 1152, v5\nv_lshl_add_u32 v7, v6, 1, v7")
    a(f"v_lshlrev_b32 v8, 12, v6\nv_lshl_add_u32 v8, v5, 1, v8\nv_add_u32 v8, {WS_ZT}, v8")
    a(f"v_lshlrev_b32 v9, 3, v5\nv_add_u32 v9, {WS_STATS}, v9")

def gen_final_loads(a):
    isz = 2048
    a(f"s_mul_i32 s{sT2}, s{sI}, 9\ns_add_u32 s{sT2}, s{sT2}, s{sFC}\ns_lshl_b32 s{sT2}, s{sT2}, 2\ns_add_u32 s{sT2}, s{sT2}, s{sFW}\ns_mul_i32 s{sT2}, s{sT2}, {isz}\ns_add_u32 s{sT2}, s{sT2}, {WS_PART}")
    for j in range(8):
        for q in range(2):
            r = FP + (j*2 + q)*4
            off = f" offset:{1024*q}" if q else ""
            a(f"buffer_load_dwordx4 v[{r}:{r+3}], v{vPST}, s[{sSRDW}:{sSRDW+3}], s{sT2} offen{off} sc1")
        if j < 7: a(f"s_add_u32 s{sT2}, s{sT2}, {32*9*4*isz}")
    for aa in range(4):
        off = f" offset:{16*aa}" if aa else ""
        a(f"buffer_load_dwordx2 v[{FX+2*aa}:{FX+2*aa+1}], v7, s[{sX}:{sX+3}], 0 offen{off}")
    a(f"buffer_load_dwordx2 v[{FST}:{FST+1}], v9, s[{sSRDW}:{sSRDW+3}], 0 offen sc1")

FZ2 = 104
def gen_final_z(a, tag, stamps=False):
    a(f"s_mov_b32 s{sCU}, 0")
    a.label(f"L_zre_{tag}")
    for aa in range(4):
        for e in range(4):
            a(f"s_mov_b32 s{sT3}, {(8*aa+e)*4096}")
            a(f"buffer_load_ushort v{FZ+4*aa+e}, v8, s[{sSRDW}:{sSRDW+3}], s{sT3} offen sc1")
    a(f"s_cmp_lg_u32 s{sST}, 1\ns_cbranch_scc1 L_z1_{tag}")
    for aa in range(4):
        for e in range(4):
            a(f"s_mov_b32 s{sT3}, {(8*aa+e)*4096}")
            a(f"buffer_load_ushort v{FZ2+4*aa+e}, v97, s[{sSRDW}:{sSRDW+3}], s{sT3} offen sc1")
    a("s_waitcnt vmcnt(0)")
    a(f"v_max3_u32 v2, v{FZ2}, v{FZ2+1}, v{FZ2+2}")
    for k in range(3, 15, 2): a(f"v_max3_u32 v2, v2, v{FZ2+k}, v{FZ2+k+1}")
    a(f"v_max_u32 v3, v2, v{FZ2+15}")
    a(f"s_branch L_z2_{tag}")
    a.label(f"L_z1_{tag}")
    a("s_waitcnt vmcnt(0)\nv_mov_b32 v3, 0")
    a.label(f"L_z2_{tag}")
    a(f"v_max3_u32 v2, v{FZ}, v{FZ+1}, v{FZ+2}")
    for k in range(3, 15, 2): a(f"v_max3_u32 v2, v2, v{FZ+k}, v{FZ+k+1}")
    a(f"v_max3_u32 v2, v2, v{FZ+15}, v3")
    a(f"v_cmp_eq_u32 vcc, 0xffff, v2\ns_add_u32 s{sCU}, s{sCU}, 1\ns_nop 0\ns_cmp_eq_u64 vcc, 0\ns_cbranch_scc1 L_zok_{tag}")
    a(f"s_cmp_lt_u32 s{sCU}, 5000\ns_cbranch_scc0 L_zok_{tag}\ns_sleep 2\ns_branch L_zre_{tag}")
    a.label(f"L_zok_{tag}")
    stamp(a, 29, stamps)

def gen_final_sum(a):
    a(f"s_mov_b32 s{sT3}, 0xffff0000")
    T = 234
    for j in range(8):
        for D in range(8):
            src = FP + 8*j + D
            if j == 0:
                a(f"v_lshlrev_b32 v{FS+2*D}, 16, v{src}\nv_and_b32 v{FS+2*D+1}, s{sT3}, v{src}")
            else:
                tt = T + 2*(D % 2)
                a(f"v_lshlrev_b32 v{tt}, 16, v{src}\nv_and_b32 v{tt+1}, s{sT3}, v{src}")
                a(f"v_pk_add_f32 v[{FS+2*D}:{FS+2*D+1}], v[{FS+2*D}:{FS+2*D+1}], v[{tt}:{tt+1}]")

XN, XF, FF = 128, 144, 160
def _unp(a, dst, src, M):
    a(f"v_lshlrev_b32 v{dst}, 16, v{src}\nv_and_b32 v{dst+1}, s{M}, v{src}\nv_lshlrev_b32 v{dst+2}, 16, v{src+1}\nv_and_b32 v{dst+3}, s{M}, v{src+1}")
def _pk(a, dst, src):
    a(f"v_cvt_pk_bf16_f32 v{dst}, v{src}, v{src+1}\nv_cvt_pk_bf16_f32 v{dst+1}, v{src+2}, v{src+3}")

def gen_final_pre(a):
    T = 176; M = sT3
    a(f"s_mov_b32 s{sT3}, 0xffff0000")
    a(f"v_rcp_f32 v{T}, v{FST+1}\ns_nop 0\nv_mul_f32 v{T+1}, v{T}, v{T}")
    for aa in range(4):
        P2 = T + 2 + 2*(aa % 2)
        _unp(a, XF+4*aa, FX+2*aa, M)
        for e in range(4): a(f"v_sub_f32 v{XN+4*aa+e}, v{XF+4*aa+e}, v{FST}")
        _pk(a, P2, XN+4*aa); _unp(a, XN+4*aa, P2, M)
        for e in range(4): a(f"v_mul_f32 v{XN+4*aa+e}, v{XN+4*aa+e}, v{T}")
        _pk(a, P2, XN+4*aa); _unp(a, XN+4*aa, P2, M)
        for e in range(4): a(f"v_mul_f32 v{FF+4*aa+e}, v{FS+4*aa+e}, v{T+1}")
        _pk(a, P2, FF+4*aa); _unp(a, FF+4*aa, P2, M)

def gen_final_combine(a):
    U = 176; M = sT3
    a(f"s_mov_b32 s{sT3}, 0xffff0000")
    for aa in range(4):
        V4 = U + 8*(aa % 2)
        for e in range(4):
            a(f"v_lshlrev_b32 v{V4+e}, 16, v{FZ+4*aa+e}")
        for e in range(4): a(f"v_mul_f32 v{V4+e}, v{V4+e}, v{XN+4*aa+e}")
        _pk(a, V4+4, V4); _unp(a, V4, V4+4, M)
        for e in range(4): a(f"v_add_f32 v{V4+e}, v{V4+e}, v{XF+4*aa+e}")
        _pk(a, V4+4, V4); _unp(a, V4, V4+4, M)
        for e in range(4): a(f"v_add_f32 v{V4+e}, v{V4+e}, v{FF+4*aa+e}")
        _pk(a, V4+6, V4)
        off = f" offset:{16*aa}" if aa else ""
        a(f"buffer_store_dwordx2 v[{V4+6}:{V4+7}], v7, s[{sOUT}:{sOUT+3}], 0 offen{off}")

def gen_kernel(name, fp32_part=False, opts=None, stamps=False, mapping="32x1"):
    opts = opts or {}
    nodma = opts.get("no_dma")
    set_p1(opts.get("p1d", 3))
    a = Asm()
    a(f".globl {name}\n.p2align 8\n.type {name},@function\n{name}:")
    a("s_cmp_ge_u32 s2, 256\ns_cbranch_scc1 L_done")
    a("s_load_dwordx4 s[80:83], s[0:1], 0")
    a("s_load_dwordx4 s[88:91], s[0:1], 16")
    a("s_load_dwordx4 s[68:71], s[0:1], 32")
    a("s_load_dwordx4 s[4:7], s[0:1], 56")
    a("s_load_dwordx4 s[16:19], s[0:1], 72")
    a("s_load_dwordx4 s[44:47], s[0:1], 88")
    if stamps:
        a("s_memrealtime s[58:59]\ns_memtime s[50:51]")
    a(f"v_lshrrev_b32 v2, 6, v0\nv_and_b32 v{vLANE}, 63, v0")
    a(f"v_readfirstlane_b32 s{sW}, v2")
    if mapping == "32x1":
        a(f"s_and_b32 s{sJ}, s2, 7\ns_lshr_b32 s{sI}, s2, 3"); nshare = 32
        a(f"s_lshl_b32 s{sOM}, s{sI}, 2")
    elif mapping == "16x2":
        a(f"s_and_b32 s{sT0}, s2, 3\ns_lshl_b32 s{sT0}, s{sT0}, 1\ns_bfe_u32 s{sT1}, s2, 0x10003\ns_add_u32 s{sJ}, s{sT0}, s{sT1}")
        a(f"s_bfe_u32 s{sT0}, s2, 0x10002\ns_lshl_b32 s{sT0}, s{sT0}, 4\ns_lshr_b32 s{sT1}, s2, 4\ns_add_u32 s{sI}, s{sT0}, s{sT1}"); nshare = 16
        a(f"s_lshl_b32 s{sOM}, s{sT1}, 2")
    elif mapping == "8x4":
        a(f"s_and_b32 s{sT0}, s2, 1\ns_lshl_b32 s{sT0}, s{sT0}, 2\ns_bfe_u32 s{sT1}, s2, 0x20003\ns_add_u32 s{sJ}, s{sT0}, s{sT1}")
        a(f"s_bfe_u32 s{sT0}, s2, 0x20001\ns_lshl_b32 s{sT0}, s{sT0}, 3\ns_lshr_b32 s{sT1}, s2, 5\ns_add_u32 s{sI}, s{sT0}, s{sT1}"); nshare = 8
        a(f"s_lshl_b32 s{sOM}, s{sT1}, 2")
    a(f"v_lshlrev_b32 v{vPST}, 4, v{vLANE}")
    if not opts.get("no_codepf"):
        a("s_getpc_b64 s[52:53]")
        a.label("L_pc")
        a(f"s_sub_u32 s52, s52, L_pc-{name}\ns_subb_u32 s53, s53, 0")
        a(f"s_lshr_b32 s54, s2, 3\ns_and_b32 s54, s54, 3\ns_cmp_lg_u32 s54, s{sW}\ns_cbranch_scc1 L_nocpf")
        a(f"s_lshl_b32 s54, s{sW}, 13\nv_lshlrev_b32 v2, 7, v{vLANE}\nv_add_u32 v2, s54, v2\nv_min_u32 v2, L_done-{name}, v2")
        a(f"global_load_dword v{vDUM+3}, v2, s[52:53]")
        a.label("L_nocpf")
    a(f"s_add_u32 s{sOM}, s{sOM}, s{sW}")
    a(f"s_and_b32 s{sPAR}, s{sJ}, {0 if mapping == '32x1' else 1}")
    gen_q_addr(a, 0)
    a(f"s_mov_b32 s99, s{sT0}")
    a("s_waitcnt lgkmcnt(0)")
    a("s_mov_b32 s84, s82\ns_mov_b32 s85, s83")
    a(f"s_mov_b32 s{sQ+2}, {2048*576*2}\ns_mov_b32 s{sQ+3}, 0x00020000\ns_mov_b32 s{sT0}, s99")
    QREG = 176
    q0l = Asm(); gen_q_loads(q0l, QREG, 0, addr=False)
    early0 = len(a.lines)
    a.lines += tag_vm(q0l.lines, "q0")
    a("s_mov_b32 s92, s90\ns_mov_b32 s93, s91")
    a("s_mov_b32 s96, s70\ns_mov_b32 s97, s71")
    a("s_mov_b32 s8, s6\ns_mov_b32 s9, s7")
    a("s_mov_b32 s64, s18\ns_mov_b32 s65, s19")
    a("s_mov_b32 s12, s46\ns_mov_b32 s13, s47")
    a("s_mov_b32 s72, s80\ns_mov_b32 s73, s81")
    a(f"s_mov_b32 s18, {576*4608*2}\ns_mov_b32 s19, 0x00020000")
    for srd, n in ((sSRDA, 576*4608*2), (sSRDB, 576*4608*2), (sSRDW, WS_SIZE), (sDBG, 256), (sK, 2048*576*2), (sV, 2048*576*2), (sSK, 576*4*2), (sD, 576*2), (sOUT, 2048*576*2), (sX, 2048*576*2)):
        a(f"s_mov_b32 s{srd+2}, {n}\ns_mov_b32 s{srd+3}, 0x00020000")
    if stamps:
        a("v_mov_b32 v249, 0\nv_writelane_b32 v249, s50, 0")
    stamp(a, 1, stamps)
    p0 = early0
    QREG, KREG, vP9, vRUN = 176, 72, 250, 251
    def blk(fn, tag=None):
        t = Asm(); fn(t)
        return tag_vm(t.lines, tag) if tag else t.lines
    def B_pf0(t):
        gen_pf_setup(t, nshare)
        t(f"s_mul_i32 s{sPFO}, s{sJ}, 1152")
        t(f"buffer_load_dword v{vDUM}, v{vPF}, s[{sSRDA}:{sSRDA+3}], s{sPFO} offen")
        t(f"buffer_load_dword v{vDUM+1}, v{vPF}, s[{sSRDB}:{sSRDB+3}], s{sPFO} offen")
        t(f"s_add_u32 s{sPFO}, s{sPFO}, 128")
    def B_pf12(t):
        for r in range(2):
            t(f"buffer_load_dword v{vDUM}, v{vPF}, s[{sSRDA}:{sSRDA+3}], s{sPFO} offen")
            t(f"buffer_load_dword v{vDUM+1}, v{vPF}, s[{sSRDB}:{sSRDB+3}], s{sPFO} offen")
            t(f"s_add_u32 s{sPFO}, s{sPFO}, 128")
    def B_clr(t):
        t(f"v_mov_b32 v2, s{sPFLG}\nv_mov_b32 v3, 0x7ff00000\nv_cmp_eq_u32 vcc, 0, v{vLANE}\nv_mov_b32 v4, 0\ns_nop 0\nv_cndmask_b32 v2, v3, v2, vcc")
        t(f"buffer_store_dword v4, v2, s[{sSRDW}:{sSRDW+3}], 0 offen sc1")
        t(f"s_lshl_b32 s{sT2}, s{sC}, 12\ns_add_u32 s{sT2}, s{sT2}, {WS_ZT}\ns_cmp_lt_u32 s{sC}, 576\ns_cselect_b32 s{sT2}, s{sT2}, 0x7ff00000")
        for r in range(4): t(f"v_mov_b32 v{116+r}, -1")
        for k in range(4):
            off = f" offset:{1024*k}" if k else ""
            t(f"buffer_store_dwordx4 v[116:119], v{vPST}, s[{sSRDW}:{sSRDW+3}], s{sT2} offen{off} sc1")
    def B_setup(t):
        t(f"v_lshrrev_b32 v2, 3, v{vLANE}\nv_and_b32 v3, 7, v{vLANE}\nv_lshrrev_b32 v4, 1, v3\nv_and_b32 v5, 1, v3\nv_lshlrev_b32 v5, 4, v5")
        t(f"v_bfe_u32 v6, v{vLANE}, 4, 1\nv_lshlrev_b32 v7, 1, v6")
        t(f"s_mul_i32 s{sT0}, s{sW}, 24\nv_add_u32 v23, s{sT0}, v2\ns_movk_i32 s{sT1}, 9216\nv_mul_lo_u32 v21, v23, s{sT1}")
        for p, vd in ((0, VDG), (1, VDU)):
            t(f"v_or_b32 v22, {p}, v7\nv_xor_b32 v22, v4, v22\nv_lshlrev_b32 v22, 5, v22\nv_add3_u32 v22, v21, v22, v5")
            for k in range(3): t(f"v_add_u32 v{vd[k]}, {8*k*9216 - 1024*k}, v22")
        t(f"s_mul_i32 s{sM0}, s{sW}, 3072\ns_add_u32 s{sM0+1}, s{sM0}, 12288")
        t(f"s_mul_i32 s{sT0}, s{sW}, 72\nv_add_u32 v23, s{sT0}, v2\ns_movk_i32 s{sT1}, 1152\nv_mul_lo_u32 v21, v23, s{sT1}")
        t(f"v_lshrrev_b32 v22, 2, v3\nv_xor_b32 v22, v22, v6\nv_lshlrev_b32 v22, 6, v22\nv_and_b32 v23, 3, v3\nv_lshlrev_b32 v23, 4, v23\nv_add3_u32 v22, v21, v22, v23")
        for k in range(4): t(f"v_add_u32 v{vD2+k}, {8*k*1152 - 1024*k}, v22")
        t(f"v_and_b32 v2, 15, v{vLANE}\nv_bfe_u32 v3, v{vLANE}, 4, 1\nv_lshrrev_b32 v4, 5, v{vLANE}\nv_lshrrev_b32 v5, 2, v2\nv_bfe_u32 v6, v2, 3, 1")
        t(f"v_lshl_add_u32 v7, v4, 3, v5\nv_lshlrev_b32 v7, 7, v7\nv_lshl_add_u32 v21, v6, 1, v3\nv_xor_b32 v21, s{sW}, v21\nv_lshlrev_b32 v21, 5, v21")
        t(f"v_and_b32 v22, 3, v2\nv_lshlrev_b32 v22, 3, v22\nv_add3_u32 v{vRA1}, v7, v21, v22\nv_mul_u32_u24 v21, 12288, v3\nv_add_u32 v{vRA1}, v{vRA1}, v21")
        t(f"v_add_u32 v{vRA1b}, 65536, v{vRA1}\nv_add_u32 v{vRA1c}, 131072, v{vRA1}")
        t(f"v_lshl_add_u32 v7, v4, 2, v5\nv_lshlrev_b32 v7, 7, v7\ns_and_b32 s{sT0}, s{sW}, 1\nv_xor_b32 v21, s{sT0}, v6\nv_lshlrev_b32 v21, 6, v21")
        t(f"v_lshlrev_b32 v2, 5, v3\nv_add3_u32 v{vRA2}, v7, v21, v2\nv_add_u32 v{vRA2}, v{vRA2}, v22\nv_add_u32 v{vRA2b}, 32768, v{vRA2}")
        t(f"s_mov_b32 s{sHIDX}, 0\ns_mov_b32 s{sB2}, 0")
        t(f"s_lshl_b32 s{sT0}, s{sJ}, 5\ns_add_u32 s{sT0}, s{sT0}, s{sI}\ns_mul_i32 s{sT0}, s{sT0}, {9*4*2048}\ns_mul_i32 s{sT1}, s{sW}, 2048\ns_add_u32 s{sT0}, s{sT0}, s{sT1}\ns_add_u32 s{sPOFF}, s{sT0}, {WS_PART}")
        t(f"s_mul_i32 s{sSOFF}, s{sJ}, {576*2}\ns_mov_b32 s{sINC}, {96*9216}")
        t(f"s_mov_b32 s{sINCW}, {(-5*96*9216 + (0 if opts.get('same_cols') else 128)) & 0xffffffff}")
        t(f"s_lshl_b32 s{sT0}, s{sI}, 7\ns_lshl_b32 s{sT1}, s{sJ}, 4\ns_add_u32 s{sT1}, s{sT1}, s{sT0}\ns_lshl_b32 s{sT0}, s{sW}, 2\ns_add_u32 s{sT1}, s{sT1}, s{sT0}\ns_add_u32 s{sPFLG}, s{sT1}, {WS_FLAG}")
        t(f"s_lshl_b32 s{sC}, s{sW}, 8\ns_add_u32 s{sC}, s{sC}, s2")
        gen_ln_setup(t)
    def B_dma012(t):
        for st in range(3):
            if st: t(f"s_add_u32 s{sSOFF}, s{sSOFF}, s{sINC}")
            tt = Asm(); dma1_group(tt, st)
            t.lines += tag_vm(tt.lines, "pair0") if st < 2 else tt.lines
    def B_frags(t):
        t(f"v_add_u32 v{vHR}, {HB}, v{vPST}\nv_add_u32 v2, {65536}, v{vHR}")
        for f in range(72):
            if f < 64: t(f"ds_read_b128 {xn_frag(f)}, v{vHR} offset:{f*1024}")
            else: t(f"ds_read_b128 {xn_frag(f)}, v2 offset:{(f-64)*1024}")
        t(f"v_and_b32 v2, 31, v{vLANE}\nv_lshlrev_b32 v2, 2, v2\nv_add_u32 v2, {LDS_STAT}, v2")
        t(f"ds_read_b32 v3, v2\nds_read_b32 v4, v2 offset:128")
    a.lines += blk(B_pf0)
    a.lines += blk(B_setup)
    stamp(a, 2, stamps)
    if mapping != "32x1": a("s_waitcnt vmcnt(@q0)")
    a.lines += blk(lambda t: gen_q_loads(t, QREG, 1), "q1")
    a("s_waitcnt vmcnt(@q0)")
    stamp(a, 3, stamps)
    gen_ln_pass(a, QREG, 0)
    stamp(a, 6, stamps)
    a("s_waitcnt vmcnt(@q1)")
    a.lines += blk(B_pf12)
    a.lines += blk(lambda t: gen_kv_loads(t, KREG, vP9, vRUN), "kv")
    stamp(a, 5, stamps)
    gen_ln_pass(a, QREG, 1)
    a("s_waitcnt lgkmcnt(0)")
    stamp(a, 4, stamps)
    a("s_barrier")
    stamp(a, 7, stamps)
    fr = blk(B_frags); dm = groups_of(blk(B_dma012))
    interleave(a, fr, dm, start=4)
    a("s_waitcnt lgkmcnt(0)")
    for n, src in ((0, 3), (1, 4)):
        a(f"v_mul_f32 v5, v{src}, v{src}\nv_mul_f32 v{VC0[n]}, {hex(f2u(C0))}, v{src}\nv_mul_f32 v5, v5, v{src}\nv_mul_f32 v{VC1[n]}, {hex(f2u(C1))}, v5")
    stamp(a, 8, stamps)
    a("s_barrier")
    a(f"s_add_u32 s{sSOFF}, s{sSOFF}, s{sINC}")
    dma1_group(a, 3)
    a(f"s_add_u32 s{sSOFF}, s{sSOFF}, s{sINC}")
    dma1_group(a, 4, 0, 12 - P1_BAR)
    gen_pf_unit(a, nshare)
    stamp(a, 9, stamps)
    stamp(a, 10, stamps)
    a("s_waitcnt vmcnt(@pair0)")
    stamp(a, 11, stamps)
    a("s_barrier")
    lk = Lgkm(a)
    for kk in range(P1_D): p1_read(lk, kk, kk % P1_NB, ("A", kk))
    a(f"s_mov_b32 s{sCNT}, 4\ns_mov_b32 s62, 32\ns_mov_b32 s{sHIDX}, 8")
    stamp(a, 12, stamps)
    pre = list(lk.q)
    def post_bar(a_, lk_):
        t = Asm(); gen_kv_store(t); B_clr(t)
        for l in t.lines:
            if l.startswith("ds_read"): lk_.issue(("X", l), l)
            elif l == "s_waitcnt lgkmcnt(0)": a_(l); lk_.wait_all_keep = True; lk_.q = []
            else: a_(l)
    r0 = len(a.lines)
    gen_round(a, lk, 0, 1, "Z", opts=opts, extra=kv_compute_ops(vP9, vRUN))
    check_hazards(a.lines[r0:], "round0")
    a.lines[p0:] = resolve_vm(a.lines[p0:])
    a(f"s_mov_b32 s{sCNT}, 3")
    lk.q = list(pre)
    a.label("L_roundA")
    b0 = len(a.lines)
    gen_round(a, lk, 1, 0, "A", opts=opts)
    a.label("L_roundB")
    gen_round(a, lk, 0, 1, "B", last_check=True, opts=opts)
    assert lk.q == pre, (lk.q, pre)
    a(f"s_sub_u32 s{sCNT}, s{sCNT}, 1\ns_cmp_ge_i32 s{sCNT}, 0\ns_cbranch_scc1 L_roundA")
    check_hazards(a.lines[b0:] + a.lines[b0:], "phase1")
    a("s_waitcnt lgkmcnt(0)")
    stamp(a, 13, stamps)
    a("s_waitcnt vmcnt(0)")
    a("s_barrier")
    gen_kv_store(a)
    a.lines += blk(B_clr)
    gen_conv_issue(a, stamps)
    tmp = Asm(); gen_wd_pf(tmp, nshare, 4, 9)
    for l in tmp.lines: a(l.replace("v123", "v10X").replace("v124", "v127").replace("v125", "v5").replace("v10X", "v4"))
    a(f"s_lshl_b32 s{sT0}, s{sW}, 10\nv_add_u32 v2, s{sT0}, v{vHR}\nv_add_u32 v3, {36*1024}, v2")
    hw = []
    for rho in range(8):
        src = HREG + 8*(rho+1)
        hw.append([f"ds_write_b128 v2, {V(src,4)} offset:{rho*4096}"]); hw.append([f"ds_write_b128 v3, {V(src+4,4)} offset:{rho*4096}"])
    interleave(a, gelu_ops(ACC[0]), hw, start=2)
    a(f"ds_write_b128 v2, {V(HP,4)} offset:{8*4096}\nds_write_b128 v3, {V(HP+4,4)} offset:{8*4096}")
    stamp(a, 16, stamps)
    a("s_waitcnt lgkmcnt(0)\ns_barrier")
    a(f"s_lshr_b32 s{sT0}, s{sW}, 1\ns_mul_i32 s{sT0}, s{sT0}, {36*1024}\nv_add_u32 v2, s{sT0}, v{vHR}")
    for f in range(36): a(f"ds_read_b128 {A(4*f,4)}, v2 offset:{f*1024}")
    a("s_waitcnt lgkmcnt(0)\ns_barrier")
    a(f"s_mov_b32 s{sSRDA+2}, {576*4608*2}")
    a(f"s_mul_i32 s{sM0}, s{sW}, 9216")
    a(f"s_mul_i32 s{sSOFF}, s{sJ}, {576*1152}\ns_add_u32 s{sSOFF}, s{sSOFF}, {0 if opts.get('same_cols') else 128}")
    a(f"s_mov_b32 s{sINC}, {288*1152}")
    a(f"s_mov_b32 s{sINCW}, {(-288*1152 + (0 if opts.get('same_cols') else 128)) & 0xffffffff}")
    if not nodma:
        dma2_group(a, 2)
        a(f"s_mov_b32 s{sT0}, 0x7ff00000")
        for k in range(2): a(f"buffer_load_dword v{vDUM+k}, v{vPST}, s[{sSRDA}:{sSRDA+3}], s{sT0} offen")
    lk = Lgkm(a)
    for F in range(P2_D): p2_read(lk, F, F % P2_NB, ("B", F))
    pre2 = list(lk.q)
    a(f"s_mov_b32 s{sCNT}, 9")
    stamp(a, 14, stamps)
    a.label("L_p2")
    bs = len(a.lines)
    gen_p2_chunk(a, lk, opts, dma=True)
    assert lk.q == pre2 or opts.get("rstamp"), (lk.q, pre2)
    a(f"s_cmp_gt_u32 s{sCNT}, 2\ns_cbranch_scc1 L_p2")
    check_hazards(a.lines[bs:] + a.lines[bs:], "phase2")
    a.label("L_p2b")
    bs = len(a.lines)
    lk.q = list(pre2)
    gen_p2_chunk(a, lk, opts, dma=False, tag="b")
    a(f"s_cmp_gt_u32 s{sCNT}, 0\ns_cbranch_scc1 L_p2b")
    check_hazards(a.lines[bs:] + a.lines[bs:], "phase2b")
    stamp(a, 15, stamps)
    a("s_waitcnt lgkmcnt(0)")
    a("s_barrier")
    a(f"s_mov_b32 s{sFC}, s{sJ}\ns_mov_b32 s{sFW}, s{sW}")
    c0 = len(a.lines)
    gen_conv_main(a, stamps)
    check_hazards(a.lines[c0:], "conv")
    stamp(a, 20, stamps)
    a(f"s_mov_b32 s{sST}, 3")
    a("s_waitcnt vmcnt(8)")
    a("s_branch L_fin2")
    a.label("L_noconv")
    publish_partial(a)
    a("s_sleep 24")
    a(f"s_mov_b32 s{sST}, 3")
    a(f"s_cmp_lg_u32 s{sW}, 3\ns_cbranch_scc1 L_pass")
    a(f"s_lshr_b32 s{sT0}, s{sJ}, 2\ns_and_b32 s{sT1}, s{sI}, 1\ns_cmp_lg_u32 s{sT0}, s{sT1}\ns_cbranch_scc1 L_pass")
    a(f"s_mov_b32 s{sST}, 0")
    a.label("L_pass")
    gen_pflag_addr(a, 12, f"s{sFW}")
    poll(a, "pB", 12, sSRDW, "0", 1, sCU, cmp="eq")
    gen_final_addr(a)
    gen_final_loads(a)
    a.label("L_fin")
    f0 = len(a.lines)
    a("s_waitcnt vmcnt(0)")
    a.label("L_fin2")
    stamp(a, 22, stamps)
    gen_final_sum(a)
    gen_final_pre(a)
    a(f"s_cmp_lg_u32 s{sST}, 0\ns_cbranch_scc1 L_zbar")
    SAVE = [(XN+k, 48+k) for k in range(48)] + [(7, 96), (8, 97)]
    for src, dst in SAVE: a(f"v_mov_b32 v{dst}, v{src}")
    a(f"s_mov_b32 s{sST}, 1\ns_mov_b32 s{sFC}, 8\ns_and_b32 s{sFW}, s{sJ}, 3\ns_branch L_pass")
    a.label("L_zbar")
    a(f"s_barrier")
    stamp(a, 28, stamps)
    gen_final_z(a, "A", stamps)
    a.label("L_comb")
    gen_final_combine(a)
    stamp(a, 31, stamps)
    check_hazards(a.lines[f0:], "final")
    a(f"s_cmp_lg_u32 s{sST}, 1\ns_cbranch_scc1 L_final_done")
    a("s_nop 1")
    for src, dst in SAVE: a(f"v_mov_b32 v{src}, v{dst}")
    for k in range(16): a(f"v_mov_b32 v{FZ+k}, v{FZ2+k}")
    a(f"s_mov_b32 s{sST}, 2\ns_branch L_comb")
    a.label("L_final_done")
    if stamps:
        a("s_waitcnt vmcnt(0)")
        stamp(a, 23, stamps)
        a("s_memrealtime s[60:61]\ns_waitcnt lgkmcnt(0)\ns_sub_u32 s60, s60, s58\nv_writelane_b32 v249, s60, 24")
        a(f"s_lshl_b32 s34, s2, 2\ns_add_u32 s34, s34, s{sW}\ns_lshl_b32 s34, s34, 8\ns_add_u32 s34, s34, {WS_STAMP2}")
        a(f"v_lshlrev_b32 v6, 2, v{vLANE}")
        a(f"buffer_store_dword v249, v6, s[{sSRDW}:{sSRDW+3}], s34 offen\ns_waitcnt vmcnt(0)")
    a.label("L_done")
    a("s_endpgm")
    return a

def kv_compute_ops(vP9, vRUN):
    PP, AC, VU = 208, 240, 160
    ops = ["s_mov_b32 s53, 0xffff0000", "s_mov_b32 s52, 0x05040100", "s_mov_b32 s98, 0x07060302"]
    def mkP(p):
        r = p + 1; o = []
        for e in range(4):
            o.append(f"v_perm_b32 v{PP+8*(p%4)+2*e}, v{KRAW+4*(r-1)+e}, v{KRAW+4*r+e}, s52")
            o.append(f"v_perm_b32 v{PP+8*(p%4)+2*e+1}, v{KRAW+4*(r-1)+e}, v{KRAW+4*r+e}, s98")
        return o
    ops += [f"v_lshlrev_b32 v6, 2, v{vRUN}", "v_sub_u32 v6, 63, v6", "v_mul_u32_u24 v6, 160, v6", f"v_lshl_add_u32 v6, v{vP9}, 4, v6", f"v_add_u32 v6, {LDS_KV - 3*160}, v6"]
    ops += mkP(0) + mkP(1)
    for tok in range(4):
        ops += mkP(tok + 2)
        for c in range(8):
            ops.append(f"v_dot2_f32_bf16 v{AC+c}, v{PP+8*(tok%4)+c}, v{KCO+2*c+1}, 0")
        for c in range(8):
            ops.append(f"v_dot2_f32_bf16 v{AC+c}, v{PP+8*((tok+2)%4)+c}, v{KCO+2*c}, v{AC+c}")
        for e in range(4):
            ops += [f"v_lshlrev_b32 v{VU+2*e}, 16, v{VRAW+4*tok+e}", f"v_and_b32 v{VU+2*e+1}, s53, v{VRAW+4*tok+e}"]
        for c in range(8):
            ops.append(f"v_mul_f32 v{AC+c}, v{AC+c}, v{VU+c}")
        for e in range(4):
            ops.append(f"v_cvt_pk_bf16_f32 v{VU+8+e}, v{AC+2*e}, v{AC+2*e+1}")
        ops.append(("ds", f"ds_write_b128 v6, v[{VU+8}:{VU+11}] offset:{(3-tok)*160}"))
    return ops

def kd(name, nvgpr_arch, nagpr, nsgpr=100):
    acc_off = (nvgpr_arch + 3)//4*4
    tot = acc_off + nagpr if nagpr else nvgpr_arch
    return f""".section .rodata,"a"
.p2align 6
.amdhsa_kernel {name}
  .amdhsa_next_free_vgpr {tot}
  .amdhsa_next_free_sgpr {nsgpr}
  .amdhsa_accum_offset {acc_off}
  .amdhsa_group_segment_fixed_size 0
  .amdhsa_kernarg_size 104
  .amdhsa_user_sgpr_count 2
  .amdhsa_user_sgpr_kernarg_segment_ptr 1
  .amdhsa_system_sgpr_workgroup_id_x 1
  .amdhsa_float_denorm_mode_32 3
.end_amdhsa_kernel
"""

NAME = "parallel_sum__ssm_conv_h3__glu_gated_geglu__prompt_kernel"
def build(fn, single_launch=True, **kw):
    a = gen_kernel(NAME, **kw)
    ref = open("parallel_sum__ssm_conv_h3__glu_gated_geglu__prompt.s.ref").read()
    hdr = []
    for l in ref.splitlines():
        if l.startswith("; Override launch"): break
        hdr.append(l)
    hdr = "\n".join(hdr) + "\n"
    hdr += f"; @launch grid=(256,1,1) block=(256,1,1) lds={LDS_TOTAL}\n"
    hdr += '.amdgcn_target "amdgcn-amd-amdhsa--gfx950"\n.text\n'
    open(fn, "w").write(hdr + a.text() + kd(NAME, 256, 256))

if __name__ == "__main__":
    import sys
    build("s_plain.s")
    build("s_st.s", stamps=True, opts={"rstamp": True})
```

```python
from asmlib import *
import math

WS_STATS = 0x240000
WS_KVR   = 0x250000
WS_ZT    = 0x490000
WS_STAMP = 0x6D0000
WS_STAMP2 = 0x3000000
WS_FLAG  = 0x6F0000
WS_ZFLAG = 0x6F2000
WS_PART  = 0x700000
WS_SIZE  = 0x10000000

SLOT = 24576
HB   = 3*SLOT
LDS_STAT = 147456
LDS_KV   = 147456 + 256
LDS_XR   = 147456 + 256
LDS_TOTAL = 147456 + 256 + 3*4608

C0 = -2.0*math.sqrt(2.0/math.pi)*math.log2(math.e)
C1 = C0*0.044715

sSRDA, sSRDB, sSRDW = 4, 8, 12
sWD = 16
sWDS = 16
sW, sJ, sI = 20, 21, 22
sSOFF = 23
sM0 = 24
sPFO = 26
sOM = 27
sCNT = 30
sINC, sINCW = 31, 32
sT0, sT1, sT2, sT3 = 34, 35, 36, 37
sPOFF = 38
sHIDX = 39
sEX = 40
sB2 = 42
sDBG = 44
sPFA, sPFB = 80, 84
sQ, sK, sV, sSK, sD = 80, 84, 88, 92, 96
sHK = 68
sOUT = 64
sX = 72
vLANE = 1
vRA1, vRA1b, vRA1c = 8, 30, 31
vRA2, vRA2b = 9, 10
vPF = 11
VDG, VDU = [12, 13, 14], [15, 16, 17]
VC0, VC1 = [18, 21], [22, 23]
vPST = 19
vHR = 20
vD2 = 24
vPF2 = 28
sPFU = 63
ACC = [32, 64]
AF = 96
XE = 128
GT = 160
HP = 168
HREG = 176
vDUM = 252

def xn_frag(f):
    return A(4*f, 4) if f < 64 else V(XE + 4*(f-64), 4)

class Lgkm:
    def __init__(self, a):
        self.a = a; self.q = []
    def issue(self, tag, text):
        self.a(text); self.q.append(tag)
    def wait_for(self, tag):
        cand = [i for i, t in enumerate(self.q) if t == tag]
        if not cand: return
        idx = max(cand); n = len(self.q) - 1 - idx
        assert n <= 15, n
        self.a(f"s_waitcnt lgkmcnt({n})")
        self.q = self.q[idx+1:]
    def wait_all(self): self.q = []

NT = {'pf': '', 'kv': ' nt', 'q': '', 'h': ' nt'}
def resolve_vm(lines):
    out = []; ops = []
    for l in lines:
        body = l.split(";")[0].strip()
        if body.startswith("buffer_") or body.startswith("global_"):
            tag = l.split("; vm:")[1].strip() if "; vm:" in l else None
            ops.append(tag)
        if "vmcnt(@" in l:
            tag = l.split("vmcnt(@")[1].split(")")[0]
            idx = max(i for i, t in enumerate(ops) if t == tag)
            n = len(ops) - 1 - idx
            assert n <= 63
            l = l.replace(f"vmcnt(@{tag})", f"vmcnt({n})")
        out.append(l)
    return out

def tag_vm(lines, tag):
    return [l + f" ; vm:{tag}" if (l.startswith("buffer_") or l.startswith("global_")) else l for l in lines]

def stamp(a, idx, on):
    if not on: return
    a("s_memtime s[48:49]")
    a("s_waitcnt lgkmcnt(0)")
    a(f"v_writelane_b32 v249, s48, {idx}")

def gelu_ops(accP, dst=HP):
    ops = []; k = 0
    for n in range(2):
        for r in range(0, 8, 2):
            g0, g1 = accP + 16*n + r, accP + 16*n + r + 1
            u0, u1 = g0 + 8, g1 + 8
            tb = GT + 4*(k % 2)
            t0, t1, q0, q1 = tb, tb+1, tb+2, tb+3
            ops += [
                f"v_mul_f32 v{t0}, v{g0}, v{g0}", f"v_mul_f32 v{t1}, v{g1}, v{g1}",
                f"v_fma_f32 v{t0}, v{t0}, v{VC1[n]}, v{VC0[n]}", f"v_fma_f32 v{t1}, v{t1}, v{VC1[n]}, v{VC0[n]}",
                f"v_mul_f32 v{t0}, v{t0}, v{g0}", f"v_mul_f32 v{t1}, v{t1}, v{g1}",
                f"v_exp_f32 v{t0}, v{t0}", f"v_exp_f32 v{t1}, v{t1}",
                f"v_mul_f32 v{q0}, v{g0}, v{u0}", f"v_mul_f32 v{q1}, v{g1}, v{u1}",
                f"v_add_f32 v{t0}, 1.0, v{t0}", f"v_add_f32 v{t1}, 1.0, v{t1}",
                f"v_rcp_f32 v{t0}, v{t0}", f"v_rcp_f32 v{t1}, v{t1}",
                f"v_mul_f32 v{q0}, v{q0}, v{t0}", f"v_mul_f32 v{q1}, v{q1}, v{t1}",
                f"v_cvt_pk_bf16_f32 v{dst + 4*n + r//2}, v{q0}, v{q1}",
            ]
            k += 1
    return ops

def dma1(a, which, k):
    srd = sSRDA if which == 0 else sSRDB
    vo = (VDG if which == 0 else VDU)[k]
    off = f" offset:{1024*k}" if k else ""
    a(f"buffer_load_dwordx4 v{vo}, s[{srd}:{srd+3}], s{sSOFF} offen{off} lds")

def dma1_group(a, slot, q0=0, q1=6):
    for q in range(q0, q1):
        which, k = divmod(q, 3)
        if k == 0 or q == q0:
            a(f"s_add_u32 m0, s{sM0+which}, {slot*SLOT}")
            a("s_nop 0")
        dma1(a, which, k)

def p1_read(lk, kk, buf, tag):
    st, ks = divmod(kk % 36, 6)
    off = st*SLOT + ks*2048
    base = [vRA1, vRA1b, vRA1c][off // 65536]
    off %= 65536
    r = AF + 4*buf
    lk.issue(tag, f"ds_read_b64_tr_b16 v[{r}:{r+1}], v{base} offset:{off}")
    lk.issue(tag, f"ds_read_b64_tr_b16 v[{r+2}:{r+3}], v{base} offset:{off+512}")

P1_D = 3
P1_NB = 4
P1_BAR = 9
def set_p1(D):
    global P1_D, P1_NB, P1_BAR
    P1_D = D; P1_NB = {3: 4, 4: 6, 5: 6}[D]; P1_BAR = 12 - D
def gen_round(a, lk, cur, prev, rname, last_check=False, opts=None, extra=None, post_bar=None):
    opts = opts or {}
    nodma = opts.get("no_dma")
    accC, accP = ACC[cur], ACC[prev]
    gops = gelu_ops(accP) if not opts.get("no_gelu") else []
    if extra is not None: gops = list(extra)
    G_START, G_END = (2, 24 + P1_BAR) if extra is None else (5, 24 + P1_BAR - 1)
    nslots = (G_END - G_START) * 2
    gi = 0
    def take_gelu(slot_idx):
        nonlocal gi
        tgt = (len(gops) * (slot_idx + 1) + nslots - 1) // nslots
        out = gops[gi:tgt]; gi = max(gi, tgt)
        return out
    for kk in range(36):
        pr, ks = divmod(kk, 12)
        buf = kk % P1_NB
        a.c(f"--- round {rname} kstep {kk}")
        if opts.get("rstamp") and kk == 0: a("s_memtime s[50:51]")
        lk.wait_for(("A", kk))
        cz = "0" if kk == 0 else V(accC, 16)
        a(f"v_mfma_f32_32x32x16_bf16 {V(accC,16)}, {V(AF+4*buf,4)}, {xn_frag(kk)}, {cz}")
        fill0, fill1 = [], []
        if G_START <= kk < G_END:
            fill0 += take_gelu((kk - G_START)*2)
            fill1 += take_gelu((kk - G_START)*2 + 1)
        if ks >= P1_BAR: q12 = ks - P1_BAR; gp = pr
        else: q12 = ks + (12 - P1_BAR); gp = (pr - 1) % 3
        half, q = divmod(q12, 6); which, k = divmod(q, 3)
        slot = 2*gp + half
        if extra is not None and kk == G_START: a("s_waitcnt vmcnt(@kv)")
        def emit(x):
            if isinstance(x, tuple): lk.issue(("X", x[1]), x[1])
            else: a(x)
        for x in fill0: emit(x)
        if ks == P1_BAR:
            a("s_waitcnt vmcnt(12) lgkmcnt(0)") if not nodma else a("s_waitcnt lgkmcnt(0)")
            lk.wait_all()
            if opts.get("rstamp") and kk == P1_BAR:
                a("v_mov_b32 v2, s50\nv_cmp_eq_u32 vcc, s62, v1\ns_add_u32 s62, s62, 1\ns_nop 0\nv_cndmask_b32 v249, v249, v2, vcc")
            if not opts.get("no_barrier"): a("s_barrier")
        else:
            p1_read(lk, kk+P1_D, (kk+P1_D) % P1_NB, ("A", (kk+P1_D) % 36))
        cz = "0" if kk == 0 else V(accC+16, 16)
        a(f"v_mfma_f32_32x32x16_bf16 {V(accC+16,16)}, {V(AF+4*buf,4)}, {xn_frag(36+kk)}, {cz}")
        if ks == P1_BAR:
            p1_read(lk, kk+P1_D, (kk+P1_D) % P1_NB, ("A", (kk+P1_D) % 36))
            if last_check and pr == 0:
                a(f"s_cmp_lg_u32 s{sCNT}, 0\ns_cbranch_scc1 L_nosw")
                gen_switch(a)
                a.label("L_nosw")
        if not nodma and q == 0:
            inc = sINCW if slot == 0 else sINC
            a(f"s_add_u32 s{sSOFF}, s{sSOFF}, s{inc}")
            if last_check and slot == 3:
                a(f"s_cmp_eq_u32 s{sCNT}, 0")
                a(f"s_cselect_b32 s{sSRDA+2}, 0, s{sSRDA+2}\ns_cselect_b32 s{sSRDB+2}, 0, s{sSRDB+2}")
        if extra is not None and kk == 24 + P1_BAR and post_bar is not None:
            post_bar(a, lk)
        if kk == G_END and gops and extra is None:
            assert gi == len(gops) and k == 0
            a(f"s_set_gpr_idx_on s{sHIDX}, gpr_idx(DST)")
            a("s_nop 0")
            for qq in range(8): a(f"v_mov_b32 v{HREG+qq}, v{HP+qq}")
            a("s_set_gpr_idx_off")
            a(f"s_add_u32 s{sHIDX}, s{sHIDX}, 8")
        if not nodma:
            if k == 0:
                a(f"s_add_u32 m0, s{sM0 + which}, {slot*SLOT}")
                if fill1: emit(fill1.pop(0))
                else: a("s_nop 0")
            dma1(a, which, k)
        if kk == P1_BAR + 11 and not nodma and not opts.get("no_pf"):
            a(f"s_sub_u32 s{sPFU}, s{sPFU}, 1\ns_cmp_lg_u32 s{sPFU}, -1\ns_cbranch_scc1 L_nopf{rname}")
            a(f"buffer_load_dword v{vDUM}, v{vPF}, s[{sPFA}:{sPFA+3}], s{sPFO} offen")
            a(f"buffer_load_dword v{vDUM+1}, v{vPF2}, s[{sPFB}:{sPFB+3}], s{sPFO} offen")
            a.label(f"L_nopf{rname}")
        for x in fill1: emit(x)

def gen_switch(a):
    a(f"s_mov_b32 s{sSRDA}, s{sWD}\ns_mov_b32 s{sSRDA+1}, s{sWD+1}\ns_mov_b32 s{sSRDB}, s{sWD}\ns_mov_b32 s{sSRDB+1}, s{sWD+1}")
    a(f"s_mul_i32 s{sT0}, s{sW}, {48*1152}")
    a(f"s_sub_u32 s{sT1}, {96*1152}, s{sT0}")
    for k in range(3):
        a(f"v_subrev_u32 v{VDG[k]}, s{sT0}, v{vD2+k}")
        a(f"v_add_u32 v{VDU[k]}, s{sT1}, v{vD2+k}")
    a(f"s_mul_i32 s{sSOFF}, s{sJ}, {576*1152}")
    a(f"s_mov_b32 s{sINCW}, 0")
    a(f"s_mov_b32 s{sINC}, {192*1152}")

def gen_pf_switch(a):
    a(f"s_mov_b32 s{sPFA}, s{sWD}\ns_mov_b32 s{sPFA+1}, s{sWD+1}")
    a(f"s_add_u32 s{sPFB}, s{sWD}, 256\ns_addc_u32 s{sPFB+1}, s{sWD+1}, 0")
    a(f"s_sub_u32 s{sPFB+2}, s{sPFA+2}, 256")
    a(f"v_mov_b32 v{vPF}, v{vPF2}")
    a(f"s_mul_i32 s{sPFO}, s{sJ}, {576*1152}")

S2 = 36864
def dma2(a, k):
    off = f" offset:{1024*(k%4)}" if k % 4 else ""
    a(f"buffer_load_dwordx4 v{vD2 + k%4}, s[{sSRDA}:{sSRDA+3}], s{sT3} offen{off} lds")

def dma2_pre(a, k, m0expr):
    if k % 4 == 0:
        a(m0expr(k//4))
        a(f"s_add_u32 s{sT3}, s{sSOFF}, {32*1152*(k//4)}")

def dma2_group(a, slot):
    for k in range(9):
        dma2_pre(a, k, lambda g: f"s_add_u32 m0, s{sM0}, {slot*S2 + 4096*g}")
        dma2(a, k)

def h_frag(K, nt):
    f = 4*K + nt
    return A(4*f, 4) if f < 64 else V(XE + 4*(f-64), 4)

def p2_read(lk, F, buf, tag):
    off = (F % 18)*4096
    base = vRA2
    if off + 1024 > 65535:
        base = vRA2b; off -= 32768
    r = AF + 4*buf
    lk.issue(tag, f"ds_read_b64_tr_b16 v[{r}:{r+1}], v{base} offset:{off}")
    lk.issue(tag, f"ds_read_b64_tr_b16 v[{r+2}:{r+3}], v{base} offset:{off+1024}")

P2_NB = 6
P2_D = 3
def p2_group_setup(a, st):
    inc = sINCW if st == 1 else sINC
    a(f"s_add_u32 s{sSOFF}, s{sSOFF}, s{inc}")
    if st == 0: a(f"s_xor_b32 s{sT2}, s{sB2}, {3*SLOT}\ns_add_u32 s{sT2}, s{sT2}, {2*SLOT}")
    else: a(f"s_add_u32 s{sT2}, s{sB2}, {(st-1)*SLOT}")

def p2_dma(a, q):
    which, k = divmod(q, 3)
    if k == 0: a(f"s_add_u32 m0, s{sT2}, s{sM0+which}\ns_nop 0")
    dma1(a, which, k)

def gen_p2_chunk(a, lk, opts, dma=True, tag=""):
    nodma = opts.get("no_dma")
    acc = ACC[0]
    for T in range(18):
        st, ks = divmod(T, 6)
        a.c(f"--- p2{tag} kstep {T}")
        if opts.get("rstamp") and T == 0: a("s_memtime s[50:51]")
        lk.wait_for(("B", T))
        if ks == 0:
            if not nodma:
                if dma: a(f"s_waitcnt vmcnt({22 if st == 0 else 20})")
                else:
                    n1, n2 = [(22, 10), (20, 2), (14, 2)][st]
                    a(f"s_cmp_eq_u32 s{sCNT}, 2\ns_cbranch_scc1 L_p2wa{st}\ns_waitcnt vmcnt({n2})")
                    if st == 0:
                        a(f"s_cmp_lg_u32 s{sW}, 0\ns_cbranch_scc1 L_p2wj{st}\ns_waitcnt vmcnt(2)")
                        a(f"v_cmp_eq_u32 vcc, 0x01010101, v95\ns_nop 0\ns_cmp_eq_u64 vcc, exec\ns_cbranch_scc1 L_p2wj{st}")
                        poll(a, "kv", 11, sDBG, 0, "0x01010101", sCU, cmp="eq")
                    a(f"s_branch L_p2wj{st}")
                    a.label(f"L_p2wa{st}"); a(f"s_waitcnt vmcnt({n1})"); a.label(f"L_p2wj{st}")
            if not opts.get("no_barrier"): a("s_barrier")
        def mf(nt):
            cz = "0" if T == 0 else V(acc+4*nt, 4)
            a(f"v_mfma_f32_16x16x32_bf16 {V(acc+4*nt,4)}, {V(AF+4*(T % P2_NB),4)}, {h_frag(T, nt)}, {cz}")
        mf(0)
        if T == 18 - P2_D:
            a(f"v_xor_b32 v{vRA2}, {3*SLOT}, v{vRA2}")
            a(f"v_xor_b32 v{vRA2b}, {3*SLOT}, v{vRA2b}")
        F = T + P2_D
        p2_read(lk, F, (F % 18) % P2_NB, ("B", F % 18))
        mf(1)
        if not nodma and dma:
            if ks == 0: p2_group_setup(a, st)
            which, k = divmod(ks, 3)
            if k == 0: a(f"s_add_u32 m0, s{sT2}, s{sM0+which}")
        mf(2)
        if not nodma and dma: dma1(a, ks // 3, ks % 3)
        mf(3)
        if opts.get("rstamp") and T == 4:
            a("s_waitcnt lgkmcnt(0)"); lk.wait_all()
            a("v_mov_b32 v2, s50\nv_cmp_eq_u32 vcc, s62, v1\ns_add_u32 s62, s62, 1\ns_nop 0\nv_cndmask_b32 v249, v249, v2, vcc")
        if dma and T == 8:
            a(f"s_and_b32 s{sT0}, s{sI}, 3\ns_sub_u32 s{sT0}, 8, s{sT0}\ns_cmp_lg_u32 s{sCNT}, s{sT0}\ns_cbranch_scc1 L_nokvadd\ns_cmp_lg_u32 s{sW}, 0\ns_cbranch_scc1 L_nokvadd")
            a(f"v_mov_b32 v2, s2\nv_mov_b32 v3, 1")
            a(f"v_cmp_eq_u32 vcc, 0, v{vLANE}\ns_and_saveexec_b64 s[{sEX}:{sEX+1}], vcc")
            a(f"buffer_store_byte v3, v2, s[{sDBG}:{sDBG+3}], 0 offen sc1")
            a(f"s_mov_b64 exec, s[{sEX}:{sEX+1}]")
            a.label("L_nokvadd")
        if not nodma and not dma and T == 0:
            a(f"s_cmp_lg_u32 s{sCNT}, 2\ns_cbranch_scc1 L_p2nog")
            p2_group_setup(a, 0)
            for q in range(6): p2_dma(a, q)
            a(f"s_cmp_lg_u32 s{sW}, 0\ns_cbranch_scc1 L_p2noxr")
            a(f"buffer_load_dword v95, v11, s[{sDBG}:{sDBG+3}], 0 offen sc1")
            a("s_branch L_p2noxr")
            a.label("L_p2nog")
            gen_conv_issue2(a)
            a.label("L_p2noxr")
    a.c("--- p2 chunk epilogue")
    a(f"s_xor_b32 s{sB2}, s{sB2}, {3*SLOT}")
    a(f"s_sub_u32 s{sCNT}, s{sCNT}, 1")
    a("s_nop 4")
    for q in range(8):
        a(f"v_cvt_pk_bf16_f32 v{GT+q}, v{acc+2*q}, v{acc+2*q+1}")
    for q in range(2):
        off = f" offset:{1024*q}" if q else ""
        a(f"buffer_store_dwordx4 {V(GT+4*q,4)}, v{vPST}, s[{sSRDW}:{sSRDW+3}], s{sPOFF} offen{off} sc1")
    a(f"s_add_u32 s{sPOFF}, s{sPOFF}, {4*2048}")

ONES_BF = 0x3f803f80
sPFLG = 56
sPAR = 28
sPP = 29
def gen_q_addr(a, p):
    if p == 0:
        a(f"v_and_b32 v2, 7, v{vLANE}\nv_mul_u32_u24 v2, 1152, v2\nv_lshrrev_b32 v3, 3, v{vLANE}\nv_lshl_add_u32 v248, v3, 4, v2")
    a(f"s_xor_b32 s{sPP}, s{sPAR}, {p}")
    a(f"s_lshl_b32 s{sT0}, s{sI}, 6\ns_lshl_b32 s{sT1}, s{sW}, 4\ns_add_u32 s{sT0}, s{sT0}, s{sT1}\ns_lshl_b32 s{sT1}, s{sPP}, 3\ns_add_u32 s{sT0}, s{sT0}, s{sT1}\ns_mul_i32 s{sT0}, s{sT0}, 1152")

def gen_q_loads(a, QREG, p, addr=True):
    if addr: gen_q_addr(a, p)
    for m in range(9):
        off = f" offset:{128*m}" if m else ""
        a(f"buffer_load_dwordx4 v[{QREG+36*p+4*m}:{QREG+36*p+4*m+3}], v248, s[{sQ}:{sQ+3}], s{sT0} offen{off}{NT['q']}")

LT = 32
def gen_ln_setup(a):
    T = LT
    vB = T+10
    a(f"v_lshrrev_b32 v{T+8}, 3, v{vLANE}\nv_lshrrev_b32 v{T+9}, 1, v{T+8}\nv_lshlrev_b32 v{vB}, 10, v{T+9}")
    a(f"v_and_b32 v{T+9}, 1, v{T+8}\nv_lshl_add_u32 v{vB}, v{T+9}, 9, v{vB}")
    a(f"v_and_b32 v{T+9}, 7, v{vLANE}\nv_lshl_add_u32 v{vB}, v{T+9}, 4, v{vB}")
    a(f"s_lshr_b32 s{sT0}, s{sW}, 1\ns_mul_i32 s{sT0}, s{sT0}, 36864")
    a(f"s_and_b32 s{sT1}, s{sW}, 1\ns_lshl_b32 s{sT1}, s{sT1}, 8")
    a(f"s_add_u32 s{sT0}, s{sT0}, s{sT1}\ns_add_u32 s{sT0}, s{sT0}, {HB}")
    a(f"v_add_u32 v{vB}, s{sT0}, v{vB}")
    vSt = T+11
    a(f"s_lshl_b32 s{sT0}, s{sW}, 6\ns_add_u32 s{sT0}, s{sT0}, {LDS_STAT}")
    a(f"v_lshlrev_b32 v{vSt}, 2, v{T+9}\nv_add_u32 v{vSt}, s{sT0}, v{vSt}")
    vG = T+12
    a(f"s_lshl_b32 s{sT0}, s{sI}, 6\ns_lshl_b32 s{sT1}, s{sW}, 4\ns_add_u32 s{sT0}, s{sT0}, s{sT1}")
    a(f"v_add_u32 v{vG}, s{sT0}, v{T+9}\nv_lshlrev_b32 v{vG}, 3, v{vG}\nv_add_u32 v{vG}, {WS_STATS}, v{vG}")

def gen_ln_pass(a, QREG, p):
    T = LT
    vS, vQ2, vB, vSt, vG = T, T+4, T+10, T+11, T+12
    X = QREG + 36*p
    a(f"s_mov_b32 s{sT2}, {hex(ONES_BF)}\ns_mov_b32 s{sT3}, 0x00003f80\ns_mov_b32 s{sEX}, 0x3f800000")
    a(f"s_xor_b32 s{sPP}, s{sPAR}, {p}")
    a(f"s_lshl_b32 s{sT0}, s{sPP}, 7\nv_add_u32 v{T+13}, s{sT0}, v{vB}\ns_lshl_b32 s{sT0}, s{sPP}, 5\nv_add_u32 v{T+14}, s{sT0}, v{vSt}")
    for k in range(4): a(f"v_mov_b32 v{vS+k}, 0\nv_mov_b32 v{vQ2+k}, 0")
    for d in range(36):
        a(f"v_dot2c_f32_bf16 v{vS+d%4}, s{sT2}, v{X+d}")
        a(f"v_dot2c_f32_bf16 v{vQ2+d%4}, v{X+d}, v{X+d}")
    a("s_nop 2")
    a(f"v_add_f32 v{vS}, v{vS}, v{vS+1}\nv_add_f32 v{vS+2}, v{vS+2}, v{vS+3}")
    a(f"v_add_f32 v{vQ2}, v{vQ2}, v{vQ2+1}\nv_add_f32 v{vQ2+2}, v{vQ2+2}, v{vQ2+3}")
    a(f"v_add_f32 v{vS}, v{vS}, v{vS+2}\nv_add_f32 v{vQ2}, v{vQ2}, v{vQ2+2}")
    a("s_nop 1")
    a(f"v_add_f32_dpp v{vS}, v{vS}, v{vS} row_ror:8 row_mask:0xf bank_mask:0xf")
    a(f"v_add_f32_dpp v{vQ2}, v{vQ2}, v{vQ2} row_ror:8 row_mask:0xf bank_mask:0xf")
    for sw in ("v_permlane16_swap_b32", "v_permlane32_swap_b32"):
        a(f"v_mov_b32 v{vS+1}, v{vS}\nv_mov_b32 v{vQ2+1}, v{vQ2}")
        a("s_nop 1")
        a(f"{sw} v{vS}, v{vS+1}\n{sw} v{vQ2}, v{vQ2+1}")
        a("s_nop 1")
        a(f"v_add_f32 v{vS}, v{vS}, v{vS+1}\nv_add_f32 v{vQ2}, v{vQ2}, v{vQ2+1}")
    inv = hex(f2u(1.0/576.0))
    a(f"v_mul_f32 v{vS}, {inv}, v{vS}\nv_mul_f32 v{vQ2}, {inv}, v{vQ2}")
    a(f"v_fma_f32 v{vQ2}, -v{vS}, v{vS}, v{vQ2}\nv_max_f32 v{vQ2}, 0, v{vQ2}")
    a(f"v_cvt_pk_bf16_f32 v{vS+1}, v{vS}, v{vQ2}")
    a(f"v_and_b32 v{vQ2}, 0xffff0000, v{vS+1}\nv_lshlrev_b32 v{vS}, 16, v{vS+1}")
    a(f"v_add_f32 v{vQ2}, {hex(f2u(1e-5))}, v{vQ2}")
    a(f"v_cvt_pk_bf16_f32 v{vQ2}, v{vQ2}, v{vQ2}\nv_lshlrev_b32 v{vQ2}, 16, v{vQ2}")
    a(f"v_sqrt_f32 v{vQ2}, v{vQ2}\ns_nop 0")
    a(f"v_cvt_pk_bf16_f32 v{vQ2}, v{vQ2}, v{vQ2}\nv_lshlrev_b32 v{vS+1}, 16, v{vQ2}")
    a(f"v_rcp_f32 v{vQ2}, v{vS+1}\nv_sub_f32 v{vS+2}, 0, v{vS}")
    a(f"ds_write_b32 v{T+14}, v{vQ2}")
    a(f"s_lshl_b32 s{sT0}, s{sPP}, 6\ns_cmp_eq_u32 s{sJ}, 0\ns_cselect_b32 s{sT0}, s{sT0}, 0x7ff00000")
    a(f"buffer_store_dwordx2 v[{vS}:{vS+1}], v{vG}, s[{sSRDW}:{sSRDW+3}], s{sT0} offen sc1")
    D = T+16
    for m in range(9):
        tb = D + 12*(m % 2)
        for e in range(4):
            a(f"v_dot2_f32_bf16 v{tb+2*e}, v{X+4*m+e}, s{sT3}, v{vS+2}")
            a(f"v_dot2_f32_bf16 v{tb+2*e+1}, v{X+4*m+e}, s{sEX}, v{vS+2}")
        if m > 0:
            pb = D + 12*((m-1) % 2)
            for e in range(4): a(f"v_cvt_pk_bf16_f32 v{pb+8+e}, v{pb+2*e}, v{pb+2*e+1}")
            a(f"ds_write_b128 v{T+13}, v[{pb+8}:{pb+11}] offset:{(m-1)*4096}")
    pb = D
    a("s_nop 2")
    for e in range(4): a(f"v_cvt_pk_bf16_f32 v{pb+8+e}, v{pb+2*e}, v{pb+2*e+1}")
    a(f"ds_write_b128 v{T+13}, v[{pb+8}:{pb+11}] offset:{8*4096}")

def interleave(a, main_lines, side_groups, start=8):
    n = len(main_lines); g = len(side_groups)
    pos = [start + (n - start - 4) * k // max(g, 1) for k in range(g)]
    lab = None
    k = 0
    for idx, l in enumerate(main_lines):
        if idx > 0 and main_lines[idx-1].startswith("s_cmp"):
            pos = [p + 1 if p == idx else p for p in pos]
        while k < g and pos[k] <= idx and not (idx > 0 and main_lines[idx-1].startswith("s_cmp")):
            for x in side_groups[k]: a.lines.append(x)
            k += 1
        a.lines.append(l)
    while k < g:
        for x in side_groups[k]: a.lines.append(x)
        k += 1

def groups_of(lines):
    out, cur = [], []
    for l in lines:
        cur.append(l)
        if l.startswith("buffer_") or l.startswith("global_"):
            out.append(cur); cur = []
    if cur: out.append(cur)
    return out

KRAW, VRAW, KCO = 176, 112, 72
def gen_kv_loads(a, KREG, vP9, vRUN):
    a(f"s_mul_i32 s52, s{sW}, 36\nv_min_u32 v120, 35, v{vLANE}\nv_add_u32 v120, s52, v120".replace("v120", "v2"))
    a(f"s_mov_b32 s53, {(2**32 + 8)//9}\nv_mul_hi_u32 v{vRUN}, v2, s53")
    a(f"v_mul_u32_u24 v{vP9}, 9, v{vRUN}\nv_sub_u32 v{vP9}, v2, v{vP9}")
    a(f"s_lshl_b32 s52, s{sI}, 6\nv_lshlrev_b32 v3, 2, v{vRUN}\nv_add_u32 v3, s52, v3\nv_mul_u32_u24 v3, 1152, v3")
    a(f"s_mul_i32 s52, s{sJ}, 144\nv_lshl_add_u32 v4, v{vP9}, 4, v3\nv_add_u32 v4, s52, v4")
    for r in range(7):
        if r < 3:
            a(f"v_add_u32 v3, {(r-3)*1152 & 0xffffffff}, v4")
            a(f"buffer_load_dwordx4 v[{KRAW+4*r}:{KRAW+4*r+3}], v3, s[{sK}:{sK+3}], 0 offen{NT['kv']}")
        else:
            off = f" offset:{1152*(r-3)}" if r > 3 else ""
            a(f"buffer_load_dwordx4 v[{KRAW+4*r}:{KRAW+4*r+3}], v4, s[{sK}:{sK+3}], 0 offen{off}{NT['kv']}")
    for r in range(4):
        off = f" offset:{1152*r}" if r else ""
        a(f"buffer_load_dwordx4 v[{VRAW+4*r}:{VRAW+4*r+3}], v4, s[{sV}:{sV+3}], 0 offen{off}{NT['kv']}")
    a(f"s_mul_i32 s52, s{sJ}, 576\nv_lshlrev_b32 v3, 6, v{vP9}")
    for r in range(4):
        off = f" offset:{16*r}" if r else ""
        a(f"buffer_load_dwordx4 v[{KCO+4*r}:{KCO+4*r+3}], v3, s[{sSK}:{sSK+3}], s52 offen{off}")

def gen_kv_compute(a, KREG, vP9, vRUN):
    KU, SU, AC, VU = 32, 88, 120, 152
    a(f"s_mov_b32 s52, 0xffff0000")
    for r in range(7):
        for e in range(4):
            a(f"v_lshlrev_b32 v{KU+8*r+2*e}, 16, v{KREG+4*r+e}\nv_and_b32 v{KU+8*r+2*e+1}, s52, v{KREG+4*r+e}")
    for c in range(8):
        for jj in range(2):
            src = KREG + 44 + 2*c + jj
            a(f"v_lshlrev_b32 v{SU+8*(2*jj)+c}, 16, v{src}\nv_and_b32 v{SU+8*(2*jj+1)+c}, s52, v{src}")
    a(f"v_lshlrev_b32 v62, 2, v{vRUN}\nv_sub_u32 v62, 63, v62\nv_mul_u32_u24 v62, 160, v62")
    a(f"v_lshl_add_u32 v62, v{vP9}, 4, v62\nv_add_u32 v62, {LDS_KV - 3*160}, v62")
    for tok in range(4):
        for jj in (3, 2, 1, 0):
            for pr in range(4):
                d = f"v[{AC+8*tok+2*pr}:{AC+8*tok+2*pr+1}]"
                kk = f"v[{KU+8*(tok+3-jj)+2*pr}:{KU+8*(tok+3-jj)+2*pr+1}]"
                ss = f"v[{SU+8*jj+2*pr}:{SU+8*jj+2*pr+1}]"
                a(f"v_pk_mul_f32 {d}, {kk}, {ss}" if jj == 3 else f"v_pk_fma_f32 {d}, {kk}, {ss}, {d}")
        for e in range(4):
            a(f"v_lshlrev_b32 v{VU+2*e}, 16, v{KREG+28+4*tok+e}\nv_and_b32 v{VU+2*e+1}, s52, v{KREG+28+4*tok+e}")
        for pr in range(4):
            d = f"v[{AC+8*tok+2*pr}:{AC+8*tok+2*pr+1}]"
            a(f"v_pk_mul_f32 {d}, {d}, v[{VU+2*pr}:{VU+2*pr+1}]")
        for e in range(4):
            a(f"v_cvt_pk_bf16_f32 v{VU+8+e}, v{AC+8*tok+2*e}, v{AC+8*tok+2*e+1}")
        a(f"ds_write_b128 v62, v[{VU+8}:{VU+11}] offset:{(3-tok)*160}")

def gen_kv_store(a):
    a(f"v_and_b32 v2, 15, v{vLANE}\nv_lshrrev_b32 v3, 4, v{vLANE}\nv_lshrrev_b32 v4, 2, v2")
    a(f"v_lshl_add_u32 v4, v3, 3, v4\nv_mul_u32_u24 v4, 160, v4\nv_and_b32 v5, 3, v2\nv_lshl_add_u32 v4, v5, 3, v4\nv_add_u32 v4, {LDS_KV}, v4")
    a(f"s_mul_i32 s{sT0}, s{sJ}, 72\nv_add_u32 v5, s{sT0}, v2\nv_lshlrev_b32 v5, 12, v5\nv_lshl_add_u32 v5, v3, 4, v5")
    a(f"s_lshl_b32 s{sT0}, s{sI}, 7\ns_sub_u32 s{sT0}, {WS_KVR + 1984*2}, s{sT0}\nv_add_u32 v5, s{sT0}, v5")
    a("v_mov_b32 v7, 0x7ff00000")
    for u in range(3):
        a(f"s_add_u32 s{sT0}, s{sW}, {4*u}")
        a(f"s_lshr_b32 s{sT1}, s{sT0}, 1\ns_and_b32 s{sT2}, s{sT0}, 1")
        a(f"s_mul_i32 s{sT3}, s{sT2}, {32*160}\ns_lshl_b32 s{sEX}, s{sT1}, 5\ns_add_u32 s{sT3}, s{sT3}, s{sEX}")
        a(f"v_add_u32 v6, s{sT3}, v4")
        r = 96 + 4*u
        a(f"ds_read_b64_tr_b16 v[{r}:{r+1}], v6\nds_read_b64_tr_b16 v[{r+2}:{r+3}], v6 offset:{4*160}")
        a(f"s_lshl_b32 s{sT3}, s{sT1}, 16\ns_lshl_b32 s{sT2}, s{sT2}, 6\ns_add_u32 s{sT3}, s{sT3}, s{sT2}")
        a(f"v_add_u32 v{108+u}, s{sT3}, v5")
        a(f"s_cmp_eq_u32 s{sT1}, 4\ns_cselect_b32 s{sT2}, 8, 16\ns_cmp_gt_u32 s{sT1}, 4\ns_cselect_b32 s{sT2}, 0, s{sT2}")
        a(f"v_cmp_gt_u32 vcc, s{sT2}, v2\ns_nop 1\nv_cndmask_b32 v{108+u}, v7, v{108+u}, vcc")
    a("s_waitcnt lgkmcnt(0)")
    for u in range(3):
        a(f"buffer_store_dwordx4 v[{96+4*u}:{99+4*u}], v{108+u}, s[{sSRDW}:{sSRDW+3}], 0 offen sc1")

def gen_bulk_pf(a, nshare, opts):
    nw = nshare*4
    per = -(-4608 // nw)
    n_ins = -(-per // 64)
    assert n_ins == 1 or True
    for it in range(n_ins):
        cnt = min(64, per - 64*it)
        a(f"s_mul_i32 s54, s{sOM}, {per}\ns_add_u32 s54, s54, {64*it}\nv_min_u32 v123, {cnt-1}, v{vLANE}\nv_add_u32 v123, s54, v123\nv_min_u32 v123, 4607, v123")
        a(f"s_mov_b32 s55, {(2**32 + 575)//576}\nv_mul_hi_u32 v124, v123, s55\nv_mul_u32_u24 v125, 576, v124\nv_sub_u32 v125, v123, v125\nv_mul_u32_u24 v125, 9216, v125\nv_lshl_add_u32 v125, v124, 7, v125")
        a(f"s_mul_i32 s55, s{sJ}, 1152\ns_add_u32 s55, s55, 128")
        a(f"buffer_load_dword v{vDUM}, v125, s[{sSRDA}:{sSRDA+3}], s55 offen{NT['pf']}")
        a(f"buffer_load_dword v{vDUM+1}, v125, s[{sSRDB}:{sSRDB+3}], s55 offen{NT['pf']}")


def gen_wd_pf(a, nshare, c0, c1):
    nw = nshare*4
    nc = c1 - c0
    tot = 576*nc
    per = -(-tot // nw)
    assert per <= 64
    a(f"s_mul_i32 s54, s{sOM}, {per}\nv_min_u32 v123, {per-1}, v1\nv_add_u32 v123, s54, v123\nv_min_u32 v123, {tot-1}, v123")
    a(f"s_mov_b32 s55, {(2**32 + 575)//576}\nv_mul_hi_u32 v124, v123, s55\nv_mul_u32_u24 v125, 576, v124\nv_sub_u32 v125, v123, v125\nv_mul_u32_u24 v125, 1152, v125\nv_lshl_add_u32 v125, v124, 7, v125")
    a(f"s_mul_i32 s55, s{sJ}, {576*1152}\ns_add_u32 s55, s55, {128*c0}")
    a(f"buffer_load_dword v{vDUM+2}, v125, s[{sWDS}:{sWDS+3}], s55 offen")

def gen_pf_setup(a, nshare):
    nw = nshare*4
    NL = -(-576 // nw)
    a(f"s_mul_i32 s{sT0}, s{sOM}, {NL}\nv_min_u32 v2, {NL-1}, v{vLANE}\nv_add_u32 v2, s{sT0}, v2\nv_min_u32 v2, 575, v2")
    a(f"v_mul_u32_u24 v{vPF}, 9216, v2")

def gen_pf_unit(a, nshare):
    nparts = nshare // 8
    NL = -(-576 // (nparts*4))
    assert NL <= 64
    a(f"s_lshr_b32 s{sT0}, s{sOM}, 2\ns_and_b32 s{sPFU}, s{sT0}, 7\ns_lshr_b32 s{sT0}, s{sT0}, 3")
    a(f"s_lshl_b32 s{sT0}, s{sT0}, 2\ns_add_u32 s{sT0}, s{sT0}, s{sW}\ns_mul_i32 s{sT0}, s{sT0}, {NL}")
    a(f"v_min_u32 v2, {NL-1}, v{vLANE}\nv_add_u32 v2, s{sT0}, v2\nv_min_u32 v2, 575, v2")
    a(f"s_cmp_lt_u32 s{sPFU}, 6\ns_cbranch_scc0 L_pfwd")
    a(f"v_mul_u32_u24 v{vPF}, 9216, v2\nv_mov_b32 v{vPF2}, v{vPF}")
    a(f"s_mov_b32 s{sPFA}, s{sSRDA}\ns_mov_b32 s{sPFA+1}, s{sSRDA+1}\ns_mov_b32 s{sPFB}, s{sSRDB}\ns_mov_b32 s{sPFB+1}, s{sSRDB+1}")
    a(f"s_mul_i32 s{sPFO}, s{sJ}, 1152\ns_add_u32 s{sT0}, s{sPFU}, 3\ns_lshl_b32 s{sT0}, s{sT0}, 7\ns_add_u32 s{sPFO}, s{sPFO}, s{sT0}")
    a("s_branch L_pfok")
    a.label("L_pfwd")
    a(f"v_mul_u32_u24 v{vPF}, 1152, v2\nv_add_u32 v{vPF2}, 128, v{vPF}")
    a(f"s_mov_b32 s{sPFA}, s{sWD}\ns_mov_b32 s{sPFA+1}, s{sWD+1}\ns_mov_b32 s{sPFB}, s{sWD}\ns_mov_b32 s{sPFB+1}, s{sWD+1}")
    a(f"s_mul_i32 s{sPFO}, s{sJ}, {576*1152}\ns_sub_u32 s{sT0}, s{sPFU}, 6\ns_lshl_b32 s{sT0}, s{sT0}, 8\ns_add_u32 s{sPFO}, s{sPFO}, s{sT0}")
    a.label("L_pfok")
    a(f"s_mov_b32 s{sPFA+2}, {576*4608*2}\ns_mov_b32 s{sPFA+3}, 0x00020000\ns_mov_b32 s{sPFB+2}, {576*4608*2}\ns_mov_b32 s{sPFB+3}, 0x00020000")

CV_CP = 4160
CV_WAVE = 4*CV_CP
sC, sCB, sCT, sCU, sXR = 70, 71, 76, 77, 78
HL = 64
vDC = 94
def poll(a, name, voff_reg, srd, soff, target, scnt, cmp="ge", sleep=8):
    a(f"s_mov_b32 s{scnt}, 0")
    a.label(f"L_poll_{name}")
    a(f"buffer_load_dword v3, v{voff_reg}, s[{srd}:{srd+3}], {soff} offen sc1")
    a("s_waitcnt vmcnt(0)")
    a(f"v_cmp_{'le' if cmp == 'ge' else 'eq'}_u32 vcc, {target}, v3")
    a(f"s_add_u32 s{scnt}, s{scnt}, 1")
    a(f"s_cmp_eq_u64 vcc, exec\ns_cbranch_scc1 L_pollok_{name}")
    a(f"s_cmp_lt_u32 s{scnt}, 20000\ns_cbranch_scc0 L_pollok_{name}")
    a(f"s_sleep {sleep}\ns_branch L_poll_{name}")
    a.label(f"L_pollok_{name}")

def gen_conv_issue(a, stamps):
    a(f"v_lshlrev_b32 v11, 2, v{vLANE}")
    a(f"s_cmp_ge_u32 s{sC}, 576\ns_cbranch_scc1 L_conv_skip1")
    a(f"s_mul_i32 s{sCB}, s{sW}, {CV_WAVE}\ns_add_u32 s{sCB}, s{sCB}, {HB}")
    a(f"s_mul_i32 s{sXR}, s{sW}, 4608\ns_add_u32 s{sXR}, s{sXR}, {LDS_XR}")
    a(f"s_lshl_b32 s{sCT}, s{sC}, 12")
    a(f"s_add_u32 s88, s{sHK}, s{sCT}\ns_addc_u32 s89, s{sHK+1}, 0\ns_mov_b32 s90, 4096\ns_mov_b32 s91, 0x00020000")
    for o in range(5):
        a(f"v_add_u32 v5, {(1024*o - 16) & 0xffffffff}, v{vPST}")
        a(f"buffer_load_dwordx4 v[{HL+6*o}:{HL+6*o+3}], v5, s[88:91], 0 offen{NT['h']}")
        a(f"v_add_u32 v6, {1024*o}, v{vPST}")
        a(f"buffer_load_dwordx2 v[{HL+6*o+4}:{HL+6*o+5}], v6, s[88:91], 0 offen{NT['h']}")
    a(f"s_lshl_b32 s{sCT}, s{sC}, 1\nv_mov_b32 v4, s{sCT}")
    a(f"buffer_load_ushort v{vDC}, v4, s[{sD}:{sD+3}], 0 offen")
    a.label("L_conv_skip1")

def gen_conv_issue2(a):
    a(f"s_cmp_ge_u32 s{sC}, 576\ns_cbranch_scc1 L_conv_skip2")
    a(f"s_lshl_b32 s{sCT}, s{sC}, 12\ns_add_u32 s{sCT}, s{sCT}, {WS_KVR}")
    a(f"s_mov_b32 m0, s{sXR}\ns_nop 0")
    for k in range(4):
        off = f" offset:{1024*k}" if k else ""
        a(f"buffer_load_dwordx4 v{vPST}, s[{sSRDW}:{sSRDW+3}], s{sCT} offen{off} sc1 lds")
    a.label("L_conv_skip2")

def publish_partial(a):
    a("s_waitcnt vmcnt(0)")
    a(f"v_mov_b32 v4, 0\nv_mov_b32 v5, 1")
    a(f"v_cmp_eq_u32 vcc, 0, v{vLANE}\ns_and_saveexec_b64 s[{sEX}:{sEX+1}], vcc")
    a(f"buffer_store_dword v5, v4, s[{sSRDW}:{sSRDW+3}], s{sPFLG} offen sc1")
    a(f"s_mov_b64 exec, s[{sEX}:{sEX+1}]")

def gen_conv_main(a, stamps):
    a(f"s_cmp_ge_u32 s{sC}, 576\ns_cbranch_scc1 L_noconv")
    for r in range(4): a(f"v_mov_b32 v{32+r}, 0")
    a(f"v_add_u32 v5, s{sXR}, v{vPST}")
    a(f"v_cmp_gt_u32 vcc, 32, v{vLANE}\ns_and_saveexec_b64 s[{sEX}:{sEX+1}], vcc")
    a(f"ds_write_b128 v5, v[32:35] offset:4096")
    a(f"s_mov_b64 exec, s[{sEX}:{sEX+1}]")
    a(f"v_mul_u32_u24 v6, {CV_CP}, v{vLANE}\nv_add_u32 v6, s{sCB}, v6")
    a(f"v_cmp_gt_u32 vcc, 4, v{vLANE}\ns_and_saveexec_b64 s[{sEX}:{sEX+1}], vcc")
    a(f"ds_write_b128 v6, v[32:35]")
    a(f"s_mov_b64 exec, s[{sEX}:{sEX+1}]")
    a(f"v_add_u32 v7, s{sCB}, v{vPST}")
    stamp(a, 17, stamps)
    for o in range(5):
        P = HL + 6*o
        t = 96 + 16*(o % 2)
        if o == 4:
            a(f"v_cmp_eq_u32 vcc, 0, v{vLANE}\ns_and_saveexec_b64 s[{sEX}:{sEX+1}], vcc")
        for n in range(4):
            a(f"v_mov_b32 v{t+n}, v{P+n}")
            a(f"v_alignbit_b32 v{t+4+n}, v{P+n+1}, v{P+n}, 16")
            a(f"v_mov_b32 v{t+8+n}, v{P+n+1}")
            a(f"v_alignbit_b32 v{t+12+n}, v{P+n+2}, v{P+n+1}, 16")
        for s_ in range(4):
            a(f"ds_write_b128 v7, v[{t+4*s_}:{t+4*s_+3}] offset:{s_*CV_CP + 16 + 1024*o}")
        if o == 4: a(f"s_mov_b64 exec, s[{sEX}:{sEX+1}]")
    a(f"v_and_b32 v14, 15, v{vLANE}\nv_lshrrev_b32 v15, 4, v{vLANE}")
    a(f"v_lshlrev_b32 v16, 5, v14\nv_lshlrev_b32 v17, 4, v15\nv_sub_u32 v16, v17, v16")
    a(f"s_add_u32 s{sCT}, s{sXR}, {2*(2032 - 32*56)}\nv_add_u32 v16, s{sCT}, v16")
    a(f"v_add_u32 v2, 1, v14\nv_and_b32 v3, 3, v2\nv_mul_u32_u24 v3, {CV_CP}, v3\nv_lshrrev_b32 v2, 2, v2")
    a(f"v_lshl_add_u32 v3, v2, 3, v3\nv_lshl_add_u32 v3, v15, 4, v3\nv_add_u32 v13, s{sCB}, v3")
    a("s_waitcnt lgkmcnt(0) vmcnt(2)")
    stamp(a, 19, stamps)
    lk = Lgkm(a)
    NB = 6; FB = 96; ACCB = 32
    def rdF(m):
        r = FB + 4*(m % NB)
        lk.issue(("F", m), f"ds_read_b64 v[{r}:{r+1}], v13 offset:{64*m}")
        lk.issue(("F", m), f"ds_read_b64 v[{r+2}:{r+3}], v13 offset:{64*m+8}")
    def rdG(i):
        lk.issue(("G", i), f"ds_read_b128 {A(4*(i+7),4)}, v16 offset:{(56-i)*64}")
    rdF(0)
    for T in range(8): rdG(8*T)
    rdF(1)
    for m in range(64):
        T0 = max(0, -(-(m-7)//8))
        if m == 9:
            stamp(a, 25, stamps); publish_partial(a); stamp(a, 26, stamps)
        if m == 32:
            gen_pflag_addr(a, 12, f"s{sW}")
            a(f"buffer_load_dword v11, v12, s[{sSRDW}:{sSRDW+3}], 0 offen sc1")
        if m == 48:
            stamp(a, 27, stamps)
            a("s_waitcnt vmcnt(0)")
            a(f"v_cmp_eq_u32 vcc, 1, v11\ns_nop 0\ns_cmp_eq_u64 vcc, exec\ns_cbranch_scc1 L_pf_ok")
            poll(a, "pA", 12, sSRDW, "0", 1, sT0, cmp="eq", sleep=4)
            a.label("L_pf_ok")
            stamp(a, 18, stamps)
            gen_final_addr(a)
            gen_final_loads(a)
        lk.wait_for(("F", m))
        pend = []
        if m + 1 < 8: pend += [("G", 8*T - (m+1)) for T in range(8)]
        if m + 2 < 64: pend += [("F", m+2)]
        for T in range(T0, 8):
            if m < 8: lk.wait_for(("G", 8*T - m))
            c_ = "0" if m == 0 else f"v[{ACCB+4*T}:{ACCB+4*T+3}]"
            a(f"v_mfma_f32_16x16x32_bf16 v[{ACCB+4*T}:{ACCB+4*T+3}], v[{FB+4*(m%NB)}:{FB+4*(m%NB)+3}], {A(4*(8*T-m+7),4)}, {c_}")
            if pend:
                k, x = pend.pop(0)
                (rdG if k == "G" else rdF)(x)
        for k, x in pend: (rdG if k == "G" else rdF)(x)
    stamp(a, 21, stamps)
    a(f"v_lshlrev_b32 v5, 5, v14\nv_lshlrev_b32 v17, 3, v15\nv_add_u32 v17, v5, v17")
    a(f"s_add_u32 s{sCT}, s{sXR}, {2*2044 - 7*512}\nv_sub_u32 v2, s{sCT}, v17")
    for T in range(8): a(f"ds_read_b64 v[{96+2*T}:{97+2*T}], v2 offset:{(7-T)*512}")
    a(f"v_lshlrev_b32 v{vDC}, 16, v{vDC}")
    a(f"s_lshl_b32 s{sCT}, s{sC}, 12\ns_add_u32 s{sCT}, s{sCT}, {WS_ZT}\ns_mov_b32 s{sCU}, 0xffff0000")
    a("s_waitcnt lgkmcnt(0)")
    for T in range(8):
        kv = 96+2*T; ac = ACCB+4*T; t = 112 + 6*(T % 2)
        a(f"v_and_b32 v{t}, s{sCU}, v{kv+1}\nv_lshlrev_b32 v{t+1}, 16, v{kv+1}\nv_and_b32 v{t+2}, s{sCU}, v{kv}\nv_lshlrev_b32 v{t+3}, 16, v{kv}")
        for r in range(4): a(f"v_fmac_f32 v{ac+r}, v{t+r}, v{vDC}")
        a(f"v_cvt_pk_bf16_f32 v{t+4}, v{ac}, v{ac+1}\nv_cvt_pk_bf16_f32 v{t+5}, v{ac+2}, v{ac+3}")
        off = f" offset:{512*T}" if T else ""
        a(f"buffer_store_dwordx2 v[{t+4}:{t+5}], v17, s[{sSRDW}:{sSRDW+3}], s{sCT} offen{off} sc1")

def gen_pflag_addr(a, vdst, swave):
    a(f"s_lshl_b32 s{sT0}, s{sI}, 7\ns_lshl_b32 s{sT1}, {swave}, 2\ns_add_u32 s{sT0}, s{sT0}, s{sT1}\ns_add_u32 s{sT0}, s{sT0}, {WS_FLAG}")
    a(f"v_and_b32 v{vdst}, 7, v{vLANE}\nv_lshlrev_b32 v{vdst}, 4, v{vdst}\nv_add_u32 v{vdst}, s{sT0}, v{vdst}")

sFC, sFW, sST = 57, 55, 54
FP, FS, FX, FZ, FST = 128, 192, 208, 216, 232
def gen_final_addr(a):
    a(f"v_and_b32 v3, 15, v{vLANE}\nv_lshrrev_b32 v4, 4, v{vLANE}")
    a(f"s_lshl_b32 s{sT2}, s{sI}, 6\nv_add_u32 v5, s{sT2}, v3")
    a(f"s_lshl_b32 s{sT2}, s{sFC}, 6\ns_lshl_b32 s{sT1}, s{sFW}, 4\ns_add_u32 s{sT2}, s{sT2}, s{sT1}")
    a(f"v_lshlrev_b32 v6, 2, v4\nv_add_u32 v6, s{sT2}, v6")
    a(f"v_mul_u32_u24 v7, 1152, v5\nv_lshl_add_u32 v7, v6, 1, v7")
    a(f"v_lshlrev_b32 v8, 12, v6\nv_lshl_add_u32 v8, v5, 1, v8\nv_add_u32 v8, {WS_ZT}, v8")
    a(f"v_lshlrev_b32 v9, 3, v5\nv_add_u32 v9, {WS_STATS}, v9")

def gen_final_loads(a):
    isz = 2048
    a(f"s_mul_i32 s{sT2}, s{sI}, 9\ns_add_u32 s{sT2}, s{sT2}, s{sFC}\ns_lshl_b32 s{sT2}, s{sT2}, 2\ns_add_u32 s{sT2}, s{sT2}, s{sFW}\ns_mul_i32 s{sT2}, s{sT2}, {isz}\ns_add_u32 s{sT2}, s{sT2}, {WS_PART}")
    for j in range(8):
        for q in range(2):
            r = FP + (j*2 + q)*4
            off = f" offset:{1024*q}" if q else ""
            a(f"buffer_load_dwordx4 v[{r}:{r+3}], v{vPST}, s[{sSRDW}:{sSRDW+3}], s{sT2} offen{off} sc1")
        if j < 7: a(f"s_add_u32 s{sT2}, s{sT2}, {32*9*4*isz}")
    for aa in range(4):
        a(f"s_mov_b32 s{sT3}, {16*1152*aa}")
        a(f"buffer_load_dwordx2 v[{FX+2*aa}:{FX+2*aa+1}], v7, s[{sX}:{sX+3}], s{sT3} offen")
    for aa in range(4):
        off = f" offset:{128*aa}" if aa else ""
        a(f"buffer_load_dwordx2 v[{FST+2*aa}:{FST+2*aa+1}], v9, s[{sSRDW}:{sSRDW+3}], 0 offen{off} sc1")

FZ2 = 104
def gen_final_z(a, tag, stamps=False):
    a(f"s_mov_b32 s{sCU}, 0")
    a.label(f"L_zre_{tag}")
    for aa in range(4):
        for e in range(4):
            off = f" offset:{32*aa}" if aa else ""
            a(f"s_mov_b32 s{sT3}, {e*4096}")
            a(f"buffer_load_ushort v{FZ+4*aa+e}, v8, s[{sSRDW}:{sSRDW+3}], s{sT3} offen{off} sc1")
    a(f"s_cmp_lg_u32 s{sST}, 1\ns_cbranch_scc1 L_z1_{tag}")
    for aa in range(4):
        for e in range(4):
            off = f" offset:{32*aa}" if aa else ""
            a(f"s_mov_b32 s{sT3}, {e*4096}")
            a(f"buffer_load_ushort v{FZ2+4*aa+e}, v97, s[{sSRDW}:{sSRDW+3}], s{sT3} offen{off} sc1")
    a("s_waitcnt vmcnt(0)")
    a(f"v_max3_u32 v2, v{FZ2}, v{FZ2+1}, v{FZ2+2}")
    for k in range(3, 15, 2): a(f"v_max3_u32 v2, v2, v{FZ2+k}, v{FZ2+k+1}")
    a(f"v_max_u32 v3, v2, v{FZ2+15}")
    a(f"s_branch L_z2_{tag}")
    a.label(f"L_z1_{tag}")
    a("s_waitcnt vmcnt(0)\nv_mov_b32 v3, 0")
    a.label(f"L_z2_{tag}")
    a(f"v_max3_u32 v2, v{FZ}, v{FZ+1}, v{FZ+2}")
    for k in range(3, 15, 2): a(f"v_max3_u32 v2, v2, v{FZ+k}, v{FZ+k+1}")
    a(f"v_max3_u32 v2, v2, v{FZ+15}, v3")
    a(f"v_cmp_eq_u32 vcc, 0xffff, v2\ns_add_u32 s{sCU}, s{sCU}, 1\ns_nop 0\ns_cmp_eq_u64 vcc, 0\ns_cbranch_scc1 L_zok_{tag}")
    a(f"s_cmp_lt_u32 s{sCU}, 5000\ns_cbranch_scc0 L_zok_{tag}\ns_sleep 2\ns_branch L_zre_{tag}")
    a.label(f"L_zok_{tag}")
    stamp(a, 29, stamps)

def gen_final_sum(a):
    a(f"s_mov_b32 s{sT3}, 0xffff0000")
    T = 240
    for j in range(8):
        for D in range(8):
            src = FP + 8*j + D
            if j == 0:
                a(f"v_lshlrev_b32 v{FS+2*D}, 16, v{src}\nv_and_b32 v{FS+2*D+1}, s{sT3}, v{src}")
            else:
                tt = T + 2*(D % 2)
                a(f"v_lshlrev_b32 v{tt}, 16, v{src}\nv_and_b32 v{tt+1}, s{sT3}, v{src}")
                a(f"v_pk_add_f32 v[{FS+2*D}:{FS+2*D+1}], v[{FS+2*D}:{FS+2*D+1}], v[{tt}:{tt+1}]")

OUTFL = ['']
XN, XF, FF = 128, 144, 160
def _unp(a, dst, src, M):
    a(f"v_lshlrev_b32 v{dst}, 16, v{src}\nv_and_b32 v{dst+1}, s{M}, v{src}\nv_lshlrev_b32 v{dst+2}, 16, v{src+1}\nv_and_b32 v{dst+3}, s{M}, v{src+1}")
def _pk(a, dst, src):
    a(f"v_cvt_pk_bf16_f32 v{dst}, v{src}, v{src+1}\nv_cvt_pk_bf16_f32 v{dst+1}, v{src+2}, v{src+3}")

def gen_final_pre(a):
    T = 176; M = sT3
    a(f"s_mov_b32 s{sT3}, 0xffff0000")
    for aa in range(4): a(f"v_rcp_f32 v{T+aa}, v{FST+2*aa+1}")
    a("s_nop 0")
    for aa in range(4): a(f"v_mul_f32 v{T+4+aa}, v{T+aa}, v{T+aa}")
    for aa in range(4):
        P2 = T + 8 + 2*(aa % 2)
        _unp(a, XF+4*aa, FX+2*aa, M)
        for e in range(4): a(f"v_sub_f32 v{XN+4*aa+e}, v{XF+4*aa+e}, v{FST+2*aa}")
        _pk(a, P2, XN+4*aa); _unp(a, XN+4*aa, P2, M)
        for e in range(4): a(f"v_mul_f32 v{XN+4*aa+e}, v{XN+4*aa+e}, v{T+aa}")
        _pk(a, P2, XN+4*aa); _unp(a, XN+4*aa, P2, M)
        for e in range(4): a(f"v_mul_f32 v{FF+4*aa+e}, v{FS+4*aa+e}, v{T+4+aa}")
        _pk(a, P2, FF+4*aa); _unp(a, FF+4*aa, P2, M)

def gen_final_combine(a):
    U = 176; M = sT3
    a(f"s_mov_b32 s{sT3}, 0xffff0000")
    for aa in range(4):
        V4 = U + 8*(aa % 2)
        for e in range(4):
            a(f"v_lshlrev_b32 v{V4+e}, 16, v{FZ+4*aa+e}")
        for e in range(4): a(f"v_mul_f32 v{V4+e}, v{V4+e}, v{XN+4*aa+e}")
        _pk(a, V4+4, V4); _unp(a, V4, V4+4, M)
        for e in range(4): a(f"v_add_f32 v{V4+e}, v{V4+e}, v{XF+4*aa+e}")
        _pk(a, V4+4, V4); _unp(a, V4, V4+4, M)
        for e in range(4): a(f"v_add_f32 v{V4+e}, v{V4+e}, v{FF+4*aa+e}")
        _pk(a, V4+6, V4)
        a(f"s_mov_b32 s{sT2}, {16*1152*aa}")
        a(f"buffer_store_dwordx2 v[{V4+6}:{V4+7}], v7, s[{sOUT}:{sOUT+3}], s{sT2} offen" + OUTFL[0])

def gen_kernel(name, fp32_part=False, opts=None, stamps=False, mapping="32x1"):
    opts = opts or {}
    nodma = opts.get("no_dma")
    set_p1(opts.get("p1d", 3))
    a = Asm()
    a(f".globl {name}\n.p2align 8\n.type {name},@function\n{name}:")
    a("s_cmp_ge_u32 s2, 256\ns_cbranch_scc1 L_done")
    a("s_load_dwordx4 s[80:83], s[0:1], 0")
    a("s_load_dwordx4 s[88:91], s[0:1], 16")
    a("s_load_dwordx4 s[68:71], s[0:1], 32")
    a("s_load_dwordx4 s[4:7], s[0:1], 56")
    a("s_load_dwordx4 s[16:19], s[0:1], 72")
    a("s_load_dwordx4 s[44:47], s[0:1], 88")
    if stamps:
        a("s_memrealtime s[58:59]\ns_memtime s[50:51]")
    a(f"v_lshrrev_b32 v2, 6, v0\nv_and_b32 v{vLANE}, 63, v0")
    a(f"v_readfirstlane_b32 s{sW}, v2")
    if mapping == "32x1":
        a(f"s_and_b32 s{sJ}, s2, 7\ns_lshr_b32 s{sI}, s2, 3"); nshare = 32
        a(f"s_lshl_b32 s{sOM}, s{sI}, 2")
    elif mapping == "16x2":
        a(f"s_and_b32 s{sT0}, s2, 3\ns_lshl_b32 s{sT0}, s{sT0}, 1\ns_bfe_u32 s{sT1}, s2, 0x10003\ns_add_u32 s{sJ}, s{sT0}, s{sT1}")
        a(f"s_bfe_u32 s{sT0}, s2, 0x10002\ns_lshl_b32 s{sT0}, s{sT0}, 4\ns_lshr_b32 s{sT1}, s2, 4\ns_add_u32 s{sI}, s{sT0}, s{sT1}"); nshare = 16
        a(f"s_lshl_b32 s{sOM}, s{sT1}, 2")
    elif mapping == "8x4":
        a(f"s_and_b32 s{sT0}, s2, 1\ns_lshl_b32 s{sT0}, s{sT0}, 2\ns_bfe_u32 s{sT1}, s2, 0x20003\ns_add_u32 s{sJ}, s{sT0}, s{sT1}")
        a(f"s_bfe_u32 s{sT0}, s2, 0x20001\ns_lshl_b32 s{sT0}, s{sT0}, 3\ns_lshr_b32 s{sT1}, s2, 5\ns_add_u32 s{sI}, s{sT0}, s{sT1}"); nshare = 8
        a(f"s_lshl_b32 s{sOM}, s{sT1}, 2")
    a(f"v_lshlrev_b32 v{vPST}, 4, v{vLANE}")
    if not opts.get("no_codepf"):
        a("s_getpc_b64 s[52:53]")
        a.label("L_pc")
        a(f"s_sub_u32 s52, s52, L_pc-{name}\ns_subb_u32 s53, s53, 0")
        a(f"s_lshr_b32 s54, s2, 3\ns_and_b32 s54, s54, 3\ns_cmp_lg_u32 s54, s{sW}\ns_cbranch_scc1 L_nocpf")
        a(f"s_lshl_b32 s54, s{sW}, 13\nv_lshlrev_b32 v2, 7, v{vLANE}\nv_add_u32 v2, s54, v2\nv_min_u32 v2, L_done-{name}, v2")
        a(f"global_load_dword v{vDUM+3}, v2, s[52:53]")
        a.label("L_nocpf")
    a(f"s_add_u32 s{sOM}, s{sOM}, s{sW}")
    a(f"s_and_b32 s{sPAR}, s{sJ}, {0 if mapping == '32x1' else 1}")
    gen_q_addr(a, 0)
    a(f"s_mov_b32 s99, s{sT0}")
    a("s_waitcnt lgkmcnt(0)")
    a("s_mov_b32 s84, s82\ns_mov_b32 s85, s83")
    a(f"s_mov_b32 s{sQ+2}, {2048*576*2}\ns_mov_b32 s{sQ+3}, 0x00020000\ns_mov_b32 s{sT0}, s99")
    QREG = 176
    q0l = Asm(); gen_q_loads(q0l, QREG, 0, addr=False)
    early0 = len(a.lines)
    a.lines += tag_vm(q0l.lines, "q0")
    a("s_mov_b32 s92, s90\ns_mov_b32 s93, s91")
    a("s_mov_b32 s96, s70\ns_mov_b32 s97, s71")
    a("s_mov_b32 s8, s6\ns_mov_b32 s9, s7")
    a("s_mov_b32 s64, s18\ns_mov_b32 s65, s19")
    a("s_mov_b32 s12, s46\ns_mov_b32 s13, s47")
    a("s_mov_b32 s72, s80\ns_mov_b32 s73, s81")
    a(f"s_mov_b32 s18, {576*4608*2}\ns_mov_b32 s19, 0x00020000")
    for srd, n in ((sSRDA, 576*4608*2), (sSRDB, 576*4608*2), (sSRDW, WS_SIZE), (sDBG, 256), (sK, 2048*576*2), (sV, 2048*576*2), (sSK, 576*4*2), (sD, 576*2), (sOUT, 2048*576*2), (sX, 2048*576*2)):
        a(f"s_mov_b32 s{srd+2}, {n}\ns_mov_b32 s{srd+3}, 0x00020000")
    if stamps:
        a("v_mov_b32 v249, 0\nv_writelane_b32 v249, s50, 0")
    stamp(a, 1, stamps)
    p0 = early0
    QREG, KREG, vP9, vRUN = 176, 72, 250, 251
    def blk(fn, tag=None):
        t = Asm(); fn(t)
        return tag_vm(t.lines, tag) if tag else t.lines
    def B_pf0(t):
        gen_pf_setup(t, nshare)
        t(f"s_mul_i32 s{sPFO}, s{sJ}, 1152")
        t(f"buffer_load_dword v{vDUM}, v{vPF}, s[{sSRDA}:{sSRDA+3}], s{sPFO} offen")
        t(f"buffer_load_dword v{vDUM+1}, v{vPF}, s[{sSRDB}:{sSRDB+3}], s{sPFO} offen")
        t(f"s_add_u32 s{sPFO}, s{sPFO}, 128")
    def B_pf12(t):
        for r in range(2):
            t(f"buffer_load_dword v{vDUM}, v{vPF}, s[{sSRDA}:{sSRDA+3}], s{sPFO} offen")
            t(f"buffer_load_dword v{vDUM+1}, v{vPF}, s[{sSRDB}:{sSRDB+3}], s{sPFO} offen")
            t(f"s_add_u32 s{sPFO}, s{sPFO}, 128")
    def B_clr(t):
        t(f"v_mov_b32 v2, s{sPFLG}\nv_mov_b32 v3, 0x7ff00000\nv_cmp_eq_u32 vcc, 0, v{vLANE}\nv_mov_b32 v4, 0\ns_nop 0\nv_cndmask_b32 v2, v3, v2, vcc")
        t(f"buffer_store_dword v4, v2, s[{sSRDW}:{sSRDW+3}], 0 offen sc1")
        t(f"s_lshl_b32 s{sT2}, s{sC}, 12\ns_add_u32 s{sT2}, s{sT2}, {WS_ZT}\ns_cmp_lt_u32 s{sC}, 576\ns_cselect_b32 s{sT2}, s{sT2}, 0x7ff00000")
        for r in range(4): t(f"v_mov_b32 v{116+r}, -1")
        for k in range(4):
            off = f" offset:{1024*k}" if k else ""
            t(f"buffer_store_dwordx4 v[116:119], v{vPST}, s[{sSRDW}:{sSRDW+3}], s{sT2} offen{off} sc1")
    def B_setup(t):
        t(f"v_lshrrev_b32 v2, 3, v{vLANE}\nv_and_b32 v3, 7, v{vLANE}\nv_lshrrev_b32 v4, 1, v3\nv_and_b32 v5, 1, v3\nv_lshlrev_b32 v5, 4, v5")
        t(f"v_bfe_u32 v6, v{vLANE}, 4, 1\nv_lshlrev_b32 v7, 1, v6")
        t(f"s_mul_i32 s{sT0}, s{sW}, 24\nv_add_u32 v23, s{sT0}, v2\ns_movk_i32 s{sT1}, 9216\nv_mul_lo_u32 v21, v23, s{sT1}")
        for p, vd in ((0, VDG), (1, VDU)):
            t(f"v_or_b32 v22, {p}, v7\nv_xor_b32 v22, v4, v22\nv_lshlrev_b32 v22, 5, v22\nv_add3_u32 v22, v21, v22, v5")
            for k in range(3): t(f"v_add_u32 v{vd[k]}, {8*k*9216 - 1024*k}, v22")
        t(f"s_mul_i32 s{sM0}, s{sW}, 3072\ns_add_u32 s{sM0+1}, s{sM0}, 12288")
        t(f"s_mul_i32 s{sT0}, s{sW}, 72\nv_add_u32 v23, s{sT0}, v2\ns_movk_i32 s{sT1}, 1152\nv_mul_lo_u32 v21, v23, s{sT1}")
        t(f"v_lshrrev_b32 v22, 1, v3\nv_bfe_u32 v23, v{vLANE}, 4, 2\nv_xor_b32 v22, v22, v23\nv_lshlrev_b32 v22, 5, v22\nv_and_b32 v23, 1, v3\nv_lshlrev_b32 v23, 4, v23\nv_add3_u32 v22, v21, v22, v23")
        for k in range(4): t(f"v_add_u32 v{vD2+k}, {8*k*1152 - 1024*k}, v22")
        t(f"v_and_b32 v2, 15, v{vLANE}\nv_bfe_u32 v3, v{vLANE}, 4, 1\nv_lshrrev_b32 v4, 5, v{vLANE}\nv_lshrrev_b32 v5, 2, v2\nv_bfe_u32 v6, v2, 3, 1")
        t(f"v_lshl_add_u32 v7, v4, 3, v5\nv_lshlrev_b32 v7, 7, v7\nv_lshl_add_u32 v21, v6, 1, v3\nv_xor_b32 v21, s{sW}, v21\nv_lshlrev_b32 v21, 5, v21")
        t(f"v_and_b32 v22, 3, v2\nv_lshlrev_b32 v22, 3, v22\nv_add3_u32 v{vRA1}, v7, v21, v22\nv_mul_u32_u24 v21, 12288, v3\nv_add_u32 v{vRA1}, v{vRA1}, v21")
        t(f"v_add_u32 v{vRA1b}, 65536, v{vRA1}\nv_add_u32 v{vRA1c}, 131072, v{vRA1}")
        t(f"v_lshrrev_b32 v7, 5, v{vLANE}\nv_lshlrev_b32 v7, 4, v7\nv_bfe_u32 v21, v{vLANE}, 4, 1\nv_lshl_add_u32 v7, v21, 2, v7\nv_add_u32 v7, v7, v5")
        t(f"v_bfe_u32 v21, v7, 1, 2\nv_xor_b32 v21, s{sW}, v21\nv_lshlrev_b32 v21, 5, v21\nv_lshlrev_b32 v7, 7, v7")
        t(f"v_add3_u32 v{vRA2}, v7, v21, v22\nv_add_u32 v{vRA2b}, 32768, v{vRA2}")
        t(f"s_mov_b32 s{sHIDX}, 0\ns_mov_b32 s{sB2}, 0")
        t(f"s_lshl_b32 s{sT0}, s{sJ}, 5\ns_add_u32 s{sT0}, s{sT0}, s{sI}\ns_mul_i32 s{sT0}, s{sT0}, {9*4*2048}\ns_mul_i32 s{sT1}, s{sW}, 2048\ns_add_u32 s{sT0}, s{sT0}, s{sT1}\ns_add_u32 s{sPOFF}, s{sT0}, {WS_PART}")
        t(f"s_mul_i32 s{sSOFF}, s{sJ}, {576*2}\ns_mov_b32 s{sINC}, {96*9216}")
        t(f"s_mov_b32 s{sINCW}, {(-5*96*9216 + (0 if opts.get('same_cols') else 128)) & 0xffffffff}")
        t(f"s_lshl_b32 s{sT0}, s{sI}, 7\ns_lshl_b32 s{sT1}, s{sJ}, 4\ns_add_u32 s{sT1}, s{sT1}, s{sT0}\ns_lshl_b32 s{sT0}, s{sW}, 2\ns_add_u32 s{sT1}, s{sT1}, s{sT0}\ns_add_u32 s{sPFLG}, s{sT1}, {WS_FLAG}")
        t(f"s_lshl_b32 s{sC}, s{sW}, 8\ns_add_u32 s{sC}, s{sC}, s2")
        gen_ln_setup(t)
    def B_dma012(t):
        for st in range(3):
            if st: t(f"s_add_u32 s{sSOFF}, s{sSOFF}, s{sINC}")
            tt = Asm(); dma1_group(tt, st)
            t.lines += tag_vm(tt.lines, "pair0") if st < 2 else tt.lines
    def B_frags(t):
        t(f"v_add_u32 v{vHR}, {HB}, v{vPST}\nv_add_u32 v2, {65536}, v{vHR}")
        for f in range(72):
            if f < 64: t(f"ds_read_b128 {xn_frag(f)}, v{vHR} offset:{f*1024}")
            else: t(f"ds_read_b128 {xn_frag(f)}, v2 offset:{(f-64)*1024}")
        t(f"v_and_b32 v2, 31, v{vLANE}\nv_lshlrev_b32 v2, 2, v2\nv_add_u32 v2, {LDS_STAT}, v2")
        t(f"ds_read_b32 v3, v2\nds_read_b32 v4, v2 offset:128")
    a.lines += blk(B_pf0)
    a.lines += blk(B_setup)
    stamp(a, 2, stamps)
    if mapping != "32x1": a("s_waitcnt vmcnt(@q0)")
    a.lines += blk(lambda t: gen_q_loads(t, QREG, 1), "q1")
    a("s_waitcnt vmcnt(@q0)")
    stamp(a, 3, stamps)
    gen_ln_pass(a, QREG, 0)
    stamp(a, 6, stamps)
    a("s_waitcnt vmcnt(@q1)")
    a.lines += blk(B_pf12)
    a.lines += blk(lambda t: gen_kv_loads(t, KREG, vP9, vRUN), "kv")
    stamp(a, 5, stamps)
    gen_ln_pass(a, QREG, 1)
    a("s_waitcnt lgkmcnt(0)")
    stamp(a, 4, stamps)
    a("s_barrier")
    stamp(a, 7, stamps)
    fr = blk(B_frags); dm = groups_of(blk(B_dma012))
    interleave(a, fr, dm, start=4)
    a("s_waitcnt lgkmcnt(0)")
    for n, src in ((0, 3), (1, 4)):
        a(f"v_mul_f32 v5, v{src}, v{src}\nv_mul_f32 v{VC0[n]}, {hex(f2u(C0))}, v{src}\nv_mul_f32 v5, v5, v{src}\nv_mul_f32 v{VC1[n]}, {hex(f2u(C1))}, v5")
    stamp(a, 8, stamps)
    a("s_barrier")
    a(f"s_add_u32 s{sSOFF}, s{sSOFF}, s{sINC}")
    dma1_group(a, 3)
    a(f"s_add_u32 s{sSOFF}, s{sSOFF}, s{sINC}")
    dma1_group(a, 4, 0, 12 - P1_BAR)
    gen_pf_unit(a, nshare)
    stamp(a, 9, stamps)
    stamp(a, 10, stamps)
    a("s_waitcnt vmcnt(@pair0)")
    stamp(a, 11, stamps)
    a("s_barrier")
    lk = Lgkm(a)
    for kk in range(P1_D): p1_read(lk, kk, kk % P1_NB, ("A", kk))
    a(f"s_mov_b32 s{sCNT}, 4\ns_mov_b32 s62, 32\ns_mov_b32 s{sHIDX}, 8")
    stamp(a, 12, stamps)
    pre = list(lk.q)
    def post_bar(a_, lk_):
        t = Asm(); gen_kv_store(t); B_clr(t)
        for l in t.lines:
            if l.startswith("ds_read"): lk_.issue(("X", l), l)
            elif l == "s_waitcnt lgkmcnt(0)": a_(l); lk_.wait_all_keep = True; lk_.q = []
            else: a_(l)
    r0 = len(a.lines)
    gen_round(a, lk, 0, 1, "Z", opts=opts, extra=kv_compute_ops(vP9, vRUN))
    check_hazards(a.lines[r0:], "round0")
    a.lines[p0:] = resolve_vm(a.lines[p0:])
    a(f"s_mov_b32 s{sCNT}, 3")
    lk.q = list(pre)
    a.label("L_roundA")
    b0 = len(a.lines)
    gen_round(a, lk, 1, 0, "A", opts=opts)
    a.label("L_roundB")
    gen_round(a, lk, 0, 1, "B", last_check=True, opts=opts)
    assert lk.q == pre, (lk.q, pre)
    a(f"s_sub_u32 s{sCNT}, s{sCNT}, 1\ns_cmp_ge_i32 s{sCNT}, 0\ns_cbranch_scc1 L_roundA")
    check_hazards(a.lines[b0:] + a.lines[b0:], "phase1")
    a("s_waitcnt lgkmcnt(0)")
    stamp(a, 13, stamps)
    a("s_waitcnt vmcnt(0)")
    a("s_barrier")
    gen_kv_store(a)
    a.lines += blk(B_clr)
    gen_conv_issue(a, stamps)
    tmp = Asm(); gen_wd_pf(tmp, nshare, 4, 9)
    for l in tmp.lines: a(l.replace("v123", "v10X").replace("v124", "v127").replace("v125", "v5").replace("v10X", "v4"))
    a(f"s_lshl_b32 s{sT0}, s{sW}, 10\nv_add_u32 v2, s{sT0}, v{vHR}\nv_add_u32 v3, {36*1024}, v2")
    hw = []
    for rho in range(8):
        src = HREG + 8*(rho+1)
        hw.append([f"ds_write_b128 v2, {V(src,4)} offset:{rho*4096}"]); hw.append([f"ds_write_b128 v3, {V(src+4,4)} offset:{rho*4096}"])
    interleave(a, gelu_ops(ACC[0]), hw, start=2)
    a(f"ds_write_b128 v2, {V(HP,4)} offset:{8*4096}\nds_write_b128 v3, {V(HP+4,4)} offset:{8*4096}")
    stamp(a, 16, stamps)
    a("s_waitcnt lgkmcnt(0)\ns_barrier")
    a(f"v_and_b32 v2, 15, v{vLANE}\nv_bfe_u32 v3, v{vLANE}, 4, 1\nv_lshl_add_u32 v2, v3, 5, v2\nv_lshlrev_b32 v2, 4, v2\nv_lshrrev_b32 v3, 5, v{vLANE}\nv_lshl_add_u32 v2, v3, 10, v2\nv_add_u32 v2, {HB}, v2\nv_add_u32 v3, {36*1024}, v2")
    for K in range(18):
        for nt in range(4):
            a(f"ds_read_b128 {h_frag(K, nt)}, v{2 + (nt >> 1)} offset:{2*K*1024 + (nt & 1)*256}")
    a("s_waitcnt lgkmcnt(0)\ns_barrier")
    a(f"s_mov_b32 s{sSRDA+2}, {576*4608*2}\ns_mov_b32 s{sSRDB+2}, {576*4608*2}")
    a(f"s_mul_i32 s{sSOFF}, s{sJ}, {576*1152}\ns_add_u32 s{sSOFF}, s{sSOFF}, {0 if opts.get('same_cols') else 128}")
    a(f"s_mov_b32 s{sINC}, {192*1152}")
    a(f"s_mov_b32 s{sINCW}, {(-2*192*1152 + (0 if opts.get('same_cols') else 128)) & 0xffffffff}")
    if not nodma:
        dma1_group(a, 3)
        a(f"s_add_u32 s{sSOFF}, s{sSOFF}, s{sINC}")
        dma1_group(a, 4)
        a(f"s_mov_b32 s{sT0}, 0x7ff00000")
        for k in range(2): a(f"buffer_load_dword v{vDUM+k}, v{vPST}, s[{sSRDA}:{sSRDA+3}], s{sT0} offen")
    lk = Lgkm(a)
    for F in range(P2_D): p2_read(lk, F, F % P2_NB, ("B", F))
    pre2 = list(lk.q)
    a(f"s_mov_b32 s{sCNT}, 9")
    stamp(a, 14, stamps)
    a.label("L_p2")
    bs = len(a.lines)
    gen_p2_chunk(a, lk, opts, dma=True)
    assert lk.q == pre2 or opts.get("rstamp"), (lk.q, pre2)
    a(f"s_cmp_gt_u32 s{sCNT}, 2\ns_cbranch_scc1 L_p2")
    check_hazards(a.lines[bs:] + a.lines[bs:], "phase2")
    a.label("L_p2b")
    bs = len(a.lines)
    lk.q = list(pre2)
    gen_p2_chunk(a, lk, opts, dma=False, tag="b")
    a(f"s_cmp_gt_u32 s{sCNT}, 0\ns_cbranch_scc1 L_p2b")
    check_hazards(a.lines[bs:] + a.lines[bs:], "phase2b")
    stamp(a, 15, stamps)
    a("s_waitcnt lgkmcnt(0)")
    a("s_barrier")
    a(f"s_mov_b32 s{sFC}, s{sJ}\ns_mov_b32 s{sFW}, s{sW}")
    c0 = len(a.lines)
    gen_conv_main(a, stamps)
    check_hazards(a.lines[c0:], "conv")
    stamp(a, 20, stamps)
    a(f"s_mov_b32 s{sST}, 3")
    a("s_waitcnt vmcnt(8)")
    a("s_branch L_fin2")
    a.label("L_noconv")
    publish_partial(a)
    a("s_sleep 24")
    a(f"s_mov_b32 s{sST}, 3")
    a(f"s_cmp_lg_u32 s{sW}, 3\ns_cbranch_scc1 L_pass")
    a(f"s_lshr_b32 s{sT0}, s{sJ}, 2\ns_and_b32 s{sT1}, s{sI}, 1\ns_cmp_lg_u32 s{sT0}, s{sT1}\ns_cbranch_scc1 L_pass")
    a(f"s_mov_b32 s{sST}, 0")
    a.label("L_pass")
    gen_pflag_addr(a, 12, f"s{sFW}")
    poll(a, "pB", 12, sSRDW, "0", 1, sCU, cmp="eq")
    gen_final_addr(a)
    gen_final_loads(a)
    a.label("L_fin")
    f0 = len(a.lines)
    a("s_waitcnt vmcnt(0)")
    a.label("L_fin2")
    stamp(a, 22, stamps)
    gen_final_sum(a)
    gen_final_pre(a)
    a(f"s_cmp_lg_u32 s{sST}, 0\ns_cbranch_scc1 L_zbar")
    SAVE = [(XN+k, 48+k) for k in range(48)] + [(7, 96), (8, 97)]
    for src, dst in SAVE: a(f"v_mov_b32 v{dst}, v{src}")
    a(f"s_mov_b32 s{sST}, 1\ns_mov_b32 s{sFC}, 8\ns_and_b32 s{sFW}, s{sJ}, 3\ns_branch L_pass")
    a.label("L_zbar")
    a(f"s_barrier")
    stamp(a, 28, stamps)
    gen_final_z(a, "A", stamps)
    a.label("L_comb")
    gen_final_combine(a)
    stamp(a, 31, stamps)
    check_hazards(a.lines[f0:], "final")
    a(f"s_cmp_lg_u32 s{sST}, 1\ns_cbranch_scc1 L_final_done")
    a("s_nop 1")
    for src, dst in SAVE: a(f"v_mov_b32 v{src}, v{dst}")
    for k in range(16): a(f"v_mov_b32 v{FZ+k}, v{FZ2+k}")
    a(f"s_mov_b32 s{sST}, 2\ns_branch L_comb")
    a.label("L_final_done")
    if stamps:
        a("s_waitcnt vmcnt(0)")
        stamp(a, 23, stamps)
        a("s_memrealtime s[60:61]\ns_waitcnt lgkmcnt(0)\ns_sub_u32 s60, s60, s58\nv_writelane_b32 v249, s60, 24")
        a(f"s_lshl_b32 s34, s2, 2\ns_add_u32 s34, s34, s{sW}\ns_lshl_b32 s34, s34, 8\ns_add_u32 s34, s34, {WS_STAMP2}")
        a(f"v_lshlrev_b32 v6, 2, v{vLANE}")
        a(f"buffer_store_dword v249, v6, s[{sSRDW}:{sSRDW+3}], s34 offen\ns_waitcnt vmcnt(0)")
    a.label("L_done")
    a("s_endpgm")
    return a

def kv_compute_ops(vP9, vRUN):
    PP, AC, VU = 208, 240, 160
    ops = ["s_mov_b32 s53, 0xffff0000", "s_mov_b32 s52, 0x05040100", "s_mov_b32 s98, 0x07060302"]
    def mkP(p):
        r = p + 1; o = []
        for e in range(4):
            o.append(f"v_perm_b32 v{PP+8*(p%4)+2*e}, v{KRAW+4*(r-1)+e}, v{KRAW+4*r+e}, s52")
            o.append(f"v_perm_b32 v{PP+8*(p%4)+2*e+1}, v{KRAW+4*(r-1)+e}, v{KRAW+4*r+e}, s98")
        return o
    ops += [f"v_lshlrev_b32 v6, 2, v{vRUN}", "v_sub_u32 v6, 63, v6", "v_mul_u32_u24 v6, 160, v6", f"v_lshl_add_u32 v6, v{vP9}, 4, v6", f"v_add_u32 v6, {LDS_KV - 3*160}, v6"]
    ops += mkP(0) + mkP(1)
    for tok in range(4):
        ops += mkP(tok + 2)
        for c in range(8):
            ops.append(f"v_dot2_f32_bf16 v{AC+c}, v{PP+8*(tok%4)+c}, v{KCO+2*c+1}, 0")
        for c in range(8):
            ops.append(f"v_dot2_f32_bf16 v{AC+c}, v{PP+8*((tok+2)%4)+c}, v{KCO+2*c}, v{AC+c}")
        for e in range(4):
            ops += [f"v_lshlrev_b32 v{VU+2*e}, 16, v{VRAW+4*tok+e}", f"v_and_b32 v{VU+2*e+1}, s53, v{VRAW+4*tok+e}"]
        for c in range(8):
            ops.append(f"v_mul_f32 v{AC+c}, v{AC+c}, v{VU+c}")
        for e in range(4):
            ops.append(f"v_cvt_pk_bf16_f32 v{VU+8+e}, v{AC+2*e}, v{AC+2*e+1}")
        ops.append(("ds", f"ds_write_b128 v6, v[{VU+8}:{VU+11}] offset:{(3-tok)*160}"))
    return ops

def kd(name, nvgpr_arch, nagpr, nsgpr=100):
    acc_off = (nvgpr_arch + 3)//4*4
    tot = acc_off + nagpr if nagpr else nvgpr_arch
    return f""".section .rodata,"a"
.p2align 6
.amdhsa_kernel {name}
  .amdhsa_next_free_vgpr {tot}
  .amdhsa_next_free_sgpr {nsgpr}
  .amdhsa_accum_offset {acc_off}
  .amdhsa_group_segment_fixed_size 0
  .amdhsa_kernarg_size 104
  .amdhsa_user_sgpr_count 2
  .amdhsa_user_sgpr_kernarg_segment_ptr 1
  .amdhsa_system_sgpr_workgroup_id_x 1
  .amdhsa_float_denorm_mode_32 3
.end_amdhsa_kernel
"""

NAME = "parallel_sum__ssm_conv_h3__glu_gated_geglu__prompt_kernel"
def build(fn, single_launch=True, **kw):
    a = gen_kernel(NAME, **kw)
    ref = open("parallel_sum__ssm_conv_h3__glu_gated_geglu__prompt.s.ref").read()
    hdr = []
    for l in ref.splitlines():
        if l.startswith("; Override launch"): break
        hdr.append(l)
    hdr = "\n".join(hdr) + "\n"
    hdr += f"; @launch grid=(256,1,1) block=(256,1,1) lds={LDS_TOTAL}\n"
    hdr += '.amdgcn_target "amdgcn-amd-amdhsa--gfx950"\n.text\n'
    open(fn, "w").write(hdr + a.text() + kd(NAME, 256, 256))

if __name__ == "__main__":
    import sys
    build("s_plain.s")
    build("s_st.s", stamps=True, opts={"rstamp": True})
    OUTFL[0] = " sc1"
    build("out_sc1.s")
    OUTFL[0] = " nt"
    build("out_nt.s")
    OUTFL[0] = ""
    build("nocpf.s", opts={"no_codepf": True})
    build("base.s")
```

```python
from asmlib import *
import math

WS_STATS = 0x240000
WS_KVR   = 0x250000
WS_ZT    = 0x490000
WS_STAMP = 0x6D0000
WS_STAMP2 = 0x3000000
WS_FLAG  = 0x6F0000
WS_ZFLAG = 0x6F2000
WS_PART  = 0x700000
WS_SIZE  = 0x10000000

SLOT = 24576
HB   = 3*SLOT
LDS_STAT = 147456
LDS_KV   = 147456 + 256
LDS_XR   = 147456 + 256
LDS_TOTAL = 147456 + 256 + 3*4608

C0 = -2.0*math.sqrt(2.0/math.pi)*math.log2(math.e)
C1 = C0*0.044715

sSRDA, sSRDB, sSRDW = 4, 8, 12
sWD = 16
sWDS = 16
sW, sJ, sI = 20, 21, 22
sSOFF = 23
sM0 = 24
sPFO = 26
sOM = 27
sCNT = 30
sINC, sINCW = 31, 32
sT0, sT1, sT2, sT3 = 34, 35, 36, 37
sPOFF = 38
sHIDX = 39
sEX = 40
sB2 = 42
sDBG = 44
sPFA, sPFB = 80, 84
sQ, sK, sV, sSK, sD = 80, 84, 88, 92, 96
sHK = 68
sOUT = 64
sX = 72
vLANE = 1
vRA1, vRA1b, vRA1c = 8, 30, 31
vRA2, vRA2b = 9, 10
vPF = 11
VDG, VDU = [12, 13, 14], [15, 16, 17]
VC0, VC1 = [18, 21, 22, 23], [120, 121, 122, 123]
vPST = 19
vHR = 20
vD2 = 24
vPF2 = 28
sPFU = 63
ACC = [32, 64]
AF = 96
XE = 128
GT = 160
HP = 168
HREG = 176
vDUM = 252

def xn_frag(f):
    return A(4*f, 4) if f < 64 else V(XE + 4*(f-64), 4)

class Lgkm:
    def __init__(self, a):
        self.a = a; self.q = []
    def issue(self, tag, text):
        self.a(text); self.q.append(tag)
    def wait_for(self, tag):
        cand = [i for i, t in enumerate(self.q) if t == tag]
        if not cand: return
        idx = max(cand); n = len(self.q) - 1 - idx
        assert n <= 15, n
        self.a(f"s_waitcnt lgkmcnt({n})")
        self.q = self.q[idx+1:]
    def wait_all(self): self.q = []

NT = {'pf': '', 'kv': ' nt', 'q': '', 'h': ' nt'}
def resolve_vm(lines):
    out = []; ops = []
    for l in lines:
        body = l.split(";")[0].strip()
        if body.startswith("buffer_") or body.startswith("global_"):
            tag = l.split("; vm:")[1].strip() if "; vm:" in l else None
            ops.append(tag)
        if "vmcnt(@" in l:
            tag = l.split("vmcnt(@")[1].split(")")[0]
            idx = max(i for i, t in enumerate(ops) if t == tag)
            n = len(ops) - 1 - idx
            assert n <= 63
            l = l.replace(f"vmcnt(@{tag})", f"vmcnt({n})")
        out.append(l)
    return out

def tag_vm(lines, tag):
    return [l + f" ; vm:{tag}" if (l.startswith("buffer_") or l.startswith("global_")) else l for l in lines]

def stamp(a, idx, on):
    if not on: return
    a("s_memtime s[48:49]")
    a("s_waitcnt lgkmcnt(0)")
    a(f"v_writelane_b32 v249, s48, {idx}")

def gelu_ops(accP, dst=HP):
    ops = []; k = 0
    for n in range(4):
        for r in range(0, 4, 2):
            g0, g1 = accP + 4*n + r, accP + 4*n + r + 1
            u0, u1 = g0 + 16, g1 + 16
            tb = GT + 4*(k % 2)
            t0, t1, q0, q1 = tb, tb+1, tb+2, tb+3
            ops += [
                f"v_mul_f32 v{t0}, v{g0}, v{g0}", f"v_mul_f32 v{t1}, v{g1}, v{g1}",
                f"v_fma_f32 v{t0}, v{t0}, v{VC1[n]}, v{VC0[n]}", f"v_fma_f32 v{t1}, v{t1}, v{VC1[n]}, v{VC0[n]}",
                f"v_mul_f32 v{t0}, v{t0}, v{g0}", f"v_mul_f32 v{t1}, v{t1}, v{g1}",
                f"v_exp_f32 v{t0}, v{t0}", f"v_exp_f32 v{t1}, v{t1}",
                f"v_mul_f32 v{q0}, v{g0}, v{u0}", f"v_mul_f32 v{q1}, v{g1}, v{u1}",
                f"v_add_f32 v{t0}, 1.0, v{t0}", f"v_add_f32 v{t1}, 1.0, v{t1}",
                f"v_rcp_f32 v{t0}, v{t0}", f"v_rcp_f32 v{t1}, v{t1}",
                f"v_mul_f32 v{q0}, v{q0}, v{t0}", f"v_mul_f32 v{q1}, v{q1}, v{t1}",
                f"v_cvt_pk_bf16_f32 v{dst + 2*n + r//2}, v{q0}, v{q1}",
            ]
            k += 1
    return ops

def dma1(a, which, k):
    srd = sSRDA if which == 0 else sSRDB
    vo = (VDG if which == 0 else VDU)[k]
    off = f" offset:{1024*k}" if k else ""
    a(f"buffer_load_dwordx4 v{vo}, s[{srd}:{srd+3}], s{sSOFF} offen{off} lds")

def dma1_group(a, slot, q0=0, q1=6):
    for q in range(q0, q1):
        which, k = divmod(q, 3)
        if k == 0 or q == q0:
            a(f"s_add_u32 m0, s{sM0+which}, {slot*SLOT}")
            a("s_nop 0")
        dma1(a, which, k)

def p1_read(lk, kk, buf, tag):
    st, k6 = divmod(kk % 36, 6)
    off = st*SLOT + (k6 & 1)*12288 + (k6 >> 1)*4096
    base = [vRA1, vRA1b, vRA1c][off // 65536]
    off %= 65536
    assert off + 512 < 65536
    r = AF + 4*buf
    lk.issue(tag, f"ds_read_b64_tr_b16 v[{r}:{r+1}], v{base} offset:{off}")
    lk.issue(tag, f"ds_read_b64_tr_b16 v[{r+2}:{r+3}], v{base} offset:{off+512}")

P1_D = 3
P1_NB = 4
P1_BAR = 9
def set_p1(D):
    global P1_D, P1_NB, P1_BAR
    P1_D = D; P1_NB = {3: 4, 4: 6, 5: 6}[D]; P1_BAR = 12 - D
def gen_round(a, lk, cur, prev, rname, last_check=False, opts=None, extra=None, post_bar=None):
    opts = opts or {}
    nodma = opts.get("no_dma")
    accC, accP = ACC[cur], ACC[prev]
    gops = gelu_ops(accP) if not opts.get("no_gelu") else []
    if extra is not None: gops = list(extra)
    G_START, G_END = (2, 24 + P1_BAR) if extra is None else (5, 24 + P1_BAR - 1)
    nslots = (G_END - G_START) * 2
    gi = 0
    def take_gelu(slot_idx):
        nonlocal gi
        tgt = (len(gops) * (slot_idx + 1) + nslots - 1) // nslots
        out = gops[gi:tgt]; gi = max(gi, tgt)
        return out
    for kk in range(36):
        pr, ks = divmod(kk, 12)
        buf = kk % P1_NB
        a.c(f"--- round {rname} kstep {kk}")
        if opts.get("rstamp") and kk == 0: a("s_memtime s[50:51]")
        if opts.get("p1w2"):
            if kk % 2 == 0: lk.wait_for(("A", kk + 1))
        else:
            lk.wait_for(("A", kk))
        K32, part = kk >> 1, kk & 1
        def mf(nt):
            d = V(accC + 16*part + 4*nt, 4)
            a(f"v_mfma_f32_16x16x32_bf16 {d}, {V(AF+4*buf,4)}, {xn_frag(4*K32 + nt)}, {'0' if K32 == 0 else d}")
        fl = []
        if G_START <= kk < G_END:
            fl = take_gelu((kk - G_START)*2) + take_gelu((kk - G_START)*2 + 1)
        wts = opts.get("p1w", (2, 0, 1, 1))
        tot = sum(wts); cum = 0; fills = []; L = len(fl); used = 0
        for x in range(4):
            cum += wts[x]
            tgt = (L*cum + tot - 1)//tot if x < 3 else L
            fills.append(fl[used:tgt]); used = max(used, tgt)
        if ks >= P1_BAR: q12 = ks - P1_BAR; gp = pr
        else: q12 = ks + (12 - P1_BAR); gp = (pr - 1) % 3
        half, q = divmod(q12, 6); which, k = divmod(q, 3)
        slot = 2*gp + half
        def emit(x):
            if isinstance(x, tuple): lk.issue(("X", x[1]), x[1])
            else: a(x)
        mf(0)
        if extra is not None and kk == G_START: a("s_waitcnt vmcnt(@kv)")
        for x in fills[0]: emit(x)
        mf(1)
        if ks == P1_BAR:
            for x in fills[1]: emit(x)
            a("s_waitcnt vmcnt(12) lgkmcnt(0)") if not nodma else a("s_waitcnt lgkmcnt(0)")
            lk.wait_all()
            if opts.get("rstamp") and kk == P1_BAR:
                a("v_mov_b32 v2, s50\nv_cmp_eq_u32 vcc, s62, v1\ns_add_u32 s62, s62, 1\ns_nop 0\nv_cndmask_b32 v249, v249, v2, vcc")
            if not opts.get("no_barrier"): a("s_barrier")
            mf(2)
            p1_read(lk, kk+P1_D, (kk+P1_D) % P1_NB, ("A", (kk+P1_D) % 36))
            if last_check and pr == 0:
                a(f"s_cmp_lg_u32 s{sCNT}, 0\ns_cbranch_scc1 L_nosw")
                gen_switch(a)
                a.label("L_nosw")
        else:
            p1_read(lk, kk+P1_D, (kk+P1_D) % P1_NB, ("A", (kk+P1_D) % 36))
            for x in fills[1]: emit(x)
            mf(2)
        if not nodma and q == 0:
            inc = sINCW if slot == 0 else sINC
            a(f"s_add_u32 s{sSOFF}, s{sSOFF}, s{inc}")
            if last_check and slot == 3:
                a(f"s_cmp_eq_u32 s{sCNT}, 0")
                a(f"s_cselect_b32 s{sSRDA+2}, 0, s{sSRDA+2}\ns_cselect_b32 s{sSRDB+2}, 0, s{sSRDB+2}")
        if kk == G_END and gops and extra is None:
            assert gi == len(gops) and k == 0
            a(f"s_set_gpr_idx_on s{sHIDX}, gpr_idx(DST)")
            a("s_nop 0")
            for qq in range(8): a(f"v_mov_b32 v{HREG+qq}, v{HP+qq}")
            a("s_set_gpr_idx_off")
            a(f"s_add_u32 s{sHIDX}, s{sHIDX}, 8")
        if not nodma and k == 0:
            a(f"s_add_u32 m0, s{sM0 + which}, {slot*SLOT}")
        f2 = list(fills[2])
        if not nodma:
            if k == 0:
                if f2: emit(f2.pop(0))
                else: a("s_nop 0")
            dma1(a, which, k)
        for x in f2: emit(x)
        mf(3)
        if kk == P1_BAR + 11 and not nodma and not opts.get("no_pf"):
            a(f"s_sub_u32 s{sPFU}, s{sPFU}, 1\ns_cmp_lg_u32 s{sPFU}, -1\ns_cbranch_scc1 L_nopf{rname}")
            a(f"buffer_load_dword v{vDUM}, v{vPF}, s[{sPFA}:{sPFA+3}], s{sPFO} offen")
            a(f"buffer_load_dword v{vDUM+1}, v{vPF2}, s[{sPFB}:{sPFB+3}], s{sPFO} offen")
            a.label(f"L_nopf{rname}")
        for x in fills[3]: emit(x)

def gen_switch(a):
    a(f"s_mov_b32 s{sSRDA}, s{sWD}\ns_mov_b32 s{sSRDA+1}, s{sWD+1}\ns_mov_b32 s{sSRDB}, s{sWD}\ns_mov_b32 s{sSRDB+1}, s{sWD+1}")
    a(f"s_mul_i32 s{sT0}, s{sW}, {48*1152}")
    a(f"s_sub_u32 s{sT1}, {96*1152}, s{sT0}")
    for k in range(3):
        a(f"v_subrev_u32 v{VDG[k]}, s{sT0}, v{vD2+k}")
        a(f"v_add_u32 v{VDU[k]}, s{sT1}, v{vD2+k}")
    a(f"s_mul_i32 s{sSOFF}, s{sJ}, {576*1152}")
    a(f"s_mov_b32 s{sINCW}, 0")
    a(f"s_mov_b32 s{sINC}, {192*1152}")

def gen_pf_switch(a):
    a(f"s_mov_b32 s{sPFA}, s{sWD}\ns_mov_b32 s{sPFA+1}, s{sWD+1}")
    a(f"s_add_u32 s{sPFB}, s{sWD}, 256\ns_addc_u32 s{sPFB+1}, s{sWD+1}, 0")
    a(f"s_sub_u32 s{sPFB+2}, s{sPFA+2}, 256")
    a(f"v_mov_b32 v{vPF}, v{vPF2}")
    a(f"s_mul_i32 s{sPFO}, s{sJ}, {576*1152}")

S2 = 36864
def dma2(a, k):
    off = f" offset:{1024*(k%4)}" if k % 4 else ""
    a(f"buffer_load_dwordx4 v{vD2 + k%4}, s[{sSRDA}:{sSRDA+3}], s{sT3} offen{off} lds")

def dma2_pre(a, k, m0expr):
    if k % 4 == 0:
        a(m0expr(k//4))
        a(f"s_add_u32 s{sT3}, s{sSOFF}, {32*1152*(k//4)}")

def dma2_group(a, slot):
    for k in range(9):
        dma2_pre(a, k, lambda g: f"s_add_u32 m0, s{sM0}, {slot*S2 + 4096*g}")
        dma2(a, k)

def h_frag(K, nt):
    f = 4*K + nt
    return A(4*f, 4) if f < 64 else V(XE + 4*(f-64), 4)

def p2_read(lk, F, buf, tag):
    off = (F % 18)*4096
    base = vRA2
    if off + 2048 > 65535:
        base = vRA2b; off -= 32768
    r = AF + 4*buf
    lk.issue(tag, f"ds_read_b64_tr_b16 v[{r}:{r+1}], v{base} offset:{off}")
    lk.issue(tag, f"ds_read_b64_tr_b16 v[{r+2}:{r+3}], v{base} offset:{off+2048}")

P2_NB = 6
P2_D = 3
def p2_group_setup(a, st):
    inc = sINCW if st == 1 else sINC
    a(f"s_add_u32 s{sSOFF}, s{sSOFF}, s{inc}")
    if st == 0: a(f"s_xor_b32 s{sT2}, s{sB2}, {3*SLOT}\ns_add_u32 s{sT2}, s{sT2}, {2*SLOT}")
    else: a(f"s_add_u32 s{sT2}, s{sB2}, {(st-1)*SLOT}")

def p2_dma(a, q):
    which, k = divmod(q, 3)
    if k == 0: a(f"s_add_u32 m0, s{sT2}, s{sM0+which}\ns_nop 0")
    dma1(a, which, k)

def gen_p2_chunk(a, lk, opts, dma=True, tag=""):
    nodma = opts.get("no_dma")
    acc = ACC[0]
    for T in range(18):
        st, ks = divmod(T, 6)
        a.c(f"--- p2{tag} kstep {T}")
        if opts.get("rstamp") and T == 0: a("s_memtime s[50:51]")
        lk.wait_for(("B", T))
        if ks == 0:
            if not nodma:
                if dma: a(f"s_waitcnt vmcnt({22 if st == 0 else 20})")
                else:
                    n1, n2 = [(22, 10), (20, 2), (14, 2)][st]
                    a(f"s_cmp_eq_u32 s{sCNT}, 2\ns_cbranch_scc1 L_p2wa{st}\ns_waitcnt vmcnt({n2})")
                    if st == 0:
                        a(f"s_cmp_lg_u32 s{sW}, 0\ns_cbranch_scc1 L_p2wj{st}\ns_waitcnt vmcnt(2)")
                        a(f"v_cmp_eq_u32 vcc, 0x01010101, v95\ns_nop 0\ns_cmp_eq_u64 vcc, exec\ns_cbranch_scc1 L_p2wj{st}")
                        poll(a, "kv", 11, sDBG, 0, "0x01010101", sCU, cmp="eq")
                    a(f"s_branch L_p2wj{st}")
                    a.label(f"L_p2wa{st}"); a(f"s_waitcnt vmcnt({n1})"); a.label(f"L_p2wj{st}")
            if not opts.get("no_barrier"): a("s_barrier")
        def mf(nt):
            cz = "0" if T == 0 else V(acc+4*nt, 4)
            a(f"v_mfma_f32_16x16x32_bf16 {V(acc+4*nt,4)}, {V(AF+4*(T % P2_NB),4)}, {h_frag(T, nt)}, {cz}")
        mf(0)
        if T == 18 - P2_D:
            a(f"v_xor_b32 v{vRA2}, {3*SLOT}, v{vRA2}")
            a(f"v_xor_b32 v{vRA2b}, {3*SLOT}, v{vRA2b}")
        F = T + P2_D
        p2_read(lk, F, (F % 18) % P2_NB, ("B", F % 18))
        mf(1)
        if not nodma and dma:
            if ks == 0: p2_group_setup(a, st)
            which, k = divmod(ks, 3)
            if k == 0: a(f"s_add_u32 m0, s{sT2}, s{sM0+which}")
        mf(2)
        if not nodma and dma: dma1(a, ks // 3, ks % 3)
        mf(3)
        if opts.get("rstamp") and T == 4:
            a("s_waitcnt lgkmcnt(0)"); lk.wait_all()
            a("v_mov_b32 v2, s50\nv_cmp_eq_u32 vcc, s62, v1\ns_add_u32 s62, s62, 1\ns_nop 0\nv_cndmask_b32 v249, v249, v2, vcc")
        if dma and T == 8:
            a(f"s_and_b32 s{sT0}, s{sI}, 3\ns_sub_u32 s{sT0}, 8, s{sT0}\ns_cmp_lg_u32 s{sCNT}, s{sT0}\ns_cbranch_scc1 L_nokvadd\ns_cmp_lg_u32 s{sW}, 0\ns_cbranch_scc1 L_nokvadd")
            a(f"v_mov_b32 v2, s2\nv_mov_b32 v3, 1")
            a(f"v_cmp_eq_u32 vcc, 0, v{vLANE}\ns_and_saveexec_b64 s[{sEX}:{sEX+1}], vcc")
            a(f"buffer_store_byte v3, v2, s[{sDBG}:{sDBG+3}], 0 offen sc1")
            a(f"s_mov_b64 exec, s[{sEX}:{sEX+1}]")
            a.label("L_nokvadd")
        if not nodma and not dma and T == 0:
            a(f"s_cmp_lg_u32 s{sCNT}, 2\ns_cbranch_scc1 L_p2nog")
            p2_group_setup(a, 0)
            for q in range(6): p2_dma(a, q)
            a(f"s_cmp_lg_u32 s{sW}, 0\ns_cbranch_scc1 L_p2noxr")
            a(f"buffer_load_dword v95, v11, s[{sDBG}:{sDBG+3}], 0 offen sc1")
            a("s_branch L_p2noxr")
            a.label("L_p2nog")
            gen_conv_issue2(a)
            a.label("L_p2noxr")
    a.c("--- p2 chunk epilogue")
    a(f"s_xor_b32 s{sB2}, s{sB2}, {3*SLOT}")
    a(f"s_sub_u32 s{sCNT}, s{sCNT}, 1")
    a("s_nop 4")
    for q in range(8):
        a(f"v_cvt_pk_bf16_f32 v{GT+q}, v{acc+2*q}, v{acc+2*q+1}")
    for q in range(2):
        off = f" offset:{1024*q}" if q else ""
        a(f"buffer_store_dwordx4 {V(GT+4*q,4)}, v{vPST}, s[{sSRDW}:{sSRDW+3}], s{sPOFF} offen{off} sc1")
    a(f"s_add_u32 s{sPOFF}, s{sPOFF}, {4*2048}")

ONES_BF = 0x3f803f80
sPFLG = 56
sPAR = 28
sPP = 29
def gen_q_addr(a, p):
    if p == 0:
        a(f"v_and_b32 v2, 7, v{vLANE}\nv_mul_u32_u24 v2, 1152, v2\nv_lshrrev_b32 v3, 3, v{vLANE}\nv_lshl_add_u32 v248, v3, 4, v2")
    a(f"s_xor_b32 s{sPP}, s{sPAR}, {p}")
    a(f"s_lshl_b32 s{sT0}, s{sI}, 6\ns_lshl_b32 s{sT1}, s{sW}, 4\ns_add_u32 s{sT0}, s{sT0}, s{sT1}\ns_lshl_b32 s{sT1}, s{sPP}, 3\ns_add_u32 s{sT0}, s{sT0}, s{sT1}\ns_mul_i32 s{sT0}, s{sT0}, 1152")

def gen_q_loads(a, QREG, p, addr=True):
    if addr: gen_q_addr(a, p)
    for m in range(9):
        off = f" offset:{128*m}" if m else ""
        a(f"buffer_load_dwordx4 v[{QREG+36*p+4*m}:{QREG+36*p+4*m+3}], v248, s[{sQ}:{sQ+3}], s{sT0} offen{off}{NT['q']}")

LT = 32
def gen_ln_setup(a):
    T = LT
    vB = T+10
    a(f"v_lshrrev_b32 v{T+8}, 3, v{vLANE}\nv_lshrrev_b32 v{T+9}, 2, v{T+8}\nv_lshlrev_b32 v{vB}, 12, v{T+9}")
    a(f"v_and_b32 v{T+9}, 3, v{T+8}\nv_lshl_add_u32 v{vB}, v{T+9}, 8, v{vB}")
    a(f"v_and_b32 v{T+9}, 7, v{vLANE}\nv_lshl_add_u32 v{vB}, v{T+9}, 4, v{vB}")
    a(f"s_lshl_b32 s{sT0}, s{sW}, 10\ns_add_u32 s{sT0}, s{sT0}, {HB}")
    a(f"v_add_u32 v{vB}, s{sT0}, v{vB}")
    vSt = T+11
    a(f"s_lshl_b32 s{sT0}, s{sW}, 6\ns_add_u32 s{sT0}, s{sT0}, {LDS_STAT}")
    a(f"v_lshlrev_b32 v{vSt}, 2, v{T+9}\nv_add_u32 v{vSt}, s{sT0}, v{vSt}")
    vG = T+12
    a(f"s_lshl_b32 s{sT0}, s{sI}, 6\ns_lshl_b32 s{sT1}, s{sW}, 4\ns_add_u32 s{sT0}, s{sT0}, s{sT1}")
    a(f"v_add_u32 v{vG}, s{sT0}, v{T+9}\nv_lshlrev_b32 v{vG}, 3, v{vG}\nv_add_u32 v{vG}, {WS_STATS}, v{vG}")

def gen_ln_pass(a, QREG, p):
    T = LT
    vS, vQ2, vB, vSt, vG = T, T+4, T+10, T+11, T+12
    X = QREG + 36*p
    a(f"s_mov_b32 s{sT2}, {hex(ONES_BF)}\ns_mov_b32 s{sT3}, 0x00003f80\ns_mov_b32 s{sEX}, 0x3f800000")
    a(f"s_xor_b32 s{sPP}, s{sPAR}, {p}")
    a(f"s_lshl_b32 s{sT0}, s{sPP}, 7\nv_add_u32 v{T+13}, s{sT0}, v{vB}\ns_lshl_b32 s{sT0}, s{sPP}, 5\nv_add_u32 v{T+14}, s{sT0}, v{vSt}")
    for k in range(4): a(f"v_mov_b32 v{vS+k}, 0\nv_mov_b32 v{vQ2+k}, 0")
    for d in range(36):
        a(f"v_dot2c_f32_bf16 v{vS+d%4}, s{sT2}, v{X+d}")
        a(f"v_dot2c_f32_bf16 v{vQ2+d%4}, v{X+d}, v{X+d}")
    a("s_nop 2")
    a(f"v_add_f32 v{vS}, v{vS}, v{vS+1}\nv_add_f32 v{vS+2}, v{vS+2}, v{vS+3}")
    a(f"v_add_f32 v{vQ2}, v{vQ2}, v{vQ2+1}\nv_add_f32 v{vQ2+2}, v{vQ2+2}, v{vQ2+3}")
    a(f"v_add_f32 v{vS}, v{vS}, v{vS+2}\nv_add_f32 v{vQ2}, v{vQ2}, v{vQ2+2}")
    a("s_nop 1")
    a(f"v_add_f32_dpp v{vS}, v{vS}, v{vS} row_ror:8 row_mask:0xf bank_mask:0xf")
    a(f"v_add_f32_dpp v{vQ2}, v{vQ2}, v{vQ2} row_ror:8 row_mask:0xf bank_mask:0xf")
    for sw in ("v_permlane16_swap_b32", "v_permlane32_swap_b32"):
        a(f"v_mov_b32 v{vS+1}, v{vS}\nv_mov_b32 v{vQ2+1}, v{vQ2}")
        a("s_nop 1")
        a(f"{sw} v{vS}, v{vS+1}\n{sw} v{vQ2}, v{vQ2+1}")
        a("s_nop 1")
        a(f"v_add_f32 v{vS}, v{vS}, v{vS+1}\nv_add_f32 v{vQ2}, v{vQ2}, v{vQ2+1}")
    inv = hex(f2u(1.0/576.0))
    a(f"v_mul_f32 v{vS}, {inv}, v{vS}\nv_mul_f32 v{vQ2}, {inv}, v{vQ2}")
    a(f"v_fma_f32 v{vQ2}, -v{vS}, v{vS}, v{vQ2}\nv_max_f32 v{vQ2}, 0, v{vQ2}")
    a(f"v_cvt_pk_bf16_f32 v{vS+1}, v{vS}, v{vQ2}")
    a(f"v_and_b32 v{vQ2}, 0xffff0000, v{vS+1}\nv_lshlrev_b32 v{vS}, 16, v{vS+1}")
    a(f"v_add_f32 v{vQ2}, {hex(f2u(1e-5))}, v{vQ2}")
    a(f"v_cvt_pk_bf16_f32 v{vQ2}, v{vQ2}, v{vQ2}\nv_lshlrev_b32 v{vQ2}, 16, v{vQ2}")
    a(f"v_sqrt_f32 v{vQ2}, v{vQ2}\ns_nop 0")
    a(f"v_cvt_pk_bf16_f32 v{vQ2}, v{vQ2}, v{vQ2}\nv_lshlrev_b32 v{vS+1}, 16, v{vQ2}")
    a(f"v_rcp_f32 v{vQ2}, v{vS+1}\nv_sub_f32 v{vS+2}, 0, v{vS}")
    a(f"ds_write_b32 v{T+14}, v{vQ2}")
    a(f"s_lshl_b32 s{sT0}, s{sPP}, 6\ns_cmp_eq_u32 s{sJ}, 0\ns_cselect_b32 s{sT0}, s{sT0}, 0x7ff00000")
    a(f"buffer_store_dwordx2 v[{vS}:{vS+1}], v{vG}, s[{sSRDW}:{sSRDW+3}], s{sT0} offen sc1")
    D = T+16
    for m in range(9):
        tb = D + 12*(m % 2)
        for e in range(4):
            a(f"v_dot2_f32_bf16 v{tb+2*e}, v{X+4*m+e}, s{sT3}, v{vS+2}")
            a(f"v_dot2_f32_bf16 v{tb+2*e+1}, v{X+4*m+e}, s{sEX}, v{vS+2}")
        if m > 0:
            pb = D + 12*((m-1) % 2)
            for e in range(4): a(f"v_cvt_pk_bf16_f32 v{pb+8+e}, v{pb+2*e}, v{pb+2*e+1}")
            a(f"ds_write_b128 v{T+13}, v[{pb+8}:{pb+11}] offset:{(m-1)*8192}")
    pb = D
    a("s_nop 2")
    for e in range(4): a(f"v_cvt_pk_bf16_f32 v{pb+8+e}, v{pb+2*e}, v{pb+2*e+1}")
    a(f"v_add_u32 v{T+13}, 32768, v{T+13}")
    a(f"ds_write_b128 v{T+13}, v[{pb+8}:{pb+11}] offset:{8*8192 - 32768}")

def interleave(a, main_lines, side_groups, start=8):
    n = len(main_lines); g = len(side_groups)
    pos = [start + (n - start - 4) * k // max(g, 1) for k in range(g)]
    lab = None
    k = 0
    for idx, l in enumerate(main_lines):
        if idx > 0 and main_lines[idx-1].startswith("s_cmp"):
            pos = [p + 1 if p == idx else p for p in pos]
        while k < g and pos[k] <= idx and not (idx > 0 and main_lines[idx-1].startswith("s_cmp")):
            for x in side_groups[k]: a.lines.append(x)
            k += 1
        a.lines.append(l)
    while k < g:
        for x in side_groups[k]: a.lines.append(x)
        k += 1

def groups_of(lines):
    out, cur = [], []
    for l in lines:
        cur.append(l)
        if l.startswith("buffer_") or l.startswith("global_"):
            out.append(cur); cur = []
    if cur: out.append(cur)
    return out

KRAW, VRAW, KCO = 176, 112, 72
def gen_kv_loads(a, KREG, vP9, vRUN):
    a(f"s_mul_i32 s52, s{sW}, 36\nv_min_u32 v120, 35, v{vLANE}\nv_add_u32 v120, s52, v120".replace("v120", "v2"))
    a(f"s_mov_b32 s53, {(2**32 + 8)//9}\nv_mul_hi_u32 v{vRUN}, v2, s53")
    a(f"v_mul_u32_u24 v{vP9}, 9, v{vRUN}\nv_sub_u32 v{vP9}, v2, v{vP9}")
    a(f"s_lshl_b32 s52, s{sI}, 6\nv_lshlrev_b32 v3, 2, v{vRUN}\nv_add_u32 v3, s52, v3\nv_mul_u32_u24 v3, 1152, v3")
    a(f"s_mul_i32 s52, s{sJ}, 144\nv_lshl_add_u32 v4, v{vP9}, 4, v3\nv_add_u32 v4, s52, v4")
    for r in range(7):
        if r < 3:
            a(f"v_add_u32 v3, {(r-3)*1152 & 0xffffffff}, v4")
            a(f"buffer_load_dwordx4 v[{KRAW+4*r}:{KRAW+4*r+3}], v3, s[{sK}:{sK+3}], 0 offen{NT['kv']}")
        else:
            off = f" offset:{1152*(r-3)}" if r > 3 else ""
            a(f"buffer_load_dwordx4 v[{KRAW+4*r}:{KRAW+4*r+3}], v4, s[{sK}:{sK+3}], 0 offen{off}{NT['kv']}")
    for r in range(4):
        off = f" offset:{1152*r}" if r else ""
        a(f"buffer_load_dwordx4 v[{VRAW+4*r}:{VRAW+4*r+3}], v4, s[{sV}:{sV+3}], 0 offen{off}{NT['kv']}")
    a(f"s_mul_i32 s52, s{sJ}, 576\nv_lshlrev_b32 v3, 6, v{vP9}")
    for r in range(4):
        off = f" offset:{16*r}" if r else ""
        a(f"buffer_load_dwordx4 v[{KCO+4*r}:{KCO+4*r+3}], v3, s[{sSK}:{sSK+3}], s52 offen{off}")

def gen_kv_compute(a, KREG, vP9, vRUN):
    KU, SU, AC, VU = 32, 88, 120, 152
    a(f"s_mov_b32 s52, 0xffff0000")
    for r in range(7):
        for e in range(4):
            a(f"v_lshlrev_b32 v{KU+8*r+2*e}, 16, v{KREG+4*r+e}\nv_and_b32 v{KU+8*r+2*e+1}, s52, v{KREG+4*r+e}")
    for c in range(8):
        for jj in range(2):
            src = KREG + 44 + 2*c + jj
            a(f"v_lshlrev_b32 v{SU+8*(2*jj)+c}, 16, v{src}\nv_and_b32 v{SU+8*(2*jj+1)+c}, s52, v{src}")
    a(f"v_lshlrev_b32 v62, 2, v{vRUN}\nv_sub_u32 v62, 63, v62\nv_mul_u32_u24 v62, 160, v62")
    a(f"v_lshl_add_u32 v62, v{vP9}, 4, v62\nv_add_u32 v62, {LDS_KV - 3*160}, v62")
    for tok in range(4):
        for jj in (3, 2, 1, 0):
            for pr in range(4):
                d = f"v[{AC+8*tok+2*pr}:{AC+8*tok+2*pr+1}]"
                kk = f"v[{KU+8*(tok+3-jj)+2*pr}:{KU+8*(tok+3-jj)+2*pr+1}]"
                ss = f"v[{SU+8*jj+2*pr}:{SU+8*jj+2*pr+1}]"
                a(f"v_pk_mul_f32 {d}, {kk}, {ss}" if jj == 3 else f"v_pk_fma_f32 {d}, {kk}, {ss}, {d}")
        for e in range(4):
            a(f"v_lshlrev_b32 v{VU+2*e}, 16, v{KREG+28+4*tok+e}\nv_and_b32 v{VU+2*e+1}, s52, v{KREG+28+4*tok+e}")
        for pr in range(4):
            d = f"v[{AC+8*tok+2*pr}:{AC+8*tok+2*pr+1}]"
            a(f"v_pk_mul_f32 {d}, {d}, v[{VU+2*pr}:{VU+2*pr+1}]")
        for e in range(4):
            a(f"v_cvt_pk_bf16_f32 v{VU+8+e}, v{AC+8*tok+2*e}, v{AC+8*tok+2*e+1}")
        a(f"ds_write_b128 v62, v[{VU+8}:{VU+11}] offset:{(3-tok)*160}")

def gen_kv_store(a):
    a(f"v_and_b32 v2, 15, v{vLANE}\nv_lshrrev_b32 v3, 4, v{vLANE}\nv_lshrrev_b32 v4, 2, v2")
    a(f"v_lshl_add_u32 v4, v3, 3, v4\nv_mul_u32_u24 v4, 160, v4\nv_and_b32 v5, 3, v2\nv_lshl_add_u32 v4, v5, 3, v4\nv_add_u32 v4, {LDS_KV}, v4")
    a(f"s_mul_i32 s{sT0}, s{sJ}, 72\nv_add_u32 v5, s{sT0}, v2\nv_lshlrev_b32 v5, 12, v5\nv_lshl_add_u32 v5, v3, 4, v5")
    a(f"s_lshl_b32 s{sT0}, s{sI}, 7\ns_sub_u32 s{sT0}, {WS_KVR + 1984*2}, s{sT0}\nv_add_u32 v5, s{sT0}, v5")
    a("v_mov_b32 v7, 0x7ff00000")
    for u in range(3):
        a(f"s_add_u32 s{sT0}, s{sW}, {4*u}")
        a(f"s_lshr_b32 s{sT1}, s{sT0}, 1\ns_and_b32 s{sT2}, s{sT0}, 1")
        a(f"s_mul_i32 s{sT3}, s{sT2}, {32*160}\ns_lshl_b32 s{sEX}, s{sT1}, 5\ns_add_u32 s{sT3}, s{sT3}, s{sEX}")
        a(f"v_add_u32 v6, s{sT3}, v4")
        r = 96 + 4*u
        a(f"ds_read_b64_tr_b16 v[{r}:{r+1}], v6\nds_read_b64_tr_b16 v[{r+2}:{r+3}], v6 offset:{4*160}")
        a(f"s_lshl_b32 s{sT3}, s{sT1}, 16\ns_lshl_b32 s{sT2}, s{sT2}, 6\ns_add_u32 s{sT3}, s{sT3}, s{sT2}")
        a(f"v_add_u32 v{108+u}, s{sT3}, v5")
        a(f"s_cmp_eq_u32 s{sT1}, 4\ns_cselect_b32 s{sT2}, 8, 16\ns_cmp_gt_u32 s{sT1}, 4\ns_cselect_b32 s{sT2}, 0, s{sT2}")
        a(f"v_cmp_gt_u32 vcc, s{sT2}, v2\ns_nop 1\nv_cndmask_b32 v{108+u}, v7, v{108+u}, vcc")
    a("s_waitcnt lgkmcnt(0)")
    for u in range(3):
        a(f"buffer_store_dwordx4 v[{96+4*u}:{99+4*u}], v{108+u}, s[{sSRDW}:{sSRDW+3}], 0 offen sc1")

def gen_bulk_pf(a, nshare, opts):
    nw = nshare*4
    per = -(-4608 // nw)
    n_ins = -(-per // 64)
    assert n_ins == 1 or True
    for it in range(n_ins):
        cnt = min(64, per - 64*it)
        a(f"s_mul_i32 s54, s{sOM}, {per}\ns_add_u32 s54, s54, {64*it}\nv_min_u32 v123, {cnt-1}, v{vLANE}\nv_add_u32 v123, s54, v123\nv_min_u32 v123, 4607, v123")
        a(f"s_mov_b32 s55, {(2**32 + 575)//576}\nv_mul_hi_u32 v124, v123, s55\nv_mul_u32_u24 v125, 576, v124\nv_sub_u32 v125, v123, v125\nv_mul_u32_u24 v125, 9216, v125\nv_lshl_add_u32 v125, v124, 7, v125")
        a(f"s_mul_i32 s55, s{sJ}, 1152\ns_add_u32 s55, s55, 128")
        a(f"buffer_load_dword v{vDUM}, v125, s[{sSRDA}:{sSRDA+3}], s55 offen{NT['pf']}")
        a(f"buffer_load_dword v{vDUM+1}, v125, s[{sSRDB}:{sSRDB+3}], s55 offen{NT['pf']}")


def gen_wd_pf(a, nshare, c0, c1):
    nw = nshare*4
    nc = c1 - c0
    tot = 576*nc
    per = -(-tot // nw)
    assert per <= 64
    a(f"s_mul_i32 s54, s{sOM}, {per}\nv_min_u32 v123, {per-1}, v1\nv_add_u32 v123, s54, v123\nv_min_u32 v123, {tot-1}, v123")
    a(f"s_mov_b32 s55, {(2**32 + 575)//576}\nv_mul_hi_u32 v124, v123, s55\nv_mul_u32_u24 v125, 576, v124\nv_sub_u32 v125, v123, v125\nv_mul_u32_u24 v125, 1152, v125\nv_lshl_add_u32 v125, v124, 7, v125")
    a(f"s_mul_i32 s55, s{sJ}, {576*1152}\ns_add_u32 s55, s55, {128*c0}")
    a(f"buffer_load_dword v{vDUM+2}, v125, s[{sWDS}:{sWDS+3}], s55 offen")

def gen_pf_setup(a, nshare):
    nw = nshare*4
    NL = -(-576 // nw)
    a(f"s_mul_i32 s{sT0}, s{sOM}, {NL}\nv_min_u32 v2, {NL-1}, v{vLANE}\nv_add_u32 v2, s{sT0}, v2\nv_min_u32 v2, 575, v2")
    a(f"v_mul_u32_u24 v{vPF}, 9216, v2")

def gen_pf_unit(a, nshare):
    nparts = nshare // 8
    NL = -(-576 // (nparts*4))
    assert NL <= 64
    a(f"s_lshr_b32 s{sT0}, s{sOM}, 2\ns_and_b32 s{sPFU}, s{sT0}, 7\ns_lshr_b32 s{sT0}, s{sT0}, 3")
    a(f"s_lshl_b32 s{sT0}, s{sT0}, 2\ns_add_u32 s{sT0}, s{sT0}, s{sW}\ns_mul_i32 s{sT0}, s{sT0}, {NL}")
    a(f"v_min_u32 v2, {NL-1}, v{vLANE}\nv_add_u32 v2, s{sT0}, v2\nv_min_u32 v2, 575, v2")
    a(f"s_cmp_lt_u32 s{sPFU}, 6\ns_cbranch_scc0 L_pfwd")
    a(f"v_mul_u32_u24 v{vPF}, 9216, v2\nv_mov_b32 v{vPF2}, v{vPF}")
    a(f"s_mov_b32 s{sPFA}, s{sSRDA}\ns_mov_b32 s{sPFA+1}, s{sSRDA+1}\ns_mov_b32 s{sPFB}, s{sSRDB}\ns_mov_b32 s{sPFB+1}, s{sSRDB+1}")
    a(f"s_mul_i32 s{sPFO}, s{sJ}, 1152\ns_add_u32 s{sT0}, s{sPFU}, 3\ns_lshl_b32 s{sT0}, s{sT0}, 7\ns_add_u32 s{sPFO}, s{sPFO}, s{sT0}")
    a("s_branch L_pfok")
    a.label("L_pfwd")
    a(f"v_mul_u32_u24 v{vPF}, 1152, v2\nv_add_u32 v{vPF2}, 128, v{vPF}")
    a(f"s_mov_b32 s{sPFA}, s{sWD}\ns_mov_b32 s{sPFA+1}, s{sWD+1}\ns_mov_b32 s{sPFB}, s{sWD}\ns_mov_b32 s{sPFB+1}, s{sWD+1}")
    a(f"s_mul_i32 s{sPFO}, s{sJ}, {576*1152}\ns_sub_u32 s{sT0}, s{sPFU}, 6\ns_lshl_b32 s{sT0}, s{sT0}, 8\ns_add_u32 s{sPFO}, s{sPFO}, s{sT0}")
    a.label("L_pfok")
    a(f"s_mov_b32 s{sPFA+2}, {576*4608*2}\ns_mov_b32 s{sPFA+3}, 0x00020000\ns_mov_b32 s{sPFB+2}, {576*4608*2}\ns_mov_b32 s{sPFB+3}, 0x00020000")

CV_CP = 4160
CV_WAVE = 4*CV_CP
sC, sCB, sCT, sCU, sXR = 70, 71, 76, 77, 78
HL = 64
vDC = 94
def poll(a, name, voff_reg, srd, soff, target, scnt, cmp="ge", sleep=8):
    a(f"s_mov_b32 s{scnt}, 0")
    a.label(f"L_poll_{name}")
    a(f"buffer_load_dword v3, v{voff_reg}, s[{srd}:{srd+3}], {soff} offen sc1")
    a("s_waitcnt vmcnt(0)")
    a(f"v_cmp_{'le' if cmp == 'ge' else 'eq'}_u32 vcc, {target}, v3")
    a(f"s_add_u32 s{scnt}, s{scnt}, 1")
    a(f"s_cmp_eq_u64 vcc, exec\ns_cbranch_scc1 L_pollok_{name}")
    a(f"s_cmp_lt_u32 s{scnt}, 20000\ns_cbranch_scc0 L_pollok_{name}")
    a(f"s_sleep {sleep}\ns_branch L_poll_{name}")
    a.label(f"L_pollok_{name}")

def gen_conv_issue(a, stamps):
    a(f"v_lshlrev_b32 v11, 2, v{vLANE}")
    a(f"s_cmp_ge_u32 s{sC}, 576\ns_cbranch_scc1 L_conv_skip1")
    a(f"s_mul_i32 s{sCB}, s{sW}, {CV_WAVE}\ns_add_u32 s{sCB}, s{sCB}, {HB}")
    a(f"s_mul_i32 s{sXR}, s{sW}, 4608\ns_add_u32 s{sXR}, s{sXR}, {LDS_XR}")
    a(f"s_lshl_b32 s{sCT}, s{sC}, 12")
    a(f"s_add_u32 s88, s{sHK}, s{sCT}\ns_addc_u32 s89, s{sHK+1}, 0\ns_mov_b32 s90, 4096\ns_mov_b32 s91, 0x00020000")
    for o in range(5):
        a(f"v_add_u32 v5, {(1024*o - 16) & 0xffffffff}, v{vPST}")
        a(f"buffer_load_dwordx4 v[{HL+6*o}:{HL+6*o+3}], v5, s[88:91], 0 offen{NT['h']}")
        a(f"v_add_u32 v6, {1024*o}, v{vPST}")
        a(f"buffer_load_dwordx2 v[{HL+6*o+4}:{HL+6*o+5}], v6, s[88:91], 0 offen{NT['h']}")
    a(f"s_lshl_b32 s{sCT}, s{sC}, 1\nv_mov_b32 v4, s{sCT}")
    a(f"buffer_load_ushort v{vDC}, v4, s[{sD}:{sD+3}], 0 offen")
    a.label("L_conv_skip1")

def gen_conv_issue2(a):
    a(f"s_cmp_ge_u32 s{sC}, 576\ns_cbranch_scc1 L_conv_skip2")
    a(f"s_lshl_b32 s{sCT}, s{sC}, 12\ns_add_u32 s{sCT}, s{sCT}, {WS_KVR}")
    a(f"s_mov_b32 m0, s{sXR}\ns_nop 0")
    for k in range(4):
        off = f" offset:{1024*k}" if k else ""
        a(f"buffer_load_dwordx4 v{vPST}, s[{sSRDW}:{sSRDW+3}], s{sCT} offen{off} sc1 lds")
    a.label("L_conv_skip2")

def publish_partial(a):
    a("s_waitcnt vmcnt(0)")
    a(f"v_mov_b32 v4, 0\nv_mov_b32 v5, 1")
    a(f"v_cmp_eq_u32 vcc, 0, v{vLANE}\ns_and_saveexec_b64 s[{sEX}:{sEX+1}], vcc")
    a(f"buffer_store_dword v5, v4, s[{sSRDW}:{sSRDW+3}], s{sPFLG} offen sc1")
    a(f"s_mov_b64 exec, s[{sEX}:{sEX+1}]")

def gen_conv_main(a, stamps):
    a(f"s_cmp_ge_u32 s{sC}, 576\ns_cbranch_scc1 L_noconv")
    for r in range(4): a(f"v_mov_b32 v{32+r}, 0")
    a(f"v_add_u32 v5, s{sXR}, v{vPST}")
    a(f"v_cmp_gt_u32 vcc, 32, v{vLANE}\ns_and_saveexec_b64 s[{sEX}:{sEX+1}], vcc")
    a(f"ds_write_b128 v5, v[32:35] offset:4096")
    a(f"s_mov_b64 exec, s[{sEX}:{sEX+1}]")
    a(f"v_mul_u32_u24 v6, {CV_CP}, v{vLANE}\nv_add_u32 v6, s{sCB}, v6")
    a(f"v_cmp_gt_u32 vcc, 4, v{vLANE}\ns_and_saveexec_b64 s[{sEX}:{sEX+1}], vcc")
    a(f"ds_write_b128 v6, v[32:35]")
    a(f"s_mov_b64 exec, s[{sEX}:{sEX+1}]")
    a(f"v_add_u32 v7, s{sCB}, v{vPST}")
    stamp(a, 17, stamps)
    for o in range(5):
        P = HL + 6*o
        t = 96 + 16*(o % 2)
        if o == 4:
            a(f"v_cmp_eq_u32 vcc, 0, v{vLANE}\ns_and_saveexec_b64 s[{sEX}:{sEX+1}], vcc")
        for n in range(4):
            a(f"v_mov_b32 v{t+n}, v{P+n}")
            a(f"v_alignbit_b32 v{t+4+n}, v{P+n+1}, v{P+n}, 16")
            a(f"v_mov_b32 v{t+8+n}, v{P+n+1}")
            a(f"v_alignbit_b32 v{t+12+n}, v{P+n+2}, v{P+n+1}, 16")
        for s_ in range(4):
            a(f"ds_write_b128 v7, v[{t+4*s_}:{t+4*s_+3}] offset:{s_*CV_CP + 16 + 1024*o}")
        if o == 4: a(f"s_mov_b64 exec, s[{sEX}:{sEX+1}]")
    a(f"v_and_b32 v14, 15, v{vLANE}\nv_lshrrev_b32 v15, 4, v{vLANE}")
    a(f"v_lshlrev_b32 v16, 5, v14\nv_lshlrev_b32 v17, 4, v15\nv_sub_u32 v16, v17, v16")
    a(f"s_add_u32 s{sCT}, s{sXR}, {2*(2032 - 32*56)}\nv_add_u32 v16, s{sCT}, v16")
    a(f"v_add_u32 v2, 1, v14\nv_and_b32 v3, 3, v2\nv_mul_u32_u24 v3, {CV_CP}, v3\nv_lshrrev_b32 v2, 2, v2")
    a(f"v_lshl_add_u32 v3, v2, 3, v3\nv_lshl_add_u32 v3, v15, 4, v3\nv_add_u32 v13, s{sCB}, v3")
    a("s_waitcnt lgkmcnt(0) vmcnt(2)")
    stamp(a, 19, stamps)
    lk = Lgkm(a)
    NB = 6; FB = 96; ACCB = 32
    def rdF(m):
        r = FB + 4*(m % NB)
        lk.issue(("F", m), f"ds_read_b64 v[{r}:{r+1}], v13 offset:{64*m}")
        lk.issue(("F", m), f"ds_read_b64 v[{r+2}:{r+3}], v13 offset:{64*m+8}")
    def rdG(i):
        lk.issue(("G", i), f"ds_read_b128 {A(4*(i+7),4)}, v16 offset:{(56-i)*64}")
    rdF(0)
    for T in range(8): rdG(8*T)
    rdF(1)
    for m in range(64):
        T0 = max(0, -(-(m-7)//8))
        if m == 9:
            stamp(a, 25, stamps); publish_partial(a); stamp(a, 26, stamps)
        if m == 32:
            gen_pflag_addr(a, 12, f"s{sW}")
            a(f"buffer_load_dword v11, v12, s[{sSRDW}:{sSRDW+3}], 0 offen sc1")
        if m == 48:
            stamp(a, 27, stamps)
            a("s_waitcnt vmcnt(0)")
            a(f"v_cmp_eq_u32 vcc, 1, v11\ns_nop 0\ns_cmp_eq_u64 vcc, exec\ns_cbranch_scc1 L_pf_ok")
            poll(a, "pA", 12, sSRDW, "0", 1, sT0, cmp="eq", sleep=4)
            a.label("L_pf_ok")
            stamp(a, 18, stamps)
            gen_final_addr(a)
            gen_final_loads(a)
        lk.wait_for(("F", m))
        pend = []
        if m + 1 < 8: pend += [("G", 8*T - (m+1)) for T in range(8)]
        if m + 2 < 64: pend += [("F", m+2)]
        for T in range(T0, 8):
            if m < 8: lk.wait_for(("G", 8*T - m))
            c_ = "0" if m == 0 else f"v[{ACCB+4*T}:{ACCB+4*T+3}]"
            a(f"v_mfma_f32_16x16x32_bf16 v[{ACCB+4*T}:{ACCB+4*T+3}], v[{FB+4*(m%NB)}:{FB+4*(m%NB)+3}], {A(4*(8*T-m+7),4)}, {c_}")
            if pend:
                k, x = pend.pop(0)
                (rdG if k == "G" else rdF)(x)
        for k, x in pend: (rdG if k == "G" else rdF)(x)
    stamp(a, 21, stamps)
    a(f"v_lshlrev_b32 v5, 5, v14\nv_lshlrev_b32 v17, 3, v15\nv_add_u32 v17, v5, v17")
    a(f"s_add_u32 s{sCT}, s{sXR}, {2*2044 - 7*512}\nv_sub_u32 v2, s{sCT}, v17")
    for T in range(8): a(f"ds_read_b64 v[{96+2*T}:{97+2*T}], v2 offset:{(7-T)*512}")
    a(f"v_lshlrev_b32 v{vDC}, 16, v{vDC}")
    a(f"s_lshl_b32 s{sCT}, s{sC}, 12\ns_add_u32 s{sCT}, s{sCT}, {WS_ZT}\ns_mov_b32 s{sCU}, 0xffff0000")
    a("s_waitcnt lgkmcnt(0)")
    for T in range(8):
        kv = 96+2*T; ac = ACCB+4*T; t = 112 + 6*(T % 2)
        a(f"v_and_b32 v{t}, s{sCU}, v{kv+1}\nv_lshlrev_b32 v{t+1}, 16, v{kv+1}\nv_and_b32 v{t+2}, s{sCU}, v{kv}\nv_lshlrev_b32 v{t+3}, 16, v{kv}")
        for r in range(4): a(f"v_fmac_f32 v{ac+r}, v{t+r}, v{vDC}")
        a(f"v_cvt_pk_bf16_f32 v{t+4}, v{ac}, v{ac+1}\nv_cvt_pk_bf16_f32 v{t+5}, v{ac+2}, v{ac+3}")
        off = f" offset:{512*T}" if T else ""
        a(f"buffer_store_dwordx2 v[{t+4}:{t+5}], v17, s[{sSRDW}:{sSRDW+3}], s{sCT} offen{off} sc1")

def gen_pflag_addr(a, vdst, swave):
    a(f"s_lshl_b32 s{sT0}, s{sI}, 7\ns_lshl_b32 s{sT1}, {swave}, 2\ns_add_u32 s{sT0}, s{sT0}, s{sT1}\ns_add_u32 s{sT0}, s{sT0}, {WS_FLAG}")
    a(f"v_and_b32 v{vdst}, 7, v{vLANE}\nv_lshlrev_b32 v{vdst}, 4, v{vdst}\nv_add_u32 v{vdst}, s{sT0}, v{vdst}")

sFC, sFW, sST = 57, 55, 54
FP, FS, FX, FZ, FST = 128, 192, 208, 216, 232
def gen_final_addr(a):
    a(f"v_and_b32 v3, 15, v{vLANE}\nv_lshrrev_b32 v4, 4, v{vLANE}")
    a(f"s_lshl_b32 s{sT2}, s{sI}, 6\nv_add_u32 v5, s{sT2}, v3")
    a(f"s_lshl_b32 s{sT2}, s{sFC}, 6\ns_lshl_b32 s{sT1}, s{sFW}, 4\ns_add_u32 s{sT2}, s{sT2}, s{sT1}")
    a(f"v_lshlrev_b32 v6, 2, v4\nv_add_u32 v6, s{sT2}, v6")
    a(f"v_mul_u32_u24 v7, 1152, v5\nv_lshl_add_u32 v7, v6, 1, v7")
    a(f"v_lshlrev_b32 v8, 12, v6\nv_lshl_add_u32 v8, v5, 1, v8\nv_add_u32 v8, {WS_ZT}, v8")
    a(f"v_lshlrev_b32 v9, 3, v5\nv_add_u32 v9, {WS_STATS}, v9")

def gen_final_loads(a):
    isz = 2048
    a(f"s_mul_i32 s{sT2}, s{sI}, 9\ns_add_u32 s{sT2}, s{sT2}, s{sFC}\ns_lshl_b32 s{sT2}, s{sT2}, 2\ns_add_u32 s{sT2}, s{sT2}, s{sFW}\ns_mul_i32 s{sT2}, s{sT2}, {isz}\ns_add_u32 s{sT2}, s{sT2}, {WS_PART}")
    for j in range(8):
        for q in range(2):
            r = FP + (j*2 + q)*4
            off = f" offset:{1024*q}" if q else ""
            a(f"buffer_load_dwordx4 v[{r}:{r+3}], v{vPST}, s[{sSRDW}:{sSRDW+3}], s{sT2} offen{off} sc1")
        if j < 7: a(f"s_add_u32 s{sT2}, s{sT2}, {32*9*4*isz}")
    for aa in range(4):
        a(f"s_mov_b32 s{sT3}, {16*1152*aa}")
        a(f"buffer_load_dwordx2 v[{FX+2*aa}:{FX+2*aa+1}], v7, s[{sX}:{sX+3}], s{sT3} offen")
    for aa in range(4):
        off = f" offset:{128*aa}" if aa else ""
        a(f"buffer_load_dwordx2 v[{FST+2*aa}:{FST+2*aa+1}], v9, s[{sSRDW}:{sSRDW+3}], 0 offen{off} sc1")

FZ2 = 104
def gen_final_z(a, tag, stamps=False):
    a(f"s_mov_b32 s{sCU}, 0")
    a.label(f"L_zre_{tag}")
    for aa in range(4):
        for e in range(4):
            off = f" offset:{32*aa}" if aa else ""
            a(f"s_mov_b32 s{sT3}, {e*4096}")
            a(f"buffer_load_ushort v{FZ+4*aa+e}, v8, s[{sSRDW}:{sSRDW+3}], s{sT3} offen{off} sc1")
    a(f"s_cmp_lg_u32 s{sST}, 1\ns_cbranch_scc1 L_z1_{tag}")
    for aa in range(4):
        for e in range(4):
            off = f" offset:{32*aa}" if aa else ""
            a(f"s_mov_b32 s{sT3}, {e*4096}")
            a(f"buffer_load_ushort v{FZ2+4*aa+e}, v97, s[{sSRDW}:{sSRDW+3}], s{sT3} offen{off} sc1")
    a("s_waitcnt vmcnt(0)")
    a(f"v_max3_u32 v2, v{FZ2}, v{FZ2+1}, v{FZ2+2}")
    for k in range(3, 15, 2): a(f"v_max3_u32 v2, v2, v{FZ2+k}, v{FZ2+k+1}")
    a(f"v_max_u32 v3, v2, v{FZ2+15}")
    a(f"s_branch L_z2_{tag}")
    a.label(f"L_z1_{tag}")
    a("s_waitcnt vmcnt(0)\nv_mov_b32 v3, 0")
    a.label(f"L_z2_{tag}")
    a(f"v_max3_u32 v2, v{FZ}, v{FZ+1}, v{FZ+2}")
    for k in range(3, 15, 2): a(f"v_max3_u32 v2, v2, v{FZ+k}, v{FZ+k+1}")
    a(f"v_max3_u32 v2, v2, v{FZ+15}, v3")
    a(f"v_cmp_eq_u32 vcc, 0xffff, v2\ns_add_u32 s{sCU}, s{sCU}, 1\ns_nop 0\ns_cmp_eq_u64 vcc, 0\ns_cbranch_scc1 L_zok_{tag}")
    a(f"s_cmp_lt_u32 s{sCU}, 5000\ns_cbranch_scc0 L_zok_{tag}\ns_sleep 2\ns_branch L_zre_{tag}")
    a.label(f"L_zok_{tag}")
    stamp(a, 29, stamps)

def gen_final_sum(a):
    a(f"s_mov_b32 s{sT3}, 0xffff0000")
    T = 240
    for j in range(8):
        for D in range(8):
            src = FP + 8*j + D
            if j == 0:
                a(f"v_lshlrev_b32 v{FS+2*D}, 16, v{src}\nv_and_b32 v{FS+2*D+1}, s{sT3}, v{src}")
            else:
                tt = T + 2*(D % 2)
                a(f"v_lshlrev_b32 v{tt}, 16, v{src}\nv_and_b32 v{tt+1}, s{sT3}, v{src}")
                a(f"v_pk_add_f32 v[{FS+2*D}:{FS+2*D+1}], v[{FS+2*D}:{FS+2*D+1}], v[{tt}:{tt+1}]")

OUTFL = ['']
XN, XF, FF = 128, 144, 160
def _unp(a, dst, src, M):
    a(f"v_lshlrev_b32 v{dst}, 16, v{src}\nv_and_b32 v{dst+1}, s{M}, v{src}\nv_lshlrev_b32 v{dst+2}, 16, v{src+1}\nv_and_b32 v{dst+3}, s{M}, v{src+1}")
def _pk(a, dst, src):
    a(f"v_cvt_pk_bf16_f32 v{dst}, v{src}, v{src+1}\nv_cvt_pk_bf16_f32 v{dst+1}, v{src+2}, v{src+3}")

def gen_final_pre(a):
    T = 176; M = sT3
    a(f"s_mov_b32 s{sT3}, 0xffff0000")
    for aa in range(4): a(f"v_rcp_f32 v{T+aa}, v{FST+2*aa+1}")
    a("s_nop 0")
    for aa in range(4): a(f"v_mul_f32 v{T+4+aa}, v{T+aa}, v{T+aa}")
    for aa in range(4):
        P2 = T + 8 + 2*(aa % 2)
        _unp(a, XF+4*aa, FX+2*aa, M)
        for e in range(4): a(f"v_sub_f32 v{XN+4*aa+e}, v{XF+4*aa+e}, v{FST+2*aa}")
        _pk(a, P2, XN+4*aa); _unp(a, XN+4*aa, P2, M)
        for e in range(4): a(f"v_mul_f32 v{XN+4*aa+e}, v{XN+4*aa+e}, v{T+aa}")
        _pk(a, P2, XN+4*aa); _unp(a, XN+4*aa, P2, M)
        for e in range(4): a(f"v_mul_f32 v{FF+4*aa+e}, v{FS+4*aa+e}, v{T+4+aa}")
        _pk(a, P2, FF+4*aa); _unp(a, FF+4*aa, P2, M)

def gen_final_combine(a):
    U = 176; M = sT3
    a(f"s_mov_b32 s{sT3}, 0xffff0000")
    for aa in range(4):
        V4 = U + 8*(aa % 2)
        for e in range(4):
            a(f"v_lshlrev_b32 v{V4+e}, 16, v{FZ+4*aa+e}")
        for e in range(4): a(f"v_mul_f32 v{V4+e}, v{V4+e}, v{XN+4*aa+e}")
        _pk(a, V4+4, V4); _unp(a, V4, V4+4, M)
        for e in range(4): a(f"v_add_f32 v{V4+e}, v{V4+e}, v{XF+4*aa+e}")
        _pk(a, V4+4, V4); _unp(a, V4, V4+4, M)
        for e in range(4): a(f"v_add_f32 v{V4+e}, v{V4+e}, v{FF+4*aa+e}")
        _pk(a, V4+6, V4)
        a(f"s_mov_b32 s{sT2}, {16*1152*aa}")
        a(f"buffer_store_dwordx2 v[{V4+6}:{V4+7}], v7, s[{sOUT}:{sOUT+3}], s{sT2} offen" + OUTFL[0])

def gen_kernel(name, fp32_part=False, opts=None, stamps=False, mapping="32x1"):
    opts = opts or {}
    nodma = opts.get("no_dma")
    set_p1(opts.get("p1d", 3))
    a = Asm()
    a(f".globl {name}\n.p2align 8\n.type {name},@function\n{name}:")
    a("s_cmp_ge_u32 s2, 256\ns_cbranch_scc1 L_done")
    a("s_load_dwordx4 s[80:83], s[0:1], 0")
    a("s_load_dwordx4 s[88:91], s[0:1], 16")
    a("s_load_dwordx4 s[68:71], s[0:1], 32")
    a("s_load_dwordx4 s[4:7], s[0:1], 56")
    a("s_load_dwordx4 s[16:19], s[0:1], 72")
    a("s_load_dwordx4 s[44:47], s[0:1], 88")
    if stamps:
        a("s_memrealtime s[58:59]\ns_memtime s[50:51]")
    a(f"v_lshrrev_b32 v2, 6, v0\nv_and_b32 v{vLANE}, 63, v0")
    a(f"v_readfirstlane_b32 s{sW}, v2")
    if mapping == "32x1":
        a(f"s_and_b32 s{sJ}, s2, 7\ns_lshr_b32 s{sI}, s2, 3"); nshare = 32
        a(f"s_lshl_b32 s{sOM}, s{sI}, 2")
    elif mapping == "16x2":
        a(f"s_and_b32 s{sT0}, s2, 3\ns_lshl_b32 s{sT0}, s{sT0}, 1\ns_bfe_u32 s{sT1}, s2, 0x10003\ns_add_u32 s{sJ}, s{sT0}, s{sT1}")
        a(f"s_bfe_u32 s{sT0}, s2, 0x10002\ns_lshl_b32 s{sT0}, s{sT0}, 4\ns_lshr_b32 s{sT1}, s2, 4\ns_add_u32 s{sI}, s{sT0}, s{sT1}"); nshare = 16
        a(f"s_lshl_b32 s{sOM}, s{sT1}, 2")
    elif mapping == "8x4":
        a(f"s_and_b32 s{sT0}, s2, 1\ns_lshl_b32 s{sT0}, s{sT0}, 2\ns_bfe_u32 s{sT1}, s2, 0x20003\ns_add_u32 s{sJ}, s{sT0}, s{sT1}")
        a(f"s_bfe_u32 s{sT0}, s2, 0x20001\ns_lshl_b32 s{sT0}, s{sT0}, 3\ns_lshr_b32 s{sT1}, s2, 5\ns_add_u32 s{sI}, s{sT0}, s{sT1}"); nshare = 8
        a(f"s_lshl_b32 s{sOM}, s{sT1}, 2")
    a(f"v_lshlrev_b32 v{vPST}, 4, v{vLANE}")
    if not opts.get("no_codepf"):
        a("s_getpc_b64 s[52:53]")
        a.label("L_pc")
        a(f"s_sub_u32 s52, s52, L_pc-{name}\ns_subb_u32 s53, s53, 0")
        a(f"s_lshr_b32 s54, s2, 3\ns_and_b32 s54, s54, 3\ns_cmp_lg_u32 s54, s{sW}\ns_cbranch_scc1 L_nocpf")
        a(f"s_lshl_b32 s54, s{sW}, 13\nv_lshlrev_b32 v2, 7, v{vLANE}\nv_add_u32 v2, s54, v2\nv_min_u32 v2, L_done-{name}, v2")
        a(f"global_load_dword v{vDUM+3}, v2, s[52:53]")
        a.label("L_nocpf")
    a(f"s_add_u32 s{sOM}, s{sOM}, s{sW}")
    a(f"s_and_b32 s{sPAR}, s{sJ}, {0 if mapping == '32x1' else 1}")
    gen_q_addr(a, 0)
    a(f"s_mov_b32 s99, s{sT0}")
    a("s_waitcnt lgkmcnt(0)")
    a("s_mov_b32 s84, s82\ns_mov_b32 s85, s83")
    a(f"s_mov_b32 s{sQ+2}, {2048*576*2}\ns_mov_b32 s{sQ+3}, 0x00020000\ns_mov_b32 s{sT0}, s99")
    QREG = 176
    q0l = Asm(); gen_q_loads(q0l, QREG, 0, addr=False)
    early0 = len(a.lines)
    a.lines += tag_vm(q0l.lines, "q0")
    a("s_mov_b32 s92, s90\ns_mov_b32 s93, s91")
    a("s_mov_b32 s96, s70\ns_mov_b32 s97, s71")
    a("s_mov_b32 s8, s6\ns_mov_b32 s9, s7")
    a("s_mov_b32 s64, s18\ns_mov_b32 s65, s19")
    a("s_mov_b32 s12, s46\ns_mov_b32 s13, s47")
    a("s_mov_b32 s72, s80\ns_mov_b32 s73, s81")
    a(f"s_mov_b32 s18, {576*4608*2}\ns_mov_b32 s19, 0x00020000")
    for srd, n in ((sSRDA, 576*4608*2), (sSRDB, 576*4608*2), (sSRDW, WS_SIZE), (sDBG, 256), (sK, 2048*576*2), (sV, 2048*576*2), (sSK, 576*4*2), (sD, 576*2), (sOUT, 2048*576*2), (sX, 2048*576*2)):
        a(f"s_mov_b32 s{srd+2}, {n}\ns_mov_b32 s{srd+3}, 0x00020000")
    if stamps:
        a("v_mov_b32 v249, 0\nv_writelane_b32 v249, s50, 0")
    stamp(a, 1, stamps)
    p0 = early0
    QREG, KREG, vP9, vRUN = 176, 72, 250, 251
    def blk(fn, tag=None):
        t = Asm(); fn(t)
        return tag_vm(t.lines, tag) if tag else t.lines
    def B_pf0(t):
        gen_pf_setup(t, nshare)
        t(f"s_mul_i32 s{sPFO}, s{sJ}, 1152")
        t(f"buffer_load_dword v{vDUM}, v{vPF}, s[{sSRDA}:{sSRDA+3}], s{sPFO} offen")
        t(f"buffer_load_dword v{vDUM+1}, v{vPF}, s[{sSRDB}:{sSRDB+3}], s{sPFO} offen")
        t(f"s_add_u32 s{sPFO}, s{sPFO}, 128")
    def B_pf12(t):
        for r in range(2):
            t(f"buffer_load_dword v{vDUM}, v{vPF}, s[{sSRDA}:{sSRDA+3}], s{sPFO} offen")
            t(f"buffer_load_dword v{vDUM+1}, v{vPF}, s[{sSRDB}:{sSRDB+3}], s{sPFO} offen")
            t(f"s_add_u32 s{sPFO}, s{sPFO}, 128")
    def B_clr(t):
        t(f"v_mov_b32 v2, s{sPFLG}\nv_mov_b32 v3, 0x7ff00000\nv_cmp_eq_u32 vcc, 0, v{vLANE}\nv_mov_b32 v4, 0\ns_nop 0\nv_cndmask_b32 v2, v3, v2, vcc")
        t(f"buffer_store_dword v4, v2, s[{sSRDW}:{sSRDW+3}], 0 offen sc1")
        t(f"s_lshl_b32 s{sT2}, s{sC}, 12\ns_add_u32 s{sT2}, s{sT2}, {WS_ZT}\ns_cmp_lt_u32 s{sC}, 576\ns_cselect_b32 s{sT2}, s{sT2}, 0x7ff00000")
        for r in range(4): t(f"v_mov_b32 v{116+r}, -1")
        for k in range(4):
            off = f" offset:{1024*k}" if k else ""
            t(f"buffer_store_dwordx4 v[116:119], v{vPST}, s[{sSRDW}:{sSRDW+3}], s{sT2} offen{off} sc1")
    def B_setup(t):
        t(f"v_lshrrev_b32 v2, 3, v{vLANE}\nv_and_b32 v3, 7, v{vLANE}\nv_lshrrev_b32 v4, 1, v3\nv_and_b32 v5, 1, v3\nv_lshlrev_b32 v5, 4, v5")
        t(f"v_bfe_u32 v6, v{vLANE}, 4, 1\nv_lshlrev_b32 v7, 1, v6")
        t(f"s_mul_i32 s{sT0}, s{sW}, 24\nv_add_u32 v23, s{sT0}, v2\ns_movk_i32 s{sT1}, 9216\nv_mul_lo_u32 v21, v23, s{sT1}")
        for k in range(3):
            t(f"s_add_u32 s{sT1}, s{sW}, {k}\ns_and_b32 s{sT1}, s{sT1}, 1\ns_lshl_b32 s{sT1}, s{sT1}, 1")
            t(f"v_or_b32 v22, s{sT1}, v6\nv_xor_b32 v22, v4, v22\nv_lshlrev_b32 v22, 5, v22\nv_add3_u32 v22, v21, v22, v5")
            t(f"v_add_u32 v{VDG[k]}, {8*k*9216 - 1024*k}, v22\nv_mov_b32 v{VDU[k]}, v{VDG[k]}")
        t(f"s_mul_i32 s{sM0}, s{sW}, 3072\ns_add_u32 s{sM0+1}, s{sM0}, 12288")
        t(f"s_mul_i32 s{sT0}, s{sW}, 72\nv_add_u32 v23, s{sT0}, v2\ns_movk_i32 s{sT1}, 1152\nv_mul_lo_u32 v21, v23, s{sT1}")
        t(f"v_lshrrev_b32 v22, 1, v3\nv_bfe_u32 v23, v{vLANE}, 4, 2\nv_xor_b32 v22, v22, v23\nv_lshlrev_b32 v22, 5, v22\nv_and_b32 v23, 1, v3\nv_lshlrev_b32 v23, 4, v23\nv_add3_u32 v22, v21, v22, v23")
        for k in range(4): t(f"v_add_u32 v{vD2+k}, {8*k*1152 - 1024*k}, v22")
        t(f"v_and_b32 v2, 15, v{vLANE}\nv_bfe_u32 v3, v{vLANE}, 4, 1\nv_lshrrev_b32 v4, 5, v{vLANE}\nv_lshrrev_b32 v5, 2, v2\nv_bfe_u32 v6, v2, 3, 1")
        t(f"v_lshrrev_b32 v7, 4, v{vLANE}\nv_lshl_add_u32 v7, v7, 3, v5\nv_lshlrev_b32 v7, 7, v7\nv_lshl_add_u32 v21, v3, 1, v6\nv_xor_b32 v21, s{sW}, v21\nv_lshlrev_b32 v21, 5, v21")
        t(f"v_and_b32 v22, 3, v2\nv_lshlrev_b32 v22, 3, v22\nv_add3_u32 v{vRA1}, v7, v21, v22")
        t(f"v_add_u32 v{vRA1b}, 65536, v{vRA1}\nv_add_u32 v{vRA1c}, 131072, v{vRA1}")
        t(f"v_lshrrev_b32 v7, 4, v{vLANE}\nv_lshl_add_u32 v7, v7, 2, v5")
        t(f"v_bfe_u32 v21, v7, 1, 2\nv_xor_b32 v21, s{sW}, v21\nv_lshlrev_b32 v21, 5, v21\nv_lshlrev_b32 v7, 7, v7")
        t(f"v_add3_u32 v{vRA2}, v7, v21, v22\nv_add_u32 v{vRA2b}, 32768, v{vRA2}")
        t(f"s_mov_b32 s{sHIDX}, 0\ns_mov_b32 s{sB2}, 0")
        t(f"s_lshl_b32 s{sT0}, s{sJ}, 5\ns_add_u32 s{sT0}, s{sT0}, s{sI}\ns_mul_i32 s{sT0}, s{sT0}, {9*4*2048}\ns_mul_i32 s{sT1}, s{sW}, 2048\ns_add_u32 s{sT0}, s{sT0}, s{sT1}\ns_add_u32 s{sPOFF}, s{sT0}, {WS_PART}")
        t(f"s_mul_i32 s{sSOFF}, s{sJ}, {576*2}\ns_mov_b32 s{sINC}, {96*9216}")
        t(f"s_mov_b32 s{sINCW}, {(-5*96*9216 + (0 if opts.get('same_cols') else 128)) & 0xffffffff}")
        t(f"s_lshl_b32 s{sT0}, s{sI}, 7\ns_lshl_b32 s{sT1}, s{sJ}, 4\ns_add_u32 s{sT1}, s{sT1}, s{sT0}\ns_lshl_b32 s{sT0}, s{sW}, 2\ns_add_u32 s{sT1}, s{sT1}, s{sT0}\ns_add_u32 s{sPFLG}, s{sT1}, {WS_FLAG}")
        t(f"s_lshl_b32 s{sC}, s{sW}, 8\ns_add_u32 s{sC}, s{sC}, s2")
        gen_ln_setup(t)
    def B_dma012(t):
        for st in range(3):
            if st: t(f"s_add_u32 s{sSOFF}, s{sSOFF}, s{sINC}")
            tt = Asm(); dma1_group(tt, st)
            t.lines += tag_vm(tt.lines, "pair0") if st < 2 else tt.lines
    def B_frags(t):
        t(f"v_add_u32 v{vHR}, {HB}, v{vPST}\nv_add_u32 v2, {65536}, v{vHR}")
        for f in range(72):
            if f < 64: t(f"ds_read_b128 {xn_frag(f)}, v{vHR} offset:{f*1024}")
            else: t(f"ds_read_b128 {xn_frag(f)}, v2 offset:{(f-64)*1024}")
    a.lines += blk(B_pf0)
    a.lines += blk(B_setup)
    stamp(a, 2, stamps)
    if mapping != "32x1": a("s_waitcnt vmcnt(@q0)")
    a.lines += blk(lambda t: gen_q_loads(t, QREG, 1), "q1")
    a("s_waitcnt vmcnt(@q0)")
    stamp(a, 3, stamps)
    gen_ln_pass(a, QREG, 0)
    stamp(a, 6, stamps)
    a("s_waitcnt vmcnt(@q1)")
    a.lines += blk(B_pf12)
    a.lines += blk(lambda t: gen_kv_loads(t, KREG, vP9, vRUN), "kv")
    stamp(a, 5, stamps)
    gen_ln_pass(a, QREG, 1)
    a("s_waitcnt lgkmcnt(0)")
    stamp(a, 4, stamps)
    a("s_barrier")
    stamp(a, 7, stamps)
    fr = blk(B_frags); dm = groups_of(blk(B_dma012))
    interleave(a, fr, dm, start=4)
    a("s_waitcnt lgkmcnt(0)")
    stamp(a, 8, stamps)
    a("s_barrier")
    a(f"s_add_u32 s{sSOFF}, s{sSOFF}, s{sINC}")
    dma1_group(a, 3)
    a(f"s_add_u32 s{sSOFF}, s{sSOFF}, s{sINC}")
    dma1_group(a, 4, 0, 12 - P1_BAR)
    gen_pf_unit(a, nshare)
    stamp(a, 9, stamps)
    stamp(a, 10, stamps)
    a("s_waitcnt vmcnt(@pair0)")
    stamp(a, 11, stamps)
    a("s_barrier")
    lk = Lgkm(a)
    for kk in range(P1_D): p1_read(lk, kk, kk % P1_NB, ("A", kk))
    a(f"s_mov_b32 s{sCNT}, 4\ns_mov_b32 s62, 32\ns_mov_b32 s{sHIDX}, 8")
    stamp(a, 12, stamps)
    pre = list(lk.q)
    def post_bar(a_, lk_):
        t = Asm(); gen_kv_store(t); B_clr(t)
        for l in t.lines:
            if l.startswith("ds_read"): lk_.issue(("X", l), l)
            elif l == "s_waitcnt lgkmcnt(0)": a_(l); lk_.wait_all_keep = True; lk_.q = []
            else: a_(l)
    r0 = len(a.lines)
    gen_round(a, lk, 0, 1, "Z", opts=opts, extra=kv_compute_ops(vP9, vRUN))
    check_hazards(a.lines[r0:], "round0")
    a.lines[p0:] = resolve_vm(a.lines[p0:])
    a(f"v_and_b32 v2, 15, v{vLANE}\nv_lshlrev_b32 v2, 2, v2\nv_add_u32 v2, {LDS_STAT}, v2")
    for n in range(4): a(f"ds_read_b32 v{3+n}, v2 offset:{64*n}")
    a("s_waitcnt lgkmcnt(0)")
    for n in range(4):
        a(f"v_mul_f32 v7, v{3+n}, v{3+n}\nv_mul_f32 v{VC0[n]}, {hex(f2u(C0))}, v{3+n}\nv_mul_f32 v7, v7, v{3+n}\nv_mul_f32 v{VC1[n]}, {hex(f2u(C1))}, v7")
    a(f"s_mov_b32 s{sCNT}, 3")
    lk.q = list(pre)
    a.label("L_roundA")
    b0 = len(a.lines)
    gen_round(a, lk, 1, 0, "A", opts=opts)
    a.label("L_roundB")
    gen_round(a, lk, 0, 1, "B", last_check=True, opts=opts)
    assert lk.q == pre, (lk.q, pre)
    a(f"s_sub_u32 s{sCNT}, s{sCNT}, 1\ns_cmp_ge_i32 s{sCNT}, 0\ns_cbranch_scc1 L_roundA")
    check_hazards(a.lines[b0:] + a.lines[b0:], "phase1")
    a("s_waitcnt lgkmcnt(0)")
    stamp(a, 13, stamps)
    a("s_waitcnt vmcnt(0)")
    a("s_barrier")
    a(f"s_lshr_b32 s{sT0}, s{sW}, 1\ns_lshl_b32 s{sT0}, s{sT0}, 12\ns_and_b32 s{sT1}, s{sW}, 1\ns_lshl_b32 s{sT1}, s{sT1}, 3\ns_add_u32 s{sT0}, s{sT0}, s{sT1}")
    a(f"v_add_u32 v30, s{sT0}, v{vHR}\nv_add_u32 v31, 32768, v30")
    side = Asm()
    gen_kv_store(side)
    side.lines += blk(B_clr)
    gen_conv_issue(side, stamps)
    tmp = Asm(); gen_wd_pf(tmp, nshare, 4, 9)
    for l in tmp.lines: side(l.replace("v123", "v10X").replace("v124", "v127").replace("v125", "v5").replace("v10X", "v4"))
    groups, cur, hold = [], [], 0
    for l in side.lines:
        cur.append(l)
        if l.startswith("s_cbranch"): hold = 1
        if l.endswith(":"): hold = 0
        if not hold and (l.startswith("buffer_") or l.startswith("s_waitcnt") or l.endswith(":")):
            groups.append(cur); cur = []
    if cur: groups.append(cur)
    hw = []
    def hwrite(rho, src, nt):
        off = rho*8192 + nt*1024
        return f"ds_write_b64 v{30 if off < 32768 else 31}, v[{src+2*nt}:{src+2*nt+1}] offset:{off if off < 32768 else off - 32768}"
    for rho in range(8):
        src = HREG + 8*(rho+1)
        hw.append([hwrite(rho, src, 0), hwrite(rho, src, 1)]); hw.append([hwrite(rho, src, 2), hwrite(rho, src, 3)])
    merged = groups[:2]
    rest = groups[2:]
    k = 0
    while rest or hw:
        if rest: merged.append(rest.pop(0))
        if hw: merged.append(hw.pop(0))
        if hw: merged.append(hw.pop(0))
    interleave(a, gelu_ops(ACC[0]), merged, start=2)
    for nt in range(4): a(hwrite(8, HP, nt))
    stamp(a, 16, stamps)
    a("s_waitcnt lgkmcnt(0)\ns_barrier")
    a(f"v_add_u32 v2, 65536, v{vHR}")
    for K in range(18):
        for nt in range(4):
            f = 4*K + nt
            a(f"ds_read_b128 {h_frag(K, nt)}, v{vHR if f < 64 else 2} offset:{(f % 64)*1024}")
    a("s_waitcnt lgkmcnt(0)\ns_barrier")
    a(f"s_mov_b32 s{sSRDA+2}, {576*4608*2}\ns_mov_b32 s{sSRDB+2}, {576*4608*2}")
    a(f"s_mul_i32 s{sSOFF}, s{sJ}, {576*1152}\ns_add_u32 s{sSOFF}, s{sSOFF}, {0 if opts.get('same_cols') else 128}")
    a(f"s_mov_b32 s{sINC}, {192*1152}")
    a(f"s_mov_b32 s{sINCW}, {(-2*192*1152 + (0 if opts.get('same_cols') else 128)) & 0xffffffff}")
    if not nodma:
        dma1_group(a, 3)
        a(f"s_add_u32 s{sSOFF}, s{sSOFF}, s{sINC}")
        dma1_group(a, 4)
        a(f"s_mov_b32 s{sT0}, 0x7ff00000")
        for k in range(2): a(f"buffer_load_dword v{vDUM+k}, v{vPST}, s[{sSRDA}:{sSRDA+3}], s{sT0} offen")
    lk = Lgkm(a)
    for F in range(P2_D): p2_read(lk, F, F % P2_NB, ("B", F))
    pre2 = list(lk.q)
    a(f"s_mov_b32 s{sCNT}, 9")
    stamp(a, 14, stamps)
    a.label("L_p2")
    bs = len(a.lines)
    gen_p2_chunk(a, lk, opts, dma=True)
    assert lk.q == pre2 or opts.get("rstamp"), (lk.q, pre2)
    a(f"s_cmp_gt_u32 s{sCNT}, 2\ns_cbranch_scc1 L_p2")
    check_hazards(a.lines[bs:] + a.lines[bs:], "phase2")
    a.label("L_p2b")
    bs = len(a.lines)
    lk.q = list(pre2)
    gen_p2_chunk(a, lk, opts, dma=False, tag="b")
    a(f"s_cmp_gt_u32 s{sCNT}, 0\ns_cbranch_scc1 L_p2b")
    check_hazards(a.lines[bs:] + a.lines[bs:], "phase2b")
    stamp(a, 15, stamps)
    a("s_waitcnt lgkmcnt(0)")
    a("s_barrier")
    a(f"s_mov_b32 s{sFC}, s{sJ}\ns_mov_b32 s{sFW}, s{sW}")
    c0 = len(a.lines)
    gen_conv_main(a, stamps)
    check_hazards(a.lines[c0:], "conv")
    stamp(a, 20, stamps)
    a(f"s_mov_b32 s{sST}, 3")
    a("s_waitcnt vmcnt(8)")
    a("s_branch L_fin2")
    a.label("L_noconv")
    publish_partial(a)
    a("s_sleep 24")
    a(f"s_mov_b32 s{sST}, 3")
    a(f"s_cmp_lg_u32 s{sW}, 3\ns_cbranch_scc1 L_pass")
    a(f"s_lshr_b32 s{sT0}, s{sJ}, 2\ns_and_b32 s{sT1}, s{sI}, 1\ns_cmp_lg_u32 s{sT0}, s{sT1}\ns_cbranch_scc1 L_pass")
    a(f"s_mov_b32 s{sST}, 0")
    a.label("L_pass")
    gen_pflag_addr(a, 12, f"s{sFW}")
    poll(a, "pB", 12, sSRDW, "0", 1, sCU, cmp="eq")
    gen_final_addr(a)
    gen_final_loads(a)
    a.label("L_fin")
    f0 = len(a.lines)
    a("s_waitcnt vmcnt(0)")
    a.label("L_fin2")
    stamp(a, 22, stamps)
    gen_final_sum(a)
    gen_final_pre(a)
    a(f"s_cmp_lg_u32 s{sST}, 0\ns_cbranch_scc1 L_zbar")
    SAVE = [(XN+k, 48+k) for k in range(48)] + [(7, 96), (8, 97)]
    for src, dst in SAVE: a(f"v_mov_b32 v{dst}, v{src}")
    a(f"s_mov_b32 s{sST}, 1\ns_mov_b32 s{sFC}, 8\ns_and_b32 s{sFW}, s{sJ}, 3\ns_branch L_pass")
    a.label("L_zbar")
    a(f"s_barrier")
    stamp(a, 28, stamps)
    gen_final_z(a, "A", stamps)
    a.label("L_comb")
    gen_final_combine(a)
    stamp(a, 31, stamps)
    check_hazards(a.lines[f0:], "final")
    a(f"s_cmp_lg_u32 s{sST}, 1\ns_cbranch_scc1 L_final_done")
    a("s_nop 1")
    for src, dst in SAVE: a(f"v_mov_b32 v{src}, v{dst}")
    for k in range(16): a(f"v_mov_b32 v{FZ+k}, v{FZ2+k}")
    a(f"s_mov_b32 s{sST}, 2\ns_branch L_comb")
    a.label("L_final_done")
    if stamps:
        a("s_waitcnt vmcnt(0)")
        stamp(a, 23, stamps)
        a("s_memrealtime s[60:61]\ns_waitcnt lgkmcnt(0)\ns_sub_u32 s60, s60, s58\nv_writelane_b32 v249, s60, 24")
        a(f"s_lshl_b32 s34, s2, 2\ns_add_u32 s34, s34, s{sW}\ns_lshl_b32 s34, s34, 8\ns_add_u32 s34, s34, {WS_STAMP2}")
        a(f"v_lshlrev_b32 v6, 2, v{vLANE}")
        a(f"buffer_store_dword v249, v6, s[{sSRDW}:{sSRDW+3}], s34 offen\ns_waitcnt vmcnt(0)")
    a.label("L_done")
    a("s_endpgm")
    return a

def kv_compute_ops(vP9, vRUN):
    PP, AC, VU = 208, 240, 160
    ops = ["s_mov_b32 s53, 0xffff0000", "s_mov_b32 s52, 0x05040100", "s_mov_b32 s98, 0x07060302"]
    def mkP(p):
        r = p + 1; o = []
        for e in range(4):
            o.append(f"v_perm_b32 v{PP+8*(p%4)+2*e}, v{KRAW+4*(r-1)+e}, v{KRAW+4*r+e}, s52")
            o.append(f"v_perm_b32 v{PP+8*(p%4)+2*e+1}, v{KRAW+4*(r-1)+e}, v{KRAW+4*r+e}, s98")
        return o
    ops += [f"v_lshlrev_b32 v6, 2, v{vRUN}", "v_sub_u32 v6, 63, v6", "v_mul_u32_u24 v6, 160, v6", f"v_lshl_add_u32 v6, v{vP9}, 4, v6", f"v_add_u32 v6, {LDS_KV - 3*160}, v6"]
    ops += mkP(0) + mkP(1)
    for tok in range(4):
        ops += mkP(tok + 2)
        for c in range(8):
            ops.append(f"v_dot2_f32_bf16 v{AC+c}, v{PP+8*(tok%4)+c}, v{KCO+2*c+1}, 0")
        for c in range(8):
            ops.append(f"v_dot2_f32_bf16 v{AC+c}, v{PP+8*((tok+2)%4)+c}, v{KCO+2*c}, v{AC+c}")
        for e in range(4):
            ops += [f"v_lshlrev_b32 v{VU+2*e}, 16, v{VRAW+4*tok+e}", f"v_and_b32 v{VU+2*e+1}, s53, v{VRAW+4*tok+e}"]
        for c in range(8):
            ops.append(f"v_mul_f32 v{AC+c}, v{AC+c}, v{VU+c}")
        for e in range(4):
            ops.append(f"v_cvt_pk_bf16_f32 v{VU+8+e}, v{AC+2*e}, v{AC+2*e+1}")
        ops.append(("ds", f"ds_write_b128 v6, v[{VU+8}:{VU+11}] offset:{(3-tok)*160}"))
    return ops

def kd(name, nvgpr_arch, nagpr, nsgpr=100):
    acc_off = (nvgpr_arch + 3)//4*4
    tot = acc_off + nagpr if nagpr else nvgpr_arch
    return f""".section .rodata,"a"
.p2align 6
.amdhsa_kernel {name}
  .amdhsa_next_free_vgpr {tot}
  .amdhsa_next_free_sgpr {nsgpr}
  .amdhsa_accum_offset {acc_off}
  .amdhsa_group_segment_fixed_size 0
  .amdhsa_kernarg_size 104
  .amdhsa_user_sgpr_count 2
  .amdhsa_user_sgpr_kernarg_segment_ptr 1
  .amdhsa_system_sgpr_workgroup_id_x 1
  .amdhsa_float_denorm_mode_32 3
.end_amdhsa_kernel
"""

NAME = "parallel_sum__ssm_conv_h3__glu_gated_geglu__prompt_kernel"
def build(fn, single_launch=True, **kw):
    a = gen_kernel(NAME, **kw)
    ref = open("parallel_sum__ssm_conv_h3__glu_gated_geglu__prompt.s.ref").read()
    hdr = []
    for l in ref.splitlines():
        if l.startswith("; Override launch"): break
        hdr.append(l)
    hdr = "\n".join(hdr) + "\n"
    hdr += f"; @launch grid=(256,1,1) block=(256,1,1) lds={LDS_TOTAL}\n"
    hdr += '.amdgcn_target "amdgcn-amd-amdhsa--gfx950"\n.text\n'
    open(fn, "w").write(hdr + a.text() + kd(NAME, 256, 256))

if __name__ == "__main__":
    import sys
    build("s_plain.s")
    build("s_st.s", stamps=True, opts={"rstamp": True})
    build("s_w1.s", stamps=True, opts={"rstamp": True, "p1w2": True, "p1d": 4})
    build("s_w2.s", stamps=True, opts={"rstamp": True, "p1w2": True, "p1d": 4, "p1w": (2, 0, 1, 2)})
    build("s_w3.s", stamps=True, opts={"rstamp": True, "p1d": 4})
```

```python
from asmlib import *
import math

WS_STATS = 0x240000
WS_KVR   = 0x250000
WS_ZT    = 0x490000
WS_STAMP = 0x6D0000
WS_STAMP2 = 0x3000000
WS_FLAG  = 0x6F0000
WS_ZFLAG = 0x6F2000
WS_PART  = 0x700000
WS_SIZE  = 0x10000000

SLOT = 24576
HB   = 3*SLOT
LDS_STAT = 147456
LDS_KV   = 147456 + 256
LDS_XR   = 147456 + 256
LDS_TOTAL = 147456 + 256 + 3*4608

C0 = -2.0*math.sqrt(2.0/math.pi)*math.log2(math.e)
C1 = C0*0.044715

sSRDA, sSRDB, sSRDW = 4, 8, 12
sWD = 16
sWDS = 16
sW, sJ, sI = 20, 21, 22
sSOFF = 23
sM0 = 24
sPFO = 26
sOM = 27
sCNT = 30
sINC, sINCW = 31, 32
sT0, sT1, sT2, sT3 = 34, 35, 36, 37
sPOFF = 38
sHIDX = 39
sEX = 40
sB2 = 42
sDBG = 44
sPFA, sPFB = 80, 84
sQ, sK, sV, sSK, sD = 80, 84, 88, 92, 96
sHK = 68
sOUT = 64
sX = 72
vLANE = 1
vRA1, vRA1b, vRA1c = 8, 30, 31
vRA2, vRA2b = 9, 10
vPF = 11
VDG, VDU = [12, 13, 14], [15, 16, 17]
VC0, VC1 = [18, 21, 22, 23], [120, 121, 122, 123]
vPST = 19
vHR = 20
vD2 = 24
vPF2 = 28
sPFU = 63
ACC = [32, 64]
AF = 96
XE = 128
GT = 160
HP = 168
HREG = 176
vDUM = 252

def xn_frag(f):
    return A(4*f, 4) if f < 64 else V(XE + 4*(f-64), 4)

class Lgkm:
    def __init__(self, a):
        self.a = a; self.q = []
    def issue(self, tag, text):
        self.a(text); self.q.append(tag)
    def wait_for(self, tag):
        cand = [i for i, t in enumerate(self.q) if t == tag]
        if not cand: return
        idx = max(cand); n = len(self.q) - 1 - idx
        assert n <= 15, n
        self.a(f"s_waitcnt lgkmcnt({n})")
        self.q = self.q[idx+1:]
    def wait_all(self): self.q = []

NT = {'pf': '', 'kv': ' nt', 'q': '', 'h': ' nt'}
def resolve_vm(lines):
    out = []; ops = []
    for l in lines:
        body = l.split(";")[0].strip()
        if body.startswith("buffer_") or body.startswith("global_"):
            tag = l.split("; vm:")[1].strip() if "; vm:" in l else None
            ops.append(tag)
        if "vmcnt(@" in l:
            tag = l.split("vmcnt(@")[1].split(")")[0]
            idx = max(i for i, t in enumerate(ops) if t == tag)
            n = len(ops) - 1 - idx
            assert n <= 63
            l = l.replace(f"vmcnt(@{tag})", f"vmcnt({n})")
        out.append(l)
    return out

def tag_vm(lines, tag):
    return [l + f" ; vm:{tag}" if (l.startswith("buffer_") or l.startswith("global_")) else l for l in lines]

def stamp(a, idx, on):
    if not on: return
    a("s_memtime s[48:49]")
    a("s_waitcnt lgkmcnt(0)")
    a(f"v_writelane_b32 v249, s48, {idx}")

def gelu_ops(accP, dst=HP):
    ops = []; k = 0
    for n in range(4):
        for r in range(0, 4, 2):
            g0, g1 = accP + 4*n + r, accP + 4*n + r + 1
            u0, u1 = g0 + 16, g1 + 16
            tb = GT + 4*(k % 2)
            t0, t1, q0, q1 = tb, tb+1, tb+2, tb+3
            ops += [
                f"v_mul_f32 v{t0}, v{g0}, v{g0}", f"v_mul_f32 v{t1}, v{g1}, v{g1}",
                f"v_fma_f32 v{t0}, v{t0}, v{VC1[n]}, v{VC0[n]}", f"v_fma_f32 v{t1}, v{t1}, v{VC1[n]}, v{VC0[n]}",
                f"v_mul_f32 v{t0}, v{t0}, v{g0}", f"v_mul_f32 v{t1}, v{t1}, v{g1}",
                f"v_exp_f32 v{t0}, v{t0}", f"v_exp_f32 v{t1}, v{t1}",
                f"v_mul_f32 v{q0}, v{g0}, v{u0}", f"v_mul_f32 v{q1}, v{g1}, v{u1}",
                f"v_add_f32 v{t0}, 1.0, v{t0}", f"v_add_f32 v{t1}, 1.0, v{t1}",
                f"v_rcp_f32 v{t0}, v{t0}", f"v_rcp_f32 v{t1}, v{t1}",
                f"v_mul_f32 v{q0}, v{q0}, v{t0}", f"v_mul_f32 v{q1}, v{q1}, v{t1}",
                f"v_cvt_pk_bf16_f32 v{dst + 2*n + r//2}, v{q0}, v{q1}",
            ]
            k += 1
    return ops

def dma1(a, which, k):
    srd = sSRDA if which == 0 else sSRDB
    vo = (VDG if which == 0 else VDU)[k]
    off = f" offset:{1024*k}" if k else ""
    a(f"buffer_load_dwordx4 v{vo}, s[{srd}:{srd+3}], s{sSOFF} offen{off} lds")

def dma1_group(a, slot, q0=0, q1=6):
    for q in range(q0, q1):
        which, k = divmod(q, 3)
        if k == 0 or q == q0:
            a(f"s_add_u32 m0, s{sM0+which}, {slot*SLOT}")
            a("s_nop 0")
        dma1(a, which, k)

def p1_read(lk, kk, buf, tag):
    st, k6 = divmod(kk % 36, 6)
    off = st*SLOT + (k6 & 1)*12288 + (k6 >> 1)*4096
    base = [vRA1, vRA1b, vRA1c][off // 65536]
    off %= 65536
    assert off + 512 < 65536
    r = AF + 4*buf
    lk.issue(tag, f"ds_read_b64_tr_b16 v[{r}:{r+1}], v{base} offset:{off}")
    lk.issue(tag, f"ds_read_b64_tr_b16 v[{r+2}:{r+3}], v{base} offset:{off+512}")

P1_D = 3
P1_NB = 4
P1_BAR = 9
def set_p1(D):
    global P1_D, P1_NB, P1_BAR
    P1_D = D; P1_NB = {3: 4, 4: 6, 5: 6}[D]; P1_BAR = 12 - D
def gen_round(a, lk, cur, prev, rname, last_check=False, opts=None, extra=None, post_bar=None):
    opts = opts or {}
    nodma = opts.get("no_dma")
    accC, accP = ACC[cur], ACC[prev]
    gops = gelu_ops(accP) if not opts.get("no_gelu") else []
    if extra is not None: gops = list(extra)
    G_START, G_END = (2, 24 + P1_BAR) if extra is None else (5, 24 + P1_BAR - 1)
    nslots = (G_END - G_START) * 2
    gi = 0
    def take_gelu(slot_idx):
        nonlocal gi
        tgt = (len(gops) * (slot_idx + 1) + nslots - 1) // nslots
        out = gops[gi:tgt]; gi = max(gi, tgt)
        return out
    for kk in range(36):
        pr, ks = divmod(kk, 12)
        buf = kk % P1_NB
        a.c(f"--- round {rname} kstep {kk}")
        if opts.get("rstamp") and kk == 0: a("s_memtime s[50:51]")
        if opts.get("p1w2"):
            if kk % 2 == 0: lk.wait_for(("A", kk + 1))
        else:
            lk.wait_for(("A", kk))
        K32, part = kk >> 1, kk & 1
        def mf(nt):
            d = V(accC + 16*part + 4*nt, 4)
            a(f"v_mfma_f32_16x16x32_bf16 {d}, {V(AF+4*buf,4)}, {xn_frag(4*K32 + nt)}, {'0' if K32 == 0 else d}")
        fl = []
        if G_START <= kk < G_END:
            fl = take_gelu((kk - G_START)*2) + take_gelu((kk - G_START)*2 + 1)
        wts = opts.get("p1w", (2, 0, 1, 1))
        tot = sum(wts); cum = 0; fills = []; L = len(fl); used = 0
        for x in range(4):
            cum += wts[x]
            tgt = (L*cum + tot - 1)//tot if x < 3 else L
            fills.append(fl[used:tgt]); used = max(used, tgt)
        if ks >= P1_BAR: q12 = ks - P1_BAR; gp = pr
        else: q12 = ks + (12 - P1_BAR); gp = (pr - 1) % 3
        half, q = divmod(q12, 6); which, k = divmod(q, 3)
        slot = 2*gp + half
        def emit(x):
            if isinstance(x, tuple): lk.issue(("X", x[1]), x[1])
            else: a(x)
        mf(0)
        if extra is not None and kk == G_START: a("s_waitcnt vmcnt(@kv)")
        for x in fills[0]: emit(x)
        mf(1)
        if ks == P1_BAR:
            for x in fills[1]: emit(x)
            a("s_waitcnt vmcnt(12) lgkmcnt(0)") if not nodma else a("s_waitcnt lgkmcnt(0)")
            lk.wait_all()
            if opts.get("rstamp") and kk == P1_BAR:
                a("v_mov_b32 v2, s50\nv_cmp_eq_u32 vcc, s62, v1\ns_add_u32 s62, s62, 1\ns_nop 0\nv_cndmask_b32 v249, v249, v2, vcc")
            if not opts.get("no_barrier"): a("s_barrier")
            mf(2)
            p1_read(lk, kk+P1_D, (kk+P1_D) % P1_NB, ("A", (kk+P1_D) % 36))
            if last_check and pr == 0:
                a(f"s_cmp_lg_u32 s{sCNT}, 0\ns_cbranch_scc1 L_nosw")
                gen_switch(a)
                a.label("L_nosw")
        else:
            p1_read(lk, kk+P1_D, (kk+P1_D) % P1_NB, ("A", (kk+P1_D) % 36))
            for x in fills[1]: emit(x)
            mf(2)
        if not nodma and q == 0:
            inc = sINCW if slot == 0 else sINC
            a(f"s_add_u32 s{sSOFF}, s{sSOFF}, s{inc}")
            if last_check and slot == 3:
                a(f"s_cmp_eq_u32 s{sCNT}, 0")
                a(f"s_cselect_b32 s{sSRDA+2}, 0, s{sSRDA+2}\ns_cselect_b32 s{sSRDB+2}, 0, s{sSRDB+2}")
        if kk == G_END and gops and extra is None:
            assert gi == len(gops) and k == 0
            a(f"s_set_gpr_idx_on s{sHIDX}, gpr_idx(DST)")
            a("s_nop 0")
            for qq in range(8): a(f"v_mov_b32 v{HREG+qq}, v{HP+qq}")
            a("s_set_gpr_idx_off")
            a(f"s_add_u32 s{sHIDX}, s{sHIDX}, 8")
        if not nodma and k == 0:
            a(f"s_add_u32 m0, s{sM0 + which}, {slot*SLOT}")
        f2 = list(fills[2])
        if not nodma:
            if k == 0:
                if f2: emit(f2.pop(0))
                else: a("s_nop 0")
            dma1(a, which, k)
        for x in f2: emit(x)
        mf(3)
        if kk == P1_BAR + 11 and not nodma and not opts.get("no_pf"):
            a(f"s_sub_u32 s{sPFU}, s{sPFU}, 1\ns_cmp_lg_u32 s{sPFU}, -1\ns_cbranch_scc1 L_nopf{rname}")
            a(f"buffer_load_dword v{vDUM}, v{vPF}, s[{sPFA}:{sPFA+3}], s{sPFO} offen")
            a(f"buffer_load_dword v{vDUM+1}, v{vPF2}, s[{sPFB}:{sPFB+3}], s{sPFO} offen")
            a.label(f"L_nopf{rname}")
        for x in fills[3]: emit(x)

def gen_switch(a):
    a(f"s_mov_b32 s{sSRDA}, s{sWD}\ns_mov_b32 s{sSRDA+1}, s{sWD+1}\ns_mov_b32 s{sSRDB}, s{sWD}\ns_mov_b32 s{sSRDB+1}, s{sWD+1}")
    a(f"s_mul_i32 s{sT0}, s{sW}, {48*1152}")
    a(f"s_sub_u32 s{sT1}, {96*1152}, s{sT0}")
    for k in range(3):
        a(f"v_subrev_u32 v{VDG[k]}, s{sT0}, v{vD2+k}")
        a(f"v_add_u32 v{VDU[k]}, s{sT1}, v{vD2+k}")
    a(f"s_mul_i32 s{sSOFF}, s{sJ}, {576*1152}")
    a(f"s_mov_b32 s{sINCW}, 0")
    a(f"s_mov_b32 s{sINC}, {192*1152}")

def gen_pf_switch(a):
    a(f"s_mov_b32 s{sPFA}, s{sWD}\ns_mov_b32 s{sPFA+1}, s{sWD+1}")
    a(f"s_add_u32 s{sPFB}, s{sWD}, 256\ns_addc_u32 s{sPFB+1}, s{sWD+1}, 0")
    a(f"s_sub_u32 s{sPFB+2}, s{sPFA+2}, 256")
    a(f"v_mov_b32 v{vPF}, v{vPF2}")
    a(f"s_mul_i32 s{sPFO}, s{sJ}, {576*1152}")

S2 = 36864
def dma2(a, k):
    off = f" offset:{1024*(k%4)}" if k % 4 else ""
    a(f"buffer_load_dwordx4 v{vD2 + k%4}, s[{sSRDA}:{sSRDA+3}], s{sT3} offen{off} lds")

def dma2_pre(a, k, m0expr):
    if k % 4 == 0:
        a(m0expr(k//4))
        a(f"s_add_u32 s{sT3}, s{sSOFF}, {32*1152*(k//4)}")

def dma2_group(a, slot):
    for k in range(9):
        dma2_pre(a, k, lambda g: f"s_add_u32 m0, s{sM0}, {slot*S2 + 4096*g}")
        dma2(a, k)

def h_frag(K, nt):
    f = 4*K + nt
    return A(4*f, 4) if f < 64 else V(XE + 4*(f-64), 4)

def p2_read(lk, F, buf, tag):
    off = (F % 18)*4096
    base = vRA2
    if off + 2048 > 65535:
        base = vRA2b; off -= 32768
    r = AF + 4*buf
    lk.issue(tag, f"ds_read_b64_tr_b16 v[{r}:{r+1}], v{base} offset:{off}")
    lk.issue(tag, f"ds_read_b64_tr_b16 v[{r+2}:{r+3}], v{base} offset:{off+2048}")

P2_NB = 6
P2_D = 3
def p2_group_setup(a, st):
    inc = sINCW if st == 1 else sINC
    a(f"s_add_u32 s{sSOFF}, s{sSOFF}, s{inc}")
    if st == 0: a(f"s_xor_b32 s{sT2}, s{sB2}, {3*SLOT}\ns_add_u32 s{sT2}, s{sT2}, {2*SLOT}")
    else: a(f"s_add_u32 s{sT2}, s{sB2}, {(st-1)*SLOT}")

def p2_dma(a, q):
    which, k = divmod(q, 3)
    if k == 0: a(f"s_add_u32 m0, s{sT2}, s{sM0+which}\ns_nop 0")
    dma1(a, which, k)

def gen_p2_chunk(a, lk, opts, dma=True, tag=""):
    nodma = opts.get("no_dma")
    acc = ACC[0]
    for T in range(18):
        st, ks = divmod(T, 6)
        a.c(f"--- p2{tag} kstep {T}")
        if opts.get("rstamp") and T == 0: a("s_memtime s[50:51]")
        lk.wait_for(("B", T))
        if ks == 0:
            if not nodma:
                if dma: a(f"s_waitcnt vmcnt({22 if st == 0 else 20})")
                else:
                    n1, n2 = [(22, 10), (20, 2), (14, 2)][st]
                    a(f"s_cmp_eq_u32 s{sCNT}, 2\ns_cbranch_scc1 L_p2wa{st}\ns_waitcnt vmcnt({n2})")
                    if st == 0:
                        a(f"s_cmp_lg_u32 s{sW}, 0\ns_cbranch_scc1 L_p2wj{st}\ns_waitcnt vmcnt(2)")
                        a(f"v_cmp_eq_u32 vcc, 0x01010101, v95\ns_nop 0\ns_cmp_eq_u64 vcc, exec\ns_cbranch_scc1 L_p2wj{st}")
                        poll(a, "kv", 11, sDBG, 0, "0x01010101", sCU, cmp="eq")
                    a(f"s_branch L_p2wj{st}")
                    a.label(f"L_p2wa{st}"); a(f"s_waitcnt vmcnt({n1})"); a.label(f"L_p2wj{st}")
            if not opts.get("no_barrier"): a("s_barrier")
        def mf(nt):
            cz = "0" if T == 0 else V(acc+4*nt, 4)
            a(f"v_mfma_f32_16x16x32_bf16 {V(acc+4*nt,4)}, {V(AF+4*(T % P2_NB),4)}, {h_frag(T, nt)}, {cz}")
        mf(0)
        if T == 18 - P2_D:
            a(f"v_xor_b32 v{vRA2}, {3*SLOT}, v{vRA2}")
            a(f"v_xor_b32 v{vRA2b}, {3*SLOT}, v{vRA2b}")
        F = T + P2_D
        p2_read(lk, F, (F % 18) % P2_NB, ("B", F % 18))
        mf(1)
        if not nodma and dma:
            if ks == 0: p2_group_setup(a, st)
            which, k = divmod(ks, 3)
            if k == 0: a(f"s_add_u32 m0, s{sT2}, s{sM0+which}")
        mf(2)
        if not nodma and dma: dma1(a, ks // 3, ks % 3)
        mf(3)
        if opts.get("rstamp") and T == 4:
            a("s_waitcnt lgkmcnt(0)"); lk.wait_all()
            a("v_mov_b32 v2, s50\nv_cmp_eq_u32 vcc, s62, v1\ns_add_u32 s62, s62, 1\ns_nop 0\nv_cndmask_b32 v249, v249, v2, vcc")
        if dma and T == 8:
            a(f"s_and_b32 s{sT0}, s{sI}, 3\ns_sub_u32 s{sT0}, 8, s{sT0}\ns_cmp_lg_u32 s{sCNT}, s{sT0}\ns_cbranch_scc1 L_nokvadd\ns_cmp_lg_u32 s{sW}, 0\ns_cbranch_scc1 L_nokvadd")
            a(f"v_mov_b32 v2, s2\nv_mov_b32 v3, 1")
            a(f"v_cmp_eq_u32 vcc, 0, v{vLANE}\ns_and_saveexec_b64 s[{sEX}:{sEX+1}], vcc")
            a(f"buffer_store_byte v3, v2, s[{sDBG}:{sDBG+3}], 0 offen sc1")
            a(f"s_mov_b64 exec, s[{sEX}:{sEX+1}]")
            a.label("L_nokvadd")
        if not nodma and not dma and T == 6:
            a(f"s_cmp_lg_u32 s{sCNT}, 1\ns_cbranch_scc1 L_nopub1")
            publish_partial(a, 1, wait=False)
            a.label("L_nopub1")
        if not nodma and not dma and T == 0:
            a(f"s_cmp_lg_u32 s{sCNT}, 2\ns_cbranch_scc1 L_p2nog")
            p2_group_setup(a, 0)
            for q in range(6): p2_dma(a, q)
            a(f"s_cmp_lg_u32 s{sW}, 0\ns_cbranch_scc1 L_p2noxr")
            a(f"buffer_load_dword v95, v11, s[{sDBG}:{sDBG+3}], 0 offen sc1")
            a("s_branch L_p2noxr")
            a.label("L_p2nog")
            gen_conv_issue2(a)
            a.label("L_p2noxr")
    a.c("--- p2 chunk epilogue")
    a(f"s_xor_b32 s{sB2}, s{sB2}, {3*SLOT}")
    a(f"s_sub_u32 s{sCNT}, s{sCNT}, 1")
    a("s_nop 4")
    for q in range(8):
        a(f"v_cvt_pk_bf16_f32 v{GT+q}, v{acc+2*q}, v{acc+2*q+1}")
    for q in range(2):
        off = f" offset:{1024*q}" if q else ""
        a(f"buffer_store_dwordx4 {V(GT+4*q,4)}, v{vPST}, s[{sSRDW}:{sSRDW+3}], s{sPOFF} offen{off} sc1")
    a(f"s_add_u32 s{sPOFF}, s{sPOFF}, {4*2048}")

ONES_BF = 0x3f803f80
sPFLG = 56
sPAR = 28
sPP = 29
def gen_q_addr(a, p):
    if p == 0:
        a(f"v_and_b32 v2, 7, v{vLANE}\nv_mul_u32_u24 v2, 1152, v2\nv_lshrrev_b32 v3, 3, v{vLANE}\nv_lshl_add_u32 v248, v3, 4, v2")
    a(f"s_xor_b32 s{sPP}, s{sPAR}, {p}")
    a(f"s_lshl_b32 s{sT0}, s{sI}, 6\ns_lshl_b32 s{sT1}, s{sW}, 4\ns_add_u32 s{sT0}, s{sT0}, s{sT1}\ns_lshl_b32 s{sT1}, s{sPP}, 3\ns_add_u32 s{sT0}, s{sT0}, s{sT1}\ns_mul_i32 s{sT0}, s{sT0}, 1152")

def gen_q_loads(a, QREG, p, addr=True):
    if addr: gen_q_addr(a, p)
    for m in range(9):
        off = f" offset:{128*m}" if m else ""
        a(f"buffer_load_dwordx4 v[{QREG+36*p+4*m}:{QREG+36*p+4*m+3}], v248, s[{sQ}:{sQ+3}], s{sT0} offen{off}{NT['q']}")

LT = 32
def gen_ln_setup(a):
    T = LT
    vB = T+10
    a(f"v_lshrrev_b32 v{T+8}, 3, v{vLANE}\nv_lshrrev_b32 v{T+9}, 2, v{T+8}\nv_lshlrev_b32 v{vB}, 12, v{T+9}")
    a(f"v_and_b32 v{T+9}, 3, v{T+8}\nv_lshl_add_u32 v{vB}, v{T+9}, 8, v{vB}")
    a(f"v_and_b32 v{T+9}, 7, v{vLANE}\nv_lshl_add_u32 v{vB}, v{T+9}, 4, v{vB}")
    a(f"s_lshl_b32 s{sT0}, s{sW}, 10\ns_add_u32 s{sT0}, s{sT0}, {HB}")
    a(f"v_add_u32 v{vB}, s{sT0}, v{vB}")
    vSt = T+11
    a(f"s_lshl_b32 s{sT0}, s{sW}, 6\ns_add_u32 s{sT0}, s{sT0}, {LDS_STAT}")
    a(f"v_lshlrev_b32 v{vSt}, 2, v{T+9}\nv_add_u32 v{vSt}, s{sT0}, v{vSt}")
    vG = T+12
    a(f"s_lshl_b32 s{sT0}, s{sI}, 6\ns_lshl_b32 s{sT1}, s{sW}, 4\ns_add_u32 s{sT0}, s{sT0}, s{sT1}")
    a(f"v_add_u32 v{vG}, s{sT0}, v{T+9}\nv_lshlrev_b32 v{vG}, 3, v{vG}\nv_add_u32 v{vG}, {WS_STATS}, v{vG}")

def gen_ln_pass(a, QREG, p):
    T = LT
    vS, vQ2, vB, vSt, vG = T, T+4, T+10, T+11, T+12
    X = QREG + 36*p
    a(f"s_mov_b32 s{sT2}, {hex(ONES_BF)}\ns_mov_b32 s{sT3}, 0x00003f80\ns_mov_b32 s{sEX}, 0x3f800000")
    a(f"s_xor_b32 s{sPP}, s{sPAR}, {p}")
    a(f"s_lshl_b32 s{sT0}, s{sPP}, 7\nv_add_u32 v{T+13}, s{sT0}, v{vB}\ns_lshl_b32 s{sT0}, s{sPP}, 5\nv_add_u32 v{T+14}, s{sT0}, v{vSt}")
    for k in range(4): a(f"v_mov_b32 v{vS+k}, 0\nv_mov_b32 v{vQ2+k}, 0")
    for d in range(36):
        a(f"v_dot2c_f32_bf16 v{vS+d%4}, s{sT2}, v{X+d}")
        a(f"v_dot2c_f32_bf16 v{vQ2+d%4}, v{X+d}, v{X+d}")
    a("s_nop 2")
    a(f"v_add_f32 v{vS}, v{vS}, v{vS+1}\nv_add_f32 v{vS+2}, v{vS+2}, v{vS+3}")
    a(f"v_add_f32 v{vQ2}, v{vQ2}, v{vQ2+1}\nv_add_f32 v{vQ2+2}, v{vQ2+2}, v{vQ2+3}")
    a(f"v_add_f32 v{vS}, v{vS}, v{vS+2}\nv_add_f32 v{vQ2}, v{vQ2}, v{vQ2+2}")
    a("s_nop 1")
    a(f"v_add_f32_dpp v{vS}, v{vS}, v{vS} row_ror:8 row_mask:0xf bank_mask:0xf")
    a(f"v_add_f32_dpp v{vQ2}, v{vQ2}, v{vQ2} row_ror:8 row_mask:0xf bank_mask:0xf")
    for sw in ("v_permlane16_swap_b32", "v_permlane32_swap_b32"):
        a(f"v_mov_b32 v{vS+1}, v{vS}\nv_mov_b32 v{vQ2+1}, v{vQ2}")
        a("s_nop 1")
        a(f"{sw} v{vS}, v{vS+1}\n{sw} v{vQ2}, v{vQ2+1}")
        a("s_nop 1")
        a(f"v_add_f32 v{vS}, v{vS}, v{vS+1}\nv_add_f32 v{vQ2}, v{vQ2}, v{vQ2+1}")
    inv = hex(f2u(1.0/576.0))
    a(f"v_mul_f32 v{vS}, {inv}, v{vS}\nv_mul_f32 v{vQ2}, {inv}, v{vQ2}")
    a(f"v_fma_f32 v{vQ2}, -v{vS}, v{vS}, v{vQ2}\nv_max_f32 v{vQ2}, 0, v{vQ2}")
    a(f"v_cvt_pk_bf16_f32 v{vS+1}, v{vS}, v{vQ2}")
    a(f"v_and_b32 v{vQ2}, 0xffff0000, v{vS+1}\nv_lshlrev_b32 v{vS}, 16, v{vS+1}")
    a(f"v_add_f32 v{vQ2}, {hex(f2u(1e-5))}, v{vQ2}")
    a(f"v_cvt_pk_bf16_f32 v{vQ2}, v{vQ2}, v{vQ2}\nv_lshlrev_b32 v{vQ2}, 16, v{vQ2}")
    a(f"v_sqrt_f32 v{vQ2}, v{vQ2}\ns_nop 0")
    a(f"v_cvt_pk_bf16_f32 v{vQ2}, v{vQ2}, v{vQ2}\nv_lshlrev_b32 v{vS+1}, 16, v{vQ2}")
    a(f"v_rcp_f32 v{vQ2}, v{vS+1}\nv_sub_f32 v{vS+2}, 0, v{vS}")
    a(f"ds_write_b32 v{T+14}, v{vQ2}")
    a(f"s_lshl_b32 s{sT0}, s{sPP}, 6\ns_cmp_eq_u32 s{sJ}, 0\ns_cselect_b32 s{sT0}, s{sT0}, 0x7ff00000")
    a(f"buffer_store_dwordx2 v[{vS}:{vS+1}], v{vG}, s[{sSRDW}:{sSRDW+3}], s{sT0} offen sc1")
    D = T+16
    for m in range(9):
        tb = D + 12*(m % 2)
        for e in range(4):
            a(f"v_dot2_f32_bf16 v{tb+2*e}, v{X+4*m+e}, s{sT3}, v{vS+2}")
            a(f"v_dot2_f32_bf16 v{tb+2*e+1}, v{X+4*m+e}, s{sEX}, v{vS+2}")
        if m > 0:
            pb = D + 12*((m-1) % 2)
            for e in range(4): a(f"v_cvt_pk_bf16_f32 v{pb+8+e}, v{pb+2*e}, v{pb+2*e+1}")
            a(f"ds_write_b128 v{T+13}, v[{pb+8}:{pb+11}] offset:{(m-1)*8192}")
    pb = D
    a("s_nop 2")
    for e in range(4): a(f"v_cvt_pk_bf16_f32 v{pb+8+e}, v{pb+2*e}, v{pb+2*e+1}")
    a(f"v_add_u32 v{T+13}, 32768, v{T+13}")
    a(f"ds_write_b128 v{T+13}, v[{pb+8}:{pb+11}] offset:{8*8192 - 32768}")

def interleave(a, main_lines, side_groups, start=8):
    n = len(main_lines); g = len(side_groups)
    pos = [start + (n - start - 4) * k // max(g, 1) for k in range(g)]
    lab = None
    k = 0
    for idx, l in enumerate(main_lines):
        if idx > 0 and main_lines[idx-1].startswith("s_cmp"):
            pos = [p + 1 if p == idx else p for p in pos]
        while k < g and pos[k] <= idx and not (idx > 0 and main_lines[idx-1].startswith("s_cmp")):
            for x in side_groups[k]: a.lines.append(x)
            k += 1
        a.lines.append(l)
    while k < g:
        for x in side_groups[k]: a.lines.append(x)
        k += 1

def groups_of(lines):
    out, cur = [], []
    for l in lines:
        cur.append(l)
        if l.startswith("buffer_") or l.startswith("global_"):
            out.append(cur); cur = []
    if cur: out.append(cur)
    return out

KRAW, VRAW, KCO = 176, 112, 72
def gen_kv_loads(a, KREG, vP9, vRUN):
    a(f"s_mul_i32 s52, s{sW}, 36\nv_min_u32 v120, 35, v{vLANE}\nv_add_u32 v120, s52, v120".replace("v120", "v2"))
    a(f"s_mov_b32 s53, {(2**32 + 8)//9}\nv_mul_hi_u32 v{vRUN}, v2, s53")
    a(f"v_mul_u32_u24 v{vP9}, 9, v{vRUN}\nv_sub_u32 v{vP9}, v2, v{vP9}")
    a(f"s_lshl_b32 s52, s{sI}, 6\nv_lshlrev_b32 v3, 2, v{vRUN}\nv_add_u32 v3, s52, v3\nv_mul_u32_u24 v3, 1152, v3")
    a(f"s_mul_i32 s52, s{sJ}, 144\nv_lshl_add_u32 v4, v{vP9}, 4, v3\nv_add_u32 v4, s52, v4")
    for r in range(7):
        if r < 3:
            a(f"v_add_u32 v3, {(r-3)*1152 & 0xffffffff}, v4")
            a(f"buffer_load_dwordx4 v[{KRAW+4*r}:{KRAW+4*r+3}], v3, s[{sK}:{sK+3}], 0 offen{NT['kv']}")
        else:
            off = f" offset:{1152*(r-3)}" if r > 3 else ""
            a(f"buffer_load_dwordx4 v[{KRAW+4*r}:{KRAW+4*r+3}], v4, s[{sK}:{sK+3}], 0 offen{off}{NT['kv']}")
    for r in range(4):
        off = f" offset:{1152*r}" if r else ""
        a(f"buffer_load_dwordx4 v[{VRAW+4*r}:{VRAW+4*r+3}], v4, s[{sV}:{sV+3}], 0 offen{off}{NT['kv']}")
    a(f"s_mul_i32 s52, s{sJ}, 576\nv_lshlrev_b32 v3, 6, v{vP9}")
    for r in range(4):
        off = f" offset:{16*r}" if r else ""
        a(f"buffer_load_dwordx4 v[{KCO+4*r}:{KCO+4*r+3}], v3, s[{sSK}:{sSK+3}], s52 offen{off}")

def gen_kv_compute(a, KREG, vP9, vRUN):
    KU, SU, AC, VU = 32, 88, 120, 152
    a(f"s_mov_b32 s52, 0xffff0000")
    for r in range(7):
        for e in range(4):
            a(f"v_lshlrev_b32 v{KU+8*r+2*e}, 16, v{KREG+4*r+e}\nv_and_b32 v{KU+8*r+2*e+1}, s52, v{KREG+4*r+e}")
    for c in range(8):
        for jj in range(2):
            src = KREG + 44 + 2*c + jj
            a(f"v_lshlrev_b32 v{SU+8*(2*jj)+c}, 16, v{src}\nv_and_b32 v{SU+8*(2*jj+1)+c}, s52, v{src}")
    a(f"v_lshlrev_b32 v62, 2, v{vRUN}\nv_sub_u32 v62, 63, v62\nv_mul_u32_u24 v62, 160, v62")
    a(f"v_lshl_add_u32 v62, v{vP9}, 4, v62\nv_add_u32 v62, {LDS_KV - 3*160}, v62")
    for tok in range(4):
        for jj in (3, 2, 1, 0):
            for pr in range(4):
                d = f"v[{AC+8*tok+2*pr}:{AC+8*tok+2*pr+1}]"
                kk = f"v[{KU+8*(tok+3-jj)+2*pr}:{KU+8*(tok+3-jj)+2*pr+1}]"
                ss = f"v[{SU+8*jj+2*pr}:{SU+8*jj+2*pr+1}]"
                a(f"v_pk_mul_f32 {d}, {kk}, {ss}" if jj == 3 else f"v_pk_fma_f32 {d}, {kk}, {ss}, {d}")
        for e in range(4):
            a(f"v_lshlrev_b32 v{VU+2*e}, 16, v{KREG+28+4*tok+e}\nv_and_b32 v{VU+2*e+1}, s52, v{KREG+28+4*tok+e}")
        for pr in range(4):
            d = f"v[{AC+8*tok+2*pr}:{AC+8*tok+2*pr+1}]"
            a(f"v_pk_mul_f32 {d}, {d}, v[{VU+2*pr}:{VU+2*pr+1}]")
        for e in range(4):
            a(f"v_cvt_pk_bf16_f32 v{VU+8+e}, v{AC+8*tok+2*e}, v{AC+8*tok+2*e+1}")
        a(f"ds_write_b128 v62, v[{VU+8}:{VU+11}] offset:{(3-tok)*160}")

def gen_kv_store(a):
    a(f"v_and_b32 v2, 15, v{vLANE}\nv_lshrrev_b32 v3, 4, v{vLANE}\nv_lshrrev_b32 v4, 2, v2")
    a(f"v_lshl_add_u32 v4, v3, 3, v4\nv_mul_u32_u24 v4, 160, v4\nv_and_b32 v5, 3, v2\nv_lshl_add_u32 v4, v5, 3, v4\nv_add_u32 v4, {LDS_KV}, v4")
    a(f"s_mul_i32 s{sT0}, s{sJ}, 72\nv_add_u32 v5, s{sT0}, v2\nv_lshlrev_b32 v5, 12, v5\nv_lshl_add_u32 v5, v3, 4, v5")
    a(f"s_lshl_b32 s{sT0}, s{sI}, 7\ns_sub_u32 s{sT0}, {WS_KVR + 1984*2}, s{sT0}\nv_add_u32 v5, s{sT0}, v5")
    a("v_mov_b32 v7, 0x7ff00000")
    for u in range(3):
        a(f"s_add_u32 s{sT0}, s{sW}, {4*u}")
        a(f"s_lshr_b32 s{sT1}, s{sT0}, 1\ns_and_b32 s{sT2}, s{sT0}, 1")
        a(f"s_mul_i32 s{sT3}, s{sT2}, {32*160}\ns_lshl_b32 s{sEX}, s{sT1}, 5\ns_add_u32 s{sT3}, s{sT3}, s{sEX}")
        a(f"v_add_u32 v6, s{sT3}, v4")
        r = 96 + 4*u
        a(f"ds_read_b64_tr_b16 v[{r}:{r+1}], v6\nds_read_b64_tr_b16 v[{r+2}:{r+3}], v6 offset:{4*160}")
        a(f"s_lshl_b32 s{sT3}, s{sT1}, 16\ns_lshl_b32 s{sT2}, s{sT2}, 6\ns_add_u32 s{sT3}, s{sT3}, s{sT2}")
        a(f"v_add_u32 v{108+u}, s{sT3}, v5")
        a(f"s_cmp_eq_u32 s{sT1}, 4\ns_cselect_b32 s{sT2}, 8, 16\ns_cmp_gt_u32 s{sT1}, 4\ns_cselect_b32 s{sT2}, 0, s{sT2}")
        a(f"v_cmp_gt_u32 vcc, s{sT2}, v2\ns_nop 1\nv_cndmask_b32 v{108+u}, v7, v{108+u}, vcc")
    a("s_waitcnt lgkmcnt(0)")
    for u in range(3):
        a(f"buffer_store_dwordx4 v[{96+4*u}:{99+4*u}], v{108+u}, s[{sSRDW}:{sSRDW+3}], 0 offen sc1")

def gen_bulk_pf(a, nshare, opts):
    nw = nshare*4
    per = -(-4608 // nw)
    n_ins = -(-per // 64)
    assert n_ins == 1 or True
    for it in range(n_ins):
        cnt = min(64, per - 64*it)
        a(f"s_mul_i32 s54, s{sOM}, {per}\ns_add_u32 s54, s54, {64*it}\nv_min_u32 v123, {cnt-1}, v{vLANE}\nv_add_u32 v123, s54, v123\nv_min_u32 v123, 4607, v123")
        a(f"s_mov_b32 s55, {(2**32 + 575)//576}\nv_mul_hi_u32 v124, v123, s55\nv_mul_u32_u24 v125, 576, v124\nv_sub_u32 v125, v123, v125\nv_mul_u32_u24 v125, 9216, v125\nv_lshl_add_u32 v125, v124, 7, v125")
        a(f"s_mul_i32 s55, s{sJ}, 1152\ns_add_u32 s55, s55, 128")
        a(f"buffer_load_dword v{vDUM}, v125, s[{sSRDA}:{sSRDA+3}], s55 offen{NT['pf']}")
        a(f"buffer_load_dword v{vDUM+1}, v125, s[{sSRDB}:{sSRDB+3}], s55 offen{NT['pf']}")


def gen_wd_pf(a, nshare, c0, c1):
    nw = nshare*4
    nc = c1 - c0
    tot = 576*nc
    per = -(-tot // nw)
    assert per <= 64
    a(f"s_mul_i32 s54, s{sOM}, {per}\nv_min_u32 v123, {per-1}, v1\nv_add_u32 v123, s54, v123\nv_min_u32 v123, {tot-1}, v123")
    a(f"s_mov_b32 s55, {(2**32 + 575)//576}\nv_mul_hi_u32 v124, v123, s55\nv_mul_u32_u24 v125, 576, v124\nv_sub_u32 v125, v123, v125\nv_mul_u32_u24 v125, 1152, v125\nv_lshl_add_u32 v125, v124, 7, v125")
    a(f"s_mul_i32 s55, s{sJ}, {576*1152}\ns_add_u32 s55, s55, {128*c0}")
    a(f"buffer_load_dword v{vDUM+2}, v125, s[{sWDS}:{sWDS+3}], s55 offen")

def gen_pf_setup(a, nshare):
    nw = nshare*4
    NL = -(-576 // nw)
    a(f"s_mul_i32 s{sT0}, s{sOM}, {NL}\nv_min_u32 v2, {NL-1}, v{vLANE}\nv_add_u32 v2, s{sT0}, v2\nv_min_u32 v2, 575, v2")
    a(f"v_mul_u32_u24 v{vPF}, 9216, v2")

def gen_pf_unit(a, nshare):
    nparts = nshare // 8
    NL = -(-576 // (nparts*4))
    assert NL <= 64
    a(f"s_lshr_b32 s{sT0}, s{sOM}, 2\ns_and_b32 s{sPFU}, s{sT0}, 7\ns_lshr_b32 s{sT0}, s{sT0}, 3")
    a(f"s_lshl_b32 s{sT0}, s{sT0}, 2\ns_add_u32 s{sT0}, s{sT0}, s{sW}\ns_mul_i32 s{sT0}, s{sT0}, {NL}")
    a(f"v_min_u32 v2, {NL-1}, v{vLANE}\nv_add_u32 v2, s{sT0}, v2\nv_min_u32 v2, 575, v2")
    a(f"s_cmp_lt_u32 s{sPFU}, 6\ns_cbranch_scc0 L_pfwd")
    a(f"v_mul_u32_u24 v{vPF}, 9216, v2\nv_mov_b32 v{vPF2}, v{vPF}")
    a(f"s_mov_b32 s{sPFA}, s{sSRDA}\ns_mov_b32 s{sPFA+1}, s{sSRDA+1}\ns_mov_b32 s{sPFB}, s{sSRDB}\ns_mov_b32 s{sPFB+1}, s{sSRDB+1}")
    a(f"s_mul_i32 s{sPFO}, s{sJ}, 1152\ns_add_u32 s{sT0}, s{sPFU}, 3\ns_lshl_b32 s{sT0}, s{sT0}, 7\ns_add_u32 s{sPFO}, s{sPFO}, s{sT0}")
    a("s_branch L_pfok")
    a.label("L_pfwd")
    a(f"v_mul_u32_u24 v{vPF}, 1152, v2\nv_add_u32 v{vPF2}, 128, v{vPF}")
    a(f"s_mov_b32 s{sPFA}, s{sWD}\ns_mov_b32 s{sPFA+1}, s{sWD+1}\ns_mov_b32 s{sPFB}, s{sWD}\ns_mov_b32 s{sPFB+1}, s{sWD+1}")
    a(f"s_mul_i32 s{sPFO}, s{sJ}, {576*1152}\ns_sub_u32 s{sT0}, s{sPFU}, 6\ns_lshl_b32 s{sT0}, s{sT0}, 8\ns_add_u32 s{sPFO}, s{sPFO}, s{sT0}")
    a.label("L_pfok")
    a(f"s_mov_b32 s{sPFA+2}, {576*4608*2}\ns_mov_b32 s{sPFA+3}, 0x00020000\ns_mov_b32 s{sPFB+2}, {576*4608*2}\ns_mov_b32 s{sPFB+3}, 0x00020000")

CV_CP = 4160
CV_WAVE = 4*CV_CP
sC, sCB, sCT, sCU, sXR = 70, 71, 76, 77, 78
HL = 64
vDC = 94
def poll(a, name, voff_reg, srd, soff, target, scnt, cmp="ge", sleep=8):
    a(f"s_mov_b32 s{scnt}, 0")
    a.label(f"L_poll_{name}")
    a(f"buffer_load_dword v3, v{voff_reg}, s[{srd}:{srd+3}], {soff} offen sc1")
    a("s_waitcnt vmcnt(0)")
    a(f"v_cmp_{'le' if cmp == 'ge' else 'eq'}_u32 vcc, {target}, v3")
    a(f"s_add_u32 s{scnt}, s{scnt}, 1")
    a(f"s_cmp_eq_u64 vcc, exec\ns_cbranch_scc1 L_pollok_{name}")
    a(f"s_cmp_lt_u32 s{scnt}, 20000\ns_cbranch_scc0 L_pollok_{name}")
    a(f"s_sleep {sleep}\ns_branch L_poll_{name}")
    a.label(f"L_pollok_{name}")

def gen_conv_issue(a, stamps):
    a(f"v_lshlrev_b32 v11, 2, v{vLANE}")
    a(f"s_cmp_ge_u32 s{sC}, 576\ns_cbranch_scc1 L_conv_skip1")
    a(f"s_mul_i32 s{sCB}, s{sW}, {CV_WAVE}\ns_add_u32 s{sCB}, s{sCB}, {HB}")
    a(f"s_mul_i32 s{sXR}, s{sW}, 4608\ns_add_u32 s{sXR}, s{sXR}, {LDS_XR}")
    a(f"s_lshl_b32 s{sCT}, s{sC}, 12")
    a(f"s_add_u32 s88, s{sHK}, s{sCT}\ns_addc_u32 s89, s{sHK+1}, 0\ns_mov_b32 s90, 4096\ns_mov_b32 s91, 0x00020000")
    for o in range(5):
        a(f"v_add_u32 v5, {(1024*o - 16) & 0xffffffff}, v{vPST}")
        a(f"buffer_load_dwordx4 v[{HL+6*o}:{HL+6*o+3}], v5, s[88:91], 0 offen{NT['h']}")
        a(f"v_add_u32 v6, {1024*o}, v{vPST}")
        a(f"buffer_load_dwordx2 v[{HL+6*o+4}:{HL+6*o+5}], v6, s[88:91], 0 offen{NT['h']}")
    a(f"s_lshl_b32 s{sCT}, s{sC}, 1\nv_mov_b32 v4, s{sCT}")
    a(f"buffer_load_ushort v{vDC}, v4, s[{sD}:{sD+3}], 0 offen")
    a.label("L_conv_skip1")

def gen_conv_issue2(a):
    a(f"s_cmp_ge_u32 s{sC}, 576\ns_cbranch_scc1 L_conv_skip2")
    a(f"s_lshl_b32 s{sCT}, s{sC}, 12\ns_add_u32 s{sCT}, s{sCT}, {WS_KVR}")
    a(f"s_mov_b32 m0, s{sXR}\ns_nop 0")
    for k in range(4):
        off = f" offset:{1024*k}" if k else ""
        a(f"buffer_load_dwordx4 v{vPST}, s[{sSRDW}:{sSRDW+3}], s{sCT} offen{off} sc1 lds")
    a.label("L_conv_skip2")

def publish_partial(a, val=2, wait=True):
    if wait: a("s_waitcnt vmcnt(0)")
    a(f"v_mov_b32 v4, 0\nv_mov_b32 v5, {val}")
    a(f"v_cmp_eq_u32 vcc, 0, v{vLANE}\ns_and_saveexec_b64 s[{sEX}:{sEX+1}], vcc")
    a(f"buffer_store_dword v5, v4, s[{sSRDW}:{sSRDW+3}], s{sPFLG} offen sc1")
    a(f"s_mov_b64 exec, s[{sEX}:{sEX+1}]")

def gen_conv_main(a, stamps):
    a(f"s_cmp_ge_u32 s{sC}, 576\ns_cbranch_scc1 L_noconv")
    for r in range(4): a(f"v_mov_b32 v{32+r}, 0")
    a(f"v_add_u32 v5, s{sXR}, v{vPST}")
    a(f"v_cmp_gt_u32 vcc, 32, v{vLANE}\ns_and_saveexec_b64 s[{sEX}:{sEX+1}], vcc")
    a(f"ds_write_b128 v5, v[32:35] offset:4096")
    a(f"s_mov_b64 exec, s[{sEX}:{sEX+1}]")
    a(f"v_mul_u32_u24 v6, {CV_CP}, v{vLANE}\nv_add_u32 v6, s{sCB}, v6")
    a(f"v_cmp_gt_u32 vcc, 4, v{vLANE}\ns_and_saveexec_b64 s[{sEX}:{sEX+1}], vcc")
    a(f"ds_write_b128 v6, v[32:35]")
    a(f"s_mov_b64 exec, s[{sEX}:{sEX+1}]")
    a(f"v_add_u32 v7, s{sCB}, v{vPST}")
    stamp(a, 17, stamps)
    for o in range(5):
        P = HL + 6*o
        t = 96 + 16*(o % 2)
        if o == 4:
            a(f"v_cmp_eq_u32 vcc, 0, v{vLANE}\ns_and_saveexec_b64 s[{sEX}:{sEX+1}], vcc")
        for n in range(4):
            a(f"v_mov_b32 v{t+n}, v{P+n}")
            a(f"v_alignbit_b32 v{t+4+n}, v{P+n+1}, v{P+n}, 16")
            a(f"v_mov_b32 v{t+8+n}, v{P+n+1}")
            a(f"v_alignbit_b32 v{t+12+n}, v{P+n+2}, v{P+n+1}, 16")
        for s_ in range(4):
            a(f"ds_write_b128 v7, v[{t+4*s_}:{t+4*s_+3}] offset:{s_*CV_CP + 16 + 1024*o}")
        if o == 4: a(f"s_mov_b64 exec, s[{sEX}:{sEX+1}]")
    a(f"v_and_b32 v14, 15, v{vLANE}\nv_lshrrev_b32 v15, 4, v{vLANE}")
    a(f"v_lshlrev_b32 v16, 5, v14\nv_lshlrev_b32 v17, 4, v15\nv_sub_u32 v16, v17, v16")
    a(f"s_add_u32 s{sCT}, s{sXR}, {2*(2032 - 32*56)}\nv_add_u32 v16, s{sCT}, v16")
    a(f"v_add_u32 v2, 1, v14\nv_and_b32 v3, 3, v2\nv_mul_u32_u24 v3, {CV_CP}, v3\nv_lshrrev_b32 v2, 2, v2")
    a(f"v_lshl_add_u32 v3, v2, 3, v3\nv_lshl_add_u32 v3, v15, 4, v3\nv_add_u32 v13, s{sCB}, v3")
    a("s_waitcnt lgkmcnt(0) vmcnt(2)")
    stamp(a, 19, stamps)
    lk = Lgkm(a)
    NB = 6; FB = 96; ACCB = 32
    def rdF(m):
        r = FB + 4*(m % NB)
        lk.issue(("F", m), f"ds_read_b64 v[{r}:{r+1}], v13 offset:{64*m}")
        lk.issue(("F", m), f"ds_read_b64 v[{r+2}:{r+3}], v13 offset:{64*m+8}")
    def rdG(i):
        lk.issue(("G", i), f"ds_read_b128 {A(4*(i+7),4)}, v16 offset:{(56-i)*64}")
    rdF(0)
    for T in range(8): rdG(8*T)
    rdF(1)
    for m in range(64):
        T0 = max(0, -(-(m-7)//8))
        if m == 9:
            stamp(a, 25, stamps); publish_partial(a); stamp(a, 26, stamps)
        lk.wait_for(("F", m))
        pend = []
        if m + 1 < 8: pend += [("G", 8*T - (m+1)) for T in range(8)]
        if m + 2 < 64: pend += [("F", m+2)]
        for T in range(T0, 8):
            if m < 8: lk.wait_for(("G", 8*T - m))
            c_ = "0" if m == 0 else f"v[{ACCB+4*T}:{ACCB+4*T+3}]"
            a(f"v_mfma_f32_16x16x32_bf16 v[{ACCB+4*T}:{ACCB+4*T+3}], v[{FB+4*(m%NB)}:{FB+4*(m%NB)+3}], {A(4*(8*T-m+7),4)}, {c_}")
            if pend:
                k, x = pend.pop(0)
                (rdG if k == "G" else rdF)(x)
        for k, x in pend: (rdG if k == "G" else rdF)(x)
    stamp(a, 21, stamps)
    a(f"v_lshlrev_b32 v5, 5, v14\nv_lshlrev_b32 v17, 3, v15\nv_add_u32 v17, v5, v17")
    a(f"s_add_u32 s{sCT}, s{sXR}, {2*2044 - 7*512}\nv_sub_u32 v2, s{sCT}, v17")
    for T in range(8): a(f"ds_read_b64 v[{96+2*T}:{97+2*T}], v2 offset:{(7-T)*512}")
    a(f"v_lshlrev_b32 v{vDC}, 16, v{vDC}")
    a(f"s_lshl_b32 s{sCT}, s{sC}, 12\ns_add_u32 s{sCT}, s{sCT}, {WS_ZT}\ns_mov_b32 s{sCU}, 0xffff0000")
    a("s_waitcnt lgkmcnt(0)")
    for T in range(8):
        kv = 96+2*T; ac = ACCB+4*T; t = 112 + 6*(T % 2)
        a(f"v_and_b32 v{t}, s{sCU}, v{kv+1}\nv_lshlrev_b32 v{t+1}, 16, v{kv+1}\nv_and_b32 v{t+2}, s{sCU}, v{kv}\nv_lshlrev_b32 v{t+3}, 16, v{kv}")
        for r in range(4): a(f"v_fmac_f32 v{ac+r}, v{t+r}, v{vDC}")
        a(f"v_cvt_pk_bf16_f32 v{t+4}, v{ac}, v{ac+1}\nv_cvt_pk_bf16_f32 v{t+5}, v{ac+2}, v{ac+3}")
        off = f" offset:{512*T}" if T else ""
        a(f"buffer_store_dwordx2 v[{t+4}:{t+5}], v17, s[{sSRDW}:{sSRDW+3}], s{sCT} offen{off} sc1")

def gen_pflag_addr(a, vdst, swave):
    a(f"s_lshl_b32 s{sT0}, s{sI}, 7\ns_lshl_b32 s{sT1}, {swave}, 2\ns_add_u32 s{sT0}, s{sT0}, s{sT1}\ns_add_u32 s{sT0}, s{sT0}, {WS_FLAG}")
    a(f"v_and_b32 v{vdst}, 7, v{vLANE}\nv_lshlrev_b32 v{vdst}, 4, v{vdst}\nv_add_u32 v{vdst}, s{sT0}, v{vdst}")

sFC, sFW, sST = 57, 55, 54
FP, FS, FX, FZ, FST = 128, 192, 208, 216, 232
def gen_final_addr(a):
    a(f"v_and_b32 v3, 15, v{vLANE}\nv_lshrrev_b32 v4, 4, v{vLANE}")
    a(f"s_lshl_b32 s{sT2}, s{sI}, 6\nv_add_u32 v5, s{sT2}, v3")
    a(f"s_lshl_b32 s{sT2}, s{sFC}, 6\ns_lshl_b32 s{sT1}, s{sFW}, 4\ns_add_u32 s{sT2}, s{sT2}, s{sT1}")
    a(f"v_lshlrev_b32 v6, 2, v4\nv_add_u32 v6, s{sT2}, v6")
    a(f"v_mul_u32_u24 v7, 1152, v5\nv_lshl_add_u32 v7, v6, 1, v7")
    a(f"v_lshlrev_b32 v8, 12, v6\nv_lshl_add_u32 v8, v5, 1, v8\nv_add_u32 v8, {WS_ZT}, v8")
    a(f"v_lshlrev_b32 v9, 3, v5\nv_add_u32 v9, {WS_STATS}, v9")

PSTG = 0
def gen_xstat_loads(a, agpr=False):
    R = (lambda r, n, base: f"a[{r-base[0]+base[1]}:{r-base[0]+base[1]+n-1}]") if agpr else (lambda r, n, base: f"v[{r}:{r+n-1}]")
    for aa in range(4):
        a(f"s_mov_b32 s{sT3}, {16*1152*aa}")
        a(f"buffer_load_dwordx2 {R(FX+2*aa, 2, (FX, 64))}, v7, s[{sX}:{sX+3}], s{sT3} offen")
    for aa in range(4):
        off = f" offset:{128*aa}" if aa else ""
        a(f"buffer_load_dwordx2 {R(FST+2*aa, 2, (FST, 72))}, v9, s[{sSRDW}:{sSRDW+3}], 0 offen{off} sc1")

def gen_final_loads(a, agpr=False):
    isz = 2048
    R = (lambda r, n, base: f"a[{r-base[0]+base[1]}:{r-base[0]+base[1]+n-1}]") if agpr else (lambda r, n, base: f"v[{r}:{r+n-1}]")
    a(f"s_mul_i32 s{sT2}, s{sI}, 9\ns_add_u32 s{sT2}, s{sT2}, s{sFC}\ns_lshl_b32 s{sT2}, s{sT2}, 2\ns_add_u32 s{sT2}, s{sT2}, s{sFW}\ns_mul_i32 s{sT2}, s{sT2}, {isz}\ns_add_u32 s{sT2}, s{sT2}, {WS_PART}")
    for j in range(8):
        for q in range(2):
            r = FP + (j*2 + q)*4
            off = f" offset:{1024*q}" if q else ""
            a(f"buffer_load_dwordx4 {R(r, 4, (FP, 0))}, v{vPST}, s[{sSRDW}:{sSRDW+3}], s{sT2} offen{off} sc1")
        if j < 7: a(f"s_add_u32 s{sT2}, s{sT2}, {32*9*4*isz}")
    gen_xstat_loads(a, agpr)

def gen_stage_partials(a):
    a(f"s_mul_i32 s{sT2}, s{sI}, 9\ns_add_u32 s{sT2}, s{sT2}, s{sJ}\ns_mul_i32 s{sT2}, s{sT2}, 8192\ns_add_u32 s{sT2}, s{sT2}, {WS_PART}")
    for p in range(8):
        for h in range(2):
            a(f"s_mov_b32 m0, {PSTG + p*8192 + h*4096}\ns_add_u32 s{sT3}, s{sT2}, {h*4096}")
            for k in range(4):
                off = f" offset:{1024*k}" if k else ""
                a(f"buffer_load_dwordx4 v{vPST}, s[{sSRDW}:{sSRDW+3}], s{sT3} offen{off} sc1 lds")
        if p < 7: a(f"s_add_u32 s{sT2}, s{sT2}, {32*9*8192}")

def lds_wait_word(a, name, off):
    a(f"v_mov_b32 v2, {LDS_STAT + off}\ns_mov_b32 s{sCU}, 0")
    a.label(f"L_lw_{name}")
    a(f"ds_read_b32 v3, v2\ns_waitcnt lgkmcnt(0)\nv_readfirstlane_b32 s{sT0}, v3\ns_add_u32 s{sCU}, s{sCU}, 1")
    a(f"s_cmp_eq_u32 s{sT0}, 1\ns_cbranch_scc1 L_lwok_{name}\ns_cmp_lt_u32 s{sCU}, 200000\ns_cbranch_scc0 L_lwok_{name}\ns_sleep 1\ns_branch L_lw_{name}")
    a.label(f"L_lwok_{name}")

def gen_partials_from_lds(a):
    a(f"s_lshl_b32 s{sT0}, s{sW}, 11\nv_add_u32 v2, s{sT0}, v{vPST}")
    for p in range(8):
        for q in range(2):
            r = FP + (p*2 + q)*4
            a(f"ds_read_b128 v[{r}:{r+3}], v2 offset:{PSTG + p*8192 + q*1024}")
    a("s_waitcnt lgkmcnt(0)")

FZ2 = 84
def gen_final_z(a, tag, stamps=False):
    a(f"s_mov_b32 s{sCU}, 0")
    a.label(f"L_zre_{tag}")
    for aa in range(4):
        for e in range(4):
            off = f" offset:{32*aa}" if aa else ""
            a(f"s_mov_b32 s{sT3}, {e*4096}")
            a(f"buffer_load_ushort v{FZ+4*aa+e}, v8, s[{sSRDW}:{sSRDW+3}], s{sT3} offen{off} sc1")
    a(f"s_cmp_lg_u32 s{sST}, 1\ns_cbranch_scc1 L_z1_{tag}")
    for aa in range(4):
        for e in range(4):
            off = f" offset:{32*aa}" if aa else ""
            a(f"s_mov_b32 s{sT3}, {e*4096}")
            a(f"buffer_load_ushort v{FZ2+4*aa+e}, v101, s[{sSRDW}:{sSRDW+3}], s{sT3} offen{off} sc1")
    a("s_waitcnt vmcnt(0)")
    a(f"v_max3_u32 v2, v{FZ2}, v{FZ2+1}, v{FZ2+2}")
    for k in range(3, 15, 2): a(f"v_max3_u32 v2, v2, v{FZ2+k}, v{FZ2+k+1}")
    a(f"v_max_u32 v3, v2, v{FZ2+15}")
    a(f"s_branch L_z2_{tag}")
    a.label(f"L_z1_{tag}")
    a("s_waitcnt vmcnt(0)\nv_mov_b32 v3, 0")
    a.label(f"L_z2_{tag}")
    a(f"v_max3_u32 v2, v{FZ}, v{FZ+1}, v{FZ+2}")
    for k in range(3, 15, 2): a(f"v_max3_u32 v2, v2, v{FZ+k}, v{FZ+k+1}")
    a(f"v_max3_u32 v2, v2, v{FZ+15}, v3")
    a(f"v_cmp_eq_u32 vcc, 0xffff, v2\ns_add_u32 s{sCU}, s{sCU}, 1\ns_nop 0\ns_cmp_eq_u64 vcc, 0\ns_cbranch_scc1 L_zok_{tag}")
    a(f"s_cmp_lt_u32 s{sCU}, 5000\ns_cbranch_scc0 L_zok_{tag}\ns_sleep 2\ns_branch L_zre_{tag}")
    a.label(f"L_zok_{tag}")
    stamp(a, 29, stamps)

def gen_final_sum(a):
    a(f"s_mov_b32 s{sT3}, 0xffff0000")
    T = 240
    for j in range(8):
        for D in range(8):
            src = FP + 8*j + D
            if j == 0:
                a(f"v_lshlrev_b32 v{FS+2*D}, 16, v{src}\nv_and_b32 v{FS+2*D+1}, s{sT3}, v{src}")
            else:
                tt = T + 2*(D % 2)
                a(f"v_lshlrev_b32 v{tt}, 16, v{src}\nv_and_b32 v{tt+1}, s{sT3}, v{src}")
                a(f"v_pk_add_f32 v[{FS+2*D}:{FS+2*D+1}], v[{FS+2*D}:{FS+2*D+1}], v[{tt}:{tt+1}]")

OUTFL = ['']
XN, XF, R2, FF = 32, 48, 64, 68
def _unp(a, dst, src, M):
    a(f"v_lshlrev_b32 v{dst}, 16, v{src}\nv_and_b32 v{dst+1}, s{M}, v{src}\nv_lshlrev_b32 v{dst+2}, 16, v{src+1}\nv_and_b32 v{dst+3}, s{M}, v{src+1}")
def _pk(a, dst, src):
    a(f"v_cvt_pk_bf16_f32 v{dst}, v{src}, v{src+1}\nv_cvt_pk_bf16_f32 v{dst+1}, v{src+2}, v{src+3}")

def gen_final_pre_a(a):
    T = 240; M = sT3
    a(f"s_mov_b32 s{sT3}, 0xffff0000")
    for aa in range(4): a(f"v_rcp_f32 v{T+aa}, v{FST+2*aa+1}")
    a("s_nop 0")
    for aa in range(4): a(f"v_mul_f32 v{R2+aa}, v{T+aa}, v{T+aa}")
    for aa in range(4):
        P2 = T + 4 + 2*(aa % 2)
        _unp(a, XF+4*aa, FX+2*aa, M)
        for e in range(4): a(f"v_sub_f32 v{XN+4*aa+e}, v{XF+4*aa+e}, v{FST+2*aa}")
        _pk(a, P2, XN+4*aa); _unp(a, XN+4*aa, P2, M)
        for e in range(4): a(f"v_mul_f32 v{XN+4*aa+e}, v{XN+4*aa+e}, v{T+aa}")
        _pk(a, P2, XN+4*aa); _unp(a, XN+4*aa, P2, M)

def gen_final_pre_b(a):
    T = 244; M = sT3
    a(f"s_mov_b32 s{sT3}, 0xffff0000")
    for aa in range(4):
        P2 = T + 2*(aa % 2)
        for e in range(4): a(f"v_mul_f32 v{FF+4*aa+e}, v{FS+4*aa+e}, v{R2+aa}")
        _pk(a, P2, FF+4*aa); _unp(a, FF+4*aa, P2, M)

def gen_final_combine(a):
    U = 176; M = sT3
    a(f"s_mov_b32 s{sT3}, 0xffff0000")
    for aa in range(4):
        V4 = U + 8*(aa % 2)
        for e in range(4):
            a(f"v_lshlrev_b32 v{V4+e}, 16, v{FZ+4*aa+e}")
        for e in range(4): a(f"v_mul_f32 v{V4+e}, v{V4+e}, v{XN+4*aa+e}")
        _pk(a, V4+4, V4); _unp(a, V4, V4+4, M)
        for e in range(4): a(f"v_add_f32 v{V4+e}, v{V4+e}, v{XF+4*aa+e}")
        _pk(a, V4+4, V4); _unp(a, V4, V4+4, M)
        for e in range(4): a(f"v_add_f32 v{V4+e}, v{V4+e}, v{FF+4*aa+e}")
        _pk(a, V4+6, V4)
        a(f"s_mov_b32 s{sT2}, {16*1152*aa}")
        a(f"buffer_store_dwordx2 v[{V4+6}:{V4+7}], v7, s[{sOUT}:{sOUT+3}], s{sT2} offen" + OUTFL[0])

def gen_kernel(name, fp32_part=False, opts=None, stamps=False, mapping="32x1"):
    opts = opts or {}
    nodma = opts.get("no_dma")
    set_p1(opts.get("p1d", 3))
    a = Asm()
    a(f".globl {name}\n.p2align 8\n.type {name},@function\n{name}:")
    a("s_cmp_ge_u32 s2, 256\ns_cbranch_scc1 L_done")
    a("s_load_dwordx4 s[80:83], s[0:1], 0")
    a("s_load_dwordx4 s[88:91], s[0:1], 16")
    a("s_load_dwordx4 s[68:71], s[0:1], 32")
    a("s_load_dwordx4 s[4:7], s[0:1], 56")
    a("s_load_dwordx4 s[16:19], s[0:1], 72")
    a("s_load_dwordx4 s[44:47], s[0:1], 88")
    if stamps:
        a("s_memrealtime s[58:59]\ns_memtime s[50:51]")
    a(f"v_lshrrev_b32 v2, 6, v0\nv_and_b32 v{vLANE}, 63, v0")
    a(f"v_readfirstlane_b32 s{sW}, v2")
    if mapping == "32x1":
        a(f"s_and_b32 s{sJ}, s2, 7\ns_lshr_b32 s{sI}, s2, 3"); nshare = 32
        a(f"s_lshl_b32 s{sOM}, s{sI}, 2")
    elif mapping == "16x2":
        a(f"s_and_b32 s{sT0}, s2, 3\ns_lshl_b32 s{sT0}, s{sT0}, 1\ns_bfe_u32 s{sT1}, s2, 0x10003\ns_add_u32 s{sJ}, s{sT0}, s{sT1}")
        a(f"s_bfe_u32 s{sT0}, s2, 0x10002\ns_lshl_b32 s{sT0}, s{sT0}, 4\ns_lshr_b32 s{sT1}, s2, 4\ns_add_u32 s{sI}, s{sT0}, s{sT1}"); nshare = 16
        a(f"s_lshl_b32 s{sOM}, s{sT1}, 2")
    elif mapping == "8x4":
        a(f"s_and_b32 s{sT0}, s2, 1\ns_lshl_b32 s{sT0}, s{sT0}, 2\ns_bfe_u32 s{sT1}, s2, 0x20003\ns_add_u32 s{sJ}, s{sT0}, s{sT1}")
        a(f"s_bfe_u32 s{sT0}, s2, 0x20001\ns_lshl_b32 s{sT0}, s{sT0}, 3\ns_lshr_b32 s{sT1}, s2, 5\ns_add_u32 s{sI}, s{sT0}, s{sT1}"); nshare = 8
        a(f"s_lshl_b32 s{sOM}, s{sT1}, 2")
    a(f"v_lshlrev_b32 v{vPST}, 4, v{vLANE}")
    if not opts.get("no_codepf"):
        a("s_getpc_b64 s[52:53]")
        a.label("L_pc")
        a(f"s_sub_u32 s52, s52, L_pc-{name}\ns_subb_u32 s53, s53, 0")
        a(f"s_lshr_b32 s54, s2, 3\ns_and_b32 s54, s54, 3\ns_cmp_lg_u32 s54, s{sW}\ns_cbranch_scc1 L_nocpf")
        a(f"s_lshl_b32 s54, s{sW}, 13\nv_lshlrev_b32 v2, 7, v{vLANE}\nv_add_u32 v2, s54, v2\nv_min_u32 v2, L_done-{name}, v2")
        a(f"global_load_dword v{vDUM+3}, v2, s[52:53]")
        a.label("L_nocpf")
    a(f"s_add_u32 s{sOM}, s{sOM}, s{sW}")
    a(f"s_and_b32 s{sPAR}, s{sJ}, {0 if mapping == '32x1' else 1}")
    gen_q_addr(a, 0)
    a(f"s_mov_b32 s99, s{sT0}")
    a("s_waitcnt lgkmcnt(0)")
    a("s_mov_b32 s84, s82\ns_mov_b32 s85, s83")
    a(f"s_mov_b32 s{sQ+2}, {2048*576*2}\ns_mov_b32 s{sQ+3}, 0x00020000\ns_mov_b32 s{sT0}, s99")
    QREG = 176
    q0l = Asm(); gen_q_loads(q0l, QREG, 0, addr=False)
    early0 = len(a.lines)
    a.lines += tag_vm(q0l.lines, "q0")
    a("s_mov_b32 s92, s90\ns_mov_b32 s93, s91")
    a("s_mov_b32 s96, s70\ns_mov_b32 s97, s71")
    a("s_mov_b32 s8, s6\ns_mov_b32 s9, s7")
    a("s_mov_b32 s64, s18\ns_mov_b32 s65, s19")
    a("s_mov_b32 s12, s46\ns_mov_b32 s13, s47")
    a("s_mov_b32 s72, s80\ns_mov_b32 s73, s81")
    a(f"s_mov_b32 s18, {576*4608*2}\ns_mov_b32 s19, 0x00020000")
    for srd, n in ((sSRDA, 576*4608*2), (sSRDB, 576*4608*2), (sSRDW, WS_SIZE), (sDBG, 256), (sK, 2048*576*2), (sV, 2048*576*2), (sSK, 576*4*2), (sD, 576*2), (sOUT, 2048*576*2), (sX, 2048*576*2)):
        a(f"s_mov_b32 s{srd+2}, {n}\ns_mov_b32 s{srd+3}, 0x00020000")
    if stamps:
        a("v_mov_b32 v249, 0\nv_writelane_b32 v249, s50, 0")
    stamp(a, 1, stamps)
    p0 = early0
    QREG, KREG, vP9, vRUN = 176, 72, 250, 251
    def blk(fn, tag=None):
        t = Asm(); fn(t)
        return tag_vm(t.lines, tag) if tag else t.lines
    def B_pf0(t):
        gen_pf_setup(t, nshare)
        t(f"s_mul_i32 s{sPFO}, s{sJ}, 1152")
        t(f"buffer_load_dword v{vDUM}, v{vPF}, s[{sSRDA}:{sSRDA+3}], s{sPFO} offen")
        t(f"buffer_load_dword v{vDUM+1}, v{vPF}, s[{sSRDB}:{sSRDB+3}], s{sPFO} offen")
        t(f"s_add_u32 s{sPFO}, s{sPFO}, 128")
    def B_pf12(t):
        for r in range(2):
            t(f"buffer_load_dword v{vDUM}, v{vPF}, s[{sSRDA}:{sSRDA+3}], s{sPFO} offen")
            t(f"buffer_load_dword v{vDUM+1}, v{vPF}, s[{sSRDB}:{sSRDB+3}], s{sPFO} offen")
            t(f"s_add_u32 s{sPFO}, s{sPFO}, 128")
    def B_clr(t):
        t(f"v_mov_b32 v2, s{sPFLG}\nv_mov_b32 v3, 0x7ff00000\nv_cmp_eq_u32 vcc, 0, v{vLANE}\nv_mov_b32 v4, 0\ns_nop 0\nv_cndmask_b32 v2, v3, v2, vcc")
        t(f"buffer_store_dword v4, v2, s[{sSRDW}:{sSRDW+3}], 0 offen sc1")
        t(f"s_lshl_b32 s{sT2}, s{sC}, 12\ns_add_u32 s{sT2}, s{sT2}, {WS_ZT}\ns_cmp_lt_u32 s{sC}, 576\ns_cselect_b32 s{sT2}, s{sT2}, 0x7ff00000")
        for r in range(4): t(f"v_mov_b32 v{116+r}, -1")
        for k in range(4):
            off = f" offset:{1024*k}" if k else ""
            t(f"buffer_store_dwordx4 v[116:119], v{vPST}, s[{sSRDW}:{sSRDW+3}], s{sT2} offen{off} sc1")
    def B_setup(t):
        t(f"v_lshrrev_b32 v2, 3, v{vLANE}\nv_and_b32 v3, 7, v{vLANE}\nv_lshrrev_b32 v4, 1, v3\nv_and_b32 v5, 1, v3\nv_lshlrev_b32 v5, 4, v5")
        t(f"v_bfe_u32 v6, v{vLANE}, 4, 1\nv_lshlrev_b32 v7, 1, v6")
        t(f"s_mul_i32 s{sT0}, s{sW}, 24\nv_add_u32 v23, s{sT0}, v2\ns_movk_i32 s{sT1}, 9216\nv_mul_lo_u32 v21, v23, s{sT1}")
        for k in range(3):
            t(f"s_add_u32 s{sT1}, s{sW}, {k}\ns_and_b32 s{sT1}, s{sT1}, 1\ns_lshl_b32 s{sT1}, s{sT1}, 1")
            t(f"v_or_b32 v22, s{sT1}, v6\nv_xor_b32 v22, v4, v22\nv_lshlrev_b32 v22, 5, v22\nv_add3_u32 v22, v21, v22, v5")
            t(f"v_add_u32 v{VDG[k]}, {8*k*9216 - 1024*k}, v22\nv_mov_b32 v{VDU[k]}, v{VDG[k]}")
        t(f"s_mul_i32 s{sM0}, s{sW}, 3072\ns_add_u32 s{sM0+1}, s{sM0}, 12288")
        t(f"s_mul_i32 s{sT0}, s{sW}, 72\nv_add_u32 v23, s{sT0}, v2\ns_movk_i32 s{sT1}, 1152\nv_mul_lo_u32 v21, v23, s{sT1}")
        t(f"v_lshrrev_b32 v22, 1, v3\nv_bfe_u32 v23, v{vLANE}, 4, 2\nv_xor_b32 v22, v22, v23\nv_lshlrev_b32 v22, 5, v22\nv_and_b32 v23, 1, v3\nv_lshlrev_b32 v23, 4, v23\nv_add3_u32 v22, v21, v22, v23")
        for k in range(4): t(f"v_add_u32 v{vD2+k}, {8*k*1152 - 1024*k}, v22")
        t(f"v_and_b32 v2, 15, v{vLANE}\nv_bfe_u32 v3, v{vLANE}, 4, 1\nv_lshrrev_b32 v4, 5, v{vLANE}\nv_lshrrev_b32 v5, 2, v2\nv_bfe_u32 v6, v2, 3, 1")
        t(f"v_lshrrev_b32 v7, 4, v{vLANE}\nv_lshl_add_u32 v7, v7, 3, v5\nv_lshlrev_b32 v7, 7, v7\nv_lshl_add_u32 v21, v3, 1, v6\nv_xor_b32 v21, s{sW}, v21\nv_lshlrev_b32 v21, 5, v21")
        t(f"v_and_b32 v22, 3, v2\nv_lshlrev_b32 v22, 3, v22\nv_add3_u32 v{vRA1}, v7, v21, v22")
        t(f"v_add_u32 v{vRA1b}, 65536, v{vRA1}\nv_add_u32 v{vRA1c}, 131072, v{vRA1}")
        t(f"v_lshrrev_b32 v7, 4, v{vLANE}\nv_lshl_add_u32 v7, v7, 2, v5")
        t(f"v_bfe_u32 v21, v7, 1, 2\nv_xor_b32 v21, s{sW}, v21\nv_lshlrev_b32 v21, 5, v21\nv_lshlrev_b32 v7, 7, v7")
        t(f"v_add3_u32 v{vRA2}, v7, v21, v22\nv_add_u32 v{vRA2b}, 32768, v{vRA2}")
        t(f"s_mov_b32 s{sHIDX}, 0\ns_mov_b32 s{sB2}, 0")
        t(f"s_lshl_b32 s{sT0}, s{sJ}, 5\ns_add_u32 s{sT0}, s{sT0}, s{sI}\ns_mul_i32 s{sT0}, s{sT0}, {9*4*2048}\ns_mul_i32 s{sT1}, s{sW}, 2048\ns_add_u32 s{sT0}, s{sT0}, s{sT1}\ns_add_u32 s{sPOFF}, s{sT0}, {WS_PART}")
        t(f"s_mul_i32 s{sSOFF}, s{sJ}, {576*2}\ns_mov_b32 s{sINC}, {96*9216}")
        t(f"s_mov_b32 s{sINCW}, {(-5*96*9216 + (0 if opts.get('same_cols') else 128)) & 0xffffffff}")
        t(f"s_lshl_b32 s{sT0}, s{sI}, 7\ns_lshl_b32 s{sT1}, s{sJ}, 4\ns_add_u32 s{sT1}, s{sT1}, s{sT0}\ns_lshl_b32 s{sT0}, s{sW}, 2\ns_add_u32 s{sT1}, s{sT1}, s{sT0}\ns_add_u32 s{sPFLG}, s{sT1}, {WS_FLAG}")
        t(f"s_lshl_b32 s{sC}, s{sW}, 8\ns_add_u32 s{sC}, s{sC}, s2")
        gen_ln_setup(t)
    def B_dma012(t):
        for st in range(3):
            if st: t(f"s_add_u32 s{sSOFF}, s{sSOFF}, s{sINC}")
            tt = Asm(); dma1_group(tt, st)
            t.lines += tag_vm(tt.lines, "pair0") if st < 2 else tt.lines
    def B_frags(t):
        t(f"v_add_u32 v{vHR}, {HB}, v{vPST}\nv_add_u32 v2, {65536}, v{vHR}")
        for f in range(72):
            if f < 64: t(f"ds_read_b128 {xn_frag(f)}, v{vHR} offset:{f*1024}")
            else: t(f"ds_read_b128 {xn_frag(f)}, v2 offset:{(f-64)*1024}")
    a.lines += blk(B_pf0)
    a.lines += blk(B_setup)
    stamp(a, 2, stamps)
    if mapping != "32x1": a("s_waitcnt vmcnt(@q0)")
    a.lines += blk(lambda t: gen_q_loads(t, QREG, 1), "q1")
    a("s_waitcnt vmcnt(@q0)")
    stamp(a, 3, stamps)
    gen_ln_pass(a, QREG, 0)
    stamp(a, 6, stamps)
    a("s_waitcnt vmcnt(@q1)")
    a.lines += blk(B_pf12)
    a.lines += blk(lambda t: gen_kv_loads(t, KREG, vP9, vRUN), "kv")
    stamp(a, 5, stamps)
    gen_ln_pass(a, QREG, 1)
    a("s_waitcnt lgkmcnt(0)")
    stamp(a, 4, stamps)
    a("s_barrier")
    stamp(a, 7, stamps)
    fr = blk(B_frags); dm = groups_of(blk(B_dma012))
    interleave(a, fr, dm, start=4)
    a("s_waitcnt lgkmcnt(0)")
    stamp(a, 8, stamps)
    a("s_barrier")
    a(f"s_add_u32 s{sSOFF}, s{sSOFF}, s{sINC}")
    dma1_group(a, 3)
    a(f"s_add_u32 s{sSOFF}, s{sSOFF}, s{sINC}")
    dma1_group(a, 4, 0, 12 - P1_BAR)
    gen_pf_unit(a, nshare)
    stamp(a, 9, stamps)
    stamp(a, 10, stamps)
    a("s_waitcnt vmcnt(@pair0)")
    stamp(a, 11, stamps)
    a("s_barrier")
    lk = Lgkm(a)
    for kk in range(P1_D): p1_read(lk, kk, kk % P1_NB, ("A", kk))
    a(f"s_mov_b32 s{sCNT}, 4\ns_mov_b32 s62, 32\ns_mov_b32 s{sHIDX}, 8")
    stamp(a, 12, stamps)
    pre = list(lk.q)
    def post_bar(a_, lk_):
        t = Asm(); gen_kv_store(t); B_clr(t)
        for l in t.lines:
            if l.startswith("ds_read"): lk_.issue(("X", l), l)
            elif l == "s_waitcnt lgkmcnt(0)": a_(l); lk_.wait_all_keep = True; lk_.q = []
            else: a_(l)
    r0 = len(a.lines)
    gen_round(a, lk, 0, 1, "Z", opts=opts, extra=kv_compute_ops(vP9, vRUN))
    check_hazards(a.lines[r0:], "round0")
    a.lines[p0:] = resolve_vm(a.lines[p0:])
    a(f"v_and_b32 v2, 15, v{vLANE}\nv_lshlrev_b32 v2, 2, v2\nv_add_u32 v2, {LDS_STAT}, v2")
    for n in range(4): a(f"ds_read_b32 v{3+n}, v2 offset:{64*n}")
    a("s_waitcnt lgkmcnt(0)")
    for n in range(4):
        a(f"v_mul_f32 v7, v{3+n}, v{3+n}\nv_mul_f32 v{VC0[n]}, {hex(f2u(C0))}, v{3+n}\nv_mul_f32 v7, v7, v{3+n}\nv_mul_f32 v{VC1[n]}, {hex(f2u(C1))}, v7")
    a(f"s_mov_b32 s{sCNT}, 3")
    lk.q = list(pre)
    a.label("L_roundA")
    b0 = len(a.lines)
    gen_round(a, lk, 1, 0, "A", opts=opts)
    a.label("L_roundB")
    gen_round(a, lk, 0, 1, "B", last_check=True, opts=opts)
    assert lk.q == pre, (lk.q, pre)
    a(f"s_sub_u32 s{sCNT}, s{sCNT}, 1\ns_cmp_ge_i32 s{sCNT}, 0\ns_cbranch_scc1 L_roundA")
    check_hazards(a.lines[b0:] + a.lines[b0:], "phase1")
    a("s_waitcnt lgkmcnt(0)")
    stamp(a, 13, stamps)
    a("s_waitcnt vmcnt(0)")
    a("s_barrier")
    a(f"s_lshr_b32 s{sT0}, s{sW}, 1\ns_lshl_b32 s{sT0}, s{sT0}, 12\ns_and_b32 s{sT1}, s{sW}, 1\ns_lshl_b32 s{sT1}, s{sT1}, 3\ns_add_u32 s{sT0}, s{sT0}, s{sT1}")
    a(f"v_add_u32 v30, s{sT0}, v{vHR}\nv_add_u32 v31, 32768, v30")
    side = Asm()
    gen_kv_store(side)
    side.lines += blk(B_clr)
    gen_conv_issue(side, stamps)
    tmp = Asm(); gen_wd_pf(tmp, nshare, 4, 9)
    for l in tmp.lines: side(l.replace("v123", "v10X").replace("v124", "v127").replace("v125", "v5").replace("v10X", "v4"))
    groups, cur, hold = [], [], 0
    for l in side.lines:
        cur.append(l)
        if l.startswith("s_cbranch"): hold = 1
        if l.endswith(":"): hold = 0
        if not hold and (l.startswith("buffer_") or l.startswith("s_waitcnt") or l.endswith(":")):
            groups.append(cur); cur = []
    if cur: groups.append(cur)
    hw = []
    def hwrite(rho, src, nt):
        off = rho*8192 + nt*1024
        return f"ds_write_b64 v{30 if off < 32768 else 31}, v[{src+2*nt}:{src+2*nt+1}] offset:{off if off < 32768 else off - 32768}"
    for rho in range(8):
        src = HREG + 8*(rho+1)
        hw.append([hwrite(rho, src, 0), hwrite(rho, src, 1)]); hw.append([hwrite(rho, src, 2), hwrite(rho, src, 3)])
    merged = groups[:2]
    rest = groups[2:]
    k = 0
    while rest or hw:
        if rest: merged.append(rest.pop(0))
        if hw: merged.append(hw.pop(0))
        if hw: merged.append(hw.pop(0))
    interleave(a, gelu_ops(ACC[0]), merged, start=2)
    for nt in range(4): a(hwrite(8, HP, nt))
    a(f"v_mov_b32 v2, {LDS_STAT}\nv_mov_b32 v3, 0\nds_write_b32 v2, v3\nds_write_b32 v2, v3 offset:4")
    stamp(a, 16, stamps)
    a("s_waitcnt lgkmcnt(0)\ns_barrier")
    a(f"v_add_u32 v2, 65536, v{vHR}")
    for K in range(18):
        for nt in range(4):
            f = 4*K + nt
            a(f"ds_read_b128 {h_frag(K, nt)}, v{vHR if f < 64 else 2} offset:{(f % 64)*1024}")
    a("s_waitcnt lgkmcnt(0)\ns_barrier")
    a(f"s_mov_b32 s{sSRDA+2}, {576*4608*2}\ns_mov_b32 s{sSRDB+2}, {576*4608*2}")
    a(f"s_mul_i32 s{sSOFF}, s{sJ}, {576*1152}\ns_add_u32 s{sSOFF}, s{sSOFF}, {0 if opts.get('same_cols') else 128}")
    a(f"s_mov_b32 s{sINC}, {192*1152}")
    a(f"s_mov_b32 s{sINCW}, {(-2*192*1152 + (0 if opts.get('same_cols') else 128)) & 0xffffffff}")
    if not nodma:
        dma1_group(a, 3)
        a(f"s_add_u32 s{sSOFF}, s{sSOFF}, s{sINC}")
        dma1_group(a, 4)
        a(f"s_mov_b32 s{sT0}, 0x7ff00000")
        for k in range(2): a(f"buffer_load_dword v{vDUM+k}, v{vPST}, s[{sSRDA}:{sSRDA+3}], s{sT0} offen")
    lk = Lgkm(a)
    for F in range(P2_D): p2_read(lk, F, F % P2_NB, ("B", F))
    pre2 = list(lk.q)
    a(f"s_mov_b32 s{sCNT}, 9")
    stamp(a, 14, stamps)
    a.label("L_p2")
    bs = len(a.lines)
    gen_p2_chunk(a, lk, opts, dma=True)
    assert lk.q == pre2 or opts.get("rstamp"), (lk.q, pre2)
    a(f"s_cmp_gt_u32 s{sCNT}, 2\ns_cbranch_scc1 L_p2")
    check_hazards(a.lines[bs:] + a.lines[bs:], "phase2")
    a.label("L_p2b")
    bs = len(a.lines)
    lk.q = list(pre2)
    gen_p2_chunk(a, lk, opts, dma=False, tag="b")
    a(f"s_cmp_gt_u32 s{sCNT}, 0\ns_cbranch_scc1 L_p2b")
    check_hazards(a.lines[bs:] + a.lines[bs:], "phase2b")
    stamp(a, 15, stamps)
    a("s_waitcnt lgkmcnt(0)")
    a("s_barrier")
    a(f"s_mov_b32 s{sFC}, s{sJ}\ns_mov_b32 s{sFW}, s{sW}")
    c0 = len(a.lines)
    gen_conv_main(a, stamps)
    stamp(a, 27, stamps)
    gen_final_addr(a)
    gen_xstat_loads(a)
    a(f"s_cmp_lg_u32 s{sW}, 0\ns_cbranch_scc1 L_nosig\nv_mov_b32 v2, {LDS_STAT}\nv_mov_b32 v3, 1\nds_write_b32 v2, v3")
    a.label("L_nosig")
    check_hazards(a.lines[c0:], "conv")
    stamp(a, 20, stamps)
    a(f"s_mov_b32 s{sST}, 3")
    a("s_branch L_stg")
    a.label("L_noconv")
    publish_partial(a, 2)
    a(f"s_mov_b32 s{sST}, 3")
    a(f"s_cmp_eq_u32 s{sW}, 3\ns_cbranch_scc1 L_w3")
    gen_final_addr(a)
    gen_xstat_loads(a)
    a("s_branch L_stg")
    a.label("L_w3")
    a(f"s_lshl_b32 s{sT0}, s{sI}, 7\ns_add_u32 s{sT0}, s{sT0}, {WS_FLAG}\nv_and_b32 v12, 31, v{vLANE}\nv_lshlrev_b32 v12, 2, v12\nv_add_u32 v12, s{sT0}, v12")
    poll(a, "pB", 12, sSRDW, "0", 1, sCU, cmp="ge", sleep=2)
    gen_stage_partials(a)
    gen_final_addr(a)
    gen_xstat_loads(a)
    a("s_waitcnt vmcnt(0)")
    a(f"v_mov_b32 v2, {LDS_STAT + 4}\nv_mov_b32 v3, 1\nds_write_b32 v2, v3")
    a(f"s_lshr_b32 s{sT0}, s{sJ}, 2\ns_and_b32 s{sT1}, s{sI}, 1\ns_cmp_lg_u32 s{sT0}, s{sT1}\ns_cbranch_scc1 L_stg")
    a(f"s_mov_b32 s{sST}, 0\nv_mov_b32 v100, v7\nv_mov_b32 v101, v8")
    a(f"s_mov_b32 s{sFC}, 8\ns_and_b32 s{sFW}, s{sJ}, 3")
    gen_pflag_addr(a, 12, f"s{sFW}")
    poll(a, "pC", 12, sSRDW, "0", 2, sCU, cmp="ge", sleep=2)
    gen_final_addr(a)
    gen_final_loads(a, agpr=True)
    a.label("L_stg")
    f0 = len(a.lines)
    a(f"s_cmp_eq_u32 s{sST}, 0\ns_cbranch_scc1 L_prea\ns_waitcnt vmcnt(0)")
    a.label("L_prea")
    gen_final_pre_a(a)
    a(f"s_cmp_eq_u32 s{sST}, 1\ns_cbranch_scc1 L_fin2")
    lds_wait_word(a, "stg", 4)
    gen_partials_from_lds(a)
    a.label("L_fin2")
    stamp(a, 22, stamps)
    gen_final_sum(a)
    gen_final_pre_b(a)
    a(f"s_cmp_lg_u32 s{sST}, 0\ns_cbranch_scc1 L_zbar")
    for k in range(52): a(f"v_accvgpr_write_b32 a{80+k}, v{32+k}")
    a("s_waitcnt vmcnt(0)")
    for k in range(64): a(f"v_accvgpr_read_b32 v{FP+k}, a{k}")
    for k in range(8): a(f"v_accvgpr_read_b32 v{FX+k}, a{64+k}")
    for k in range(8): a(f"v_accvgpr_read_b32 v{FST+k}, a{72+k}")
    a(f"s_mov_b32 s{sST}, 1\ns_branch L_prea")
    a.label("L_zbar")
    a(f"s_cmp_lt_u32 s{sC}, 576\ns_cbranch_scc1 L_zgo")
    a(f"v_mov_b32 v2, {LDS_STAT}\ns_mov_b32 s{sCU}, 0")
    a.label("L_zwait")
    a(f"ds_read_b32 v3, v2\ns_waitcnt lgkmcnt(0)\nv_readfirstlane_b32 s{sT0}, v3\ns_add_u32 s{sCU}, s{sCU}, 1")
    a(f"s_cmp_eq_u32 s{sT0}, 1\ns_cbranch_scc1 L_zgo\ns_cmp_lt_u32 s{sCU}, 100000\ns_cbranch_scc0 L_zgo\ns_sleep 2\ns_branch L_zwait")
    a.label("L_zgo")
    stamp(a, 28, stamps)
    gen_final_z(a, "A", stamps)
    a.label("L_comb")
    gen_final_combine(a)
    stamp(a, 31, stamps)
    check_hazards(a.lines[f0:], "final")
    a(f"s_cmp_lg_u32 s{sST}, 1\ns_cbranch_scc1 L_final_done")
    a("s_nop 1")
    for k in range(52): a(f"v_accvgpr_read_b32 v{32+k}, a{80+k}")
    a("v_mov_b32 v7, v100\nv_mov_b32 v8, v101")
    for k in range(16): a(f"v_mov_b32 v{FZ+k}, v{FZ2+k}")
    a(f"s_mov_b32 s{sST}, 2\ns_branch L_comb")
    a.label("L_final_done")
    if stamps:
        a("s_waitcnt vmcnt(0)")
        stamp(a, 23, stamps)
        a("s_memrealtime s[60:61]\ns_waitcnt lgkmcnt(0)\ns_sub_u32 s60, s60, s58\nv_writelane_b32 v249, s60, 24")
        a(f"s_lshl_b32 s34, s2, 2\ns_add_u32 s34, s34, s{sW}\ns_lshl_b32 s34, s34, 8\ns_add_u32 s34, s34, {WS_STAMP2}")
        a(f"v_lshlrev_b32 v6, 2, v{vLANE}")
        a(f"buffer_store_dword v249, v6, s[{sSRDW}:{sSRDW+3}], s34 offen\ns_waitcnt vmcnt(0)")
    a.label("L_done")
    a("s_endpgm")
    return a

def kv_compute_ops(vP9, vRUN):
    PP, AC, VU = 208, 240, 160
    ops = ["s_mov_b32 s53, 0xffff0000", "s_mov_b32 s52, 0x05040100", "s_mov_b32 s98, 0x07060302"]
    def mkP(p):
        r = p + 1; o = []
        for e in range(4):
            o.append(f"v_perm_b32 v{PP+8*(p%4)+2*e}, v{KRAW+4*(r-1)+e}, v{KRAW+4*r+e}, s52")
            o.append(f"v_perm_b32 v{PP+8*(p%4)+2*e+1}, v{KRAW+4*(r-1)+e}, v{KRAW+4*r+e}, s98")
        return o
    ops += [f"v_lshlrev_b32 v6, 2, v{vRUN}", "v_sub_u32 v6, 63, v6", "v_mul_u32_u24 v6, 160, v6", f"v_lshl_add_u32 v6, v{vP9}, 4, v6", f"v_add_u32 v6, {LDS_KV - 3*160}, v6"]
    ops += mkP(0) + mkP(1)
    for tok in range(4):
        ops += mkP(tok + 2)
        for c in range(8):
            ops.append(f"v_dot2_f32_bf16 v{AC+c}, v{PP+8*(tok%4)+c}, v{KCO+2*c+1}, 0")
        for c in range(8):
            ops.append(f"v_dot2_f32_bf16 v{AC+c}, v{PP+8*((tok+2)%4)+c}, v{KCO+2*c}, v{AC+c}")
        for e in range(4):
            ops += [f"v_lshlrev_b32 v{VU+2*e}, 16, v{VRAW+4*tok+e}", f"v_and_b32 v{VU+2*e+1}, s53, v{VRAW+4*tok+e}"]
        for c in range(8):
            ops.append(f"v_mul_f32 v{AC+c}, v{AC+c}, v{VU+c}")
        for e in range(4):
            ops.append(f"v_cvt_pk_bf16_f32 v{VU+8+e}, v{AC+2*e}, v{AC+2*e+1}")
        ops.append(("ds", f"ds_write_b128 v6, v[{VU+8}:{VU+11}] offset:{(3-tok)*160}"))
    return ops

def kd(name, nvgpr_arch, nagpr, nsgpr=100):
    acc_off = (nvgpr_arch + 3)//4*4
    tot = acc_off + nagpr if nagpr else nvgpr_arch
    return f""".section .rodata,"a"
.p2align 6
.amdhsa_kernel {name}
  .amdhsa_next_free_vgpr {tot}
  .amdhsa_next_free_sgpr {nsgpr}
  .amdhsa_accum_offset {acc_off}
  .amdhsa_group_segment_fixed_size 0
  .amdhsa_kernarg_size 104
  .amdhsa_user_sgpr_count 2
  .amdhsa_user_sgpr_kernarg_segment_ptr 1
  .amdhsa_system_sgpr_workgroup_id_x 1
  .amdhsa_float_denorm_mode_32 3
.end_amdhsa_kernel
"""

NAME = "parallel_sum__ssm_conv_h3__glu_gated_geglu__prompt_kernel"
def build(fn, single_launch=True, **kw):
    a = gen_kernel(NAME, **kw)
    ref = open("parallel_sum__ssm_conv_h3__glu_gated_geglu__prompt.s.ref").read()
    hdr = []
    for l in ref.splitlines():
        if l.startswith("; Override launch"): break
        hdr.append(l)
    hdr = "\n".join(hdr) + "\n"
    hdr += f"; @launch grid=(256,1,1) block=(256,1,1) lds={LDS_TOTAL}\n"
    hdr += '.amdgcn_target "amdgcn-amd-amdhsa--gfx950"\n.text\n'
    open(fn, "w").write(hdr + a.text() + kd(NAME, 256, 256))

if __name__ == "__main__":
    import sys
    build("s_plain.s")
    build("s_st.s", stamps=True, opts={})
```

```python
from asmlib import *
import math

WS_STATS = 0x240000
WS_KVR   = 0x250000
WS_ZT    = 0x490000
WS_STAMP = 0x6D0000
WS_STAMP2 = 0x3000000
WS_FLAG  = 0x6F0000
WS_ZFLAG = 0x6F2000
WS_PART  = 0x700000
WS_SIZE  = 0x10000000

SLOT = 24576
HB   = 3*SLOT
LDS_STAT = 147456
LDS_KV   = 147456 + 256
LDS_XR   = 147456 + 256
LDS_TOTAL = 147456 + 256 + 3*4608

C0 = -2.0*math.sqrt(2.0/math.pi)*math.log2(math.e)
C1 = C0*0.044715

sSRDA, sSRDB, sSRDW = 4, 8, 12
sWD = 16
sWDS = 16
sW, sJ, sI = 20, 21, 22
sSOFF = 23
sM0 = 24
sPFO = 26
sOM = 27
sCNT = 30
sINC, sINCW = 31, 32
sT0, sT1, sT2, sT3 = 34, 35, 36, 37
sPOFF = 38
sHIDX = 39
sEX = 40
sB2 = 42
sDBG = 44
sPFA, sPFB = 80, 84
sQ, sK, sV, sSK, sD = 80, 84, 88, 92, 96
sHK = 68
sOUT = 64
sX = 72
vLANE = 1
vRA1, vRA1b, vRA1c = 8, 30, 31
vRA2, vRA2b = 9, 10
vPF = 11
VDG, VDU = [12, 13, 14], [15, 16, 17]
VC0, VC1 = [18, 21, 22, 23], [120, 121, 122, 123]
vPST = 19
vHR = 20
vD2 = 24
vPF2 = 28
sPFU = 63
ACC = [32, 64]
AF = 96
XE = 128
GT = 160
HP = 168
HREG = 176
vDUM = 252

def xn_frag(f):
    return A(4*f, 4) if f < 64 else V(XE + 4*(f-64), 4)

class Lgkm:
    def __init__(self, a):
        self.a = a; self.q = []
    def issue(self, tag, text):
        self.a(text); self.q.append(tag)
    def wait_for(self, tag):
        cand = [i for i, t in enumerate(self.q) if t == tag]
        if not cand: return
        idx = max(cand); n = len(self.q) - 1 - idx
        assert n <= 15, n
        self.a(f"s_waitcnt lgkmcnt({n})")
        self.q = self.q[idx+1:]
    def wait_all(self): self.q = []

NT = {'pf': '', 'kv': ' nt', 'q': '', 'h': ' nt'}
def resolve_vm(lines):
    out = []; ops = []
    for l in lines:
        body = l.split(";")[0].strip()
        if body.startswith("buffer_") or body.startswith("global_"):
            tag = l.split("; vm:")[1].strip() if "; vm:" in l else None
            ops.append(tag)
        if "vmcnt(@" in l:
            tag = l.split("vmcnt(@")[1].split(")")[0]
            idx = max(i for i, t in enumerate(ops) if t == tag)
            n = len(ops) - 1 - idx
            assert n <= 63
            l = l.replace(f"vmcnt(@{tag})", f"vmcnt({n})")
        out.append(l)
    return out

def tag_vm(lines, tag):
    return [l + f" ; vm:{tag}" if (l.startswith("buffer_") or l.startswith("global_")) else l for l in lines]

def stamp(a, idx, on):
    if not on: return
    a("s_memtime s[48:49]")
    a("s_waitcnt lgkmcnt(0)")
    a(f"v_writelane_b32 v249, s48, {idx}")

def gelu_ops(accP, dst=HP):
    ops = []; k = 0
    for n in range(4):
        for r in range(0, 4, 2):
            g0, g1 = accP + 4*n + r, accP + 4*n + r + 1
            u0, u1 = g0 + 16, g1 + 16
            tb = GT + 4*(k % 2)
            t0, t1, q0, q1 = tb, tb+1, tb+2, tb+3
            ops += [
                f"v_mul_f32 v{t0}, v{g0}, v{g0}", f"v_mul_f32 v{t1}, v{g1}, v{g1}",
                f"v_fma_f32 v{t0}, v{t0}, v{VC1[n]}, v{VC0[n]}", f"v_fma_f32 v{t1}, v{t1}, v{VC1[n]}, v{VC0[n]}",
                f"v_mul_f32 v{t0}, v{t0}, v{g0}", f"v_mul_f32 v{t1}, v{t1}, v{g1}",
                f"v_exp_f32 v{t0}, v{t0}", f"v_exp_f32 v{t1}, v{t1}",
                f"v_mul_f32 v{q0}, v{g0}, v{u0}", f"v_mul_f32 v{q1}, v{g1}, v{u1}",
                f"v_add_f32 v{t0}, 1.0, v{t0}", f"v_add_f32 v{t1}, 1.0, v{t1}",
                f"v_rcp_f32 v{t0}, v{t0}", f"v_rcp_f32 v{t1}, v{t1}",
                f"v_mul_f32 v{q0}, v{q0}, v{t0}", f"v_mul_f32 v{q1}, v{q1}, v{t1}",
                f"v_cvt_pk_bf16_f32 v{dst + 2*n + r//2}, v{q0}, v{q1}",
            ]
            k += 1
    return ops

def dma1(a, which, k):
    srd = sSRDA if which == 0 else sSRDB
    vo = (VDG if which == 0 else VDU)[k]
    off = f" offset:{1024*k}" if k else ""
    a(f"buffer_load_dwordx4 v{vo}, s[{srd}:{srd+3}], s{sSOFF} offen{off} lds")

def dma1_group(a, slot, q0=0, q1=6):
    for q in range(q0, q1):
        which, k = divmod(q, 3)
        if k == 0 or q == q0:
            a(f"s_add_u32 m0, s{sM0+which}, {slot*SLOT}")
            a("s_nop 0")
        dma1(a, which, k)

def p1_read(lk, kk, buf, tag):
    st, k6 = divmod(kk % 36, 6)
    off = st*SLOT + (k6 & 1)*12288 + (k6 >> 1)*4096
    base = [vRA1, vRA1b, vRA1c][off // 65536]
    off %= 65536
    assert off + 512 < 65536
    r = AF + 4*buf
    lk.issue(tag, f"ds_read_b64_tr_b16 v[{r}:{r+1}], v{base} offset:{off}")
    lk.issue(tag, f"ds_read_b64_tr_b16 v[{r+2}:{r+3}], v{base} offset:{off+512}")

P1_D = 3
P1_NB = 4
P1_BAR = 9
def set_p1(D):
    global P1_D, P1_NB, P1_BAR
    P1_D = D; P1_NB = {3: 4, 4: 6, 5: 6}[D]; P1_BAR = 12 - D
def gen_round(a, lk, cur, prev, rname, last_check=False, opts=None, extra=None, post_bar=None):
    opts = opts or {}
    nodma = opts.get("no_dma")
    accC, accP = ACC[cur], ACC[prev]
    gops = gelu_ops(accP) if not opts.get("no_gelu") else []
    if extra is not None: gops = list(extra)
    G_START, G_END = (2, 24 + P1_BAR) if extra is None else (5, 24 + P1_BAR - 1)
    nslots = (G_END - G_START) * 2
    gi = 0
    def take_gelu(slot_idx):
        nonlocal gi
        tgt = (len(gops) * (slot_idx + 1) + nslots - 1) // nslots
        out = gops[gi:tgt]; gi = max(gi, tgt)
        return out
    for kk in range(36):
        pr, ks = divmod(kk, 12)
        buf = kk % P1_NB
        a.c(f"--- round {rname} kstep {kk}")
        if opts.get("rstamp") and kk == 0: a("s_memtime s[50:51]")
        if opts.get("p1w2"):
            if kk % 2 == 0: lk.wait_for(("A", kk + 1))
        else:
            lk.wait_for(("A", kk))
        K32, part = kk >> 1, kk & 1
        def mf(nt):
            d = V(accC + 16*part + 4*nt, 4)
            a(f"v_mfma_f32_16x16x32_bf16 {d}, {V(AF+4*buf,4)}, {xn_frag(4*K32 + nt)}, {'0' if K32 == 0 else d}")
        fl = []
        if G_START <= kk < G_END:
            fl = take_gelu((kk - G_START)*2) + take_gelu((kk - G_START)*2 + 1)
        wts = opts.get("p1w", (2, 0, 1, 1))
        tot = sum(wts); cum = 0; fills = []; L = len(fl); used = 0
        for x in range(4):
            cum += wts[x]
            tgt = (L*cum + tot - 1)//tot if x < 3 else L
            fills.append(fl[used:tgt]); used = max(used, tgt)
        if ks >= P1_BAR: q12 = ks - P1_BAR; gp = pr
        else: q12 = ks + (12 - P1_BAR); gp = (pr - 1) % 3
        half, q = divmod(q12, 6); which, k = divmod(q, 3)
        slot = 2*gp + half
        def emit(x):
            if isinstance(x, tuple): lk.issue(("X", x[1]), x[1])
            else: a(x)
        mf(0)
        if extra is not None and kk == G_START: a("s_waitcnt vmcnt(@kv)")
        for x in fills[0]: emit(x)
        mf(1)
        if ks == P1_BAR:
            for x in fills[1]: emit(x)
            a("s_waitcnt vmcnt(12) lgkmcnt(0)") if not nodma else a("s_waitcnt lgkmcnt(0)")
            lk.wait_all()
            if opts.get("rstamp") and kk == P1_BAR:
                a("v_mov_b32 v2, s50\nv_cmp_eq_u32 vcc, s62, v1\ns_add_u32 s62, s62, 1\ns_nop 0\nv_cndmask_b32 v249, v249, v2, vcc")
            if not opts.get("no_barrier"): a("s_barrier")
            mf(2)
            p1_read(lk, kk+P1_D, (kk+P1_D) % P1_NB, ("A", (kk+P1_D) % 36))
            if last_check and pr == 0:
                a(f"s_cmp_lg_u32 s{sCNT}, 0\ns_cbranch_scc1 L_nosw")
                gen_switch(a)
                a.label("L_nosw")
        else:
            p1_read(lk, kk+P1_D, (kk+P1_D) % P1_NB, ("A", (kk+P1_D) % 36))
            for x in fills[1]: emit(x)
            mf(2)
        if not nodma and q == 0:
            inc = sINCW if slot == 0 else sINC
            a(f"s_add_u32 s{sSOFF}, s{sSOFF}, s{inc}")
            if last_check and slot == 3:
                a(f"s_cmp_eq_u32 s{sCNT}, 0")
                a(f"s_cselect_b32 s{sSRDA+2}, 0, s{sSRDA+2}\ns_cselect_b32 s{sSRDB+2}, 0, s{sSRDB+2}")
        if kk == G_END and gops and extra is None:
            assert gi == len(gops) and k == 0
            a(f"s_set_gpr_idx_on s{sHIDX}, gpr_idx(DST)")
            a("s_nop 0")
            for qq in range(8): a(f"v_mov_b32 v{HREG+qq}, v{HP+qq}")
            a("s_set_gpr_idx_off")
            a(f"s_add_u32 s{sHIDX}, s{sHIDX}, 8")
        if not nodma and k == 0:
            a(f"s_add_u32 m0, s{sM0 + which}, {slot*SLOT}")
        f2 = list(fills[2])
        if not nodma:
            if k == 0:
                if f2: emit(f2.pop(0))
                else: a("s_nop 0")
            dma1(a, which, k)
        for x in f2: emit(x)
        mf(3)
        if kk == P1_BAR + 11 and not nodma and not opts.get("no_pf"):
            a(f"s_sub_u32 s{sPFU}, s{sPFU}, 1\ns_cmp_lg_u32 s{sPFU}, -1\ns_cbranch_scc1 L_nopf{rname}")
            a(f"buffer_load_dword v{vDUM}, v{vPF}, s[{sPFA}:{sPFA+3}], s{sPFO} offen")
            a(f"buffer_load_dword v{vDUM+1}, v{vPF2}, s[{sPFB}:{sPFB+3}], s{sPFO} offen")
            a.label(f"L_nopf{rname}")
        for x in fills[3]: emit(x)

def gen_switch(a):
    a(f"s_mov_b32 s{sSRDA}, s{sWD}\ns_mov_b32 s{sSRDA+1}, s{sWD+1}\ns_mov_b32 s{sSRDB}, s{sWD}\ns_mov_b32 s{sSRDB+1}, s{sWD+1}")
    a(f"s_mul_i32 s{sT0}, s{sW}, {48*1152}")
    a(f"s_sub_u32 s{sT1}, {96*1152}, s{sT0}")
    for k in range(3):
        a(f"v_subrev_u32 v{VDG[k]}, s{sT0}, v{vD2+k}")
        a(f"v_add_u32 v{VDU[k]}, s{sT1}, v{vD2+k}")
    a(f"s_mul_i32 s{sSOFF}, s{sJ}, {576*1152}")
    a(f"s_mov_b32 s{sINCW}, 0")
    a(f"s_mov_b32 s{sINC}, {192*1152}")

def gen_pf_switch(a):
    a(f"s_mov_b32 s{sPFA}, s{sWD}\ns_mov_b32 s{sPFA+1}, s{sWD+1}")
    a(f"s_add_u32 s{sPFB}, s{sWD}, 256\ns_addc_u32 s{sPFB+1}, s{sWD+1}, 0")
    a(f"s_sub_u32 s{sPFB+2}, s{sPFA+2}, 256")
    a(f"v_mov_b32 v{vPF}, v{vPF2}")
    a(f"s_mul_i32 s{sPFO}, s{sJ}, {576*1152}")

S2 = 36864
def dma2(a, k):
    off = f" offset:{1024*(k%4)}" if k % 4 else ""
    a(f"buffer_load_dwordx4 v{vD2 + k%4}, s[{sSRDA}:{sSRDA+3}], s{sT3} offen{off} lds")

def dma2_pre(a, k, m0expr):
    if k % 4 == 0:
        a(m0expr(k//4))
        a(f"s_add_u32 s{sT3}, s{sSOFF}, {32*1152*(k//4)}")

def dma2_group(a, slot):
    for k in range(9):
        dma2_pre(a, k, lambda g: f"s_add_u32 m0, s{sM0}, {slot*S2 + 4096*g}")
        dma2(a, k)

def h_frag(K, nt):
    f = 4*K + nt
    return A(4*f, 4) if f < 64 else V(XE + 4*(f-64), 4)

def p2_read(lk, F, buf, tag):
    off = (F % 18)*4096
    base = vRA2
    if off + 2048 > 65535:
        base = vRA2b; off -= 32768
    r = AF + 4*buf
    lk.issue(tag, f"ds_read_b64_tr_b16 v[{r}:{r+1}], v{base} offset:{off}")
    lk.issue(tag, f"ds_read_b64_tr_b16 v[{r+2}:{r+3}], v{base} offset:{off+2048}")

P2_NB = 6
P2_D = 3
def p2_group_setup(a, st):
    inc = sINCW if st == 1 else sINC
    a(f"s_add_u32 s{sSOFF}, s{sSOFF}, s{inc}")
    if st == 0: a(f"s_xor_b32 s{sT2}, s{sB2}, {3*SLOT}\ns_add_u32 s{sT2}, s{sT2}, {2*SLOT}")
    else: a(f"s_add_u32 s{sT2}, s{sB2}, {(st-1)*SLOT}")

def p2_dma(a, q):
    which, k = divmod(q, 3)
    if k == 0: a(f"s_add_u32 m0, s{sT2}, s{sM0+which}\ns_nop 0")
    dma1(a, which, k)

def gen_p2_chunk(a, lk, opts, dma=True, tag=""):
    nodma = opts.get("no_dma")
    acc = ACC[0]
    for T in range(18):
        st, ks = divmod(T, 6)
        a.c(f"--- p2{tag} kstep {T}")
        if opts.get("rstamp") and T == 0: a("s_memtime s[50:51]")
        lk.wait_for(("B", T))
        if ks == 0:
            if not nodma:
                if dma: a(f"s_waitcnt vmcnt({22 if st == 0 else 20})")
                else:
                    n1, n2 = [(22, 10), (20, 2), (14, 2)][st]
                    a(f"s_cmp_eq_u32 s{sCNT}, 2\ns_cbranch_scc1 L_p2wa{st}\ns_waitcnt vmcnt({n2})")
                    if st == 0:
                        a(f"s_cmp_lg_u32 s{sW}, 0\ns_cbranch_scc1 L_p2wj{st}\ns_waitcnt vmcnt(2)")
                        a(f"v_cmp_eq_u32 vcc, 0x01010101, v95\ns_nop 0\ns_cmp_eq_u64 vcc, exec\ns_cbranch_scc1 L_p2wj{st}")
                        poll(a, "kv", 11, sDBG, 0, "0x01010101", sCU, cmp="eq")
                    a(f"s_branch L_p2wj{st}")
                    a.label(f"L_p2wa{st}"); a(f"s_waitcnt vmcnt({n1})"); a.label(f"L_p2wj{st}")
            if not opts.get("no_barrier"): a("s_barrier")
        def mf(nt):
            cz = "0" if T == 0 else V(acc+4*nt, 4)
            a(f"v_mfma_f32_16x16x32_bf16 {V(acc+4*nt,4)}, {V(AF+4*(T % P2_NB),4)}, {h_frag(T, nt)}, {cz}")
        mf(0)
        if T == 18 - P2_D:
            a(f"v_xor_b32 v{vRA2}, {3*SLOT}, v{vRA2}")
            a(f"v_xor_b32 v{vRA2b}, {3*SLOT}, v{vRA2b}")
        F = T + P2_D
        p2_read(lk, F, (F % 18) % P2_NB, ("B", F % 18))
        mf(1)
        if not nodma and dma:
            if ks == 0: p2_group_setup(a, st)
            which, k = divmod(ks, 3)
            if k == 0: a(f"s_add_u32 m0, s{sT2}, s{sM0+which}")
        mf(2)
        if not nodma and dma: dma1(a, ks // 3, ks % 3)
        mf(3)
        if opts.get("rstamp") and T == 4:
            a("s_waitcnt lgkmcnt(0)"); lk.wait_all()
            a("v_mov_b32 v2, s50\nv_cmp_eq_u32 vcc, s62, v1\ns_add_u32 s62, s62, 1\ns_nop 0\nv_cndmask_b32 v249, v249, v2, vcc")
        if dma and T == 8:
            a(f"s_and_b32 s{sT0}, s{sI}, 3\ns_sub_u32 s{sT0}, 8, s{sT0}\ns_cmp_lg_u32 s{sCNT}, s{sT0}\ns_cbranch_scc1 L_nokvadd\ns_cmp_lg_u32 s{sW}, 0\ns_cbranch_scc1 L_nokvadd")
            a(f"v_mov_b32 v2, s2\nv_mov_b32 v3, 1")
            a(f"v_cmp_eq_u32 vcc, 0, v{vLANE}\ns_and_saveexec_b64 s[{sEX}:{sEX+1}], vcc")
            a(f"buffer_store_byte v3, v2, s[{sDBG}:{sDBG+3}], 0 offen sc1")
            a(f"s_mov_b64 exec, s[{sEX}:{sEX+1}]")
            a.label("L_nokvadd")
        if not nodma and not dma and T == 6:
            a(f"s_cmp_lg_u32 s{sCNT}, 1\ns_cbranch_scc1 L_nopub1")
            publish_partial(a, 1, wait=False)
            a.label("L_nopub1")
        if not nodma and not dma and T == 0:
            a(f"s_cmp_lg_u32 s{sCNT}, 2\ns_cbranch_scc1 L_p2nog")
            p2_group_setup(a, 0)
            for q in range(6): p2_dma(a, q)
            a(f"s_cmp_lg_u32 s{sW}, 0\ns_cbranch_scc1 L_p2noxr")
            a(f"buffer_load_dword v95, v11, s[{sDBG}:{sDBG+3}], 0 offen sc1")
            a("s_branch L_p2noxr")
            a.label("L_p2nog")
            gen_conv_issue2(a)
            a.label("L_p2noxr")
    a.c("--- p2 chunk epilogue")
    a(f"s_xor_b32 s{sB2}, s{sB2}, {3*SLOT}")
    a(f"s_sub_u32 s{sCNT}, s{sCNT}, 1")
    a("s_nop 4")
    for q in range(8):
        a(f"v_cvt_pk_bf16_f32 v{GT+q}, v{acc+2*q}, v{acc+2*q+1}")
    for q in range(2):
        off = f" offset:{1024*q}" if q else ""
        a(f"buffer_store_dwordx4 {V(GT+4*q,4)}, v{vPST}, s[{sSRDW}:{sSRDW+3}], s{sPOFF} offen{off} sc1")
    a(f"s_add_u32 s{sPOFF}, s{sPOFF}, {4*2048}")

ONES_BF = 0x3f803f80
sPFLG = 56
sPAR = 28
sPP = 29
def gen_q_addr(a, p):
    if p == 0:
        a(f"v_and_b32 v2, 7, v{vLANE}\nv_mul_u32_u24 v2, 1152, v2\nv_lshrrev_b32 v3, 3, v{vLANE}\nv_lshl_add_u32 v248, v3, 4, v2")
    a(f"s_xor_b32 s{sPP}, s{sPAR}, {p}")
    a(f"s_lshl_b32 s{sT0}, s{sI}, 6\ns_lshl_b32 s{sT1}, s{sW}, 4\ns_add_u32 s{sT0}, s{sT0}, s{sT1}\ns_lshl_b32 s{sT1}, s{sPP}, 3\ns_add_u32 s{sT0}, s{sT0}, s{sT1}\ns_mul_i32 s{sT0}, s{sT0}, 1152")

def gen_q_loads(a, QREG, p, addr=True):
    if addr: gen_q_addr(a, p)
    for m in range(9):
        off = f" offset:{128*m}" if m else ""
        a(f"buffer_load_dwordx4 v[{QREG+36*p+4*m}:{QREG+36*p+4*m+3}], v248, s[{sQ}:{sQ+3}], s{sT0} offen{off}{NT['q']}")

LT = 32
def gen_ln_setup(a):
    T = LT
    vB = T+10
    a(f"v_lshrrev_b32 v{T+8}, 3, v{vLANE}\nv_lshrrev_b32 v{T+9}, 2, v{T+8}\nv_lshlrev_b32 v{vB}, 12, v{T+9}")
    a(f"v_and_b32 v{T+9}, 3, v{T+8}\nv_lshl_add_u32 v{vB}, v{T+9}, 8, v{vB}")
    a(f"v_and_b32 v{T+9}, 7, v{vLANE}\nv_lshl_add_u32 v{vB}, v{T+9}, 4, v{vB}")
    a(f"s_lshl_b32 s{sT0}, s{sW}, 10\ns_add_u32 s{sT0}, s{sT0}, {HB}")
    a(f"v_add_u32 v{vB}, s{sT0}, v{vB}")
    vSt = T+11
    a(f"s_lshl_b32 s{sT0}, s{sW}, 6\ns_add_u32 s{sT0}, s{sT0}, {LDS_STAT}")
    a(f"v_lshlrev_b32 v{vSt}, 2, v{T+9}\nv_add_u32 v{vSt}, s{sT0}, v{vSt}")
    vG = T+12
    a(f"s_lshl_b32 s{sT0}, s{sI}, 6\ns_lshl_b32 s{sT1}, s{sW}, 4\ns_add_u32 s{sT0}, s{sT0}, s{sT1}")
    a(f"v_add_u32 v{vG}, s{sT0}, v{T+9}\nv_lshlrev_b32 v{vG}, 3, v{vG}\nv_add_u32 v{vG}, {WS_STATS}, v{vG}")

def gen_ln_pass(a, QREG, p):
    T = LT
    vS, vQ2, vB, vSt, vG = T, T+4, T+10, T+11, T+12
    X = QREG + 36*p
    a(f"s_mov_b32 s{sT2}, {hex(ONES_BF)}\ns_mov_b32 s{sT3}, 0x00003f80\ns_mov_b32 s{sEX}, 0x3f800000")
    a(f"s_xor_b32 s{sPP}, s{sPAR}, {p}")
    a(f"s_lshl_b32 s{sT0}, s{sPP}, 7\nv_add_u32 v{T+13}, s{sT0}, v{vB}\ns_lshl_b32 s{sT0}, s{sPP}, 5\nv_add_u32 v{T+14}, s{sT0}, v{vSt}")
    for k in range(4): a(f"v_mov_b32 v{vS+k}, 0\nv_mov_b32 v{vQ2+k}, 0")
    for d in range(36):
        a(f"v_dot2c_f32_bf16 v{vS+d%4}, s{sT2}, v{X+d}")
        a(f"v_dot2c_f32_bf16 v{vQ2+d%4}, v{X+d}, v{X+d}")
    a("s_nop 2")
    a(f"v_add_f32 v{vS}, v{vS}, v{vS+1}\nv_add_f32 v{vS+2}, v{vS+2}, v{vS+3}")
    a(f"v_add_f32 v{vQ2}, v{vQ2}, v{vQ2+1}\nv_add_f32 v{vQ2+2}, v{vQ2+2}, v{vQ2+3}")
    a(f"v_add_f32 v{vS}, v{vS}, v{vS+2}\nv_add_f32 v{vQ2}, v{vQ2}, v{vQ2+2}")
    a("s_nop 1")
    a(f"v_add_f32_dpp v{vS}, v{vS}, v{vS} row_ror:8 row_mask:0xf bank_mask:0xf")
    a(f"v_add_f32_dpp v{vQ2}, v{vQ2}, v{vQ2} row_ror:8 row_mask:0xf bank_mask:0xf")
    for sw in ("v_permlane16_swap_b32", "v_permlane32_swap_b32"):
        a(f"v_mov_b32 v{vS+1}, v{vS}\nv_mov_b32 v{vQ2+1}, v{vQ2}")
        a("s_nop 1")
        a(f"{sw} v{vS}, v{vS+1}\n{sw} v{vQ2}, v{vQ2+1}")
        a("s_nop 1")
        a(f"v_add_f32 v{vS}, v{vS}, v{vS+1}\nv_add_f32 v{vQ2}, v{vQ2}, v{vQ2+1}")
    inv = hex(f2u(1.0/576.0))
    a(f"v_mul_f32 v{vS}, {inv}, v{vS}\nv_mul_f32 v{vQ2}, {inv}, v{vQ2}")
    a(f"v_fma_f32 v{vQ2}, -v{vS}, v{vS}, v{vQ2}\nv_max_f32 v{vQ2}, 0, v{vQ2}")
    a(f"v_cvt_pk_bf16_f32 v{vS+1}, v{vS}, v{vQ2}")
    a(f"v_and_b32 v{vQ2}, 0xffff0000, v{vS+1}\nv_lshlrev_b32 v{vS}, 16, v{vS+1}")
    a(f"v_add_f32 v{vQ2}, {hex(f2u(1e-5))}, v{vQ2}")
    a(f"v_cvt_pk_bf16_f32 v{vQ2}, v{vQ2}, v{vQ2}\nv_lshlrev_b32 v{vQ2}, 16, v{vQ2}")
    a(f"v_sqrt_f32 v{vQ2}, v{vQ2}\ns_nop 0")
    a(f"v_cvt_pk_bf16_f32 v{vQ2}, v{vQ2}, v{vQ2}\nv_lshlrev_b32 v{vS+1}, 16, v{vQ2}")
    a(f"v_rcp_f32 v{vQ2}, v{vS+1}\nv_sub_f32 v{vS+2}, 0, v{vS}")
    a(f"ds_write_b32 v{T+14}, v{vQ2}")
    a(f"s_lshl_b32 s{sT0}, s{sPP}, 6\ns_cmp_eq_u32 s{sJ}, 0\ns_cselect_b32 s{sT0}, s{sT0}, 0x7ff00000")
    a(f"buffer_store_dwordx2 v[{vS}:{vS+1}], v{vG}, s[{sSRDW}:{sSRDW+3}], s{sT0} offen sc1")
    D = T+16
    for m in range(9):
        tb = D + 12*(m % 2)
        for e in range(4):
            a(f"v_dot2_f32_bf16 v{tb+2*e}, v{X+4*m+e}, s{sT3}, v{vS+2}")
            a(f"v_dot2_f32_bf16 v{tb+2*e+1}, v{X+4*m+e}, s{sEX}, v{vS+2}")
        if m > 0:
            pb = D + 12*((m-1) % 2)
            for e in range(4): a(f"v_cvt_pk_bf16_f32 v{pb+8+e}, v{pb+2*e}, v{pb+2*e+1}")
            a(f"ds_write_b128 v{T+13}, v[{pb+8}:{pb+11}] offset:{(m-1)*8192}")
    pb = D
    a("s_nop 2")
    for e in range(4): a(f"v_cvt_pk_bf16_f32 v{pb+8+e}, v{pb+2*e}, v{pb+2*e+1}")
    a(f"v_add_u32 v{T+13}, 32768, v{T+13}")
    a(f"ds_write_b128 v{T+13}, v[{pb+8}:{pb+11}] offset:{8*8192 - 32768}")

def interleave(a, main_lines, side_groups, start=8):
    n = len(main_lines); g = len(side_groups)
    pos = [start + (n - start - 4) * k // max(g, 1) for k in range(g)]
    lab = None
    k = 0
    for idx, l in enumerate(main_lines):
        if idx > 0 and main_lines[idx-1].startswith("s_cmp"):
            pos = [p + 1 if p == idx else p for p in pos]
        while k < g and pos[k] <= idx and not (idx > 0 and main_lines[idx-1].startswith("s_cmp")):
            for x in side_groups[k]: a.lines.append(x)
            k += 1
        a.lines.append(l)
    while k < g:
        for x in side_groups[k]: a.lines.append(x)
        k += 1

def groups_of(lines):
    out, cur = [], []
    for l in lines:
        cur.append(l)
        if l.startswith("buffer_") or l.startswith("global_"):
            out.append(cur); cur = []
    if cur: out.append(cur)
    return out

KRAW, KCO = 176, 72
VRAWL = [120, 124, 88, 92]
def gen_kv_loads(a, KREG, vP9, vRUN):
    a(f"s_mul_i32 s52, s{sW}, 36\nv_min_u32 v120, 35, v{vLANE}\nv_add_u32 v120, s52, v120".replace("v120", "v2"))
    a(f"s_mov_b32 s53, {(2**32 + 8)//9}\nv_mul_hi_u32 v{vRUN}, v2, s53")
    a(f"v_mul_u32_u24 v{vP9}, 9, v{vRUN}\nv_sub_u32 v{vP9}, v2, v{vP9}")
    a(f"s_lshl_b32 s52, s{sI}, 6\nv_lshlrev_b32 v3, 2, v{vRUN}\nv_add_u32 v3, s52, v3\nv_mul_u32_u24 v3, 1152, v3")
    a(f"s_mul_i32 s52, s{sJ}, 144\nv_lshl_add_u32 v4, v{vP9}, 4, v3\nv_add_u32 v4, s52, v4")
    for r in range(7):
        if r < 3:
            a(f"v_add_u32 v3, {(r-3)*1152 & 0xffffffff}, v4")
            a(f"buffer_load_dwordx4 v[{KRAW+4*r}:{KRAW+4*r+3}], v3, s[{sK}:{sK+3}], 0 offen{NT['kv']}")
        else:
            off = f" offset:{1152*(r-3)}" if r > 3 else ""
            a(f"buffer_load_dwordx4 v[{KRAW+4*r}:{KRAW+4*r+3}], v4, s[{sK}:{sK+3}], 0 offen{off}{NT['kv']}")
    for r in range(4):
        off = f" offset:{1152*r}" if r else ""
        a(f"buffer_load_dwordx4 v[{VRAWL[r]}:{VRAWL[r]+3}], v4, s[{sV}:{sV+3}], 0 offen{off}{NT['kv']}")
    a(f"s_mul_i32 s52, s{sJ}, 576\nv_lshlrev_b32 v3, 6, v{vP9}")
    for r in range(4):
        off = f" offset:{16*r}" if r else ""
        a(f"buffer_load_dwordx4 v[{KCO+4*r}:{KCO+4*r+3}], v3, s[{sSK}:{sSK+3}], s52 offen{off}")

def gen_kv_compute(a, KREG, vP9, vRUN):
    KU, SU, AC, VU = 32, 88, 120, 152
    a(f"s_mov_b32 s52, 0xffff0000")
    for r in range(7):
        for e in range(4):
            a(f"v_lshlrev_b32 v{KU+8*r+2*e}, 16, v{KREG+4*r+e}\nv_and_b32 v{KU+8*r+2*e+1}, s52, v{KREG+4*r+e}")
    for c in range(8):
        for jj in range(2):
            src = KREG + 44 + 2*c + jj
            a(f"v_lshlrev_b32 v{SU+8*(2*jj)+c}, 16, v{src}\nv_and_b32 v{SU+8*(2*jj+1)+c}, s52, v{src}")
    a(f"v_lshlrev_b32 v62, 2, v{vRUN}\nv_sub_u32 v62, 63, v62\nv_mul_u32_u24 v62, 160, v62")
    a(f"v_lshl_add_u32 v62, v{vP9}, 4, v62\nv_add_u32 v62, {LDS_KV - 3*160}, v62")
    for tok in range(4):
        for jj in (3, 2, 1, 0):
            for pr in range(4):
                d = f"v[{AC+8*tok+2*pr}:{AC+8*tok+2*pr+1}]"
                kk = f"v[{KU+8*(tok+3-jj)+2*pr}:{KU+8*(tok+3-jj)+2*pr+1}]"
                ss = f"v[{SU+8*jj+2*pr}:{SU+8*jj+2*pr+1}]"
                a(f"v_pk_mul_f32 {d}, {kk}, {ss}" if jj == 3 else f"v_pk_fma_f32 {d}, {kk}, {ss}, {d}")
        for e in range(4):
            a(f"v_lshlrev_b32 v{VU+2*e}, 16, v{KREG+28+4*tok+e}\nv_and_b32 v{VU+2*e+1}, s52, v{KREG+28+4*tok+e}")
        for pr in range(4):
            d = f"v[{AC+8*tok+2*pr}:{AC+8*tok+2*pr+1}]"
            a(f"v_pk_mul_f32 {d}, {d}, v[{VU+2*pr}:{VU+2*pr+1}]")
        for e in range(4):
            a(f"v_cvt_pk_bf16_f32 v{VU+8+e}, v{AC+8*tok+2*e}, v{AC+8*tok+2*e+1}")
        a(f"ds_write_b128 v62, v[{VU+8}:{VU+11}] offset:{(3-tok)*160}")

def gen_kv_store(a):
    a(f"v_and_b32 v2, 15, v{vLANE}\nv_lshrrev_b32 v3, 4, v{vLANE}\nv_lshrrev_b32 v4, 2, v2")
    a(f"v_lshl_add_u32 v4, v3, 3, v4\nv_mul_u32_u24 v4, 160, v4\nv_and_b32 v5, 3, v2\nv_lshl_add_u32 v4, v5, 3, v4\nv_add_u32 v4, {LDS_KV}, v4")
    a(f"s_mul_i32 s{sT0}, s{sJ}, 72\nv_add_u32 v5, s{sT0}, v2\nv_lshlrev_b32 v5, 12, v5\nv_lshl_add_u32 v5, v3, 4, v5")
    a(f"s_lshl_b32 s{sT0}, s{sI}, 7\ns_sub_u32 s{sT0}, {WS_KVR + 1984*2}, s{sT0}\nv_add_u32 v5, s{sT0}, v5")
    a("v_mov_b32 v7, 0x7ff00000")
    for u in range(3):
        a(f"s_add_u32 s{sT0}, s{sW}, {4*u}")
        a(f"s_lshr_b32 s{sT1}, s{sT0}, 1\ns_and_b32 s{sT2}, s{sT0}, 1")
        a(f"s_mul_i32 s{sT3}, s{sT2}, {32*160}\ns_lshl_b32 s{sEX}, s{sT1}, 5\ns_add_u32 s{sT3}, s{sT3}, s{sEX}")
        a(f"v_add_u32 v6, s{sT3}, v4")
        r = 96 + 4*u
        a(f"ds_read_b64_tr_b16 v[{r}:{r+1}], v6\nds_read_b64_tr_b16 v[{r+2}:{r+3}], v6 offset:{4*160}")
        a(f"s_lshl_b32 s{sT3}, s{sT1}, 16\ns_lshl_b32 s{sT2}, s{sT2}, 6\ns_add_u32 s{sT3}, s{sT3}, s{sT2}")
        a(f"v_add_u32 v{108+u}, s{sT3}, v5")
        a(f"s_cmp_eq_u32 s{sT1}, 4\ns_cselect_b32 s{sT2}, 8, 16\ns_cmp_gt_u32 s{sT1}, 4\ns_cselect_b32 s{sT2}, 0, s{sT2}")
        a(f"v_cmp_gt_u32 vcc, s{sT2}, v2\ns_nop 1\nv_cndmask_b32 v{108+u}, v7, v{108+u}, vcc")
    a("s_waitcnt lgkmcnt(0)")
    for u in range(3):
        a(f"buffer_store_dwordx4 v[{96+4*u}:{99+4*u}], v{108+u}, s[{sSRDW}:{sSRDW+3}], 0 offen sc1")

def gen_bulk_pf(a, nshare, opts):
    nw = nshare*4
    per = -(-4608 // nw)
    n_ins = -(-per // 64)
    assert n_ins == 1 or True
    for it in range(n_ins):
        cnt = min(64, per - 64*it)
        a(f"s_mul_i32 s54, s{sOM}, {per}\ns_add_u32 s54, s54, {64*it}\nv_min_u32 v123, {cnt-1}, v{vLANE}\nv_add_u32 v123, s54, v123\nv_min_u32 v123, 4607, v123")
        a(f"s_mov_b32 s55, {(2**32 + 575)//576}\nv_mul_hi_u32 v124, v123, s55\nv_mul_u32_u24 v125, 576, v124\nv_sub_u32 v125, v123, v125\nv_mul_u32_u24 v125, 9216, v125\nv_lshl_add_u32 v125, v124, 7, v125")
        a(f"s_mul_i32 s55, s{sJ}, 1152\ns_add_u32 s55, s55, 128")
        a(f"buffer_load_dword v{vDUM}, v125, s[{sSRDA}:{sSRDA+3}], s55 offen{NT['pf']}")
        a(f"buffer_load_dword v{vDUM+1}, v125, s[{sSRDB}:{sSRDB+3}], s55 offen{NT['pf']}")


def gen_wd_pf(a, nshare, c0, c1):
    nw = nshare*4
    nc = c1 - c0
    tot = 576*nc
    per = -(-tot // nw)
    assert per <= 64
    a(f"s_mul_i32 s54, s{sOM}, {per}\nv_min_u32 v123, {per-1}, v1\nv_add_u32 v123, s54, v123\nv_min_u32 v123, {tot-1}, v123")
    a(f"s_mov_b32 s55, {(2**32 + 575)//576}\nv_mul_hi_u32 v124, v123, s55\nv_mul_u32_u24 v125, 576, v124\nv_sub_u32 v125, v123, v125\nv_mul_u32_u24 v125, 1152, v125\nv_lshl_add_u32 v125, v124, 7, v125")
    a(f"s_mul_i32 s55, s{sJ}, {576*1152}\ns_add_u32 s55, s55, {128*c0}")
    a(f"buffer_load_dword v{vDUM+2}, v125, s[{sWDS}:{sWDS+3}], s55 offen")

def gen_pf_setup(a, nshare):
    nw = nshare*4
    NL = -(-576 // nw)
    a(f"s_mul_i32 s{sT0}, s{sOM}, {NL}\nv_min_u32 v2, {NL-1}, v{vLANE}\nv_add_u32 v2, s{sT0}, v2\nv_min_u32 v2, 575, v2")
    a(f"v_mul_u32_u24 v{vPF}, 9216, v2")

def gen_pf_unit(a, nshare):
    nparts = nshare // 8
    NL = -(-576 // (nparts*4))
    assert NL <= 64
    a(f"s_lshr_b32 s{sT0}, s{sOM}, 2\ns_and_b32 s{sPFU}, s{sT0}, 7\ns_lshr_b32 s{sT0}, s{sT0}, 3")
    a(f"s_lshl_b32 s{sT0}, s{sT0}, 2\ns_add_u32 s{sT0}, s{sT0}, s{sW}\ns_mul_i32 s{sT0}, s{sT0}, {NL}")
    a(f"v_min_u32 v2, {NL-1}, v{vLANE}\nv_add_u32 v2, s{sT0}, v2\nv_min_u32 v2, 575, v2")
    a(f"s_cmp_lt_u32 s{sPFU}, 6\ns_cbranch_scc0 L_pfwd")
    a(f"v_mul_u32_u24 v{vPF}, 9216, v2\nv_mov_b32 v{vPF2}, v{vPF}")
    a(f"s_mov_b32 s{sPFA}, s{sSRDA}\ns_mov_b32 s{sPFA+1}, s{sSRDA+1}\ns_mov_b32 s{sPFB}, s{sSRDB}\ns_mov_b32 s{sPFB+1}, s{sSRDB+1}")
    a(f"s_mul_i32 s{sPFO}, s{sJ}, 1152\ns_add_u32 s{sT0}, s{sPFU}, 3\ns_lshl_b32 s{sT0}, s{sT0}, 7\ns_add_u32 s{sPFO}, s{sPFO}, s{sT0}")
    a("s_branch L_pfok")
    a.label("L_pfwd")
    a(f"v_mul_u32_u24 v{vPF}, 1152, v2\nv_add_u32 v{vPF2}, 128, v{vPF}")
    a(f"s_mov_b32 s{sPFA}, s{sWD}\ns_mov_b32 s{sPFA+1}, s{sWD+1}\ns_mov_b32 s{sPFB}, s{sWD}\ns_mov_b32 s{sPFB+1}, s{sWD+1}")
    a(f"s_mul_i32 s{sPFO}, s{sJ}, {576*1152}\ns_sub_u32 s{sT0}, s{sPFU}, 6\ns_lshl_b32 s{sT0}, s{sT0}, 8\ns_add_u32 s{sPFO}, s{sPFO}, s{sT0}")
    a.label("L_pfok")
    a(f"s_mov_b32 s{sPFA+2}, {576*4608*2}\ns_mov_b32 s{sPFA+3}, 0x00020000\ns_mov_b32 s{sPFB+2}, {576*4608*2}\ns_mov_b32 s{sPFB+3}, 0x00020000")

CV_CP = 4160
CV_WAVE = 4*CV_CP
sC, sCB, sCT, sCU, sXR = 70, 71, 76, 77, 78
HL = 64
vDC = 94
def poll(a, name, voff_reg, srd, soff, target, scnt, cmp="ge", sleep=8):
    a(f"s_mov_b32 s{scnt}, 0")
    a.label(f"L_poll_{name}")
    a(f"buffer_load_dword v3, v{voff_reg}, s[{srd}:{srd+3}], {soff} offen sc1")
    a("s_waitcnt vmcnt(0)")
    a(f"v_cmp_{'le' if cmp == 'ge' else 'eq'}_u32 vcc, {target}, v3")
    a(f"s_add_u32 s{scnt}, s{scnt}, 1")
    a(f"s_cmp_eq_u64 vcc, exec\ns_cbranch_scc1 L_pollok_{name}")
    a(f"s_cmp_lt_u32 s{scnt}, 20000\ns_cbranch_scc0 L_pollok_{name}")
    a(f"s_sleep {sleep}\ns_branch L_poll_{name}")
    a.label(f"L_pollok_{name}")

def gen_conv_issue(a, stamps):
    a(f"v_lshlrev_b32 v11, 2, v{vLANE}")
    a(f"s_cmp_ge_u32 s{sC}, 576\ns_cbranch_scc1 L_conv_skip1")
    a(f"s_mul_i32 s{sCB}, s{sW}, {CV_WAVE}\ns_add_u32 s{sCB}, s{sCB}, {HB}")
    a(f"s_mul_i32 s{sXR}, s{sW}, 4608\ns_add_u32 s{sXR}, s{sXR}, {LDS_XR}")
    a(f"s_lshl_b32 s{sCT}, s{sC}, 12")
    a(f"s_add_u32 s88, s{sHK}, s{sCT}\ns_addc_u32 s89, s{sHK+1}, 0\ns_mov_b32 s90, 4096\ns_mov_b32 s91, 0x00020000")
    for o in range(5):
        a(f"v_add_u32 v5, {(1024*o - 16) & 0xffffffff}, v{vPST}")
        a(f"buffer_load_dwordx4 v[{HL+6*o}:{HL+6*o+3}], v5, s[88:91], 0 offen{NT['h']}")
        a(f"v_add_u32 v6, {1024*o}, v{vPST}")
        a(f"buffer_load_dwordx2 v[{HL+6*o+4}:{HL+6*o+5}], v6, s[88:91], 0 offen{NT['h']}")
    a(f"s_lshl_b32 s{sCT}, s{sC}, 1\nv_mov_b32 v4, s{sCT}")
    a(f"buffer_load_ushort v{vDC}, v4, s[{sD}:{sD+3}], 0 offen")
    a.label("L_conv_skip1")

def gen_conv_issue2(a):
    a(f"s_cmp_ge_u32 s{sC}, 576\ns_cbranch_scc1 L_conv_skip2")
    a(f"s_lshl_b32 s{sCT}, s{sC}, 12\ns_add_u32 s{sCT}, s{sCT}, {WS_KVR}")
    a(f"s_mov_b32 m0, s{sXR}\ns_nop 0")
    for k in range(4):
        off = f" offset:{1024*k}" if k else ""
        a(f"buffer_load_dwordx4 v{vPST}, s[{sSRDW}:{sSRDW+3}], s{sCT} offen{off} sc1 lds")
    a.label("L_conv_skip2")

def publish_partial(a, val=2, wait=True):
    if wait: a("s_waitcnt vmcnt(0)")
    a(f"v_mov_b32 v4, 0\nv_mov_b32 v5, {val}")
    a(f"v_cmp_eq_u32 vcc, 0, v{vLANE}\ns_and_saveexec_b64 s[{sEX}:{sEX+1}], vcc")
    a(f"buffer_store_dword v5, v4, s[{sSRDW}:{sSRDW+3}], s{sPFLG} offen sc1")
    a(f"s_mov_b64 exec, s[{sEX}:{sEX+1}]")

def gen_conv_main(a, stamps):
    a(f"s_cmp_ge_u32 s{sC}, 576\ns_cbranch_scc1 L_noconv")
    for r in range(4): a(f"v_mov_b32 v{32+r}, 0")
    a(f"v_add_u32 v5, s{sXR}, v{vPST}")
    a(f"v_cmp_gt_u32 vcc, 32, v{vLANE}\ns_and_saveexec_b64 s[{sEX}:{sEX+1}], vcc")
    a(f"ds_write_b128 v5, v[32:35] offset:4096")
    a(f"s_mov_b64 exec, s[{sEX}:{sEX+1}]")
    a(f"v_mul_u32_u24 v6, {CV_CP}, v{vLANE}\nv_add_u32 v6, s{sCB}, v6")
    a(f"v_cmp_gt_u32 vcc, 4, v{vLANE}\ns_and_saveexec_b64 s[{sEX}:{sEX+1}], vcc")
    a(f"ds_write_b128 v6, v[32:35]")
    a(f"s_mov_b64 exec, s[{sEX}:{sEX+1}]")
    a(f"v_add_u32 v7, s{sCB}, v{vPST}")
    stamp(a, 17, stamps)
    for o in range(5):
        P = HL + 6*o
        t = 96 + 16*(o % 2)
        if o == 4:
            a(f"v_cmp_eq_u32 vcc, 0, v{vLANE}\ns_and_saveexec_b64 s[{sEX}:{sEX+1}], vcc")
        for n in range(4):
            a(f"v_mov_b32 v{t+n}, v{P+n}")
            a(f"v_alignbit_b32 v{t+4+n}, v{P+n+1}, v{P+n}, 16")
            a(f"v_mov_b32 v{t+8+n}, v{P+n+1}")
            a(f"v_alignbit_b32 v{t+12+n}, v{P+n+2}, v{P+n+1}, 16")
        for s_ in range(4):
            a(f"ds_write_b128 v7, v[{t+4*s_}:{t+4*s_+3}] offset:{s_*CV_CP + 16 + 1024*o}")
        if o == 4: a(f"s_mov_b64 exec, s[{sEX}:{sEX+1}]")
    a(f"v_and_b32 v14, 15, v{vLANE}\nv_lshrrev_b32 v15, 4, v{vLANE}")
    a(f"v_lshlrev_b32 v16, 5, v14\nv_lshlrev_b32 v17, 4, v15\nv_sub_u32 v16, v17, v16")
    a(f"s_add_u32 s{sCT}, s{sXR}, {2*(2032 - 32*56)}\nv_add_u32 v16, s{sCT}, v16")
    a(f"v_add_u32 v2, 1, v14\nv_and_b32 v3, 3, v2\nv_mul_u32_u24 v3, {CV_CP}, v3\nv_lshrrev_b32 v2, 2, v2")
    a(f"v_lshl_add_u32 v3, v2, 3, v3\nv_lshl_add_u32 v3, v15, 4, v3\nv_add_u32 v13, s{sCB}, v3")
    a("s_waitcnt lgkmcnt(0) vmcnt(2)")
    stamp(a, 19, stamps)
    lk = Lgkm(a)
    NB = 6; FB = 96; ACCB = 32
    def rdF(m):
        r = FB + 4*(m % NB)
        lk.issue(("F", m), f"ds_read_b64 v[{r}:{r+1}], v13 offset:{64*m}")
        lk.issue(("F", m), f"ds_read_b64 v[{r+2}:{r+3}], v13 offset:{64*m+8}")
    def rdG(i):
        lk.issue(("G", i), f"ds_read_b128 {A(4*(i+7),4)}, v16 offset:{(56-i)*64}")
    rdF(0)
    for T in range(8): rdG(8*T)
    rdF(1)
    for m in range(64):
        T0 = max(0, -(-(m-7)//8))
        if m == 9:
            stamp(a, 25, stamps); publish_partial(a); stamp(a, 26, stamps)
        lk.wait_for(("F", m))
        pend = []
        if m + 1 < 8: pend += [("G", 8*T - (m+1)) for T in range(8)]
        if m + 2 < 64: pend += [("F", m+2)]
        for T in range(T0, 8):
            if m < 8: lk.wait_for(("G", 8*T - m))
            c_ = "0" if m == 0 else f"v[{ACCB+4*T}:{ACCB+4*T+3}]"
            a(f"v_mfma_f32_16x16x32_bf16 v[{ACCB+4*T}:{ACCB+4*T+3}], v[{FB+4*(m%NB)}:{FB+4*(m%NB)+3}], {A(4*(8*T-m+7),4)}, {c_}")
            if pend:
                k, x = pend.pop(0)
                (rdG if k == "G" else rdF)(x)
        for k, x in pend: (rdG if k == "G" else rdF)(x)
    stamp(a, 21, stamps)
    a(f"v_lshlrev_b32 v5, 5, v14\nv_lshlrev_b32 v17, 3, v15\nv_add_u32 v17, v5, v17")
    a(f"s_add_u32 s{sCT}, s{sXR}, {2*2044 - 7*512}\nv_sub_u32 v2, s{sCT}, v17")
    for T in range(8): a(f"ds_read_b64 v[{96+2*T}:{97+2*T}], v2 offset:{(7-T)*512}")
    a(f"v_lshlrev_b32 v{vDC}, 16, v{vDC}")
    a(f"s_lshl_b32 s{sCT}, s{sC}, 12\ns_add_u32 s{sCT}, s{sCT}, {WS_ZT}\ns_mov_b32 s{sCU}, 0xffff0000")
    a("s_waitcnt lgkmcnt(0)")
    for T in range(8):
        kv = 96+2*T; ac = ACCB+4*T; t = 112 + 6*(T % 2)
        a(f"v_and_b32 v{t}, s{sCU}, v{kv+1}\nv_lshlrev_b32 v{t+1}, 16, v{kv+1}\nv_and_b32 v{t+2}, s{sCU}, v{kv}\nv_lshlrev_b32 v{t+3}, 16, v{kv}")
        for r in range(4): a(f"v_fmac_f32 v{ac+r}, v{t+r}, v{vDC}")
        a(f"v_cvt_pk_bf16_f32 v{t+4}, v{ac}, v{ac+1}\nv_cvt_pk_bf16_f32 v{t+5}, v{ac+2}, v{ac+3}")
        off = f" offset:{512*T}" if T else ""
        a(f"buffer_store_dwordx2 v[{t+4}:{t+5}], v17, s[{sSRDW}:{sSRDW+3}], s{sCT} offen{off} sc1")

def gen_pflag_addr(a, vdst, swave):
    a(f"s_lshl_b32 s{sT0}, s{sI}, 7\ns_lshl_b32 s{sT1}, {swave}, 2\ns_add_u32 s{sT0}, s{sT0}, s{sT1}\ns_add_u32 s{sT0}, s{sT0}, {WS_FLAG}")
    a(f"v_and_b32 v{vdst}, 7, v{vLANE}\nv_lshlrev_b32 v{vdst}, 4, v{vdst}\nv_add_u32 v{vdst}, s{sT0}, v{vdst}")

sFC, sFW, sST = 57, 55, 54
FP, FS, FX, FZ, FST = 128, 192, 208, 216, 232
def gen_final_addr(a):
    a(f"v_and_b32 v3, 15, v{vLANE}\nv_lshrrev_b32 v4, 4, v{vLANE}")
    a(f"s_lshl_b32 s{sT2}, s{sI}, 6\nv_add_u32 v5, s{sT2}, v3")
    a(f"s_lshl_b32 s{sT2}, s{sFC}, 6\ns_lshl_b32 s{sT1}, s{sFW}, 4\ns_add_u32 s{sT2}, s{sT2}, s{sT1}")
    a(f"v_lshlrev_b32 v6, 2, v4\nv_add_u32 v6, s{sT2}, v6")
    a(f"v_mul_u32_u24 v7, 1152, v5\nv_lshl_add_u32 v7, v6, 1, v7")
    a(f"v_lshlrev_b32 v8, 12, v6\nv_lshl_add_u32 v8, v5, 1, v8\nv_add_u32 v8, {WS_ZT}, v8")
    a(f"v_lshlrev_b32 v9, 3, v5\nv_add_u32 v9, {WS_STATS}, v9")

PSTG = 0
def gen_xstat_loads(a, agpr=False):
    R = (lambda r, n, base: f"a[{r-base[0]+base[1]}:{r-base[0]+base[1]+n-1}]") if agpr else (lambda r, n, base: f"v[{r}:{r+n-1}]")
    for aa in range(4):
        a(f"s_mov_b32 s{sT3}, {16*1152*aa}")
        a(f"buffer_load_dwordx2 {R(FX+2*aa, 2, (FX, 64))}, v7, s[{sX}:{sX+3}], s{sT3} offen")
    for aa in range(4):
        off = f" offset:{128*aa}" if aa else ""
        a(f"buffer_load_dwordx2 {R(FST+2*aa, 2, (FST, 72))}, v9, s[{sSRDW}:{sSRDW+3}], 0 offen{off} sc1")

def gen_final_loads(a, agpr=False):
    isz = 2048
    R = (lambda r, n, base: f"a[{r-base[0]+base[1]}:{r-base[0]+base[1]+n-1}]") if agpr else (lambda r, n, base: f"v[{r}:{r+n-1}]")
    a(f"s_mul_i32 s{sT2}, s{sI}, 9\ns_add_u32 s{sT2}, s{sT2}, s{sFC}\ns_lshl_b32 s{sT2}, s{sT2}, 2\ns_add_u32 s{sT2}, s{sT2}, s{sFW}\ns_mul_i32 s{sT2}, s{sT2}, {isz}\ns_add_u32 s{sT2}, s{sT2}, {WS_PART}")
    for j in range(8):
        for q in range(2):
            r = FP + (j*2 + q)*4
            off = f" offset:{1024*q}" if q else ""
            a(f"buffer_load_dwordx4 {R(r, 4, (FP, 0))}, v{vPST}, s[{sSRDW}:{sSRDW+3}], s{sT2} offen{off} sc1")
        if j < 7: a(f"s_add_u32 s{sT2}, s{sT2}, {32*9*4*isz}")
    gen_xstat_loads(a, agpr)

def gen_stage_partials(a):
    a(f"s_mul_i32 s{sT2}, s{sI}, 9\ns_add_u32 s{sT2}, s{sT2}, s{sJ}\ns_mul_i32 s{sT2}, s{sT2}, 8192\ns_add_u32 s{sT2}, s{sT2}, {WS_PART}")
    for p in range(8):
        for h in range(2):
            a(f"s_mov_b32 m0, {PSTG + p*8192 + h*4096}\ns_add_u32 s{sT3}, s{sT2}, {h*4096}")
            for k in range(4):
                off = f" offset:{1024*k}" if k else ""
                a(f"buffer_load_dwordx4 v{vPST}, s[{sSRDW}:{sSRDW+3}], s{sT3} offen{off} sc1 lds")
        if p < 7: a(f"s_add_u32 s{sT2}, s{sT2}, {32*9*8192}")

def lds_wait_word(a, name, off):
    a(f"v_mov_b32 v2, {LDS_STAT + off}\ns_mov_b32 s{sCU}, 0")
    a.label(f"L_lw_{name}")
    a(f"ds_read_b32 v3, v2\ns_waitcnt lgkmcnt(0)\nv_readfirstlane_b32 s{sT0}, v3\ns_add_u32 s{sCU}, s{sCU}, 1")
    a(f"s_cmp_eq_u32 s{sT0}, 1\ns_cbranch_scc1 L_lwok_{name}\ns_cmp_lt_u32 s{sCU}, 200000\ns_cbranch_scc0 L_lwok_{name}\ns_sleep 1\ns_branch L_lw_{name}")
    a.label(f"L_lwok_{name}")

def gen_partials_from_lds(a):
    a(f"s_lshl_b32 s{sT0}, s{sW}, 11\nv_add_u32 v2, s{sT0}, v{vPST}")
    for p in range(8):
        for q in range(2):
            r = FP + (p*2 + q)*4
            a(f"ds_read_b128 v[{r}:{r+3}], v2 offset:{PSTG + p*8192 + q*1024}")
    a("s_waitcnt lgkmcnt(0)")

FZ2 = 84
def gen_final_z(a, tag, stamps=False):
    a(f"s_mov_b32 s{sCU}, 0")
    a.label(f"L_zre_{tag}")
    for aa in range(4):
        for e in range(4):
            off = f" offset:{32*aa}" if aa else ""
            a(f"s_mov_b32 s{sT3}, {e*4096}")
            a(f"buffer_load_ushort v{FZ+4*aa+e}, v8, s[{sSRDW}:{sSRDW+3}], s{sT3} offen{off} sc1")
    a(f"s_cmp_lg_u32 s{sST}, 1\ns_cbranch_scc1 L_z1_{tag}")
    for aa in range(4):
        for e in range(4):
            off = f" offset:{32*aa}" if aa else ""
            a(f"s_mov_b32 s{sT3}, {e*4096}")
            a(f"buffer_load_ushort v{FZ2+4*aa+e}, v101, s[{sSRDW}:{sSRDW+3}], s{sT3} offen{off} sc1")
    a("s_waitcnt vmcnt(0)")
    a(f"v_max3_u32 v2, v{FZ2}, v{FZ2+1}, v{FZ2+2}")
    for k in range(3, 15, 2): a(f"v_max3_u32 v2, v2, v{FZ2+k}, v{FZ2+k+1}")
    a(f"v_max_u32 v3, v2, v{FZ2+15}")
    a(f"s_branch L_z2_{tag}")
    a.label(f"L_z1_{tag}")
    a("s_waitcnt vmcnt(0)\nv_mov_b32 v3, 0")
    a.label(f"L_z2_{tag}")
    a(f"v_max3_u32 v2, v{FZ}, v{FZ+1}, v{FZ+2}")
    for k in range(3, 15, 2): a(f"v_max3_u32 v2, v2, v{FZ+k}, v{FZ+k+1}")
    a(f"v_max3_u32 v2, v2, v{FZ+15}, v3")
    a(f"v_cmp_eq_u32 vcc, 0xffff, v2\ns_add_u32 s{sCU}, s{sCU}, 1\ns_nop 0\ns_cmp_eq_u64 vcc, 0\ns_cbranch_scc1 L_zok_{tag}")
    a(f"s_cmp_lt_u32 s{sCU}, 5000\ns_cbranch_scc0 L_zok_{tag}\ns_sleep 2\ns_branch L_zre_{tag}")
    a.label(f"L_zok_{tag}")
    stamp(a, 29, stamps)

def gen_final_sum(a):
    a(f"s_mov_b32 s{sT3}, 0xffff0000")
    T = 240
    for j in range(8):
        for D in range(8):
            src = FP + 8*j + D
            if j == 0:
                a(f"v_lshlrev_b32 v{FS+2*D}, 16, v{src}\nv_and_b32 v{FS+2*D+1}, s{sT3}, v{src}")
            else:
                tt = T + 2*(D % 2)
                a(f"v_lshlrev_b32 v{tt}, 16, v{src}\nv_and_b32 v{tt+1}, s{sT3}, v{src}")
                a(f"v_pk_add_f32 v[{FS+2*D}:{FS+2*D+1}], v[{FS+2*D}:{FS+2*D+1}], v[{tt}:{tt+1}]")

OUTFL = ['']
XN, XF, R2, FF = 32, 48, 64, 68
def _unp(a, dst, src, M):
    a(f"v_lshlrev_b32 v{dst}, 16, v{src}\nv_and_b32 v{dst+1}, s{M}, v{src}\nv_lshlrev_b32 v{dst+2}, 16, v{src+1}\nv_and_b32 v{dst+3}, s{M}, v{src+1}")
def _pk(a, dst, src):
    a(f"v_cvt_pk_bf16_f32 v{dst}, v{src}, v{src+1}\nv_cvt_pk_bf16_f32 v{dst+1}, v{src+2}, v{src+3}")

def gen_final_pre_a(a):
    T = 240; M = sT3
    a(f"s_mov_b32 s{sT3}, 0xffff0000")
    for aa in range(4): a(f"v_rcp_f32 v{T+aa}, v{FST+2*aa+1}")
    a("s_nop 0")
    for aa in range(4): a(f"v_mul_f32 v{R2+aa}, v{T+aa}, v{T+aa}")
    for aa in range(4):
        P2 = T + 4 + 2*(aa % 2)
        _unp(a, XF+4*aa, FX+2*aa, M)
        for e in range(4): a(f"v_sub_f32 v{XN+4*aa+e}, v{XF+4*aa+e}, v{FST+2*aa}")
        _pk(a, P2, XN+4*aa); _unp(a, XN+4*aa, P2, M)
        for e in range(4): a(f"v_mul_f32 v{XN+4*aa+e}, v{XN+4*aa+e}, v{T+aa}")
        _pk(a, P2, XN+4*aa); _unp(a, XN+4*aa, P2, M)

def gen_final_pre_b(a):
    T = 244; M = sT3
    a(f"s_mov_b32 s{sT3}, 0xffff0000")
    for aa in range(4):
        P2 = T + 2*(aa % 2)
        for e in range(4): a(f"v_mul_f32 v{FF+4*aa+e}, v{FS+4*aa+e}, v{R2+aa}")
        _pk(a, P2, FF+4*aa); _unp(a, FF+4*aa, P2, M)

def gen_final_combine(a):
    U = 176; M = sT3
    a(f"s_mov_b32 s{sT3}, 0xffff0000")
    for aa in range(4):
        V4 = U + 8*(aa % 2)
        for e in range(4):
            a(f"v_lshlrev_b32 v{V4+e}, 16, v{FZ+4*aa+e}")
        for e in range(4): a(f"v_mul_f32 v{V4+e}, v{V4+e}, v{XN+4*aa+e}")
        _pk(a, V4+4, V4); _unp(a, V4, V4+4, M)
        for e in range(4): a(f"v_add_f32 v{V4+e}, v{V4+e}, v{XF+4*aa+e}")
        _pk(a, V4+4, V4); _unp(a, V4, V4+4, M)
        for e in range(4): a(f"v_add_f32 v{V4+e}, v{V4+e}, v{FF+4*aa+e}")
        _pk(a, V4+6, V4)
        a(f"s_mov_b32 s{sT2}, {16*1152*aa}")
        a(f"buffer_store_dwordx2 v[{V4+6}:{V4+7}], v7, s[{sOUT}:{sOUT+3}], s{sT2} offen" + OUTFL[0])

def gen_kernel(name, fp32_part=False, opts=None, stamps=False, mapping="32x1"):
    opts = opts or {}
    nodma = opts.get("no_dma")
    set_p1(opts.get("p1d", 3))
    a = Asm()
    a(f".globl {name}\n.p2align 8\n.type {name},@function\n{name}:")
    a("s_cmp_ge_u32 s2, 256\ns_cbranch_scc1 L_done")
    a("s_load_dwordx4 s[80:83], s[0:1], 0")
    a("s_load_dwordx4 s[88:91], s[0:1], 16")
    a("s_load_dwordx4 s[68:71], s[0:1], 32")
    a("s_load_dwordx4 s[4:7], s[0:1], 56")
    a("s_load_dwordx4 s[16:19], s[0:1], 72")
    a("s_load_dwordx4 s[44:47], s[0:1], 88")
    if stamps:
        a("s_memrealtime s[58:59]\ns_memtime s[50:51]")
    a(f"v_lshrrev_b32 v2, 6, v0\nv_and_b32 v{vLANE}, 63, v0")
    a(f"v_readfirstlane_b32 s{sW}, v2")
    if mapping == "32x1":
        a(f"s_and_b32 s{sJ}, s2, 7\ns_lshr_b32 s{sI}, s2, 3"); nshare = 32
        a(f"s_lshl_b32 s{sOM}, s{sI}, 2")
    elif mapping == "16x2":
        a(f"s_and_b32 s{sT0}, s2, 3\ns_lshl_b32 s{sT0}, s{sT0}, 1\ns_bfe_u32 s{sT1}, s2, 0x10003\ns_add_u32 s{sJ}, s{sT0}, s{sT1}")
        a(f"s_bfe_u32 s{sT0}, s2, 0x10002\ns_lshl_b32 s{sT0}, s{sT0}, 4\ns_lshr_b32 s{sT1}, s2, 4\ns_add_u32 s{sI}, s{sT0}, s{sT1}"); nshare = 16
        a(f"s_lshl_b32 s{sOM}, s{sT1}, 2")
    elif mapping == "8x4":
        a(f"s_and_b32 s{sT0}, s2, 1\ns_lshl_b32 s{sT0}, s{sT0}, 2\ns_bfe_u32 s{sT1}, s2, 0x20003\ns_add_u32 s{sJ}, s{sT0}, s{sT1}")
        a(f"s_bfe_u32 s{sT0}, s2, 0x20001\ns_lshl_b32 s{sT0}, s{sT0}, 3\ns_lshr_b32 s{sT1}, s2, 5\ns_add_u32 s{sI}, s{sT0}, s{sT1}"); nshare = 8
        a(f"s_lshl_b32 s{sOM}, s{sT1}, 2")
    a(f"v_lshlrev_b32 v{vPST}, 4, v{vLANE}")
    if not opts.get("no_codepf"):
        a("s_getpc_b64 s[52:53]")
        a.label("L_pc")
        a(f"s_sub_u32 s52, s52, L_pc-{name}\ns_subb_u32 s53, s53, 0")
        a(f"s_lshr_b32 s54, s2, 3\ns_and_b32 s54, s54, 3\ns_cmp_lg_u32 s54, s{sW}\ns_cbranch_scc1 L_nocpf")
        a(f"s_lshl_b32 s54, s{sW}, 13\nv_lshlrev_b32 v2, 7, v{vLANE}\nv_add_u32 v2, s54, v2\nv_min_u32 v2, L_done-{name}, v2")
        a(f"global_load_dword v{vDUM+3}, v2, s[52:53]")
        a.label("L_nocpf")
    a(f"s_add_u32 s{sOM}, s{sOM}, s{sW}")
    a(f"s_and_b32 s{sPAR}, s{sJ}, {0 if mapping == '32x1' else 1}")
    gen_q_addr(a, 0)
    a(f"s_mov_b32 s99, s{sT0}")
    a("s_waitcnt lgkmcnt(0)")
    a("s_mov_b32 s84, s82\ns_mov_b32 s85, s83")
    a(f"s_mov_b32 s{sQ+2}, {2048*576*2}\ns_mov_b32 s{sQ+3}, 0x00020000\ns_mov_b32 s{sT0}, s99")
    QREG = 176
    q0l = Asm(); gen_q_loads(q0l, QREG, 0, addr=False)
    early0 = len(a.lines)
    a.lines += tag_vm(q0l.lines, "q0")
    a("s_mov_b32 s92, s90\ns_mov_b32 s93, s91")
    a("s_mov_b32 s96, s70\ns_mov_b32 s97, s71")
    a("s_mov_b32 s8, s6\ns_mov_b32 s9, s7")
    a("s_mov_b32 s64, s18\ns_mov_b32 s65, s19")
    a("s_mov_b32 s12, s46\ns_mov_b32 s13, s47")
    a("s_mov_b32 s72, s80\ns_mov_b32 s73, s81")
    a(f"s_mov_b32 s18, {576*4608*2}\ns_mov_b32 s19, 0x00020000")
    for srd, n in ((sSRDA, 576*4608*2), (sSRDB, 576*4608*2), (sSRDW, WS_SIZE), (sDBG, 256), (sK, 2048*576*2), (sV, 2048*576*2), (sSK, 576*4*2), (sD, 576*2), (sOUT, 2048*576*2), (sX, 2048*576*2)):
        a(f"s_mov_b32 s{srd+2}, {n}\ns_mov_b32 s{srd+3}, 0x00020000")
    if stamps:
        a("v_mov_b32 v249, 0\nv_writelane_b32 v249, s50, 0")
    stamp(a, 1, stamps)
    p0 = early0
    QREG, KREG, vP9, vRUN = 176, 72, 250, 251
    def blk(fn, tag=None):
        t = Asm(); fn(t)
        return tag_vm(t.lines, tag) if tag else t.lines
    def B_pf0(t):
        gen_pf_setup(t, nshare)
        t(f"s_mul_i32 s{sPFO}, s{sJ}, 1152")
        t(f"buffer_load_dword v{vDUM}, v{vPF}, s[{sSRDA}:{sSRDA+3}], s{sPFO} offen")
        t(f"buffer_load_dword v{vDUM+1}, v{vPF}, s[{sSRDB}:{sSRDB+3}], s{sPFO} offen")
        t(f"s_add_u32 s{sPFO}, s{sPFO}, 128")
    def B_pf12(t):
        for r in range(2):
            t(f"buffer_load_dword v{vDUM}, v{vPF}, s[{sSRDA}:{sSRDA+3}], s{sPFO} offen")
            t(f"buffer_load_dword v{vDUM+1}, v{vPF}, s[{sSRDB}:{sSRDB+3}], s{sPFO} offen")
            t(f"s_add_u32 s{sPFO}, s{sPFO}, 128")
    def B_clr(t):
        t(f"v_mov_b32 v2, s{sPFLG}\nv_mov_b32 v3, 0x7ff00000\nv_cmp_eq_u32 vcc, 0, v{vLANE}\nv_mov_b32 v4, 0\ns_nop 0\nv_cndmask_b32 v2, v3, v2, vcc")
        t(f"buffer_store_dword v4, v2, s[{sSRDW}:{sSRDW+3}], 0 offen sc1")
        t(f"s_lshl_b32 s{sT2}, s{sC}, 12\ns_add_u32 s{sT2}, s{sT2}, {WS_ZT}\ns_cmp_lt_u32 s{sC}, 576\ns_cselect_b32 s{sT2}, s{sT2}, 0x7ff00000")
        for r in range(4): t(f"v_mov_b32 v{116+r}, -1")
        for k in range(4):
            off = f" offset:{1024*k}" if k else ""
            t(f"buffer_store_dwordx4 v[116:119], v{vPST}, s[{sSRDW}:{sSRDW+3}], s{sT2} offen{off} sc1")
    def B_setup(t):
        t(f"v_lshrrev_b32 v2, 3, v{vLANE}\nv_and_b32 v3, 7, v{vLANE}\nv_lshrrev_b32 v4, 1, v3\nv_and_b32 v5, 1, v3\nv_lshlrev_b32 v5, 4, v5")
        t(f"v_bfe_u32 v6, v{vLANE}, 4, 1\nv_lshlrev_b32 v7, 1, v6")
        t(f"s_mul_i32 s{sT0}, s{sW}, 24\nv_add_u32 v23, s{sT0}, v2\ns_movk_i32 s{sT1}, 9216\nv_mul_lo_u32 v21, v23, s{sT1}")
        for k in range(3):
            t(f"s_add_u32 s{sT1}, s{sW}, {k}\ns_and_b32 s{sT1}, s{sT1}, 1\ns_lshl_b32 s{sT1}, s{sT1}, 1")
            t(f"v_or_b32 v22, s{sT1}, v6\nv_xor_b32 v22, v4, v22\nv_lshlrev_b32 v22, 5, v22\nv_add3_u32 v22, v21, v22, v5")
            t(f"v_add_u32 v{VDG[k]}, {8*k*9216 - 1024*k}, v22\nv_mov_b32 v{VDU[k]}, v{VDG[k]}")
        t(f"s_mul_i32 s{sM0}, s{sW}, 3072\ns_add_u32 s{sM0+1}, s{sM0}, 12288")
        t(f"s_mul_i32 s{sT0}, s{sW}, 72\nv_add_u32 v23, s{sT0}, v2\ns_movk_i32 s{sT1}, 1152\nv_mul_lo_u32 v21, v23, s{sT1}")
        t(f"v_lshrrev_b32 v22, 1, v3\nv_bfe_u32 v23, v{vLANE}, 4, 2\nv_xor_b32 v22, v22, v23\nv_lshlrev_b32 v22, 5, v22\nv_and_b32 v23, 1, v3\nv_lshlrev_b32 v23, 4, v23\nv_add3_u32 v22, v21, v22, v23")
        for k in range(4): t(f"v_add_u32 v{vD2+k}, {8*k*1152 - 1024*k}, v22")
        t(f"v_and_b32 v2, 15, v{vLANE}\nv_bfe_u32 v3, v{vLANE}, 4, 1\nv_lshrrev_b32 v4, 5, v{vLANE}\nv_lshrrev_b32 v5, 2, v2\nv_bfe_u32 v6, v2, 3, 1")
        t(f"v_lshrrev_b32 v7, 4, v{vLANE}\nv_lshl_add_u32 v7, v7, 3, v5\nv_lshlrev_b32 v7, 7, v7\nv_lshl_add_u32 v21, v3, 1, v6\nv_xor_b32 v21, s{sW}, v21\nv_lshlrev_b32 v21, 5, v21")
        t(f"v_and_b32 v22, 3, v2\nv_lshlrev_b32 v22, 3, v22\nv_add3_u32 v{vRA1}, v7, v21, v22")
        t(f"v_add_u32 v{vRA1b}, 65536, v{vRA1}\nv_add_u32 v{vRA1c}, 131072, v{vRA1}")
        t(f"v_lshrrev_b32 v7, 4, v{vLANE}\nv_lshl_add_u32 v7, v7, 2, v5")
        t(f"v_bfe_u32 v21, v7, 1, 2\nv_xor_b32 v21, s{sW}, v21\nv_lshlrev_b32 v21, 5, v21\nv_lshlrev_b32 v7, 7, v7")
        t(f"v_add3_u32 v{vRA2}, v7, v21, v22\nv_add_u32 v{vRA2b}, 32768, v{vRA2}")
        t(f"s_mov_b32 s{sHIDX}, 0\ns_mov_b32 s{sB2}, 0")
        t(f"s_lshl_b32 s{sT0}, s{sJ}, 5\ns_add_u32 s{sT0}, s{sT0}, s{sI}\ns_mul_i32 s{sT0}, s{sT0}, {9*4*2048}\ns_mul_i32 s{sT1}, s{sW}, 2048\ns_add_u32 s{sT0}, s{sT0}, s{sT1}\ns_add_u32 s{sPOFF}, s{sT0}, {WS_PART}")
        t(f"s_mul_i32 s{sSOFF}, s{sJ}, {576*2}\ns_mov_b32 s{sINC}, {96*9216}")
        t(f"s_mov_b32 s{sINCW}, {(-5*96*9216 + (0 if opts.get('same_cols') else 128)) & 0xffffffff}")
        t(f"s_lshl_b32 s{sT0}, s{sI}, 7\ns_lshl_b32 s{sT1}, s{sJ}, 4\ns_add_u32 s{sT1}, s{sT1}, s{sT0}\ns_lshl_b32 s{sT0}, s{sW}, 2\ns_add_u32 s{sT1}, s{sT1}, s{sT0}\ns_add_u32 s{sPFLG}, s{sT1}, {WS_FLAG}")
        t(f"s_lshl_b32 s{sC}, s{sW}, 8\ns_add_u32 s{sC}, s{sC}, s2")
        gen_ln_setup(t)
    def B_dma012(t):
        for st in range(3):
            if st: t(f"s_add_u32 s{sSOFF}, s{sSOFF}, s{sINC}")
            tt = Asm(); dma1_group(tt, st)
            t.lines += tag_vm(tt.lines, "pair0") if st < 2 else tt.lines
    def B_frags(t):
        t(f"v_add_u32 v{vHR}, {HB}, v{vPST}\nv_add_u32 v2, {65536}, v{vHR}")
        for f in range(72):
            if f < 64: t(f"ds_read_b128 {xn_frag(f)}, v{vHR} offset:{f*1024}")
            else: t(f"ds_read_b128 {xn_frag(f)}, v2 offset:{(f-64)*1024}")
    a.lines += blk(B_pf0)
    a.lines += blk(B_setup)
    stamp(a, 2, stamps)
    if mapping != "32x1": a("s_waitcnt vmcnt(@q0)")
    a.lines += blk(lambda t: gen_q_loads(t, QREG, 1), "q1")
    a("s_waitcnt vmcnt(@q0)")
    stamp(a, 3, stamps)
    gen_ln_pass(a, QREG, 0)
    stamp(a, 6, stamps)
    a("s_waitcnt vmcnt(@q1)")
    a.lines += blk(B_pf12)
    a.lines += blk(lambda t: gen_kv_loads(t, KREG, vP9, vRUN), "kv")
    stamp(a, 5, stamps)
    gen_ln_pass(a, QREG, 1)
    a("s_waitcnt lgkmcnt(0)")
    stamp(a, 4, stamps)
    a("s_barrier")
    stamp(a, 7, stamps)
    fr = blk(B_frags); dm = groups_of(blk(B_dma012))
    interleave(a, fr, dm, start=4)
    a("s_waitcnt lgkmcnt(0)")
    stamp(a, 8, stamps)
    a("s_barrier")
    a(f"s_add_u32 s{sSOFF}, s{sSOFF}, s{sINC}")
    dma1_group(a, 3)
    a(f"s_add_u32 s{sSOFF}, s{sSOFF}, s{sINC}")
    dma1_group(a, 4, 0, 12 - P1_BAR)
    gen_pf_unit(a, nshare)
    stamp(a, 9, stamps)
    stamp(a, 10, stamps)
    a("s_waitcnt vmcnt(@pair0)")
    stamp(a, 11, stamps)
    a("s_barrier")
    lk = Lgkm(a)
    for kk in range(P1_D): p1_read(lk, kk, kk % P1_NB, ("A", kk))
    a(f"s_mov_b32 s{sCNT}, 4\ns_mov_b32 s62, 32\ns_mov_b32 s{sHIDX}, 8")
    stamp(a, 12, stamps)
    pre = list(lk.q)
    def post_bar(a_, lk_):
        t = Asm(); gen_kv_store(t); B_clr(t)
        for l in t.lines:
            if l.startswith("ds_read"): lk_.issue(("X", l), l)
            elif l == "s_waitcnt lgkmcnt(0)": a_(l); lk_.wait_all_keep = True; lk_.q = []
            else: a_(l)
    r0 = len(a.lines)
    gen_round(a, lk, 0, 1, "Z", opts=opts, extra=kv_compute_ops(vP9, vRUN))
    check_hazards(a.lines[r0:], "round0")
    a.lines[p0:] = resolve_vm(a.lines[p0:])
    a(f"v_and_b32 v2, 15, v{vLANE}\nv_lshlrev_b32 v2, 2, v2\nv_add_u32 v2, {LDS_STAT}, v2")
    for n in range(4): a(f"ds_read_b32 v{3+n}, v2 offset:{64*n}")
    a("s_waitcnt lgkmcnt(0)")
    for n in range(4):
        a(f"v_mul_f32 v7, v{3+n}, v{3+n}\nv_mul_f32 v{VC0[n]}, {hex(f2u(C0))}, v{3+n}\nv_mul_f32 v7, v7, v{3+n}\nv_mul_f32 v{VC1[n]}, {hex(f2u(C1))}, v7")
    a(f"s_mov_b32 s{sCNT}, 3")
    lk.q = list(pre)
    a.label("L_roundA")
    b0 = len(a.lines)
    gen_round(a, lk, 1, 0, "A", opts=opts)
    a.label("L_roundB")
    gen_round(a, lk, 0, 1, "B", last_check=True, opts=opts)
    assert lk.q == pre, (lk.q, pre)
    a(f"s_sub_u32 s{sCNT}, s{sCNT}, 1\ns_cmp_ge_i32 s{sCNT}, 0\ns_cbranch_scc1 L_roundA")
    check_hazards(a.lines[b0:] + a.lines[b0:], "phase1")
    a("s_waitcnt lgkmcnt(0)")
    stamp(a, 13, stamps)
    a("s_waitcnt vmcnt(0)")
    a("s_barrier")
    a(f"s_lshr_b32 s{sT0}, s{sW}, 1\ns_lshl_b32 s{sT0}, s{sT0}, 12\ns_and_b32 s{sT1}, s{sW}, 1\ns_lshl_b32 s{sT1}, s{sT1}, 3\ns_add_u32 s{sT0}, s{sT0}, s{sT1}")
    a(f"v_add_u32 v30, s{sT0}, v{vHR}\nv_add_u32 v31, 32768, v30")
    side = Asm()
    gen_kv_store(side)
    side.lines += blk(B_clr)
    gen_conv_issue(side, stamps)
    tmp = Asm(); gen_wd_pf(tmp, nshare, 4, 9)
    for l in tmp.lines: side(l.replace("v123", "v10X").replace("v124", "v127").replace("v125", "v5").replace("v10X", "v4"))
    groups, cur, hold = [], [], 0
    for l in side.lines:
        cur.append(l)
        if l.startswith("s_cbranch"): hold = 1
        if l.endswith(":"): hold = 0
        if not hold and (l.startswith("buffer_") or l.startswith("s_waitcnt") or l.endswith(":")):
            groups.append(cur); cur = []
    if cur: groups.append(cur)
    hw = []
    def hwrite(rho, src, nt):
        off = rho*8192 + nt*1024
        return f"ds_write_b64 v{30 if off < 32768 else 31}, v[{src+2*nt}:{src+2*nt+1}] offset:{off if off < 32768 else off - 32768}"
    for rho in range(8):
        src = HREG + 8*(rho+1)
        hw.append([hwrite(rho, src, 0), hwrite(rho, src, 1)]); hw.append([hwrite(rho, src, 2), hwrite(rho, src, 3)])
    merged = groups[:2]
    rest = groups[2:]
    k = 0
    while rest or hw:
        if rest: merged.append(rest.pop(0))
        if hw: merged.append(hw.pop(0))
        if hw: merged.append(hw.pop(0))
    interleave(a, gelu_ops(ACC[0]), merged, start=2)
    for nt in range(4): a(hwrite(8, HP, nt))
    a(f"v_mov_b32 v2, {LDS_STAT}\nv_mov_b32 v3, 0\nds_write_b32 v2, v3\nds_write_b32 v2, v3 offset:4")
    stamp(a, 16, stamps)
    a("s_waitcnt lgkmcnt(0)\ns_barrier")
    a(f"v_add_u32 v2, 65536, v{vHR}")
    for K in range(18):
        for nt in range(4):
            f = 4*K + nt
            a(f"ds_read_b128 {h_frag(K, nt)}, v{vHR if f < 64 else 2} offset:{(f % 64)*1024}")
    a("s_waitcnt lgkmcnt(0)\ns_barrier")
    a(f"s_mov_b32 s{sSRDA+2}, {576*4608*2}\ns_mov_b32 s{sSRDB+2}, {576*4608*2}")
    a(f"s_mul_i32 s{sSOFF}, s{sJ}, {576*1152}\ns_add_u32 s{sSOFF}, s{sSOFF}, {0 if opts.get('same_cols') else 128}")
    a(f"s_mov_b32 s{sINC}, {192*1152}")
    a(f"s_mov_b32 s{sINCW}, {(-2*192*1152 + (0 if opts.get('same_cols') else 128)) & 0xffffffff}")
    if not nodma:
        dma1_group(a, 3)
        a(f"s_add_u32 s{sSOFF}, s{sSOFF}, s{sINC}")
        dma1_group(a, 4)
        a(f"s_mov_b32 s{sT0}, 0x7ff00000")
        for k in range(2): a(f"buffer_load_dword v{vDUM+k}, v{vPST}, s[{sSRDA}:{sSRDA+3}], s{sT0} offen")
    lk = Lgkm(a)
    for F in range(P2_D): p2_read(lk, F, F % P2_NB, ("B", F))
    pre2 = list(lk.q)
    a(f"s_mov_b32 s{sCNT}, 9")
    stamp(a, 14, stamps)
    a.label("L_p2")
    bs = len(a.lines)
    gen_p2_chunk(a, lk, opts, dma=True)
    assert lk.q == pre2 or opts.get("rstamp"), (lk.q, pre2)
    a(f"s_cmp_gt_u32 s{sCNT}, 2\ns_cbranch_scc1 L_p2")
    check_hazards(a.lines[bs:] + a.lines[bs:], "phase2")
    a.label("L_p2b")
    bs = len(a.lines)
    lk.q = list(pre2)
    gen_p2_chunk(a, lk, opts, dma=False, tag="b")
    a(f"s_cmp_gt_u32 s{sCNT}, 0\ns_cbranch_scc1 L_p2b")
    check_hazards(a.lines[bs:] + a.lines[bs:], "phase2b")
    stamp(a, 15, stamps)
    a("s_waitcnt lgkmcnt(0)")
    a("s_barrier")
    a(f"s_mov_b32 s{sFC}, s{sJ}\ns_mov_b32 s{sFW}, s{sW}")
    c0 = len(a.lines)
    gen_conv_main(a, stamps)
    stamp(a, 27, stamps)
    gen_final_addr(a)
    gen_xstat_loads(a)
    a(f"s_cmp_lg_u32 s{sW}, 0\ns_cbranch_scc1 L_nosig\nv_mov_b32 v2, {LDS_STAT}\nv_mov_b32 v3, 1\nds_write_b32 v2, v3")
    a.label("L_nosig")
    check_hazards(a.lines[c0:], "conv")
    stamp(a, 20, stamps)
    a(f"s_mov_b32 s{sST}, 3")
    a("s_branch L_stg")
    a.label("L_noconv")
    publish_partial(a, 2)
    a(f"s_mov_b32 s{sST}, 3")
    a(f"s_cmp_eq_u32 s{sW}, 3\ns_cbranch_scc1 L_w3")
    gen_final_addr(a)
    gen_xstat_loads(a)
    a("s_branch L_stg")
    a.label("L_w3")
    a(f"s_lshl_b32 s{sT0}, s{sI}, 7\ns_add_u32 s{sT0}, s{sT0}, {WS_FLAG}\nv_and_b32 v12, 31, v{vLANE}\nv_lshlrev_b32 v12, 2, v12\nv_add_u32 v12, s{sT0}, v12")
    poll(a, "pB", 12, sSRDW, "0", 1, sCU, cmp="ge", sleep=2)
    gen_stage_partials(a)
    gen_final_addr(a)
    gen_xstat_loads(a)
    a("s_waitcnt vmcnt(0)")
    a(f"v_mov_b32 v2, {LDS_STAT + 4}\nv_mov_b32 v3, 1\nds_write_b32 v2, v3")
    a(f"s_lshr_b32 s{sT0}, s{sJ}, 2\ns_and_b32 s{sT1}, s{sI}, 1\ns_cmp_lg_u32 s{sT0}, s{sT1}\ns_cbranch_scc1 L_stg")
    a(f"s_mov_b32 s{sST}, 0\nv_mov_b32 v100, v7\nv_mov_b32 v101, v8")
    a(f"s_mov_b32 s{sFC}, 8\ns_and_b32 s{sFW}, s{sJ}, 3")
    gen_pflag_addr(a, 12, f"s{sFW}")
    poll(a, "pC", 12, sSRDW, "0", 2, sCU, cmp="ge", sleep=2)
    gen_final_addr(a)
    gen_final_loads(a, agpr=True)
    a.label("L_stg")
    f0 = len(a.lines)
    a(f"s_cmp_eq_u32 s{sST}, 0\ns_cbranch_scc1 L_prea\ns_waitcnt vmcnt(0)")
    a.label("L_prea")
    gen_final_pre_a(a)
    a(f"s_cmp_eq_u32 s{sST}, 1\ns_cbranch_scc1 L_fin2")
    lds_wait_word(a, "stg", 4)
    gen_partials_from_lds(a)
    a.label("L_fin2")
    stamp(a, 22, stamps)
    gen_final_sum(a)
    gen_final_pre_b(a)
    a(f"s_cmp_lg_u32 s{sST}, 0\ns_cbranch_scc1 L_zbar")
    for k in range(52): a(f"v_accvgpr_write_b32 a{80+k}, v{32+k}")
    a("s_waitcnt vmcnt(0)")
    for k in range(64): a(f"v_accvgpr_read_b32 v{FP+k}, a{k}")
    for k in range(8): a(f"v_accvgpr_read_b32 v{FX+k}, a{64+k}")
    for k in range(8): a(f"v_accvgpr_read_b32 v{FST+k}, a{72+k}")
    a(f"s_mov_b32 s{sST}, 1\ns_branch L_prea")
    a.label("L_zbar")
    a(f"s_cmp_lt_u32 s{sC}, 576\ns_cbranch_scc1 L_zgo")
    a(f"v_mov_b32 v2, {LDS_STAT}\ns_mov_b32 s{sCU}, 0")
    a.label("L_zwait")
    a(f"ds_read_b32 v3, v2\ns_waitcnt lgkmcnt(0)\nv_readfirstlane_b32 s{sT0}, v3\ns_add_u32 s{sCU}, s{sCU}, 1")
    a(f"s_cmp_eq_u32 s{sT0}, 1\ns_cbranch_scc1 L_zgo\ns_cmp_lt_u32 s{sCU}, 100000\ns_cbranch_scc0 L_zgo\ns_sleep 2\ns_branch L_zwait")
    a.label("L_zgo")
    stamp(a, 28, stamps)
    gen_final_z(a, "A", stamps)
    a.label("L_comb")
    gen_final_combine(a)
    stamp(a, 31, stamps)
    check_hazards(a.lines[f0:], "final")
    a(f"s_cmp_lg_u32 s{sST}, 1\ns_cbranch_scc1 L_final_done")
    a("s_nop 1")
    for k in range(52): a(f"v_accvgpr_read_b32 v{32+k}, a{80+k}")
    a("v_mov_b32 v7, v100\nv_mov_b32 v8, v101")
    for k in range(16): a(f"v_mov_b32 v{FZ+k}, v{FZ2+k}")
    a(f"s_mov_b32 s{sST}, 2\ns_branch L_comb")
    a.label("L_final_done")
    if stamps:
        a("s_waitcnt vmcnt(0)")
        stamp(a, 23, stamps)
        a("s_memrealtime s[60:61]\ns_waitcnt lgkmcnt(0)\ns_sub_u32 s60, s60, s58\nv_writelane_b32 v249, s60, 24\nv_writelane_b32 v249, s58, 60")
        a(f"s_lshl_b32 s34, s2, 2\ns_add_u32 s34, s34, s{sW}\ns_lshl_b32 s34, s34, 8\ns_add_u32 s34, s34, {WS_STAMP2}")
        a(f"v_lshlrev_b32 v6, 2, v{vLANE}")
        a(f"buffer_store_dword v249, v6, s[{sSRDW}:{sSRDW+3}], s34 offen\ns_waitcnt vmcnt(0)")
    a.label("L_done")
    a("s_endpgm")
    return a

def kv_compute_ops(vP9, vRUN):
    PP, AC, VU = 208, 240, 160
    ops = ["s_mov_b32 s53, 0xffff0000", "s_mov_b32 s52, 0x05040100", "s_mov_b32 s98, 0x07060302"]
    def mkP(p):
        r = p + 1; o = []
        for e in range(4):
            o.append(f"v_perm_b32 v{PP+8*(p%4)+2*e}, v{KRAW+4*(r-1)+e}, v{KRAW+4*r+e}, s52")
            o.append(f"v_perm_b32 v{PP+8*(p%4)+2*e+1}, v{KRAW+4*(r-1)+e}, v{KRAW+4*r+e}, s98")
        return o
    ops += [f"v_lshlrev_b32 v6, 2, v{vRUN}", "v_sub_u32 v6, 63, v6", "v_mul_u32_u24 v6, 160, v6", f"v_lshl_add_u32 v6, v{vP9}, 4, v6", f"v_add_u32 v6, {LDS_KV - 3*160}, v6"]
    ops += mkP(0) + mkP(1)
    for tok in range(4):
        ops += mkP(tok + 2)
        for c in range(8):
            ops.append(f"v_dot2_f32_bf16 v{AC+c}, v{PP+8*(tok%4)+c}, v{KCO+2*c+1}, 0")
        for c in range(8):
            ops.append(f"v_dot2_f32_bf16 v{AC+c}, v{PP+8*((tok+2)%4)+c}, v{KCO+2*c}, v{AC+c}")
        for e in range(4):
            ops += [f"v_lshlrev_b32 v{VU+2*e}, 16, v{VRAWL[tok]+e}", f"v_and_b32 v{VU+2*e+1}, s53, v{VRAWL[tok]+e}"]
        for c in range(8):
            ops.append(f"v_mul_f32 v{AC+c}, v{AC+c}, v{VU+c}")
        for e in range(4):
            ops.append(f"v_cvt_pk_bf16_f32 v{VU+8+e}, v{AC+2*e}, v{AC+2*e+1}")
        ops.append(("ds", f"ds_write_b128 v6, v[{VU+8}:{VU+11}] offset:{(3-tok)*160}"))
    return ops

def kd(name, nvgpr_arch, nagpr, nsgpr=100):
    acc_off = (nvgpr_arch + 3)//4*4
    tot = acc_off + nagpr if nagpr else nvgpr_arch
    return f""".section .rodata,"a"
.p2align 6
.amdhsa_kernel {name}
  .amdhsa_next_free_vgpr {tot}
  .amdhsa_next_free_sgpr {nsgpr}
  .amdhsa_accum_offset {acc_off}
  .amdhsa_group_segment_fixed_size 0
  .amdhsa_kernarg_size 104
  .amdhsa_user_sgpr_count 2
  .amdhsa_user_sgpr_kernarg_segment_ptr 1
  .amdhsa_system_sgpr_workgroup_id_x 1
  .amdhsa_float_denorm_mode_32 3
.end_amdhsa_kernel
"""

NAME = "parallel_sum__ssm_conv_h3__glu_gated_geglu__prompt_kernel"
def build(fn, single_launch=True, **kw):
    a = gen_kernel(NAME, **kw)
    ref = open("parallel_sum__ssm_conv_h3__glu_gated_geglu__prompt.s.ref").read()
    hdr = []
    for l in ref.splitlines():
        if l.startswith("; Override launch"): break
        hdr.append(l)
    hdr = "\n".join(hdr) + "\n"
    hdr += f"; @launch grid=(256,1,1) block=(256,1,1) lds={LDS_TOTAL}\n"
    hdr += '.amdgcn_target "amdgcn-amd-amdhsa--gfx950"\n.text\n'
    open(fn, "w").write(hdr + a.text() + kd(NAME, 256, 256))

if __name__ == "__main__":
    import sys
    build("s_plain.s")
    build("s_st.s", stamps=True, opts={})
    build("a_base.s")
    build("a_w2d4.s", opts={"p1w2": True, "p1d": 4})
    build("a_w2d4b.s", opts={"p1w2": True, "p1d": 4, "p1w": (2, 0, 1, 2)})
    build("s_w2.s", stamps=True, opts={"p1w2": True, "p1d": 4})
```

```python
from asmlib import *
import math

WS_STATS = 0x240000
WS_KVR   = 0x250000
WS_ZT    = 0x490000
WS_STAMP = 0x6D0000
WS_STAMP2 = 0x3000000
WS_FLAG  = 0x6F0000
WS_ZFLAG = 0x6F2000
WS_PART  = 0x700000
WS_SIZE  = 0x10000000

SLOT = 24576
HB   = 3*SLOT
LDS_STAT = 147456
LDS_KV   = 147456 + 256
LDS_XR   = 147456 + 256
LDS_TOTAL = 147456 + 256 + 3*4608

C0 = -2.0*math.sqrt(2.0/math.pi)*math.log2(math.e)
C1 = C0*0.044715

sSRDA, sSRDB, sSRDW = 4, 8, 12
sWD = 16
sWDS = 16
sW, sJ, sI = 20, 21, 22
sSOFF = 23
sM0 = 24
sPFO = 26
sOM = 27
sCNT = 30
sINC, sINCW = 31, 32
sT0, sT1, sT2, sT3 = 34, 35, 36, 37
sPOFF = 38
sHIDX = 39
sEX = 40
sB2 = 42
sDBG = 44
sPFA, sPFB = 80, 84
sQ, sK, sV, sSK, sD = 80, 84, 88, 92, 96
sHK = 68
sOUT = 64
sX = 72
vLANE = 1
vRA1, vRA1b, vRA1c = 8, 30, 31
vRA2, vRA2b = 9, 10
vPF = 11
VDG, VDU = [12, 13, 14], [15, 16, 17]
VC0, VC1 = [18, 21, 22, 23], [120, 121, 122, 123]
vPST = 19
vHR = 20
vD2 = 24
vPF2 = 28
sPFU = 63
ACC = [32, 64]
AF = 96
XE = 128
GT = 160
HP = 168
HREG = 176
vDUM = 252

def xn_frag(f):
    return A(4*f, 4) if f < 64 else V(XE + 4*(f-64), 4)

class Lgkm:
    def __init__(self, a):
        self.a = a; self.q = []
    def issue(self, tag, text):
        self.a(text); self.q.append(tag)
    def wait_for(self, tag):
        cand = [i for i, t in enumerate(self.q) if t == tag]
        if not cand: return
        idx = max(cand); n = len(self.q) - 1 - idx
        assert n <= 15, n
        self.a(f"s_waitcnt lgkmcnt({n})")
        self.q = self.q[idx+1:]
    def wait_all(self): self.q = []

NT = {'pf': '', 'kv': ' nt', 'q': '', 'h': ' nt'}
def resolve_vm(lines):
    out = []; ops = []
    for l in lines:
        body = l.split(";")[0].strip()
        if body.startswith("buffer_") or body.startswith("global_"):
            tag = l.split("; vm:")[1].strip() if "; vm:" in l else None
            ops.append(tag)
        if "vmcnt(@" in l:
            tag = l.split("vmcnt(@")[1].split(")")[0]
            idx = max(i for i, t in enumerate(ops) if t == tag)
            n = len(ops) - 1 - idx
            assert n <= 63
            l = l.replace(f"vmcnt(@{tag})", f"vmcnt({n})")
        out.append(l)
    return out

def tag_vm(lines, tag):
    return [l + f" ; vm:{tag}" if (l.startswith("buffer_") or l.startswith("global_")) else l for l in lines]

def stamp(a, idx, on):
    if not on: return
    a("s_memtime s[48:49]")
    a("s_waitcnt lgkmcnt(0)")
    a(f"v_writelane_b32 v249, s48, {idx}")

def gelu_ops(accP, dst=HP):
    ops = []; k = 0
    for n in range(4):
        for r in range(0, 4, 2):
            g0, g1 = accP + 4*n + r, accP + 4*n + r + 1
            u0, u1 = g0 + 16, g1 + 16
            tb = GT + 4*(k % 2)
            t0, t1, q0, q1 = tb, tb+1, tb+2, tb+3
            ops += [
                f"v_mul_f32 v{t0}, v{g0}, v{g0}", f"v_mul_f32 v{t1}, v{g1}, v{g1}",
                f"v_fma_f32 v{t0}, v{t0}, v{VC1[n]}, v{VC0[n]}", f"v_fma_f32 v{t1}, v{t1}, v{VC1[n]}, v{VC0[n]}",
                f"v_mul_f32 v{t0}, v{t0}, v{g0}", f"v_mul_f32 v{t1}, v{t1}, v{g1}",
                f"v_exp_f32 v{t0}, v{t0}", f"v_exp_f32 v{t1}, v{t1}",
                f"v_mul_f32 v{q0}, v{g0}, v{u0}", f"v_mul_f32 v{q1}, v{g1}, v{u1}",
                f"v_add_f32 v{t0}, 1.0, v{t0}", f"v_add_f32 v{t1}, 1.0, v{t1}",
                f"v_rcp_f32 v{t0}, v{t0}", f"v_rcp_f32 v{t1}, v{t1}",
                f"v_mul_f32 v{q0}, v{q0}, v{t0}", f"v_mul_f32 v{q1}, v{q1}, v{t1}",
                f"v_cvt_pk_bf16_f32 v{dst + 2*n + r//2}, v{q0}, v{q1}",
            ]
            k += 1
    return ops

def dma1(a, which, k):
    srd = sSRDA if which == 0 else sSRDB
    vo = (VDG if which == 0 else VDU)[k]
    off = f" offset:{1024*k}" if k else ""
    a(f"buffer_load_dwordx4 v{vo}, s[{srd}:{srd+3}], s{sSOFF} offen{off} lds")

def dma1_group(a, slot, q0=0, q1=6):
    for q in range(q0, q1):
        which, k = divmod(q, 3)
        if k == 0 or q == q0:
            a(f"s_add_u32 m0, s{sM0+which}, {slot*SLOT}")
            a("s_nop 0")
        dma1(a, which, k)

def p1_read(lk, kk, buf, tag):
    st, k6 = divmod(kk % 36, 6)
    off = st*SLOT + (k6 & 1)*12288 + (k6 >> 1)*4096
    base = [vRA1, vRA1b, vRA1c][off // 65536]
    off %= 65536
    assert off + 512 < 65536
    r = AF + 4*buf
    lk.issue(tag, f"ds_read_b64_tr_b16 v[{r}:{r+1}], v{base} offset:{off}")
    lk.issue(tag, f"ds_read_b64_tr_b16 v[{r+2}:{r+3}], v{base} offset:{off+512}")

P1_D = 3
P1_NB = 4
P1_BAR = 9
def set_p1(D):
    global P1_D, P1_NB, P1_BAR
    P1_D = D; P1_NB = {3: 4, 4: 6, 5: 6}[D]; P1_BAR = 12 - D
def gen_round(a, lk, cur, prev, rname, last_check=False, opts=None, extra=None, post_bar=None):
    opts = opts or {}
    nodma = opts.get("no_dma")
    accC, accP = ACC[cur], ACC[prev]
    gops = gelu_ops(accP) if not opts.get("no_gelu") else []
    if extra is not None: gops = list(extra)
    G_START, G_END = (2, 24 + P1_BAR) if extra is None else (5, 24 + P1_BAR - 1)
    nslots = (G_END - G_START) * 2
    gi = 0
    def take_gelu(slot_idx):
        nonlocal gi
        tgt = (len(gops) * (slot_idx + 1) + nslots - 1) // nslots
        out = gops[gi:tgt]; gi = max(gi, tgt)
        return out
    for kk in range(36):
        pr, ks = divmod(kk, 12)
        buf = kk % P1_NB
        a.c(f"--- round {rname} kstep {kk}")
        if opts.get("rstamp") and kk == 0: a("s_memtime s[50:51]")
        if opts.get("p1w2"):
            if kk % 2 == 0: lk.wait_for(("A", kk + 1))
        else:
            lk.wait_for(("A", kk))
        K32, part = kk >> 1, kk & 1
        def mf(nt):
            d = V(accC + 16*part + 4*nt, 4)
            a(f"v_mfma_f32_16x16x32_bf16 {d}, {V(AF+4*buf,4)}, {xn_frag(4*K32 + nt)}, {'0' if K32 == 0 else d}")
        fl = []
        if G_START <= kk < G_END:
            fl = take_gelu((kk - G_START)*2) + take_gelu((kk - G_START)*2 + 1)
        wts = opts.get("p1w", (2, 0, 1, 1))
        tot = sum(wts); cum = 0; fills = []; L = len(fl); used = 0
        for x in range(4):
            cum += wts[x]
            tgt = (L*cum + tot - 1)//tot if x < 3 else L
            fills.append(fl[used:tgt]); used = max(used, tgt)
        if ks >= P1_BAR: q12 = ks - P1_BAR; gp = pr
        else: q12 = ks + (12 - P1_BAR); gp = (pr - 1) % 3
        half, q = divmod(q12, 6); which, k = divmod(q, 3)
        slot = 2*gp + half
        def emit(x):
            if isinstance(x, tuple): lk.issue(("X", x[1]), x[1])
            else: a(x)
        mf(0)
        if extra is not None and kk == G_START: a("s_waitcnt vmcnt(@kv)")
        for x in fills[0]: emit(x)
        mf(1)
        if ks == P1_BAR:
            for x in fills[1]: emit(x)
            a("s_waitcnt vmcnt(12) lgkmcnt(0)") if not nodma else a("s_waitcnt lgkmcnt(0)")
            lk.wait_all()
            if opts.get("rstamp") and kk == P1_BAR:
                a("v_mov_b32 v2, s50\nv_cmp_eq_u32 vcc, s62, v1\ns_add_u32 s62, s62, 1\ns_nop 0\nv_cndmask_b32 v249, v249, v2, vcc")
            if not opts.get("no_barrier"): a("s_barrier")
            mf(2)
            p1_read(lk, kk+P1_D, (kk+P1_D) % P1_NB, ("A", (kk+P1_D) % 36))
            if last_check and pr == 0:
                a(f"s_cmp_lg_u32 s{sCNT}, 0\ns_cbranch_scc1 L_nosw")
                gen_switch(a)
                a.label("L_nosw")
        else:
            p1_read(lk, kk+P1_D, (kk+P1_D) % P1_NB, ("A", (kk+P1_D) % 36))
            for x in fills[1]: emit(x)
            mf(2)
        if not nodma and q == 0:
            inc = sINCW if slot == 0 else sINC
            a(f"s_add_u32 s{sSOFF}, s{sSOFF}, s{inc}")
            if last_check and slot == 3:
                a(f"s_cmp_eq_u32 s{sCNT}, 0")
                a(f"s_cselect_b32 s{sSRDA+2}, 0, s{sSRDA+2}\ns_cselect_b32 s{sSRDB+2}, 0, s{sSRDB+2}")
        if kk == G_END and gops and extra is None:
            assert gi == len(gops) and k == 0
            a(f"s_set_gpr_idx_on s{sHIDX}, gpr_idx(DST)")
            a("s_nop 0")
            for qq in range(8): a(f"v_mov_b32 v{HREG+qq}, v{HP+qq}")
            a("s_set_gpr_idx_off")
            a(f"s_add_u32 s{sHIDX}, s{sHIDX}, 8")
        if not nodma and k == 0:
            a(f"s_add_u32 m0, s{sM0 + which}, {slot*SLOT}")
        f2 = list(fills[2])
        if not nodma:
            if k == 0:
                if f2: emit(f2.pop(0))
                else: a("s_nop 0")
            dma1(a, which, k)
        for x in f2: emit(x)
        mf(3)
        if kk == P1_BAR + 11 and not nodma and not opts.get("no_pf"):
            a(f"s_sub_u32 s{sPFU}, s{sPFU}, 1\ns_cmp_lg_u32 s{sPFU}, -1\ns_cbranch_scc1 L_nopf{rname}")
            a(f"buffer_load_dword v{vDUM}, v{vPF}, s[{sPFA}:{sPFA+3}], s{sPFO} offen")
            a(f"buffer_load_dword v{vDUM+1}, v{vPF2}, s[{sPFB}:{sPFB+3}], s{sPFO} offen")
            a.label(f"L_nopf{rname}")
        for x in fills[3]: emit(x)

def gen_switch(a):
    a(f"s_mov_b32 s{sSRDA}, s{sWD}\ns_mov_b32 s{sSRDA+1}, s{sWD+1}\ns_mov_b32 s{sSRDB}, s{sWD}\ns_mov_b32 s{sSRDB+1}, s{sWD+1}")
    a(f"s_mul_i32 s{sT0}, s{sW}, {48*1152}")
    a(f"s_sub_u32 s{sT1}, {96*1152}, s{sT0}")
    for k in range(3):
        a(f"v_subrev_u32 v{VDG[k]}, s{sT0}, v{vD2+k}")
        a(f"v_add_u32 v{VDU[k]}, s{sT1}, v{vD2+k}")
    a(f"s_mul_i32 s{sSOFF}, s{sJ}, {576*1152}")
    a(f"s_mov_b32 s{sINCW}, 0")
    a(f"s_mov_b32 s{sINC}, {192*1152}")

def gen_pf_switch(a):
    a(f"s_mov_b32 s{sPFA}, s{sWD}\ns_mov_b32 s{sPFA+1}, s{sWD+1}")
    a(f"s_add_u32 s{sPFB}, s{sWD}, 256\ns_addc_u32 s{sPFB+1}, s{sWD+1}, 0")
    a(f"s_sub_u32 s{sPFB+2}, s{sPFA+2}, 256")
    a(f"v_mov_b32 v{vPF}, v{vPF2}")
    a(f"s_mul_i32 s{sPFO}, s{sJ}, {576*1152}")

S2 = 36864
def dma2(a, k):
    off = f" offset:{1024*(k%4)}" if k % 4 else ""
    a(f"buffer_load_dwordx4 v{vD2 + k%4}, s[{sSRDA}:{sSRDA+3}], s{sT3} offen{off} lds")

def dma2_pre(a, k, m0expr):
    if k % 4 == 0:
        a(m0expr(k//4))
        a(f"s_add_u32 s{sT3}, s{sSOFF}, {32*1152*(k//4)}")

def dma2_group(a, slot):
    for k in range(9):
        dma2_pre(a, k, lambda g: f"s_add_u32 m0, s{sM0}, {slot*S2 + 4096*g}")
        dma2(a, k)

def h_frag(K, nt):
    f = 4*K + nt
    return A(4*f, 4) if f < 64 else V(XE + 4*(f-64), 4)

def p2_read(lk, F, buf, tag):
    off = (F % 18)*4096
    base = vRA2
    if off + 2048 > 65535:
        base = vRA2b; off -= 32768
    r = AF + 4*buf
    lk.issue(tag, f"ds_read_b64_tr_b16 v[{r}:{r+1}], v{base} offset:{off}")
    lk.issue(tag, f"ds_read_b64_tr_b16 v[{r+2}:{r+3}], v{base} offset:{off+2048}")

P2_NB = 6
P2_D = 3
def p2_group_setup(a, st):
    inc = sINCW if st == 1 else sINC
    a(f"s_add_u32 s{sSOFF}, s{sSOFF}, s{inc}")
    if st == 0: a(f"s_xor_b32 s{sT2}, s{sB2}, {3*SLOT}\ns_add_u32 s{sT2}, s{sT2}, {2*SLOT}")
    else: a(f"s_add_u32 s{sT2}, s{sB2}, {(st-1)*SLOT}")

def p2_dma(a, q):
    which, k = divmod(q, 3)
    if k == 0: a(f"s_add_u32 m0, s{sT2}, s{sM0+which}\ns_nop 0")
    dma1(a, which, k)

def gen_p2_chunk(a, lk, opts, dma=True, tag=""):
    nodma = opts.get("no_dma")
    acc = ACC[0]
    for T in range(18):
        st, ks = divmod(T, 6)
        a.c(f"--- p2{tag} kstep {T}")
        if opts.get("rstamp") and T == 0: a("s_memtime s[50:51]")
        lk.wait_for(("B", T))
        if ks == 0:
            if not nodma:
                if dma: a(f"s_waitcnt vmcnt({22 if st == 0 else 20})")
                else: a(f"s_waitcnt vmcnt({[22, 20, 14][st]})")
            if not opts.get("no_barrier"): a("s_barrier")
        def mf(nt):
            cz = "0" if T == 0 else V(acc+4*nt, 4)
            a(f"v_mfma_f32_16x16x32_bf16 {V(acc+4*nt,4)}, {V(AF+4*(T % P2_NB),4)}, {h_frag(T, nt)}, {cz}")
        mf(0)
        if T == 18 - P2_D:
            a(f"v_xor_b32 v{vRA2}, {3*SLOT}, v{vRA2}")
            a(f"v_xor_b32 v{vRA2b}, {3*SLOT}, v{vRA2b}")
        F = T + P2_D
        if dma or F < 18: p2_read(lk, F, (F % 18) % P2_NB, ("B", F % 18))
        mf(1)
        if not nodma and dma:
            if ks == 0: p2_group_setup(a, st)
            which, k = divmod(ks, 3)
            if k == 0: a(f"s_add_u32 m0, s{sT2}, s{sM0+which}")
        mf(2)
        if not nodma and dma: dma1(a, ks // 3, ks % 3)
        mf(3)
        if opts.get("rstamp") and T == 4:
            a("s_waitcnt lgkmcnt(0)"); lk.wait_all()
            a("v_mov_b32 v2, s50\nv_cmp_eq_u32 vcc, s62, v1\ns_add_u32 s62, s62, 1\ns_nop 0\nv_cndmask_b32 v249, v249, v2, vcc")
        if dma and T == 8:
            a(f"s_and_b32 s{sT0}, s{sI}, 3\ns_sub_u32 s{sT0}, 8, s{sT0}\ns_cmp_lg_u32 s{sCNT}, s{sT0}\ns_cbranch_scc1 L_nokvadd\ns_cmp_lg_u32 s{sW}, 0\ns_cbranch_scc1 L_nokvadd")
            a(f"v_mov_b32 v2, s2\nv_mov_b32 v3, 1")
            a(f"v_cmp_eq_u32 vcc, 0, v{vLANE}\ns_and_saveexec_b64 s[{sEX}:{sEX+1}], vcc")
            a(f"buffer_store_byte v3, v2, s[{sDBG}:{sDBG+3}], 0 offen sc1")
            a(f"s_mov_b64 exec, s[{sEX}:{sEX+1}]")
            a.label("L_nokvadd")
        if not nodma and not dma and T == 0:
            p2_group_setup(a, 0)
            for q in range(6): p2_dma(a, q)
            a(f"s_cmp_lg_u32 s{sW}, 0\ns_cbranch_scc1 L_p2noprobe")
            a(f"buffer_load_dword v95, v11, s[{sDBG}:{sDBG+3}], 0 offen sc1")
            a.label("L_p2noprobe")
    a.c("--- p2 chunk epilogue")
    a(f"s_xor_b32 s{sB2}, s{sB2}, {3*SLOT}")
    a(f"s_sub_u32 s{sCNT}, s{sCNT}, 1")
    a("s_nop 4")
    for q in range(8):
        a(f"v_cvt_pk_bf16_f32 v{GT+q}, v{acc+2*q}, v{acc+2*q+1}")
    for q in range(2):
        off = f" offset:{1024*q}" if q else ""
        a(f"buffer_store_dwordx4 {V(GT+4*q,4)}, v{vPST}, s[{sSRDW}:{sSRDW+3}], s{sPOFF} offen{off} sc1")
    a(f"s_add_u32 s{sPOFF}, s{sPOFF}, {4*2048}")

sMT, sMTE = 60, 61
def gen_p2_tile8(a):
    acc = ACC[0]
    a.label("L_t8")
    a(f"s_xor_b32 s{sT0}, s{sMT}, s{sW}\ns_lshl_b32 s{sT0}, s{sT0}, 5\nv_xor_b32 v30, s{sT0}, v{vRA2}\nv_xor_b32 v31, s{sT0}, v{vRA2b}")
    lk = Lgkm(a)
    def rd(F):
        off = F*4096; base = 30
        if off + 2048 > 65535: base = 31; off -= 32768
        r = AF + 4*(F % P2_NB)
        lk.issue(("T", F), f"ds_read_b64_tr_b16 v[{r}:{r+1}], v{base} offset:{off}")
        lk.issue(("T", F), f"ds_read_b64_tr_b16 v[{r+2}:{r+3}], v{base} offset:{off+2048}")
    for F in range(P2_D): rd(F)
    for T in range(18):
        lk.wait_for(("T", T))
        for nt in range(4):
            cz = "0" if T == 0 else V(acc+4*nt, 4)
            a(f"v_mfma_f32_16x16x32_bf16 {V(acc+4*nt,4)}, {V(AF+4*(T % P2_NB),4)}, {h_frag(T, nt)}, {cz}")
            if nt == 0 and T + P2_D < 18: rd(T + P2_D)
    a(f"s_lshl_b32 s{sT0}, s{sJ}, 5\ns_add_u32 s{sT0}, s{sT0}, s{sI}\ns_mul_i32 s{sT0}, s{sT0}, 9\ns_add_u32 s{sT0}, s{sT0}, 8\ns_lshl_b32 s{sT0}, s{sT0}, 2\ns_add_u32 s{sT0}, s{sT0}, s{sMT}\ns_lshl_b32 s{sT0}, s{sT0}, 11\ns_add_u32 s{sT0}, s{sT0}, {WS_PART}")
    for q in range(8):
        a(f"v_cvt_pk_bf16_f32 v{GT+q}, v{acc+2*q}, v{acc+2*q+1}")
    for q in range(2):
        off = f" offset:{1024*q}" if q else ""
        a(f"buffer_store_dwordx4 {V(GT+4*q,4)}, v{vPST}, s[{sSRDW}:{sSRDW+3}], s{sT0} offen{off} sc1")
    a(f"s_cmp_lg_u32 s{sMT}, s{sT1}\ns_cbranch_scc1 L_t8np")
    a("s_waitcnt vmcnt(2)")
    publish_partial(a, 2, wait=False)
    a(f"s_lshl_b32 s{sT0}, s{sI}, 7\ns_add_u32 s{sT0}, s{sT0}, {WS_FLAG}\nv_and_b32 v12, 31, v{vLANE}\nv_lshlrev_b32 v12, 2, v12\nv_add_u32 v12, s{sT0}, v12")
    a(f"buffer_load_dword v29, v12, s[{sSRDW}:{sSRDW+3}], 0 offen sc1")
    a.label("L_t8np")
    a(f"s_add_u32 s{sMT}, s{sMT}, 1\ns_cmp_le_u32 s{sMT}, s{sMTE}\ns_cbranch_scc1 L_t8")

ONES_BF = 0x3f803f80
sPFLG = 56
sPAR = 28
sPP = 29
def gen_q_addr(a, p):
    if p == 0:
        a(f"v_and_b32 v2, 7, v{vLANE}\nv_mul_u32_u24 v2, 1152, v2\nv_lshrrev_b32 v3, 3, v{vLANE}\nv_lshl_add_u32 v248, v3, 4, v2")
    a(f"s_xor_b32 s{sPP}, s{sPAR}, {p}")
    a(f"s_lshl_b32 s{sT0}, s{sI}, 6\ns_lshl_b32 s{sT1}, s{sW}, 4\ns_add_u32 s{sT0}, s{sT0}, s{sT1}\ns_lshl_b32 s{sT1}, s{sPP}, 3\ns_add_u32 s{sT0}, s{sT0}, s{sT1}\ns_mul_i32 s{sT0}, s{sT0}, 1152")

def gen_q_loads(a, QREG, p, addr=True):
    if addr: gen_q_addr(a, p)
    for m in range(9):
        off = f" offset:{128*m}" if m else ""
        a(f"buffer_load_dwordx4 v[{QREG+36*p+4*m}:{QREG+36*p+4*m+3}], v248, s[{sQ}:{sQ+3}], s{sT0} offen{off}{NT['q']}")

LT = 32
def gen_ln_setup(a):
    T = LT
    vB = T+10
    a(f"v_lshrrev_b32 v{T+8}, 3, v{vLANE}\nv_lshrrev_b32 v{T+9}, 2, v{T+8}\nv_lshlrev_b32 v{vB}, 12, v{T+9}")
    a(f"v_and_b32 v{T+9}, 3, v{T+8}\nv_lshl_add_u32 v{vB}, v{T+9}, 8, v{vB}")
    a(f"v_and_b32 v{T+9}, 7, v{vLANE}\nv_lshl_add_u32 v{vB}, v{T+9}, 4, v{vB}")
    a(f"s_lshl_b32 s{sT0}, s{sW}, 10\ns_add_u32 s{sT0}, s{sT0}, {HB}")
    a(f"v_add_u32 v{vB}, s{sT0}, v{vB}")
    vSt = T+11
    a(f"s_lshl_b32 s{sT0}, s{sW}, 6\ns_add_u32 s{sT0}, s{sT0}, {LDS_STAT}")
    a(f"v_lshlrev_b32 v{vSt}, 2, v{T+9}\nv_add_u32 v{vSt}, s{sT0}, v{vSt}")
    vG = T+12
    a(f"s_lshl_b32 s{sT0}, s{sI}, 6\ns_lshl_b32 s{sT1}, s{sW}, 4\ns_add_u32 s{sT0}, s{sT0}, s{sT1}")
    a(f"v_add_u32 v{vG}, s{sT0}, v{T+9}\nv_lshlrev_b32 v{vG}, 3, v{vG}\nv_add_u32 v{vG}, {WS_STATS}, v{vG}")

def gen_ln_pass(a, QREG, p):
    T = LT
    vS, vQ2, vB, vSt, vG = T, T+4, T+10, T+11, T+12
    X = QREG + 36*p
    a(f"s_mov_b32 s{sT2}, {hex(ONES_BF)}\ns_mov_b32 s{sT3}, 0x00003f80\ns_mov_b32 s{sEX}, 0x3f800000")
    a(f"s_xor_b32 s{sPP}, s{sPAR}, {p}")
    a(f"s_lshl_b32 s{sT0}, s{sPP}, 7\nv_add_u32 v{T+13}, s{sT0}, v{vB}\ns_lshl_b32 s{sT0}, s{sPP}, 5\nv_add_u32 v{T+14}, s{sT0}, v{vSt}")
    for k in range(4): a(f"v_mov_b32 v{vS+k}, 0\nv_mov_b32 v{vQ2+k}, 0")
    for d in range(36):
        a(f"v_dot2c_f32_bf16 v{vS+d%4}, s{sT2}, v{X+d}")
        a(f"v_dot2c_f32_bf16 v{vQ2+d%4}, v{X+d}, v{X+d}")
    a("s_nop 2")
    a(f"v_add_f32 v{vS}, v{vS}, v{vS+1}\nv_add_f32 v{vS+2}, v{vS+2}, v{vS+3}")
    a(f"v_add_f32 v{vQ2}, v{vQ2}, v{vQ2+1}\nv_add_f32 v{vQ2+2}, v{vQ2+2}, v{vQ2+3}")
    a(f"v_add_f32 v{vS}, v{vS}, v{vS+2}\nv_add_f32 v{vQ2}, v{vQ2}, v{vQ2+2}")
    a("s_nop 1")
    a(f"v_add_f32_dpp v{vS}, v{vS}, v{vS} row_ror:8 row_mask:0xf bank_mask:0xf")
    a(f"v_add_f32_dpp v{vQ2}, v{vQ2}, v{vQ2} row_ror:8 row_mask:0xf bank_mask:0xf")
    for sw in ("v_permlane16_swap_b32", "v_permlane32_swap_b32"):
        a(f"v_mov_b32 v{vS+1}, v{vS}\nv_mov_b32 v{vQ2+1}, v{vQ2}")
        a("s_nop 1")
        a(f"{sw} v{vS}, v{vS+1}\n{sw} v{vQ2}, v{vQ2+1}")
        a("s_nop 1")
        a(f"v_add_f32 v{vS}, v{vS}, v{vS+1}\nv_add_f32 v{vQ2}, v{vQ2}, v{vQ2+1}")
    inv = hex(f2u(1.0/576.0))
    a(f"v_mul_f32 v{vS}, {inv}, v{vS}\nv_mul_f32 v{vQ2}, {inv}, v{vQ2}")
    a(f"v_fma_f32 v{vQ2}, -v{vS}, v{vS}, v{vQ2}\nv_max_f32 v{vQ2}, 0, v{vQ2}")
    a(f"v_cvt_pk_bf16_f32 v{vS+1}, v{vS}, v{vQ2}")
    a(f"v_and_b32 v{vQ2}, 0xffff0000, v{vS+1}\nv_lshlrev_b32 v{vS}, 16, v{vS+1}")
    a(f"v_add_f32 v{vQ2}, {hex(f2u(1e-5))}, v{vQ2}")
    a(f"v_cvt_pk_bf16_f32 v{vQ2}, v{vQ2}, v{vQ2}\nv_lshlrev_b32 v{vQ2}, 16, v{vQ2}")
    a(f"v_sqrt_f32 v{vQ2}, v{vQ2}\ns_nop 0")
    a(f"v_cvt_pk_bf16_f32 v{vQ2}, v{vQ2}, v{vQ2}\nv_lshlrev_b32 v{vS+1}, 16, v{vQ2}")
    a(f"v_rcp_f32 v{vQ2}, v{vS+1}\nv_sub_f32 v{vS+2}, 0, v{vS}")
    a(f"ds_write_b32 v{T+14}, v{vQ2}")
    a(f"s_lshl_b32 s{sT0}, s{sPP}, 6\ns_cmp_eq_u32 s{sJ}, 0\ns_cselect_b32 s{sT0}, s{sT0}, 0x7ff00000")
    a(f"buffer_store_dwordx2 v[{vS}:{vS+1}], v{vG}, s[{sSRDW}:{sSRDW+3}], s{sT0} offen sc1")
    D = T+16
    for m in range(9):
        tb = D + 12*(m % 2)
        for e in range(4):
            a(f"v_dot2_f32_bf16 v{tb+2*e}, v{X+4*m+e}, s{sT3}, v{vS+2}")
            a(f"v_dot2_f32_bf16 v{tb+2*e+1}, v{X+4*m+e}, s{sEX}, v{vS+2}")
        if m > 0:
            pb = D + 12*((m-1) % 2)
            for e in range(4): a(f"v_cvt_pk_bf16_f32 v{pb+8+e}, v{pb+2*e}, v{pb+2*e+1}")
            a(f"ds_write_b128 v{T+13}, v[{pb+8}:{pb+11}] offset:{(m-1)*8192}")
    pb = D
    a("s_nop 2")
    for e in range(4): a(f"v_cvt_pk_bf16_f32 v{pb+8+e}, v{pb+2*e}, v{pb+2*e+1}")
    a(f"v_add_u32 v{T+13}, 32768, v{T+13}")
    a(f"ds_write_b128 v{T+13}, v[{pb+8}:{pb+11}] offset:{8*8192 - 32768}")

def interleave(a, main_lines, side_groups, start=8):
    n = len(main_lines); g = len(side_groups)
    pos = [start + (n - start - 4) * k // max(g, 1) for k in range(g)]
    lab = None
    k = 0
    for idx, l in enumerate(main_lines):
        if idx > 0 and main_lines[idx-1].startswith("s_cmp"):
            pos = [p + 1 if p == idx else p for p in pos]
        while k < g and pos[k] <= idx and not (idx > 0 and main_lines[idx-1].startswith("s_cmp")):
            for x in side_groups[k]: a.lines.append(x)
            k += 1
        a.lines.append(l)
    while k < g:
        for x in side_groups[k]: a.lines.append(x)
        k += 1

def groups_of(lines):
    out, cur = [], []
    for l in lines:
        cur.append(l)
        if l.startswith("buffer_") or l.startswith("global_"):
            out.append(cur); cur = []
    if cur: out.append(cur)
    return out

KRAW, VRAW, KCO = 176, 112, 72
def gen_kv_loads(a, KREG, vP9, vRUN):
    a(f"s_mul_i32 s52, s{sW}, 36\nv_min_u32 v120, 35, v{vLANE}\nv_add_u32 v120, s52, v120".replace("v120", "v2"))
    a(f"s_mov_b32 s53, {(2**32 + 8)//9}\nv_mul_hi_u32 v{vRUN}, v2, s53")
    a(f"v_mul_u32_u24 v{vP9}, 9, v{vRUN}\nv_sub_u32 v{vP9}, v2, v{vP9}")
    a(f"s_lshl_b32 s52, s{sI}, 6\nv_lshlrev_b32 v3, 2, v{vRUN}\nv_add_u32 v3, s52, v3\nv_mul_u32_u24 v3, 1152, v3")
    a(f"s_mul_i32 s52, s{sJ}, 144\nv_lshl_add_u32 v4, v{vP9}, 4, v3\nv_add_u32 v4, s52, v4")
    for r in range(7):
        if r < 3:
            a(f"v_add_u32 v3, {(r-3)*1152 & 0xffffffff}, v4")
            a(f"buffer_load_dwordx4 v[{KRAW+4*r}:{KRAW+4*r+3}], v3, s[{sK}:{sK+3}], 0 offen{NT['kv']}")
        else:
            off = f" offset:{1152*(r-3)}" if r > 3 else ""
            a(f"buffer_load_dwordx4 v[{KRAW+4*r}:{KRAW+4*r+3}], v4, s[{sK}:{sK+3}], 0 offen{off}{NT['kv']}")
    for r in range(4):
        off = f" offset:{1152*r}" if r else ""
        a(f"buffer_load_dwordx4 v[{VRAW+4*r}:{VRAW+4*r+3}], v4, s[{sV}:{sV+3}], 0 offen{off}{NT['kv']}")
    a(f"s_mul_i32 s52, s{sJ}, 576\nv_lshlrev_b32 v3, 6, v{vP9}")
    for r in range(4):
        off = f" offset:{16*r}" if r else ""
        a(f"buffer_load_dwordx4 v[{KCO+4*r}:{KCO+4*r+3}], v3, s[{sSK}:{sSK+3}], s52 offen{off}")

def gen_kv_compute(a, KREG, vP9, vRUN):
    KU, SU, AC, VU = 32, 88, 120, 152
    a(f"s_mov_b32 s52, 0xffff0000")
    for r in range(7):
        for e in range(4):
            a(f"v_lshlrev_b32 v{KU+8*r+2*e}, 16, v{KREG+4*r+e}\nv_and_b32 v{KU+8*r+2*e+1}, s52, v{KREG+4*r+e}")
    for c in range(8):
        for jj in range(2):
            src = KREG + 44 + 2*c + jj
            a(f"v_lshlrev_b32 v{SU+8*(2*jj)+c}, 16, v{src}\nv_and_b32 v{SU+8*(2*jj+1)+c}, s52, v{src}")
    a(f"v_lshlrev_b32 v62, 2, v{vRUN}\nv_sub_u32 v62, 63, v62\nv_mul_u32_u24 v62, 160, v62")
    a(f"v_lshl_add_u32 v62, v{vP9}, 4, v62\nv_add_u32 v62, {LDS_KV - 3*160}, v62")
    for tok in range(4):
        for jj in (3, 2, 1, 0):
            for pr in range(4):
                d = f"v[{AC+8*tok+2*pr}:{AC+8*tok+2*pr+1}]"
                kk = f"v[{KU+8*(tok+3-jj)+2*pr}:{KU+8*(tok+3-jj)+2*pr+1}]"
                ss = f"v[{SU+8*jj+2*pr}:{SU+8*jj+2*pr+1}]"
                a(f"v_pk_mul_f32 {d}, {kk}, {ss}" if jj == 3 else f"v_pk_fma_f32 {d}, {kk}, {ss}, {d}")
        for e in range(4):
            a(f"v_lshlrev_b32 v{VU+2*e}, 16, v{KREG+28+4*tok+e}\nv_and_b32 v{VU+2*e+1}, s52, v{KREG+28+4*tok+e}")
        for pr in range(4):
            d = f"v[{AC+8*tok+2*pr}:{AC+8*tok+2*pr+1}]"
            a(f"v_pk_mul_f32 {d}, {d}, v[{VU+2*pr}:{VU+2*pr+1}]")
        for e in range(4):
            a(f"v_cvt_pk_bf16_f32 v{VU+8+e}, v{AC+8*tok+2*e}, v{AC+8*tok+2*e+1}")
        a(f"ds_write_b128 v62, v[{VU+8}:{VU+11}] offset:{(3-tok)*160}")

def gen_kv_store(a):
    a(f"v_and_b32 v2, 15, v{vLANE}\nv_lshrrev_b32 v3, 4, v{vLANE}\nv_lshrrev_b32 v4, 2, v2")
    a(f"v_lshl_add_u32 v4, v3, 3, v4\nv_mul_u32_u24 v4, 160, v4\nv_and_b32 v5, 3, v2\nv_lshl_add_u32 v4, v5, 3, v4\nv_add_u32 v4, {LDS_KV}, v4")
    a(f"s_mul_i32 s{sT0}, s{sJ}, 72\nv_add_u32 v5, s{sT0}, v2\nv_lshlrev_b32 v5, 12, v5\nv_lshl_add_u32 v5, v3, 4, v5")
    a(f"s_lshl_b32 s{sT0}, s{sI}, 7\ns_sub_u32 s{sT0}, {WS_KVR + 1984*2}, s{sT0}\nv_add_u32 v5, s{sT0}, v5")
    a("v_mov_b32 v7, 0x7ff00000")
    for u in range(3):
        a(f"s_add_u32 s{sT0}, s{sW}, {4*u}")
        a(f"s_lshr_b32 s{sT1}, s{sT0}, 1\ns_and_b32 s{sT2}, s{sT0}, 1")
        a(f"s_mul_i32 s{sT3}, s{sT2}, {32*160}\ns_lshl_b32 s{sEX}, s{sT1}, 5\ns_add_u32 s{sT3}, s{sT3}, s{sEX}")
        a(f"v_add_u32 v6, s{sT3}, v4")
        r = 96 + 4*u
        a(f"ds_read_b64_tr_b16 v[{r}:{r+1}], v6\nds_read_b64_tr_b16 v[{r+2}:{r+3}], v6 offset:{4*160}")
        a(f"s_lshl_b32 s{sT3}, s{sT1}, 16\ns_lshl_b32 s{sT2}, s{sT2}, 6\ns_add_u32 s{sT3}, s{sT3}, s{sT2}")
        a(f"v_add_u32 v{108+u}, s{sT3}, v5")
        a(f"s_cmp_eq_u32 s{sT1}, 4\ns_cselect_b32 s{sT2}, 8, 16\ns_cmp_gt_u32 s{sT1}, 4\ns_cselect_b32 s{sT2}, 0, s{sT2}")
        a(f"v_cmp_gt_u32 vcc, s{sT2}, v2\ns_nop 1\nv_cndmask_b32 v{108+u}, v7, v{108+u}, vcc")
    a("s_waitcnt lgkmcnt(0)")
    for u in range(3):
        a(f"buffer_store_dwordx4 v[{96+4*u}:{99+4*u}], v{108+u}, s[{sSRDW}:{sSRDW+3}], 0 offen sc1")

def gen_bulk_pf(a, nshare, opts):
    nw = nshare*4
    per = -(-4608 // nw)
    n_ins = -(-per // 64)
    assert n_ins == 1 or True
    for it in range(n_ins):
        cnt = min(64, per - 64*it)
        a(f"s_mul_i32 s54, s{sOM}, {per}\ns_add_u32 s54, s54, {64*it}\nv_min_u32 v123, {cnt-1}, v{vLANE}\nv_add_u32 v123, s54, v123\nv_min_u32 v123, 4607, v123")
        a(f"s_mov_b32 s55, {(2**32 + 575)//576}\nv_mul_hi_u32 v124, v123, s55\nv_mul_u32_u24 v125, 576, v124\nv_sub_u32 v125, v123, v125\nv_mul_u32_u24 v125, 9216, v125\nv_lshl_add_u32 v125, v124, 7, v125")
        a(f"s_mul_i32 s55, s{sJ}, 1152\ns_add_u32 s55, s55, 128")
        a(f"buffer_load_dword v{vDUM}, v125, s[{sSRDA}:{sSRDA+3}], s55 offen{NT['pf']}")
        a(f"buffer_load_dword v{vDUM+1}, v125, s[{sSRDB}:{sSRDB+3}], s55 offen{NT['pf']}")


def gen_wd_pf(a, nshare, c0, c1):
    nw = nshare*4
    nc = c1 - c0
    tot = 576*nc
    per = -(-tot // nw)
    assert per <= 64
    a(f"s_mul_i32 s54, s{sOM}, {per}\nv_min_u32 v123, {per-1}, v1\nv_add_u32 v123, s54, v123\nv_min_u32 v123, {tot-1}, v123")
    a(f"s_mov_b32 s55, {(2**32 + 575)//576}\nv_mul_hi_u32 v124, v123, s55\nv_mul_u32_u24 v125, 576, v124\nv_sub_u32 v125, v123, v125\nv_mul_u32_u24 v125, 1152, v125\nv_lshl_add_u32 v125, v124, 7, v125")
    a(f"s_mul_i32 s55, s{sJ}, {576*1152}\ns_add_u32 s55, s55, {128*c0}")
    a(f"buffer_load_dword v{vDUM+2}, v125, s[{sWDS}:{sWDS+3}], s55 offen")

def gen_pf_setup(a, nshare):
    nw = nshare*4
    NL = -(-576 // nw)
    a(f"s_mul_i32 s{sT0}, s{sOM}, {NL}\nv_min_u32 v2, {NL-1}, v{vLANE}\nv_add_u32 v2, s{sT0}, v2\nv_min_u32 v2, 575, v2")
    a(f"v_mul_u32_u24 v{vPF}, 9216, v2")

def gen_pf_unit(a, nshare):
    nparts = nshare // 8
    NL = -(-576 // (nparts*4))
    assert NL <= 64
    a(f"s_lshr_b32 s{sT0}, s{sOM}, 2\ns_and_b32 s{sPFU}, s{sT0}, 7\ns_lshr_b32 s{sT0}, s{sT0}, 3")
    a(f"s_lshl_b32 s{sT0}, s{sT0}, 2\ns_add_u32 s{sT0}, s{sT0}, s{sW}\ns_mul_i32 s{sT0}, s{sT0}, {NL}")
    a(f"v_min_u32 v2, {NL-1}, v{vLANE}\nv_add_u32 v2, s{sT0}, v2\nv_min_u32 v2, 575, v2")
    a(f"s_cmp_lt_u32 s{sPFU}, 6\ns_cbranch_scc0 L_pfwd")
    a(f"v_mul_u32_u24 v{vPF}, 9216, v2\nv_mov_b32 v{vPF2}, v{vPF}")
    a(f"s_mov_b32 s{sPFA}, s{sSRDA}\ns_mov_b32 s{sPFA+1}, s{sSRDA+1}\ns_mov_b32 s{sPFB}, s{sSRDB}\ns_mov_b32 s{sPFB+1}, s{sSRDB+1}")
    a(f"s_mul_i32 s{sPFO}, s{sJ}, 1152\ns_add_u32 s{sT0}, s{sPFU}, 3\ns_lshl_b32 s{sT0}, s{sT0}, 7\ns_add_u32 s{sPFO}, s{sPFO}, s{sT0}")
    a("s_branch L_pfok")
    a.label("L_pfwd")
    a(f"v_mul_u32_u24 v{vPF}, 1152, v2\nv_add_u32 v{vPF2}, 128, v{vPF}")
    a(f"s_mov_b32 s{sPFA}, s{sWD}\ns_mov_b32 s{sPFA+1}, s{sWD+1}\ns_mov_b32 s{sPFB}, s{sWD}\ns_mov_b32 s{sPFB+1}, s{sWD+1}")
    a(f"s_mul_i32 s{sPFO}, s{sJ}, {576*1152}\ns_sub_u32 s{sT0}, s{sPFU}, 6\ns_lshl_b32 s{sT0}, s{sT0}, 8\ns_add_u32 s{sPFO}, s{sPFO}, s{sT0}")
    a.label("L_pfok")
    a(f"s_mov_b32 s{sPFA+2}, {576*4608*2}\ns_mov_b32 s{sPFA+3}, 0x00020000\ns_mov_b32 s{sPFB+2}, {576*4608*2}\ns_mov_b32 s{sPFB+3}, 0x00020000")

CV_CP = 4160
CV_WAVE = 4*CV_CP
sC, sCB, sCT, sCU, sXR = 70, 71, 76, 77, 78
HL = 64
vDC = 94
def poll(a, name, voff_reg, srd, soff, target, scnt, cmp="ge", sleep=8):
    a(f"s_mov_b32 s{scnt}, 0")
    a.label(f"L_poll_{name}")
    a(f"buffer_load_dword v3, v{voff_reg}, s[{srd}:{srd+3}], {soff} offen sc1")
    a("s_waitcnt vmcnt(0)")
    a(f"v_cmp_{'le' if cmp == 'ge' else 'eq'}_u32 vcc, {target}, v3")
    a(f"s_add_u32 s{scnt}, s{scnt}, 1")
    a(f"s_cmp_eq_u64 vcc, exec\ns_cbranch_scc1 L_pollok_{name}")
    a(f"s_cmp_lt_u32 s{scnt}, 20000\ns_cbranch_scc0 L_pollok_{name}")
    a(f"s_sleep {sleep}\ns_branch L_poll_{name}")
    a.label(f"L_pollok_{name}")

def gen_conv_issue(a, stamps):
    a(f"v_lshlrev_b32 v11, 2, v{vLANE}")
    a(f"s_cmp_ge_u32 s{sC}, 576\ns_cbranch_scc1 L_conv_skip1")
    a(f"s_mul_i32 s{sCB}, s{sW}, {CV_WAVE}\ns_add_u32 s{sCB}, s{sCB}, {HB}")
    a(f"s_mul_i32 s{sXR}, s{sW}, 4608\ns_add_u32 s{sXR}, s{sXR}, {LDS_XR}")
    a(f"s_lshl_b32 s{sCT}, s{sC}, 12")
    a(f"s_add_u32 s88, s{sHK}, s{sCT}\ns_addc_u32 s89, s{sHK+1}, 0\ns_mov_b32 s90, 4096\ns_mov_b32 s91, 0x00020000")
    for o in range(5):
        a(f"v_add_u32 v5, {(1024*o - 16) & 0xffffffff}, v{vPST}")
        a(f"buffer_load_dwordx4 v[{HL+6*o}:{HL+6*o+3}], v5, s[88:91], 0 offen{NT['h']}")
        a(f"v_add_u32 v6, {1024*o}, v{vPST}")
        a(f"buffer_load_dwordx2 v[{HL+6*o+4}:{HL+6*o+5}], v6, s[88:91], 0 offen{NT['h']}")
    a(f"s_lshl_b32 s{sCT}, s{sC}, 1\nv_mov_b32 v4, s{sCT}")
    a(f"buffer_load_ushort v{vDC}, v4, s[{sD}:{sD+3}], 0 offen")
    a.label("L_conv_skip1")

def gen_conv_issue2(a):
    a(f"s_cmp_ge_u32 s{sC}, 576\ns_cbranch_scc1 L_conv_skip2")
    a(f"s_lshl_b32 s{sCT}, s{sC}, 12\ns_add_u32 s{sCT}, s{sCT}, {WS_KVR}")
    a(f"s_mov_b32 m0, s{sXR}\ns_nop 0")
    for k in range(4):
        off = f" offset:{1024*k}" if k else ""
        a(f"buffer_load_dwordx4 v{vPST}, s[{sSRDW}:{sSRDW+3}], s{sCT} offen{off} sc1 lds")
    a.label("L_conv_skip2")

def publish_partial(a, val=2, wait=True):
    if wait: a("s_waitcnt vmcnt(0)")
    a(f"v_mov_b32 v4, 0\nv_mov_b32 v5, {val}")
    a(f"v_cmp_eq_u32 vcc, 0, v{vLANE}\ns_and_saveexec_b64 s[{sEX}:{sEX+1}], vcc")
    a(f"buffer_store_dword v5, v4, s[{sSRDW}:{sSRDW+3}], s{sPFLG} offen sc1")
    a(f"s_mov_b64 exec, s[{sEX}:{sEX+1}]")

def gen_conv_main(a, stamps):
    a(f"s_cmp_ge_u32 s{sW}, 2\ns_cbranch_scc1 L_tiles")
    a.label("L_convgo")
    for r in range(4): a(f"v_mov_b32 v{32+r}, 0")
    a(f"v_add_u32 v5, s{sXR}, v{vPST}")
    a(f"v_cmp_gt_u32 vcc, 32, v{vLANE}\ns_and_saveexec_b64 s[{sEX}:{sEX+1}], vcc")
    a(f"ds_write_b128 v5, v[32:35] offset:4096")
    a(f"s_mov_b64 exec, s[{sEX}:{sEX+1}]")
    a(f"v_mul_u32_u24 v6, {CV_CP}, v{vLANE}\nv_add_u32 v6, s{sCB}, v6")
    a(f"v_cmp_gt_u32 vcc, 4, v{vLANE}\ns_and_saveexec_b64 s[{sEX}:{sEX+1}], vcc")
    a(f"ds_write_b128 v6, v[32:35]")
    a(f"s_mov_b64 exec, s[{sEX}:{sEX+1}]")
    a(f"v_add_u32 v7, s{sCB}, v{vPST}")
    stamp(a, 17, stamps)
    for o in range(5):
        P = HL + 6*o
        t = 96 + 16*(o % 2)
        if o == 4:
            a(f"v_cmp_eq_u32 vcc, 0, v{vLANE}\ns_and_saveexec_b64 s[{sEX}:{sEX+1}], vcc")
        for n in range(4):
            a(f"v_mov_b32 v{t+n}, v{P+n}")
            a(f"v_alignbit_b32 v{t+4+n}, v{P+n+1}, v{P+n}, 16")
            a(f"v_mov_b32 v{t+8+n}, v{P+n+1}")
            a(f"v_alignbit_b32 v{t+12+n}, v{P+n+2}, v{P+n+1}, 16")
        for s_ in range(4):
            a(f"ds_write_b128 v7, v[{t+4*s_}:{t+4*s_+3}] offset:{s_*CV_CP + 16 + 1024*o}")
        if o == 4: a(f"s_mov_b64 exec, s[{sEX}:{sEX+1}]")
    a(f"v_and_b32 v14, 15, v{vLANE}\nv_lshrrev_b32 v15, 4, v{vLANE}")
    a(f"v_lshlrev_b32 v16, 5, v14\nv_lshlrev_b32 v17, 4, v15\nv_sub_u32 v16, v17, v16")
    a(f"s_add_u32 s{sCT}, s{sXR}, {2*(2032 - 32*56)}\nv_add_u32 v16, s{sCT}, v16")
    a(f"v_add_u32 v2, 1, v14\nv_and_b32 v3, 3, v2\nv_mul_u32_u24 v3, {CV_CP}, v3\nv_lshrrev_b32 v2, 2, v2")
    a(f"v_lshl_add_u32 v3, v2, 3, v3\nv_lshl_add_u32 v3, v15, 4, v3\nv_add_u32 v13, s{sCB}, v3")
    a("s_waitcnt lgkmcnt(0) vmcnt(0)")
    publish_partial(a, 3, wait=False)
    stamp(a, 19, stamps)
    lk = Lgkm(a)
    NB = 6; FB = 96; ACCB = 32
    def rdF(m):
        r = FB + 4*(m % NB)
        lk.issue(("F", m), f"ds_read_b64 v[{r}:{r+1}], v13 offset:{64*m}")
        lk.issue(("F", m), f"ds_read_b64 v[{r+2}:{r+3}], v13 offset:{64*m+8}")
    def rdG(i):
        lk.issue(("G", i), f"ds_read_b128 {A(4*(i+7),4)}, v16 offset:{(56-i)*64}")
    rdF(0)
    for T in range(8): rdG(8*T)
    rdF(1)
    for m in range(64):
        T0 = max(0, -(-(m-7)//8))
        lk.wait_for(("F", m))
        pend = []
        if m + 1 < 8: pend += [("G", 8*T - (m+1)) for T in range(8)]
        if m + 2 < 64: pend += [("F", m+2)]
        for T in range(T0, 8):
            if m < 8: lk.wait_for(("G", 8*T - m))
            c_ = "0" if m == 0 else f"v[{ACCB+4*T}:{ACCB+4*T+3}]"
            a(f"v_mfma_f32_16x16x32_bf16 v[{ACCB+4*T}:{ACCB+4*T+3}], v[{FB+4*(m%NB)}:{FB+4*(m%NB)+3}], {A(4*(8*T-m+7),4)}, {c_}")
            if pend:
                k, x = pend.pop(0)
                (rdG if k == "G" else rdF)(x)
        for k, x in pend: (rdG if k == "G" else rdF)(x)
    stamp(a, 21, stamps)
    a(f"v_lshlrev_b32 v5, 5, v14\nv_lshlrev_b32 v17, 3, v15\nv_add_u32 v17, v5, v17")
    a(f"s_add_u32 s{sCT}, s{sXR}, {2*2044 - 7*512}\nv_sub_u32 v2, s{sCT}, v17")
    for T in range(8): a(f"ds_read_b64 v[{96+2*T}:{97+2*T}], v2 offset:{(7-T)*512}")
    a(f"v_lshlrev_b32 v{vDC}, 16, v{vDC}")
    a(f"s_lshl_b32 s{sCT}, s{sC}, 12\ns_add_u32 s{sCT}, s{sCT}, {WS_ZT}\ns_mov_b32 s{sCU}, 0xffff0000")
    a("s_waitcnt lgkmcnt(0)")
    for T in range(8):
        kv = 96+2*T; ac = ACCB+4*T; t = 112 + 6*(T % 2)
        a(f"v_and_b32 v{t}, s{sCU}, v{kv+1}\nv_lshlrev_b32 v{t+1}, 16, v{kv+1}\nv_and_b32 v{t+2}, s{sCU}, v{kv}\nv_lshlrev_b32 v{t+3}, 16, v{kv}")
        for r in range(4): a(f"v_fmac_f32 v{ac+r}, v{t+r}, v{vDC}")
        a(f"v_cvt_pk_bf16_f32 v{t+4}, v{ac}, v{ac+1}\nv_cvt_pk_bf16_f32 v{t+5}, v{ac+2}, v{ac+3}")
        off = f" offset:{512*T}" if T else ""
        a(f"buffer_store_dwordx2 v[{t+4}:{t+5}], v17, s[{sSRDW}:{sSRDW+3}], s{sCT} offen{off} sc1")

def gen_pflag_addr(a, vdst, swave):
    a(f"s_lshl_b32 s{sT0}, s{sI}, 7\ns_lshl_b32 s{sT1}, {swave}, 2\ns_add_u32 s{sT0}, s{sT0}, s{sT1}\ns_add_u32 s{sT0}, s{sT0}, {WS_FLAG}")
    a(f"v_and_b32 v{vdst}, 7, v{vLANE}\nv_lshlrev_b32 v{vdst}, 4, v{vdst}\nv_add_u32 v{vdst}, s{sT0}, v{vdst}")

sFC, sFW, sST = 57, 55, 54
FP, FS, FX, FZ, FST = 128, 192, 208, 216, 232
def gen_final_addr(a):
    a(f"v_and_b32 v3, 15, v{vLANE}\nv_lshrrev_b32 v4, 4, v{vLANE}")
    a(f"s_lshl_b32 s{sT2}, s{sI}, 6\nv_add_u32 v5, s{sT2}, v3")
    a(f"s_lshl_b32 s{sT2}, s{sFC}, 6\ns_lshl_b32 s{sT1}, s{sFW}, 4\ns_add_u32 s{sT2}, s{sT2}, s{sT1}")
    a(f"v_lshlrev_b32 v6, 2, v4\nv_add_u32 v6, s{sT2}, v6")
    a(f"v_mul_u32_u24 v7, 1152, v5\nv_lshl_add_u32 v7, v6, 1, v7")
    a(f"v_lshlrev_b32 v8, 12, v6\nv_lshl_add_u32 v8, v5, 1, v8\nv_add_u32 v8, {WS_ZT}, v8")
    a(f"v_lshlrev_b32 v9, 3, v5\nv_add_u32 v9, {WS_STATS}, v9")

PSTG = 0
def gen_xstat_loads(a, agpr=False):
    R = (lambda r, n, base: f"a[{r-base[0]+base[1]}:{r-base[0]+base[1]+n-1}]") if agpr else (lambda r, n, base: f"v[{r}:{r+n-1}]")
    for aa in range(4):
        a(f"s_mov_b32 s{sT3}, {16*1152*aa}")
        a(f"buffer_load_dwordx2 {R(FX+2*aa, 2, (FX, 64))}, v7, s[{sX}:{sX+3}], s{sT3} offen")
    for aa in range(4):
        off = f" offset:{128*aa}" if aa else ""
        a(f"buffer_load_dwordx2 {R(FST+2*aa, 2, (FST, 72))}, v9, s[{sSRDW}:{sSRDW+3}], 0 offen{off} sc1")

def gen_final_loads(a, agpr=False):
    isz = 2048
    R = (lambda r, n, base: f"a[{r-base[0]+base[1]}:{r-base[0]+base[1]+n-1}]") if agpr else (lambda r, n, base: f"v[{r}:{r+n-1}]")
    a(f"s_mul_i32 s{sT2}, s{sI}, 9\ns_add_u32 s{sT2}, s{sT2}, s{sFC}\ns_lshl_b32 s{sT2}, s{sT2}, 2\ns_add_u32 s{sT2}, s{sT2}, s{sFW}\ns_mul_i32 s{sT2}, s{sT2}, {isz}\ns_add_u32 s{sT2}, s{sT2}, {WS_PART}")
    for j in range(8):
        for q in range(2):
            r = FP + (j*2 + q)*4
            off = f" offset:{1024*q}" if q else ""
            a(f"buffer_load_dwordx4 {R(r, 4, (FP, 0))}, v{vPST}, s[{sSRDW}:{sSRDW+3}], s{sT2} offen{off} sc1")
        if j < 7: a(f"s_add_u32 s{sT2}, s{sT2}, {32*9*4*isz}")
    gen_xstat_loads(a, agpr)

def gen_stage_partials(a, mid=None):
    a(f"s_mul_i32 s{sT2}, s{sI}, 9\ns_add_u32 s{sT2}, s{sT2}, s{sJ}\ns_mul_i32 s{sT2}, s{sT2}, 8192\ns_add_u32 s{sT2}, s{sT2}, {WS_PART}")
    for p in range(8):
        for h in range(2):
            a(f"s_mov_b32 m0, {PSTG + p*8192 + h*4096}\ns_add_u32 s{sT3}, s{sT2}, {h*4096}")
            for k in range(4):
                off = f" offset:{1024*k}" if k else ""
                a(f"buffer_load_dwordx4 v{vPST}, s[{sSRDW}:{sSRDW+3}], s{sT3} offen{off} sc1 lds")
        if p < 7: a(f"s_add_u32 s{sT2}, s{sT2}, {32*9*8192}")
        if p == 3 and mid is not None: mid()

def lds_wait_word(a, name, off):
    a(f"v_mov_b32 v2, {LDS_STAT + off}\ns_mov_b32 s{sCU}, 0")
    a.label(f"L_lw_{name}")
    a(f"ds_read_b32 v3, v2\ns_waitcnt lgkmcnt(0)\nv_readfirstlane_b32 s{sT0}, v3\ns_add_u32 s{sCU}, s{sCU}, 1")
    a(f"s_cmp_eq_u32 s{sT0}, 1\ns_cbranch_scc1 L_lwok_{name}\ns_cmp_lt_u32 s{sCU}, 200000\ns_cbranch_scc0 L_lwok_{name}\ns_sleep 1\ns_branch L_lw_{name}")
    a.label(f"L_lwok_{name}")

def gen_partials_from_lds(a):
    a(f"s_lshl_b32 s{sT0}, s{sW}, 11\nv_add_u32 v2, s{sT0}, v{vPST}")
    for p in range(8):
        for q in range(2):
            r = FP + (p*2 + q)*4
            a(f"ds_read_b128 v[{r}:{r+3}], v2 offset:{PSTG + p*8192 + q*1024}")
    a("s_waitcnt lgkmcnt(0)")

FZ2 = 84
def gen_final_z(a, tag, stamps=False):
    a(f"s_mov_b32 s{sCU}, 0")
    a.label(f"L_zre_{tag}")
    for aa in range(4):
        for e in range(4):
            off = f" offset:{32*aa}" if aa else ""
            a(f"s_mov_b32 s{sT3}, {e*4096}")
            a(f"buffer_load_ushort v{FZ+4*aa+e}, v8, s[{sSRDW}:{sSRDW+3}], s{sT3} offen{off} sc1")
    a(f"s_cmp_lg_u32 s{sST}, 1\ns_cbranch_scc1 L_z1_{tag}")
    for aa in range(4):
        for e in range(4):
            off = f" offset:{32*aa}" if aa else ""
            a(f"s_mov_b32 s{sT3}, {e*4096}")
            a(f"buffer_load_ushort v{FZ2+4*aa+e}, v101, s[{sSRDW}:{sSRDW+3}], s{sT3} offen{off} sc1")
    a("s_waitcnt vmcnt(0)")
    a(f"v_max3_u32 v2, v{FZ2}, v{FZ2+1}, v{FZ2+2}")
    for k in range(3, 15, 2): a(f"v_max3_u32 v2, v2, v{FZ2+k}, v{FZ2+k+1}")
    a(f"v_max_u32 v3, v2, v{FZ2+15}")
    a(f"s_branch L_z2_{tag}")
    a.label(f"L_z1_{tag}")
    a("s_waitcnt vmcnt(0)\nv_mov_b32 v3, 0")
    a.label(f"L_z2_{tag}")
    a(f"v_max3_u32 v2, v{FZ}, v{FZ+1}, v{FZ+2}")
    for k in range(3, 15, 2): a(f"v_max3_u32 v2, v2, v{FZ+k}, v{FZ+k+1}")
    a(f"v_max3_u32 v2, v2, v{FZ+15}, v3")
    a(f"v_cmp_eq_u32 vcc, 0xffff, v2\ns_add_u32 s{sCU}, s{sCU}, 1\ns_nop 0\ns_cmp_eq_u64 vcc, 0\ns_cbranch_scc1 L_zok_{tag}")
    a(f"s_cmp_lt_u32 s{sCU}, 5000\ns_cbranch_scc0 L_zok_{tag}\ns_sleep 2\ns_branch L_zre_{tag}")
    a.label(f"L_zok_{tag}")
    stamp(a, 29, stamps)

def gen_final_sum(a):
    a(f"s_mov_b32 s{sT3}, 0xffff0000")
    T = 240
    for j in range(8):
        for D in range(8):
            src = FP + 8*j + D
            if j == 0:
                a(f"v_lshlrev_b32 v{FS+2*D}, 16, v{src}\nv_and_b32 v{FS+2*D+1}, s{sT3}, v{src}")
            else:
                tt = T + 2*(D % 2)
                a(f"v_lshlrev_b32 v{tt}, 16, v{src}\nv_and_b32 v{tt+1}, s{sT3}, v{src}")
                a(f"v_pk_add_f32 v[{FS+2*D}:{FS+2*D+1}], v[{FS+2*D}:{FS+2*D+1}], v[{tt}:{tt+1}]")

OUTFL = ['']
XN, XF, R2, FF = 32, 48, 64, 68
def _unp(a, dst, src, M):
    a(f"v_lshlrev_b32 v{dst}, 16, v{src}\nv_and_b32 v{dst+1}, s{M}, v{src}\nv_lshlrev_b32 v{dst+2}, 16, v{src+1}\nv_and_b32 v{dst+3}, s{M}, v{src+1}")
def _pk(a, dst, src):
    a(f"v_cvt_pk_bf16_f32 v{dst}, v{src}, v{src+1}\nv_cvt_pk_bf16_f32 v{dst+1}, v{src+2}, v{src+3}")

def gen_final_pre_a(a):
    T = 240; M = sT3
    a(f"s_mov_b32 s{sT3}, 0xffff0000")
    for aa in range(4): a(f"v_rcp_f32 v{T+aa}, v{FST+2*aa+1}")
    a("s_nop 0")
    for aa in range(4): a(f"v_mul_f32 v{R2+aa}, v{T+aa}, v{T+aa}")
    for aa in range(4):
        P2 = T + 4 + 2*(aa % 2)
        _unp(a, XF+4*aa, FX+2*aa, M)
        for e in range(4): a(f"v_sub_f32 v{XN+4*aa+e}, v{XF+4*aa+e}, v{FST+2*aa}")
        _pk(a, P2, XN+4*aa); _unp(a, XN+4*aa, P2, M)
        for e in range(4): a(f"v_mul_f32 v{XN+4*aa+e}, v{XN+4*aa+e}, v{T+aa}")
        _pk(a, P2, XN+4*aa); _unp(a, XN+4*aa, P2, M)

def gen_final_pre_b(a):
    T = 244; M = sT3
    a(f"s_mov_b32 s{sT3}, 0xffff0000")
    for aa in range(4):
        P2 = T + 2*(aa % 2)
        for e in range(4): a(f"v_mul_f32 v{FF+4*aa+e}, v{FS+4*aa+e}, v{R2+aa}")
        _pk(a, P2, FF+4*aa); _unp(a, FF+4*aa, P2, M)

def gen_final_combine(a):
    U = 176; M = sT3
    a(f"s_mov_b32 s{sT3}, 0xffff0000")
    for aa in range(4):
        V4 = U + 8*(aa % 2)
        for e in range(4):
            a(f"v_lshlrev_b32 v{V4+e}, 16, v{FZ+4*aa+e}")
        for e in range(4): a(f"v_mul_f32 v{V4+e}, v{V4+e}, v{XN+4*aa+e}")
        _pk(a, V4+4, V4); _unp(a, V4, V4+4, M)
        for e in range(4): a(f"v_add_f32 v{V4+e}, v{V4+e}, v{XF+4*aa+e}")
        _pk(a, V4+4, V4); _unp(a, V4, V4+4, M)
        for e in range(4): a(f"v_add_f32 v{V4+e}, v{V4+e}, v{FF+4*aa+e}")
        _pk(a, V4+6, V4)
        a(f"s_mov_b32 s{sT2}, {16*1152*aa}")
        a(f"buffer_store_dwordx2 v[{V4+6}:{V4+7}], v7, s[{sOUT}:{sOUT+3}], s{sT2} offen" + OUTFL[0])

def gen_kernel(name, fp32_part=False, opts=None, stamps=False, mapping="32x1"):
    opts = opts or {}
    nodma = opts.get("no_dma")
    set_p1(opts.get("p1d", 3))
    a = Asm()
    a(f".globl {name}\n.p2align 8\n.type {name},@function\n{name}:")
    a("s_cmp_ge_u32 s2, 256\ns_cbranch_scc1 L_done")
    a("s_load_dwordx4 s[80:83], s[0:1], 0")
    a("s_load_dwordx4 s[88:91], s[0:1], 16")
    a("s_load_dwordx4 s[68:71], s[0:1], 32")
    a("s_load_dwordx4 s[4:7], s[0:1], 56")
    a("s_load_dwordx4 s[16:19], s[0:1], 72")
    a("s_load_dwordx4 s[44:47], s[0:1], 88")
    if stamps:
        a("s_memrealtime s[58:59]\ns_memtime s[50:51]")
    a(f"v_lshrrev_b32 v2, 6, v0\nv_and_b32 v{vLANE}, 63, v0")
    a(f"v_readfirstlane_b32 s{sW}, v2")
    if mapping == "32x1":
        a(f"s_and_b32 s{sJ}, s2, 7\ns_lshr_b32 s{sI}, s2, 3"); nshare = 32
        a(f"s_lshl_b32 s{sOM}, s{sI}, 2")
    elif mapping == "16x2":
        a(f"s_and_b32 s{sT0}, s2, 3\ns_lshl_b32 s{sT0}, s{sT0}, 1\ns_bfe_u32 s{sT1}, s2, 0x10003\ns_add_u32 s{sJ}, s{sT0}, s{sT1}")
        a(f"s_bfe_u32 s{sT0}, s2, 0x10002\ns_lshl_b32 s{sT0}, s{sT0}, 4\ns_lshr_b32 s{sT1}, s2, 4\ns_add_u32 s{sI}, s{sT0}, s{sT1}"); nshare = 16
        a(f"s_lshl_b32 s{sOM}, s{sT1}, 2")
    elif mapping == "8x4":
        a(f"s_and_b32 s{sT0}, s2, 1\ns_lshl_b32 s{sT0}, s{sT0}, 2\ns_bfe_u32 s{sT1}, s2, 0x20003\ns_add_u32 s{sJ}, s{sT0}, s{sT1}")
        a(f"s_bfe_u32 s{sT0}, s2, 0x20001\ns_lshl_b32 s{sT0}, s{sT0}, 3\ns_lshr_b32 s{sT1}, s2, 5\ns_add_u32 s{sI}, s{sT0}, s{sT1}"); nshare = 8
        a(f"s_lshl_b32 s{sOM}, s{sT1}, 2")
    a(f"v_lshlrev_b32 v{vPST}, 4, v{vLANE}")
    if not opts.get("no_codepf"):
        a("s_getpc_b64 s[52:53]")
        a.label("L_pc")
        a(f"s_sub_u32 s52, s52, L_pc-{name}\ns_subb_u32 s53, s53, 0")
        a(f"s_lshr_b32 s54, s2, 3\ns_and_b32 s54, s54, 3\ns_cmp_lg_u32 s54, s{sW}\ns_cbranch_scc1 L_nocpf")
        a(f"s_lshl_b32 s54, s{sW}, 13\nv_lshlrev_b32 v2, 7, v{vLANE}\nv_add_u32 v2, s54, v2\nv_min_u32 v2, L_done-{name}, v2")
        a(f"global_load_dword v{vDUM+3}, v2, s[52:53]")
        a.label("L_nocpf")
    a(f"s_add_u32 s{sOM}, s{sOM}, s{sW}")
    a(f"s_and_b32 s{sPAR}, s{sJ}, {0 if mapping == '32x1' else 1}")
    gen_q_addr(a, 0)
    a(f"s_mov_b32 s99, s{sT0}")
    a("s_waitcnt lgkmcnt(0)")
    a("s_mov_b32 s84, s82\ns_mov_b32 s85, s83")
    a(f"s_mov_b32 s{sQ+2}, {2048*576*2}\ns_mov_b32 s{sQ+3}, 0x00020000\ns_mov_b32 s{sT0}, s99")
    QREG = 176
    q0l = Asm(); gen_q_loads(q0l, QREG, 0, addr=False)
    early0 = len(a.lines)
    a.lines += tag_vm(q0l.lines, "q0")
    a("s_mov_b32 s92, s90\ns_mov_b32 s93, s91")
    a("s_mov_b32 s96, s70\ns_mov_b32 s97, s71")
    a("s_mov_b32 s8, s6\ns_mov_b32 s9, s7")
    a("s_mov_b32 s64, s18\ns_mov_b32 s65, s19")
    a("s_mov_b32 s12, s46\ns_mov_b32 s13, s47")
    a("s_mov_b32 s72, s80\ns_mov_b32 s73, s81")
    a(f"s_mov_b32 s18, {576*4608*2}\ns_mov_b32 s19, 0x00020000")
    for srd, n in ((sSRDA, 576*4608*2), (sSRDB, 576*4608*2), (sSRDW, WS_SIZE), (sDBG, 256), (sK, 2048*576*2), (sV, 2048*576*2), (sSK, 576*4*2), (sD, 576*2), (sOUT, 2048*576*2), (sX, 2048*576*2)):
        a(f"s_mov_b32 s{srd+2}, {n}\ns_mov_b32 s{srd+3}, 0x00020000")
    if stamps:
        a("v_mov_b32 v249, 0\nv_writelane_b32 v249, s50, 0")
    stamp(a, 1, stamps)
    p0 = early0
    QREG, KREG, vP9, vRUN = 176, 72, 250, 251
    def blk(fn, tag=None):
        t = Asm(); fn(t)
        return tag_vm(t.lines, tag) if tag else t.lines
    def B_pf0(t):
        gen_pf_setup(t, nshare)
        t(f"s_mul_i32 s{sPFO}, s{sJ}, 1152")
        t(f"buffer_load_dword v{vDUM}, v{vPF}, s[{sSRDA}:{sSRDA+3}], s{sPFO} offen")
        t(f"buffer_load_dword v{vDUM+1}, v{vPF}, s[{sSRDB}:{sSRDB+3}], s{sPFO} offen")
        t(f"s_add_u32 s{sPFO}, s{sPFO}, 128")
    def B_pf12(t):
        for r in range(2):
            t(f"buffer_load_dword v{vDUM}, v{vPF}, s[{sSRDA}:{sSRDA+3}], s{sPFO} offen")
            t(f"buffer_load_dword v{vDUM+1}, v{vPF}, s[{sSRDB}:{sSRDB+3}], s{sPFO} offen")
            t(f"s_add_u32 s{sPFO}, s{sPFO}, 128")
    def B_clr(t):
        t(f"v_mov_b32 v2, s{sPFLG}\nv_mov_b32 v3, 0x7ff00000\nv_cmp_eq_u32 vcc, 0, v{vLANE}\nv_mov_b32 v4, 0\ns_nop 0\nv_cndmask_b32 v2, v3, v2, vcc")
        t(f"buffer_store_dword v4, v2, s[{sSRDW}:{sSRDW+3}], 0 offen sc1")
        t(f"s_lshl_b32 s{sT2}, s{sC}, 12\ns_add_u32 s{sT2}, s{sT2}, {WS_ZT}\ns_cmp_lt_u32 s{sC}, 576\ns_cselect_b32 s{sT2}, s{sT2}, 0x7ff00000")
        for r in range(4): t(f"v_mov_b32 v{116+r}, -1")
        for k in range(4):
            off = f" offset:{1024*k}" if k else ""
            t(f"buffer_store_dwordx4 v[116:119], v{vPST}, s[{sSRDW}:{sSRDW+3}], s{sT2} offen{off} sc1")
    def B_setup(t):
        t(f"v_lshrrev_b32 v2, 3, v{vLANE}\nv_and_b32 v3, 7, v{vLANE}\nv_lshrrev_b32 v4, 1, v3\nv_and_b32 v5, 1, v3\nv_lshlrev_b32 v5, 4, v5")
        t(f"v_bfe_u32 v6, v{vLANE}, 4, 1\nv_lshlrev_b32 v7, 1, v6")
        t(f"s_mul_i32 s{sT0}, s{sW}, 24\nv_add_u32 v23, s{sT0}, v2\ns_movk_i32 s{sT1}, 9216\nv_mul_lo_u32 v21, v23, s{sT1}")
        for k in range(3):
            t(f"s_add_u32 s{sT1}, s{sW}, {k}\ns_and_b32 s{sT1}, s{sT1}, 1\ns_lshl_b32 s{sT1}, s{sT1}, 1")
            t(f"v_or_b32 v22, s{sT1}, v6\nv_xor_b32 v22, v4, v22\nv_lshlrev_b32 v22, 5, v22\nv_add3_u32 v22, v21, v22, v5")
            t(f"v_add_u32 v{VDG[k]}, {8*k*9216 - 1024*k}, v22\nv_mov_b32 v{VDU[k]}, v{VDG[k]}")
        t(f"s_mul_i32 s{sM0}, s{sW}, 3072\ns_add_u32 s{sM0+1}, s{sM0}, 12288")
        t(f"s_mul_i32 s{sT0}, s{sW}, 72\nv_add_u32 v23, s{sT0}, v2\ns_movk_i32 s{sT1}, 1152\nv_mul_lo_u32 v21, v23, s{sT1}")
        t(f"v_lshrrev_b32 v22, 1, v3\nv_bfe_u32 v23, v{vLANE}, 4, 2\nv_xor_b32 v22, v22, v23\nv_lshlrev_b32 v22, 5, v22\nv_and_b32 v23, 1, v3\nv_lshlrev_b32 v23, 4, v23\nv_add3_u32 v22, v21, v22, v23")
        for k in range(4): t(f"v_add_u32 v{vD2+k}, {8*k*1152 - 1024*k}, v22")
        t(f"v_and_b32 v2, 15, v{vLANE}\nv_bfe_u32 v3, v{vLANE}, 4, 1\nv_lshrrev_b32 v4, 5, v{vLANE}\nv_lshrrev_b32 v5, 2, v2\nv_bfe_u32 v6, v2, 3, 1")
        t(f"v_lshrrev_b32 v7, 4, v{vLANE}\nv_lshl_add_u32 v7, v7, 3, v5\nv_lshlrev_b32 v7, 7, v7\nv_lshl_add_u32 v21, v3, 1, v6\nv_xor_b32 v21, s{sW}, v21\nv_lshlrev_b32 v21, 5, v21")
        t(f"v_and_b32 v22, 3, v2\nv_lshlrev_b32 v22, 3, v22\nv_add3_u32 v{vRA1}, v7, v21, v22")
        t(f"v_add_u32 v{vRA1b}, 65536, v{vRA1}\nv_add_u32 v{vRA1c}, 131072, v{vRA1}")
        t(f"v_lshrrev_b32 v7, 4, v{vLANE}\nv_lshl_add_u32 v7, v7, 2, v5")
        t(f"v_bfe_u32 v21, v7, 1, 2\nv_xor_b32 v21, s{sW}, v21\nv_lshlrev_b32 v21, 5, v21\nv_lshlrev_b32 v7, 7, v7")
        t(f"v_add3_u32 v{vRA2}, v7, v21, v22\nv_add_u32 v{vRA2b}, 32768, v{vRA2}")
        t(f"s_mov_b32 s{sHIDX}, 0\ns_mov_b32 s{sB2}, 0")
        t(f"s_lshl_b32 s{sT0}, s{sJ}, 5\ns_add_u32 s{sT0}, s{sT0}, s{sI}\ns_mul_i32 s{sT0}, s{sT0}, {9*4*2048}\ns_mul_i32 s{sT1}, s{sW}, 2048\ns_add_u32 s{sT0}, s{sT0}, s{sT1}\ns_add_u32 s{sPOFF}, s{sT0}, {WS_PART}")
        t(f"s_mul_i32 s{sSOFF}, s{sJ}, {576*2}\ns_mov_b32 s{sINC}, {96*9216}")
        t(f"s_mov_b32 s{sINCW}, {(-5*96*9216 + (0 if opts.get('same_cols') else 128)) & 0xffffffff}")
        t(f"s_lshl_b32 s{sT0}, s{sI}, 7\ns_lshl_b32 s{sT1}, s{sJ}, 4\ns_add_u32 s{sT1}, s{sT1}, s{sT0}\ns_lshl_b32 s{sT0}, s{sW}, 2\ns_add_u32 s{sT1}, s{sT1}, s{sT0}\ns_add_u32 s{sPFLG}, s{sT1}, {WS_FLAG}")
        t(f"s_lshl_b32 s{sC}, s{sW}, 8\ns_add_u32 s{sC}, s{sC}, s2")
        gen_ln_setup(t)
    def B_dma012(t):
        for st in range(3):
            if st: t(f"s_add_u32 s{sSOFF}, s{sSOFF}, s{sINC}")
            tt = Asm(); dma1_group(tt, st)
            t.lines += tag_vm(tt.lines, "pair0") if st < 2 else tt.lines
    def B_frags(t):
        t(f"v_add_u32 v{vHR}, {HB}, v{vPST}\nv_add_u32 v2, {65536}, v{vHR}")
        for f in range(72):
            if f < 64: t(f"ds_read_b128 {xn_frag(f)}, v{vHR} offset:{f*1024}")
            else: t(f"ds_read_b128 {xn_frag(f)}, v2 offset:{(f-64)*1024}")
    a.lines += blk(B_pf0)
    a.lines += blk(B_setup)
    stamp(a, 2, stamps)
    if mapping != "32x1": a("s_waitcnt vmcnt(@q0)")
    a.lines += blk(lambda t: gen_q_loads(t, QREG, 1), "q1")
    a("s_waitcnt vmcnt(@q0)")
    stamp(a, 3, stamps)
    gen_ln_pass(a, QREG, 0)
    stamp(a, 6, stamps)
    a("s_waitcnt vmcnt(@q1)")
    a.lines += blk(B_pf12)
    a.lines += blk(lambda t: gen_kv_loads(t, KREG, vP9, vRUN), "kv")
    stamp(a, 5, stamps)
    gen_ln_pass(a, QREG, 1)
    a("s_waitcnt lgkmcnt(0)")
    stamp(a, 4, stamps)
    a("s_barrier")
    stamp(a, 7, stamps)
    fr = blk(B_frags); dm = groups_of(blk(B_dma012))
    interleave(a, fr, dm, start=4)
    a("s_waitcnt lgkmcnt(0)")
    stamp(a, 8, stamps)
    a("s_barrier")
    a(f"s_add_u32 s{sSOFF}, s{sSOFF}, s{sINC}")
    dma1_group(a, 3)
    a(f"s_add_u32 s{sSOFF}, s{sSOFF}, s{sINC}")
    dma1_group(a, 4, 0, 12 - P1_BAR)
    gen_pf_unit(a, nshare)
    stamp(a, 9, stamps)
    stamp(a, 10, stamps)
    a("s_waitcnt vmcnt(@pair0)")
    stamp(a, 11, stamps)
    a("s_barrier")
    lk = Lgkm(a)
    for kk in range(P1_D): p1_read(lk, kk, kk % P1_NB, ("A", kk))
    a(f"s_mov_b32 s{sCNT}, 4\ns_mov_b32 s62, 32\ns_mov_b32 s{sHIDX}, 8")
    stamp(a, 12, stamps)
    pre = list(lk.q)
    def post_bar(a_, lk_):
        t = Asm(); gen_kv_store(t); B_clr(t)
        for l in t.lines:
            if l.startswith("ds_read"): lk_.issue(("X", l), l)
            elif l == "s_waitcnt lgkmcnt(0)": a_(l); lk_.wait_all_keep = True; lk_.q = []
            else: a_(l)
    r0 = len(a.lines)
    gen_round(a, lk, 0, 1, "Z", opts=opts, extra=kv_compute_ops(vP9, vRUN))
    check_hazards(a.lines[r0:], "round0")
    a.lines[p0:] = resolve_vm(a.lines[p0:])
    a(f"v_and_b32 v2, 15, v{vLANE}\nv_lshlrev_b32 v2, 2, v2\nv_add_u32 v2, {LDS_STAT}, v2")
    for n in range(4): a(f"ds_read_b32 v{3+n}, v2 offset:{64*n}")
    a("s_waitcnt lgkmcnt(0)")
    for n in range(4):
        a(f"v_mul_f32 v7, v{3+n}, v{3+n}\nv_mul_f32 v{VC0[n]}, {hex(f2u(C0))}, v{3+n}\nv_mul_f32 v7, v7, v{3+n}\nv_mul_f32 v{VC1[n]}, {hex(f2u(C1))}, v7")
    a(f"s_mov_b32 s{sCNT}, 3")
    lk.q = list(pre)
    a.label("L_roundA")
    b0 = len(a.lines)
    gen_round(a, lk, 1, 0, "A", opts=opts)
    a.label("L_roundB")
    gen_round(a, lk, 0, 1, "B", last_check=True, opts=opts)
    assert lk.q == pre, (lk.q, pre)
    a(f"s_sub_u32 s{sCNT}, s{sCNT}, 1\ns_cmp_ge_i32 s{sCNT}, 0\ns_cbranch_scc1 L_roundA")
    check_hazards(a.lines[b0:] + a.lines[b0:], "phase1")
    a("s_waitcnt lgkmcnt(0)")
    stamp(a, 13, stamps)
    a("s_waitcnt vmcnt(0)")
    a("s_barrier")
    a(f"s_lshr_b32 s{sT0}, s{sW}, 1\ns_lshl_b32 s{sT0}, s{sT0}, 12\ns_and_b32 s{sT1}, s{sW}, 1\ns_lshl_b32 s{sT1}, s{sT1}, 3\ns_add_u32 s{sT0}, s{sT0}, s{sT1}")
    a(f"v_add_u32 v30, s{sT0}, v{vHR}\nv_add_u32 v31, 32768, v30")
    side = Asm()
    gen_kv_store(side)
    side.lines += blk(B_clr)
    gen_conv_issue(side, stamps)
    tmp = Asm(); gen_wd_pf(tmp, nshare, 4, 9)
    for l in tmp.lines: side(l.replace("v123", "v10X").replace("v124", "v127").replace("v125", "v5").replace("v10X", "v4"))
    groups, cur, hold = [], [], 0
    for l in side.lines:
        cur.append(l)
        if l.startswith("s_cbranch"): hold = 1
        if l.endswith(":"): hold = 0
        if not hold and (l.startswith("buffer_") or l.startswith("s_waitcnt") or l.endswith(":")):
            groups.append(cur); cur = []
    if cur: groups.append(cur)
    hw = []
    def hwrite(rho, src, nt):
        off = rho*8192 + nt*1024
        return f"ds_write_b64 v{30 if off < 32768 else 31}, v[{src+2*nt}:{src+2*nt+1}] offset:{off if off < 32768 else off - 32768}"
    for rho in range(8):
        src = HREG + 8*(rho+1)
        hw.append([hwrite(rho, src, 0), hwrite(rho, src, 1)]); hw.append([hwrite(rho, src, 2), hwrite(rho, src, 3)])
    merged = groups[:2]
    rest = groups[2:]
    k = 0
    while rest or hw:
        if rest: merged.append(rest.pop(0))
        if hw: merged.append(hw.pop(0))
        if hw: merged.append(hw.pop(0))
    interleave(a, gelu_ops(ACC[0]), merged, start=2)
    for nt in range(4): a(hwrite(8, HP, nt))
    a(f"v_mov_b32 v2, {LDS_STAT}\nv_mov_b32 v3, 0\nds_write_b32 v2, v3\nds_write_b32 v2, v3 offset:4\nds_write_b32 v2, v3 offset:8")
    stamp(a, 16, stamps)
    a("s_waitcnt lgkmcnt(0)\ns_barrier")
    a(f"v_add_u32 v2, 65536, v{vHR}")
    for K in range(18):
        for nt in range(4):
            f = 4*K + nt
            a(f"ds_read_b128 {h_frag(K, nt)}, v{vHR if f < 64 else 2} offset:{(f % 64)*1024}")
    a("s_waitcnt lgkmcnt(0)\ns_barrier")
    a(f"s_mov_b32 s{sSRDA+2}, {576*4608*2}\ns_mov_b32 s{sSRDB+2}, {576*4608*2}")
    a(f"s_mul_i32 s{sSOFF}, s{sJ}, {576*1152}\ns_add_u32 s{sSOFF}, s{sSOFF}, {0 if opts.get('same_cols') else 128}")
    a(f"s_mov_b32 s{sINC}, {192*1152}")
    a(f"s_mov_b32 s{sINCW}, {(-2*192*1152 + (0 if opts.get('same_cols') else 128)) & 0xffffffff}")
    if not nodma:
        dma1_group(a, 3)
        a(f"s_add_u32 s{sSOFF}, s{sSOFF}, s{sINC}")
        dma1_group(a, 4)
        a(f"s_mov_b32 s{sT0}, 0x7ff00000")
        for k in range(2): a(f"buffer_load_dword v{vDUM+k}, v{vPST}, s[{sSRDA}:{sSRDA+3}], s{sT0} offen")
    lk = Lgkm(a)
    for F in range(P2_D): p2_read(lk, F, F % P2_NB, ("B", F))
    pre2 = list(lk.q)
    a(f"s_mov_b32 s{sCNT}, 9")
    stamp(a, 14, stamps)
    a.label("L_p2")
    bs = len(a.lines)
    gen_p2_chunk(a, lk, opts, dma=True)
    assert lk.q == pre2 or opts.get("rstamp"), (lk.q, pre2)
    a(f"s_cmp_gt_u32 s{sCNT}, 2\ns_cbranch_scc1 L_p2")
    check_hazards(a.lines[bs:] + a.lines[bs:], "phase2")
    bs = len(a.lines)
    lk.q = list(pre2)
    gen_p2_chunk(a, lk, opts, dma=False, tag="7")
    check_hazards(a.lines[bs:], "phase2 chunk 7")
    stamp(a, 15, stamps)
    a("s_waitcnt vmcnt(2) lgkmcnt(0)")
    publish_partial(a, 1, wait=False)
    a(f"s_cmp_lg_u32 s{sW}, 0\ns_cbranch_scc1 L_kvseen")
    a(f"v_cmp_eq_u32 vcc, 0x01010101, v95\ns_nop 0\ns_cmp_eq_u64 vcc, exec\ns_cbranch_scc1 L_kvseen")
    poll(a, "kv", 11, sDBG, 0, "0x01010101", sCU, cmp="eq")
    a.label("L_kvseen")
    a("s_barrier")
    gen_conv_issue2(a)
    a(f"s_mov_b32 s{sFC}, s{sJ}\ns_mov_b32 s{sFW}, s{sW}")
    c0 = len(a.lines)
    gen_conv_main(a, stamps)
    stamp(a, 27, stamps)
    gen_final_addr(a)
    gen_xstat_loads(a)
    a(f"s_cmp_lg_u32 s{sW}, 0\ns_cbranch_scc1 L_nosig\nv_mov_b32 v2, {LDS_STAT}\nv_mov_b32 v3, 1\nds_write_b32 v2, v3")
    a.label("L_nosig")
    check_hazards(a.lines[c0:], "conv")
    stamp(a, 20, stamps)
    a(f"s_mov_b32 s{sST}, 3")
    a("s_branch L_stg")
    a.label("L_tiles")
    a(f"s_sub_u32 s{sMT}, s{sW}, 2\ns_lshl_b32 s{sMT}, s{sMT}, 1\ns_add_u32 s{sMTE}, s{sMT}, 1")
    a(f"s_mov_b32 s{sT1}, s{sMT}")
    t8 = len(a.lines)
    gen_p2_tile8(a)
    check_hazards(a.lines[t8:] + a.lines[t8:], "tile8")
    a(f"s_cmp_eq_u32 s{sW}, 3\ns_cbranch_scc1 L_noconv")
    a(f"s_waitcnt lgkmcnt(0)\nv_mov_b32 v2, {LDS_STAT + 8}\nv_mov_b32 v3, 1\nds_write_b32 v2, v3")
    a(f"s_cmp_lt_u32 s{sC}, 576\ns_cbranch_scc1 L_convgo")
    a.label("L_noconv")
    a(f"s_mov_b32 s{sST}, 3")
    a(f"s_cmp_eq_u32 s{sW}, 3\ns_cbranch_scc1 L_w3")
    publish_partial(a, 3)
    gen_final_addr(a)
    gen_xstat_loads(a)
    a("s_branch L_stg")
    a.label("L_w3")
    lds_wait_word(a, "w2", 8)
    a(f"s_cmp_eq_u32 s{sJ}, 7\ns_cselect_b32 s{sT1}, 2, 1")
    a("s_waitcnt vmcnt(2)")
    a(f"v_cmp_le_u32 vcc, s{sT1}, v29\ns_nop 0\ns_cmp_eq_u64 vcc, exec\ns_cbranch_scc1 L_pB_ok")
    poll(a, "pB", 12, sSRDW, "0", f"s{sT1}", sCU, cmp="ge", sleep=2)
    a.label("L_pB_ok")
    def mid():
        a("s_waitcnt vmcnt(32)")
        publish_partial(a, 3, wait=False)
    gen_stage_partials(a, mid)
    gen_final_addr(a)
    gen_xstat_loads(a)
    a("s_waitcnt vmcnt(0)")
    a(f"v_mov_b32 v2, {LDS_STAT + 4}\nv_mov_b32 v3, 1\nds_write_b32 v2, v3")
    a(f"s_lshr_b32 s{sT0}, s{sJ}, 2\ns_and_b32 s{sT1}, s{sI}, 1\ns_cmp_lg_u32 s{sT0}, s{sT1}\ns_cbranch_scc1 L_stg")
    a(f"s_mov_b32 s{sST}, 0\nv_mov_b32 v100, v7\nv_mov_b32 v101, v8")
    a(f"s_mov_b32 s{sFC}, 8\ns_and_b32 s{sFW}, s{sJ}, 3")
    a(f"s_lshl_b32 s{sT0}, s{sI}, 7\ns_add_u32 s{sT0}, s{sT0}, {WS_FLAG}\nv_and_b32 v12, 31, v{vLANE}\nv_lshlrev_b32 v12, 2, v12\nv_add_u32 v12, s{sT0}, v12")
    poll(a, "pC", 12, sSRDW, "0", 3, sCU, cmp="ge", sleep=2)
    gen_final_addr(a)
    gen_final_loads(a, agpr=True)
    a.label("L_stg")
    f0 = len(a.lines)
    a(f"s_cmp_eq_u32 s{sST}, 0\ns_cbranch_scc1 L_prea\ns_waitcnt vmcnt(0)")
    a.label("L_prea")
    gen_final_pre_a(a)
    a(f"s_cmp_eq_u32 s{sST}, 1\ns_cbranch_scc1 L_fin2")
    lds_wait_word(a, "stg", 4)
    gen_partials_from_lds(a)
    a.label("L_fin2")
    stamp(a, 22, stamps)
    gen_final_sum(a)
    gen_final_pre_b(a)
    a(f"s_cmp_lg_u32 s{sST}, 0\ns_cbranch_scc1 L_zbar")
    for k in range(52): a(f"v_accvgpr_write_b32 a{80+k}, v{32+k}")
    a("s_waitcnt vmcnt(0)")
    for k in range(64): a(f"v_accvgpr_read_b32 v{FP+k}, a{k}")
    for k in range(8): a(f"v_accvgpr_read_b32 v{FX+k}, a{64+k}")
    for k in range(8): a(f"v_accvgpr_read_b32 v{FST+k}, a{72+k}")
    a(f"s_mov_b32 s{sST}, 1\ns_branch L_prea")
    a.label("L_zbar")
    a(f"s_cmp_lt_u32 s{sC}, 576\ns_cbranch_scc1 L_zgo")
    a(f"v_mov_b32 v2, {LDS_STAT}\ns_mov_b32 s{sCU}, 0")
    a.label("L_zwait")
    a(f"ds_read_b32 v3, v2\ns_waitcnt lgkmcnt(0)\nv_readfirstlane_b32 s{sT0}, v3\ns_add_u32 s{sCU}, s{sCU}, 1")
    a(f"s_cmp_eq_u32 s{sT0}, 1\ns_cbranch_scc1 L_zgo\ns_cmp_lt_u32 s{sCU}, 100000\ns_cbranch_scc0 L_zgo\ns_sleep 2\ns_branch L_zwait")
    a.label("L_zgo")
    stamp(a, 28, stamps)
    gen_final_z(a, "A", stamps)
    a.label("L_comb")
    gen_final_combine(a)
    stamp(a, 31, stamps)
    check_hazards(a.lines[f0:], "final")
    a(f"s_cmp_lg_u32 s{sST}, 1\ns_cbranch_scc1 L_final_done")
    a("s_nop 1")
    for k in range(52): a(f"v_accvgpr_read_b32 v{32+k}, a{80+k}")
    a("v_mov_b32 v7, v100\nv_mov_b32 v8, v101")
    for k in range(16): a(f"v_mov_b32 v{FZ+k}, v{FZ2+k}")
    a(f"s_mov_b32 s{sST}, 2\ns_branch L_comb")
    a.label("L_final_done")
    if stamps:
        a("s_waitcnt vmcnt(0)")
        stamp(a, 23, stamps)
        a("s_memrealtime s[60:61]\ns_waitcnt lgkmcnt(0)\ns_sub_u32 s60, s60, s58\nv_writelane_b32 v249, s60, 24\nv_writelane_b32 v249, s58, 60")
        a(f"s_lshl_b32 s34, s2, 2\ns_add_u32 s34, s34, s{sW}\ns_lshl_b32 s34, s34, 8\ns_add_u32 s34, s34, {WS_STAMP2}")
        a(f"v_lshlrev_b32 v6, 2, v{vLANE}")
        a(f"buffer_store_dword v249, v6, s[{sSRDW}:{sSRDW+3}], s34 offen\ns_waitcnt vmcnt(0)")
    a.label("L_done")
    a("s_endpgm")
    return a

def kv_compute_ops(vP9, vRUN):
    PP, AC, VU = 208, 240, 160
    ops = ["s_mov_b32 s53, 0xffff0000", "s_mov_b32 s52, 0x05040100", "s_mov_b32 s98, 0x07060302"]
    def mkP(p):
        r = p + 1; o = []
        for e in range(4):
            o.append(f"v_perm_b32 v{PP+8*(p%4)+2*e}, v{KRAW+4*(r-1)+e}, v{KRAW+4*r+e}, s52")
            o.append(f"v_perm_b32 v{PP+8*(p%4)+2*e+1}, v{KRAW+4*(r-1)+e}, v{KRAW+4*r+e}, s98")
        return o
    ops += [f"v_lshlrev_b32 v6, 2, v{vRUN}", "v_sub_u32 v6, 63, v6", "v_mul_u32_u24 v6, 160, v6", f"v_lshl_add_u32 v6, v{vP9}, 4, v6", f"v_add_u32 v6, {LDS_KV - 3*160}, v6"]
    ops += mkP(0) + mkP(1)
    for tok in range(4):
        ops += mkP(tok + 2)
        for c in range(8):
            ops.append(f"v_dot2_f32_bf16 v{AC+c}, v{PP+8*(tok%4)+c}, v{KCO+2*c+1}, 0")
        for c in range(8):
            ops.append(f"v_dot2_f32_bf16 v{AC+c}, v{PP+8*((tok+2)%4)+c}, v{KCO+2*c}, v{AC+c}")
        for e in range(4):
            ops += [f"v_lshlrev_b32 v{VU+2*e}, 16, v{VRAW+4*tok+e}", f"v_and_b32 v{VU+2*e+1}, s53, v{VRAW+4*tok+e}"]
        for c in range(8):
            ops.append(f"v_mul_f32 v{AC+c}, v{AC+c}, v{VU+c}")
        for e in range(4):
            ops.append(f"v_cvt_pk_bf16_f32 v{VU+8+e}, v{AC+2*e}, v{AC+2*e+1}")
        ops.append(("ds", f"ds_write_b128 v6, v[{VU+8}:{VU+11}] offset:{(3-tok)*160}"))
    return ops

def kd(name, nvgpr_arch, nagpr, nsgpr=100):
    acc_off = (nvgpr_arch + 3)//4*4
    tot = acc_off + nagpr if nagpr else nvgpr_arch
    return f""".section .rodata,"a"
.p2align 6
.amdhsa_kernel {name}
  .amdhsa_next_free_vgpr {tot}
  .amdhsa_next_free_sgpr {nsgpr}
  .amdhsa_accum_offset {acc_off}
  .amdhsa_group_segment_fixed_size 0
  .amdhsa_kernarg_size 104
  .amdhsa_user_sgpr_count 2
  .amdhsa_user_sgpr_kernarg_segment_ptr 1
  .amdhsa_system_sgpr_workgroup_id_x 1
  .amdhsa_float_denorm_mode_32 3
.end_amdhsa_kernel
"""

NAME = "parallel_sum__ssm_conv_h3__glu_gated_geglu__prompt_kernel"
def build(fn, single_launch=True, **kw):
    a = gen_kernel(NAME, **kw)
    ref = open("parallel_sum__ssm_conv_h3__glu_gated_geglu__prompt.s.ref").read()
    hdr = []
    for l in ref.splitlines():
        if l.startswith("; Override launch"): break
        hdr.append(l)
    hdr = "\n".join(hdr) + "\n"
    hdr += f"; @launch grid=(256,1,1) block=(256,1,1) lds={LDS_TOTAL}\n"
    hdr += '.amdgcn_target "amdgcn-amd-amdhsa--gfx950"\n.text\n'
    open(fn, "w").write(hdr + a.text() + kd(NAME, 256, 256))

if __name__ == "__main__":
    import sys
    build("s_plain.s")
    build("s_st.s", stamps=True, opts={})
```

```python
from asmlib import *
import math

WS_STATS = 0x240000
WS_KVR   = 0x250000
WS_ZT    = 0x490000
WS_STAMP = 0x6D0000
WS_STAMP2 = 0x3000000
WS_FLAG  = 0x6F0000
WS_ZFLAG = 0x6F2000
WS_PART  = 0x700000
WS_SIZE  = 0x10000000

SLOT = 24576
HB   = 3*SLOT
LDS_STAT = 147456
LDS_KV   = 147456 + 256
LDS_XR   = 147456 + 256
LDS_TOTAL = 147456 + 256 + 3*4608

C0 = -2.0*math.sqrt(2.0/math.pi)*math.log2(math.e)
C1 = C0*0.044715

sSRDA, sSRDB, sSRDW = 4, 8, 12
sWD = 16
sWDS = 16
sW, sJ, sI = 20, 21, 22
sSOFF = 23
sM0 = 24
sPFO = 26
sOM = 27
sCNT = 30
sINC, sINCW = 31, 32
sT0, sT1, sT2, sT3 = 34, 35, 36, 37
sPOFF = 38
sHIDX = 39
sEX = 40
sB2 = 42
sDBG = 44
sPFA, sPFB = 80, 84
sQ, sK, sV, sSK, sD = 80, 84, 88, 92, 96
sHK = 68
sOUT = 64
sX = 72
vLANE = 1
vRA1, vRA1b, vRA1c = 8, 30, 31
vRA2, vRA2b = 9, 10
vPF = 11
VDG, VDU = [12, 13, 14], [15, 16, 17]
VC0, VC1 = [18, 21, 22, 23], [120, 121, 122, 123]
vPST = 19
vHR = 20
vD2 = 24
vPF2 = 28
sPFU = 63
ACC = [32, 64]
AF = 96
XE = 128
GT = 160
HP = 168
HREG = 176
vDUM = 252

def xn_frag(f):
    return A(4*f, 4) if f < 64 else V(XE + 4*(f-64), 4)

class Lgkm:
    def __init__(self, a):
        self.a = a; self.q = []
    def issue(self, tag, text):
        self.a(text); self.q.append(tag)
    def wait_for(self, tag):
        cand = [i for i, t in enumerate(self.q) if t == tag]
        if not cand: return
        idx = max(cand); n = len(self.q) - 1 - idx
        assert n <= 15, n
        self.a(f"s_waitcnt lgkmcnt({n})")
        self.q = self.q[idx+1:]
    def wait_all(self): self.q = []

NT = {'pf': '', 'kv': ' nt', 'q': '', 'h': ' nt'}
def resolve_vm(lines):
    out = []; ops = []
    for l in lines:
        body = l.split(";")[0].strip()
        if body.startswith("buffer_") or body.startswith("global_"):
            tag = l.split("; vm:")[1].strip() if "; vm:" in l else None
            ops.append(tag)
        if "vmcnt(@" in l:
            tag = l.split("vmcnt(@")[1].split(")")[0]
            idx = max(i for i, t in enumerate(ops) if t == tag)
            n = len(ops) - 1 - idx
            assert n <= 63
            l = l.replace(f"vmcnt(@{tag})", f"vmcnt({n})")
        out.append(l)
    return out

def tag_vm(lines, tag):
    return [l + f" ; vm:{tag}" if (l.startswith("buffer_") or l.startswith("global_")) else l for l in lines]

def stamp(a, idx, on):
    if not on: return
    a("s_memtime s[48:49]")
    a("s_waitcnt lgkmcnt(0)")
    a(f"v_writelane_b32 v249, s48, {idx}")

def gelu_ops(accP, dst=HP):
    ops = []; k = 0
    for n in range(4):
        for r in range(0, 4, 2):
            g0, g1 = accP + 4*n + r, accP + 4*n + r + 1
            u0, u1 = g0 + 16, g1 + 16
            tb = GT + 4*(k % 2)
            t0, t1, q0, q1 = tb, tb+1, tb+2, tb+3
            ops += [
                f"v_mul_f32 v{t0}, v{g0}, v{g0}", f"v_mul_f32 v{t1}, v{g1}, v{g1}",
                f"v_fma_f32 v{t0}, v{t0}, v{VC1[n]}, v{VC0[n]}", f"v_fma_f32 v{t1}, v{t1}, v{VC1[n]}, v{VC0[n]}",
                f"v_mul_f32 v{t0}, v{t0}, v{g0}", f"v_mul_f32 v{t1}, v{t1}, v{g1}",
                f"v_exp_f32 v{t0}, v{t0}", f"v_exp_f32 v{t1}, v{t1}",
                f"v_mul_f32 v{q0}, v{g0}, v{u0}", f"v_mul_f32 v{q1}, v{g1}, v{u1}",
                f"v_add_f32 v{t0}, 1.0, v{t0}", f"v_add_f32 v{t1}, 1.0, v{t1}",
                f"v_rcp_f32 v{t0}, v{t0}", f"v_rcp_f32 v{t1}, v{t1}",
                f"v_mul_f32 v{q0}, v{q0}, v{t0}", f"v_mul_f32 v{q1}, v{q1}, v{t1}",
                f"v_cvt_pk_bf16_f32 v{dst + 2*n + r//2}, v{q0}, v{q1}",
            ]
            k += 1
    return ops

def dma1(a, which, k):
    srd = sSRDA if which == 0 else sSRDB
    vo = (VDG if which == 0 else VDU)[k]
    off = f" offset:{1024*k}" if k else ""
    a(f"buffer_load_dwordx4 v{vo}, s[{srd}:{srd+3}], s{sSOFF} offen{off} lds")

def dma1_group(a, slot, q0=0, q1=6):
    for q in range(q0, q1):
        which, k = divmod(q, 3)
        if k == 0 or q == q0:
            a(f"s_add_u32 m0, s{sM0+which}, {slot*SLOT}")
            a("s_nop 0")
        dma1(a, which, k)

def p1_read(lk, kk, buf, tag):
    st, k6 = divmod(kk % 36, 6)
    off = st*SLOT + (k6 & 1)*12288 + (k6 >> 1)*4096
    base = [vRA1, vRA1b, vRA1c][off // 65536]
    off %= 65536
    assert off + 512 < 65536
    r = AF + 4*buf
    lk.issue(tag, f"ds_read_b64_tr_b16 v[{r}:{r+1}], v{base} offset:{off}")
    lk.issue(tag, f"ds_read_b64_tr_b16 v[{r+2}:{r+3}], v{base} offset:{off+512}")

P1_D = 3
P1_NB = 4
P1_BAR = 9
def set_p1(D):
    global P1_D, P1_NB, P1_BAR
    P1_D = D; P1_NB = {3: 4, 4: 6, 5: 6}[D]; P1_BAR = 12 - D
def gen_round(a, lk, cur, prev, rname, last_check=False, opts=None, extra=None, post_bar=None):
    opts = opts or {}
    nodma = opts.get("no_dma")
    accC, accP = ACC[cur], ACC[prev]
    gops = gelu_ops(accP) if not opts.get("no_gelu") else []
    if extra is not None: gops = list(extra)
    G_START, G_END = (2, 24 + P1_BAR) if extra is None else (5, 24 + P1_BAR - 1)
    nslots = (G_END - G_START) * 2
    gi = 0
    def take_gelu(slot_idx):
        nonlocal gi
        tgt = (len(gops) * (slot_idx + 1) + nslots - 1) // nslots
        out = gops[gi:tgt]; gi = max(gi, tgt)
        return out
    for kk in range(36):
        pr, ks = divmod(kk, 12)
        buf = kk % P1_NB
        a.c(f"--- round {rname} kstep {kk}")
        if opts.get("rstamp") and kk == 0: a("s_memtime s[50:51]")
        if opts.get("p1w2"):
            if kk % 2 == 0: lk.wait_for(("A", kk + 1))
        else:
            lk.wait_for(("A", kk))
        K32, part = kk >> 1, kk & 1
        def mf(nt):
            d = V(accC + 16*part + 4*nt, 4)
            a(f"v_mfma_f32_16x16x32_bf16 {d}, {V(AF+4*buf,4)}, {xn_frag(4*K32 + nt)}, {'0' if K32 == 0 else d}")
        fl = []
        if G_START <= kk < G_END:
            fl = take_gelu((kk - G_START)*2) + take_gelu((kk - G_START)*2 + 1)
        wts = opts.get("p1w", (2, 0, 1, 1))
        tot = sum(wts); cum = 0; fills = []; L = len(fl); used = 0
        for x in range(4):
            cum += wts[x]
            tgt = (L*cum + tot - 1)//tot if x < 3 else L
            fills.append(fl[used:tgt]); used = max(used, tgt)
        if ks >= P1_BAR: q12 = ks - P1_BAR; gp = pr
        else: q12 = ks + (12 - P1_BAR); gp = (pr - 1) % 3
        half, q = divmod(q12, 6); which, k = divmod(q, 3)
        slot = 2*gp + half
        def emit(x):
            if isinstance(x, tuple): lk.issue(("X", x[1]), x[1])
            else: a(x)
        mf(0)
        if extra is not None and kk == G_START: a("s_waitcnt vmcnt(@kv)")
        for x in fills[0]: emit(x)
        mf(1)
        if ks == P1_BAR:
            for x in fills[1]: emit(x)
            a("s_waitcnt vmcnt(12) lgkmcnt(0)") if not nodma else a("s_waitcnt lgkmcnt(0)")
            lk.wait_all()
            if opts.get("rstamp") and kk == P1_BAR:
                a("v_mov_b32 v2, s50\nv_cmp_eq_u32 vcc, s62, v1\ns_add_u32 s62, s62, 1\ns_nop 0\nv_cndmask_b32 v249, v249, v2, vcc")
            if not opts.get("no_barrier"): a("s_barrier")
            mf(2)
            p1_read(lk, kk+P1_D, (kk+P1_D) % P1_NB, ("A", (kk+P1_D) % 36))
            if last_check and pr == 0:
                a(f"s_cmp_lg_u32 s{sCNT}, 0\ns_cbranch_scc1 L_nosw")
                gen_switch(a)
                a.label("L_nosw")
        else:
            p1_read(lk, kk+P1_D, (kk+P1_D) % P1_NB, ("A", (kk+P1_D) % 36))
            for x in fills[1]: emit(x)
            mf(2)
        if not nodma and q == 0:
            inc = sINCW if slot == 0 else sINC
            a(f"s_add_u32 s{sSOFF}, s{sSOFF}, s{inc}")
            if last_check and slot == 3:
                a(f"s_cmp_eq_u32 s{sCNT}, 0")
                a(f"s_cselect_b32 s{sSRDA+2}, 0, s{sSRDA+2}\ns_cselect_b32 s{sSRDB+2}, 0, s{sSRDB+2}")
        if kk == G_END and gops and extra is None:
            assert gi == len(gops) and k == 0
            a(f"s_set_gpr_idx_on s{sHIDX}, gpr_idx(DST)")
            a("s_nop 0")
            for qq in range(8): a(f"v_mov_b32 v{HREG+qq}, v{HP+qq}")
            a("s_set_gpr_idx_off")
            a(f"s_add_u32 s{sHIDX}, s{sHIDX}, 8")
        if not nodma and k == 0:
            a(f"s_add_u32 m0, s{sM0 + which}, {slot*SLOT}")
        f2 = list(fills[2])
        if not nodma:
            if k == 0:
                if f2: emit(f2.pop(0))
                else: a("s_nop 0")
            dma1(a, which, k)
        for x in f2: emit(x)
        mf(3)
        if kk == P1_BAR + 11 and not nodma and not opts.get("no_pf"):
            a(f"s_sub_u32 s{sPFU}, s{sPFU}, 1\ns_cmp_lg_u32 s{sPFU}, -1\ns_cbranch_scc1 L_nopf{rname}")
            a(f"buffer_load_dword v{vDUM}, v{vPF}, s[{sPFA}:{sPFA+3}], s{sPFO} offen")
            a(f"buffer_load_dword v{vDUM+1}, v{vPF2}, s[{sPFB}:{sPFB+3}], s{sPFO} offen")
            a.label(f"L_nopf{rname}")
        for x in fills[3]: emit(x)

def gen_switch(a):
    a(f"s_mov_b32 s{sSRDA}, s{sWD}\ns_mov_b32 s{sSRDA+1}, s{sWD+1}\ns_mov_b32 s{sSRDB}, s{sWD}\ns_mov_b32 s{sSRDB+1}, s{sWD+1}")
    a(f"s_mul_i32 s{sT0}, s{sW}, {48*1152}")
    a(f"s_sub_u32 s{sT1}, {96*1152}, s{sT0}")
    for k in range(3):
        a(f"v_subrev_u32 v{VDG[k]}, s{sT0}, v{vD2+k}")
        a(f"v_add_u32 v{VDU[k]}, s{sT1}, v{vD2+k}")
    a(f"s_mul_i32 s{sSOFF}, s{sJ}, {576*1152}")
    a(f"s_mov_b32 s{sINCW}, 0")
    a(f"s_mov_b32 s{sINC}, {192*1152}")

def gen_pf_switch(a):
    a(f"s_mov_b32 s{sPFA}, s{sWD}\ns_mov_b32 s{sPFA+1}, s{sWD+1}")
    a(f"s_add_u32 s{sPFB}, s{sWD}, 256\ns_addc_u32 s{sPFB+1}, s{sWD+1}, 0")
    a(f"s_sub_u32 s{sPFB+2}, s{sPFA+2}, 256")
    a(f"v_mov_b32 v{vPF}, v{vPF2}")
    a(f"s_mul_i32 s{sPFO}, s{sJ}, {576*1152}")

S2 = 36864
def dma2(a, k):
    off = f" offset:{1024*(k%4)}" if k % 4 else ""
    a(f"buffer_load_dwordx4 v{vD2 + k%4}, s[{sSRDA}:{sSRDA+3}], s{sT3} offen{off} lds")

def dma2_pre(a, k, m0expr):
    if k % 4 == 0:
        a(m0expr(k//4))
        a(f"s_add_u32 s{sT3}, s{sSOFF}, {32*1152*(k//4)}")

def dma2_group(a, slot):
    for k in range(9):
        dma2_pre(a, k, lambda g: f"s_add_u32 m0, s{sM0}, {slot*S2 + 4096*g}")
        dma2(a, k)

def h_frag(K, nt):
    f = 4*K + nt
    return A(4*f, 4) if f < 64 else V(XE + 4*(f-64), 4)

def p2_read(lk, F, buf, tag):
    off = (F % 18)*4096
    base = vRA2
    if off + 2048 > 65535:
        base = vRA2b; off -= 32768
    r = AF + 4*buf
    lk.issue(tag, f"ds_read_b64_tr_b16 v[{r}:{r+1}], v{base} offset:{off}")
    lk.issue(tag, f"ds_read_b64_tr_b16 v[{r+2}:{r+3}], v{base} offset:{off+2048}")

P2_NB = 6
P2_D = 3
def p2_group_setup(a, st):
    inc = sINCW if st == 1 else sINC
    a(f"s_add_u32 s{sSOFF}, s{sSOFF}, s{inc}")
    if st == 0: a(f"s_xor_b32 s{sT2}, s{sB2}, {3*SLOT}\ns_add_u32 s{sT2}, s{sT2}, {2*SLOT}")
    else: a(f"s_add_u32 s{sT2}, s{sB2}, {(st-1)*SLOT}")

def p2_dma(a, q):
    which, k = divmod(q, 3)
    if k == 0: a(f"s_add_u32 m0, s{sT2}, s{sM0+which}\ns_nop 0")
    dma1(a, which, k)

def gen_p2_chunk(a, lk, opts, dma=True, tag=""):
    nodma = opts.get("no_dma")
    acc = ACC[0]
    for T in range(18):
        st, ks = divmod(T, 6)
        a.c(f"--- p2{tag} kstep {T}")
        if opts.get("rstamp") and T == 0: a("s_memtime s[50:51]")
        lk.wait_for(("B", T))
        if ks == 0:
            if not nodma:
                if dma: a(f"s_waitcnt vmcnt({22 if st == 0 else 20})")
                else: a(f"s_waitcnt vmcnt({[22, 20, 14][st]})")
            if not opts.get("no_barrier"): a("s_barrier")
        def mf(nt):
            cz = "0" if T == 0 else V(acc+4*nt, 4)
            a(f"v_mfma_f32_16x16x32_bf16 {V(acc+4*nt,4)}, {V(AF+4*(T % P2_NB),4)}, {h_frag(T, nt)}, {cz}")
        mf(0)
        if T == 18 - P2_D:
            a(f"v_xor_b32 v{vRA2}, {3*SLOT}, v{vRA2}")
            a(f"v_xor_b32 v{vRA2b}, {3*SLOT}, v{vRA2b}")
        F = T + P2_D
        if dma or F < 18: p2_read(lk, F, (F % 18) % P2_NB, ("B", F % 18))
        mf(1)
        if not nodma and dma:
            if ks == 0: p2_group_setup(a, st)
            which, k = divmod(ks, 3)
            if k == 0: a(f"s_add_u32 m0, s{sT2}, s{sM0+which}")
        mf(2)
        if not nodma and dma: dma1(a, ks // 3, ks % 3)
        mf(3)
        if opts.get("rstamp") and T == 4:
            a("s_waitcnt lgkmcnt(0)"); lk.wait_all()
            a("v_mov_b32 v2, s50\nv_cmp_eq_u32 vcc, s62, v1\ns_add_u32 s62, s62, 1\ns_nop 0\nv_cndmask_b32 v249, v249, v2, vcc")
        if dma and T == 8:
            a(f"s_and_b32 s{sT0}, s{sI}, 3\ns_sub_u32 s{sT0}, 8, s{sT0}\ns_cmp_lg_u32 s{sCNT}, s{sT0}\ns_cbranch_scc1 L_nokvadd\ns_cmp_lg_u32 s{sW}, 0\ns_cbranch_scc1 L_nokvadd")
            a(f"v_mov_b32 v2, s2\nv_mov_b32 v3, 1")
            a(f"v_cmp_eq_u32 vcc, 0, v{vLANE}\ns_and_saveexec_b64 s[{sEX}:{sEX+1}], vcc")
            a(f"buffer_store_byte v3, v2, s[{sDBG}:{sDBG+3}], 0 offen sc1")
            a(f"s_mov_b64 exec, s[{sEX}:{sEX+1}]")
            a.label("L_nokvadd")
        if not nodma and not dma and T == 0:
            p2_group_setup(a, 0)
            for q in range(6): p2_dma(a, q)
            a(f"s_cmp_lg_u32 s{sW}, 0\ns_cbranch_scc1 L_p2noprobe")
            a(f"buffer_load_dword v95, v11, s[{sDBG}:{sDBG+3}], 0 offen sc1")
            a.label("L_p2noprobe")
    a.c("--- p2 chunk epilogue")
    a(f"s_xor_b32 s{sB2}, s{sB2}, {3*SLOT}")
    a(f"s_sub_u32 s{sCNT}, s{sCNT}, 1")
    a("s_nop 4")
    for q in range(8):
        a(f"v_cvt_pk_bf16_f32 v{GT+q}, v{acc+2*q}, v{acc+2*q+1}")
    for q in range(2):
        off = f" offset:{1024*q}" if q else ""
        a(f"buffer_store_dwordx4 {V(GT+4*q,4)}, v{vPST}, s[{sSRDW}:{sSRDW+3}], s{sPOFF} offen{off} sc1")
    a(f"s_add_u32 s{sPOFF}, s{sPOFF}, {4*2048}")

sMT, sMTE = 60, 61
def gen_p2_tile8(a):
    acc = ACC[0]
    a.label("L_t8")
    a(f"s_xor_b32 s{sT0}, s{sMT}, s{sW}\ns_lshl_b32 s{sT0}, s{sT0}, 5\nv_xor_b32 v30, s{sT0}, v{vRA2}\nv_xor_b32 v31, s{sT0}, v{vRA2b}")
    lk = Lgkm(a)
    def rd(F):
        off = F*4096; base = 30
        if off + 2048 > 65535: base = 31; off -= 32768
        r = AF + 4*(F % P2_NB)
        lk.issue(("T", F), f"ds_read_b64_tr_b16 v[{r}:{r+1}], v{base} offset:{off}")
        lk.issue(("T", F), f"ds_read_b64_tr_b16 v[{r+2}:{r+3}], v{base} offset:{off+2048}")
    for F in range(P2_D): rd(F)
    for T in range(18):
        lk.wait_for(("T", T))
        for nt in range(4):
            cz = "0" if T == 0 else V(acc+4*nt, 4)
            a(f"v_mfma_f32_16x16x32_bf16 {V(acc+4*nt,4)}, {V(AF+4*(T % P2_NB),4)}, {h_frag(T, nt)}, {cz}")
            if nt == 0 and T + P2_D < 18: rd(T + P2_D)
    a(f"s_lshl_b32 s{sT0}, s{sJ}, 5\ns_add_u32 s{sT0}, s{sT0}, s{sI}\ns_mul_i32 s{sT0}, s{sT0}, 9\ns_add_u32 s{sT0}, s{sT0}, 8\ns_lshl_b32 s{sT0}, s{sT0}, 2\ns_add_u32 s{sT0}, s{sT0}, s{sMT}\ns_lshl_b32 s{sT0}, s{sT0}, 11\ns_add_u32 s{sT0}, s{sT0}, {WS_PART}")
    for q in range(8):
        a(f"v_cvt_pk_bf16_f32 v{GT+q}, v{acc+2*q}, v{acc+2*q+1}")
    for q in range(2):
        off = f" offset:{1024*q}" if q else ""
        a(f"buffer_store_dwordx4 {V(GT+4*q,4)}, v{vPST}, s[{sSRDW}:{sSRDW+3}], s{sT0} offen{off} sc1")
    a(f"s_cmp_lg_u32 s{sMT}, s{sT1}\ns_cbranch_scc1 L_t8np")
    a("s_waitcnt vmcnt(2)")
    publish_partial(a, 2, wait=False)
    a(f"s_lshl_b32 s{sT0}, s{sI}, 7\ns_add_u32 s{sT0}, s{sT0}, {WS_FLAG}\nv_and_b32 v12, 31, v{vLANE}\nv_lshlrev_b32 v12, 2, v12\nv_add_u32 v12, s{sT0}, v12")
    a(f"buffer_load_dword v29, v12, s[{sSRDW}:{sSRDW+3}], 0 offen sc1")
    a.label("L_t8np")
    a(f"s_add_u32 s{sMT}, s{sMT}, 1\ns_cmp_le_u32 s{sMT}, s{sMTE}\ns_cbranch_scc1 L_t8")

ONES_BF = 0x3f803f80
sPFLG = 56
sPAR = 28
sPP = 29
def gen_q_addr(a, p):
    if p == 0:
        a(f"v_and_b32 v2, 7, v{vLANE}\nv_mul_u32_u24 v2, 1152, v2\nv_lshrrev_b32 v3, 3, v{vLANE}\nv_lshl_add_u32 v248, v3, 4, v2")
    a(f"s_xor_b32 s{sPP}, s{sPAR}, {p}")
    a(f"s_lshl_b32 s{sT0}, s{sI}, 6\ns_lshl_b32 s{sT1}, s{sW}, 4\ns_add_u32 s{sT0}, s{sT0}, s{sT1}\ns_lshl_b32 s{sT1}, s{sPP}, 3\ns_add_u32 s{sT0}, s{sT0}, s{sT1}\ns_mul_i32 s{sT0}, s{sT0}, 1152")

def gen_q_loads(a, QREG, p, addr=True):
    if addr: gen_q_addr(a, p)
    for m in range(9):
        off = f" offset:{128*m}" if m else ""
        a(f"buffer_load_dwordx4 v[{QREG+36*p+4*m}:{QREG+36*p+4*m+3}], v248, s[{sQ}:{sQ+3}], s{sT0} offen{off}{NT['q']}")

LT = 32
def gen_ln_setup(a):
    T = LT
    vB = T+10
    a(f"v_lshrrev_b32 v{T+8}, 3, v{vLANE}\nv_lshrrev_b32 v{T+9}, 2, v{T+8}\nv_lshlrev_b32 v{vB}, 12, v{T+9}")
    a(f"v_and_b32 v{T+9}, 3, v{T+8}\nv_lshl_add_u32 v{vB}, v{T+9}, 8, v{vB}")
    a(f"v_and_b32 v{T+9}, 7, v{vLANE}\nv_lshl_add_u32 v{vB}, v{T+9}, 4, v{vB}")
    a(f"s_lshl_b32 s{sT0}, s{sW}, 10\ns_add_u32 s{sT0}, s{sT0}, {HB}")
    a(f"v_add_u32 v{vB}, s{sT0}, v{vB}")
    vSt = T+11
    a(f"s_lshl_b32 s{sT0}, s{sW}, 6\ns_add_u32 s{sT0}, s{sT0}, {LDS_STAT}")
    a(f"v_lshlrev_b32 v{vSt}, 2, v{T+9}\nv_add_u32 v{vSt}, s{sT0}, v{vSt}")
    vG = T+12
    a(f"s_lshl_b32 s{sT0}, s{sI}, 6\ns_lshl_b32 s{sT1}, s{sW}, 4\ns_add_u32 s{sT0}, s{sT0}, s{sT1}")
    a(f"v_add_u32 v{vG}, s{sT0}, v{T+9}\nv_lshlrev_b32 v{vG}, 3, v{vG}\nv_add_u32 v{vG}, {WS_STATS}, v{vG}")

def gen_ln_pass(a, QREG, p):
    T = LT
    vS, vQ2, vB, vSt, vG = T, T+4, T+10, T+11, T+12
    X = QREG + 36*p
    a(f"s_mov_b32 s{sT2}, {hex(ONES_BF)}\ns_mov_b32 s{sT3}, 0x00003f80\ns_mov_b32 s{sEX}, 0x3f800000")
    a(f"s_xor_b32 s{sPP}, s{sPAR}, {p}")
    a(f"s_lshl_b32 s{sT0}, s{sPP}, 7\nv_add_u32 v{T+13}, s{sT0}, v{vB}\ns_lshl_b32 s{sT0}, s{sPP}, 5\nv_add_u32 v{T+14}, s{sT0}, v{vSt}")
    for k in range(4): a(f"v_mov_b32 v{vS+k}, 0\nv_mov_b32 v{vQ2+k}, 0")
    for d in range(36):
        a(f"v_dot2c_f32_bf16 v{vS+d%4}, s{sT2}, v{X+d}")
        a(f"v_dot2c_f32_bf16 v{vQ2+d%4}, v{X+d}, v{X+d}")
    a("s_nop 2")
    a(f"v_add_f32 v{vS}, v{vS}, v{vS+1}\nv_add_f32 v{vS+2}, v{vS+2}, v{vS+3}")
    a(f"v_add_f32 v{vQ2}, v{vQ2}, v{vQ2+1}\nv_add_f32 v{vQ2+2}, v{vQ2+2}, v{vQ2+3}")
    a(f"v_add_f32 v{vS}, v{vS}, v{vS+2}\nv_add_f32 v{vQ2}, v{vQ2}, v{vQ2+2}")
    a("s_nop 1")
    a(f"v_add_f32_dpp v{vS}, v{vS}, v{vS} row_ror:8 row_mask:0xf bank_mask:0xf")
    a(f"v_add_f32_dpp v{vQ2}, v{vQ2}, v{vQ2} row_ror:8 row_mask:0xf bank_mask:0xf")
    for sw in ("v_permlane16_swap_b32", "v_permlane32_swap_b32"):
        a(f"v_mov_b32 v{vS+1}, v{vS}\nv_mov_b32 v{vQ2+1}, v{vQ2}")
        a("s_nop 1")
        a(f"{sw} v{vS}, v{vS+1}\n{sw} v{vQ2}, v{vQ2+1}")
        a("s_nop 1")
        a(f"v_add_f32 v{vS}, v{vS}, v{vS+1}\nv_add_f32 v{vQ2}, v{vQ2}, v{vQ2+1}")
    inv = hex(f2u(1.0/576.0))
    a(f"v_mul_f32 v{vS}, {inv}, v{vS}\nv_mul_f32 v{vQ2}, {inv}, v{vQ2}")
    a(f"v_fma_f32 v{vQ2}, -v{vS}, v{vS}, v{vQ2}\nv_max_f32 v{vQ2}, 0, v{vQ2}")
    a(f"v_cvt_pk_bf16_f32 v{vS+1}, v{vS}, v{vQ2}")
    a(f"v_and_b32 v{vQ2}, 0xffff0000, v{vS+1}\nv_lshlrev_b32 v{vS}, 16, v{vS+1}")
    a(f"v_add_f32 v{vQ2}, {hex(f2u(1e-5))}, v{vQ2}")
    a(f"v_cvt_pk_bf16_f32 v{vQ2}, v{vQ2}, v{vQ2}\nv_lshlrev_b32 v{vQ2}, 16, v{vQ2}")
    a(f"v_sqrt_f32 v{vQ2}, v{vQ2}\ns_nop 0")
    a(f"v_cvt_pk_bf16_f32 v{vQ2}, v{vQ2}, v{vQ2}\nv_lshlrev_b32 v{vS+1}, 16, v{vQ2}")
    a(f"v_rcp_f32 v{vQ2}, v{vS+1}\nv_sub_f32 v{vS+2}, 0, v{vS}")
    a(f"ds_write_b32 v{T+14}, v{vQ2}")
    a(f"s_lshl_b32 s{sT0}, s{sPP}, 6\ns_cmp_eq_u32 s{sJ}, 0\ns_cselect_b32 s{sT0}, s{sT0}, 0x7ff00000")
    a(f"buffer_store_dwordx2 v[{vS}:{vS+1}], v{vG}, s[{sSRDW}:{sSRDW+3}], s{sT0} offen sc1")
    D = T+16
    for m in range(9):
        tb = D + 12*(m % 2)
        for e in range(4):
            a(f"v_dot2_f32_bf16 v{tb+2*e}, v{X+4*m+e}, s{sT3}, v{vS+2}")
            a(f"v_dot2_f32_bf16 v{tb+2*e+1}, v{X+4*m+e}, s{sEX}, v{vS+2}")
        if m > 0:
            pb = D + 12*((m-1) % 2)
            for e in range(4): a(f"v_cvt_pk_bf16_f32 v{pb+8+e}, v{pb+2*e}, v{pb+2*e+1}")
            a(f"ds_write_b128 v{T+13}, v[{pb+8}:{pb+11}] offset:{(m-1)*8192}")
    pb = D
    a("s_nop 2")
    for e in range(4): a(f"v_cvt_pk_bf16_f32 v{pb+8+e}, v{pb+2*e}, v{pb+2*e+1}")
    a(f"v_add_u32 v{T+13}, 32768, v{T+13}")
    a(f"ds_write_b128 v{T+13}, v[{pb+8}:{pb+11}] offset:{8*8192 - 32768}")

def interleave(a, main_lines, side_groups, start=8):
    n = len(main_lines); g = len(side_groups)
    pos = [start + (n - start - 4) * k // max(g, 1) for k in range(g)]
    lab = None
    k = 0
    for idx, l in enumerate(main_lines):
        if idx > 0 and main_lines[idx-1].startswith("s_cmp"):
            pos = [p + 1 if p == idx else p for p in pos]
        while k < g and pos[k] <= idx and not (idx > 0 and main_lines[idx-1].startswith("s_cmp")):
            for x in side_groups[k]: a.lines.append(x)
            k += 1
        a.lines.append(l)
    while k < g:
        for x in side_groups[k]: a.lines.append(x)
        k += 1

def groups_of(lines):
    out, cur = [], []
    for l in lines:
        cur.append(l)
        if l.startswith("buffer_") or l.startswith("global_"):
            out.append(cur); cur = []
    if cur: out.append(cur)
    return out

KRAW, VRAW, KCO = 176, 112, 72
def gen_kv_loads(a, KREG, vP9, vRUN):
    a(f"s_mul_i32 s52, s{sW}, 36\nv_min_u32 v120, 35, v{vLANE}\nv_add_u32 v120, s52, v120".replace("v120", "v2"))
    a(f"s_mov_b32 s53, {(2**32 + 8)//9}\nv_mul_hi_u32 v{vRUN}, v2, s53")
    a(f"v_mul_u32_u24 v{vP9}, 9, v{vRUN}\nv_sub_u32 v{vP9}, v2, v{vP9}")
    a(f"s_lshl_b32 s52, s{sI}, 6\nv_lshlrev_b32 v3, 2, v{vRUN}\nv_add_u32 v3, s52, v3\nv_mul_u32_u24 v3, 1152, v3")
    a(f"s_mul_i32 s52, s{sJ}, 144\nv_lshl_add_u32 v4, v{vP9}, 4, v3\nv_add_u32 v4, s52, v4")
    for r in range(7):
        if r < 3:
            a(f"v_add_u32 v3, {(r-3)*1152 & 0xffffffff}, v4")
            a(f"buffer_load_dwordx4 v[{KRAW+4*r}:{KRAW+4*r+3}], v3, s[{sK}:{sK+3}], 0 offen{NT['kv']}")
        else:
            off = f" offset:{1152*(r-3)}" if r > 3 else ""
            a(f"buffer_load_dwordx4 v[{KRAW+4*r}:{KRAW+4*r+3}], v4, s[{sK}:{sK+3}], 0 offen{off}{NT['kv']}")
    for r in range(4):
        off = f" offset:{1152*r}" if r else ""
        a(f"buffer_load_dwordx4 v[{VRAW+4*r}:{VRAW+4*r+3}], v4, s[{sV}:{sV+3}], 0 offen{off}{NT['kv']}")
    a(f"s_mul_i32 s52, s{sJ}, 576\nv_lshlrev_b32 v3, 6, v{vP9}")
    for r in range(4):
        off = f" offset:{16*r}" if r else ""
        a(f"buffer_load_dwordx4 v[{KCO+4*r}:{KCO+4*r+3}], v3, s[{sSK}:{sSK+3}], s52 offen{off}")

def gen_kv_compute(a, KREG, vP9, vRUN):
    KU, SU, AC, VU = 32, 88, 120, 152
    a(f"s_mov_b32 s52, 0xffff0000")
    for r in range(7):
        for e in range(4):
            a(f"v_lshlrev_b32 v{KU+8*r+2*e}, 16, v{KREG+4*r+e}\nv_and_b32 v{KU+8*r+2*e+1}, s52, v{KREG+4*r+e}")
    for c in range(8):
        for jj in range(2):
            src = KREG + 44 + 2*c + jj
            a(f"v_lshlrev_b32 v{SU+8*(2*jj)+c}, 16, v{src}\nv_and_b32 v{SU+8*(2*jj+1)+c}, s52, v{src}")
    a(f"v_lshlrev_b32 v62, 2, v{vRUN}\nv_sub_u32 v62, 63, v62\nv_mul_u32_u24 v62, 160, v62")
    a(f"v_lshl_add_u32 v62, v{vP9}, 4, v62\nv_add_u32 v62, {LDS_KV - 3*160}, v62")
    for tok in range(4):
        for jj in (3, 2, 1, 0):
            for pr in range(4):
                d = f"v[{AC+8*tok+2*pr}:{AC+8*tok+2*pr+1}]"
                kk = f"v[{KU+8*(tok+3-jj)+2*pr}:{KU+8*(tok+3-jj)+2*pr+1}]"
                ss = f"v[{SU+8*jj+2*pr}:{SU+8*jj+2*pr+1}]"
                a(f"v_pk_mul_f32 {d}, {kk}, {ss}" if jj == 3 else f"v_pk_fma_f32 {d}, {kk}, {ss}, {d}")
        for e in range(4):
            a(f"v_lshlrev_b32 v{VU+2*e}, 16, v{KREG+28+4*tok+e}\nv_and_b32 v{VU+2*e+1}, s52, v{KREG+28+4*tok+e}")
        for pr in range(4):
            d = f"v[{AC+8*tok+2*pr}:{AC+8*tok+2*pr+1}]"
            a(f"v_pk_mul_f32 {d}, {d}, v[{VU+2*pr}:{VU+2*pr+1}]")
        for e in range(4):
            a(f"v_cvt_pk_bf16_f32 v{VU+8+e}, v{AC+8*tok+2*e}, v{AC+8*tok+2*e+1}")
        a(f"ds_write_b128 v62, v[{VU+8}:{VU+11}] offset:{(3-tok)*160}")

def gen_kv_store(a):
    a(f"v_and_b32 v2, 15, v{vLANE}\nv_lshrrev_b32 v3, 4, v{vLANE}\nv_lshrrev_b32 v4, 2, v2")
    a(f"v_lshl_add_u32 v4, v3, 3, v4\nv_mul_u32_u24 v4, 160, v4\nv_and_b32 v5, 3, v2\nv_lshl_add_u32 v4, v5, 3, v4\nv_add_u32 v4, {LDS_KV}, v4")
    a(f"s_mul_i32 s{sT0}, s{sJ}, 72\nv_add_u32 v5, s{sT0}, v2\nv_lshlrev_b32 v5, 12, v5\nv_lshl_add_u32 v5, v3, 4, v5")
    a(f"s_lshl_b32 s{sT0}, s{sI}, 7\ns_sub_u32 s{sT0}, {WS_KVR + 1984*2}, s{sT0}\nv_add_u32 v5, s{sT0}, v5")
    a("v_mov_b32 v7, 0x7ff00000")
    for u in range(3):
        a(f"s_add_u32 s{sT0}, s{sW}, {4*u}")
        a(f"s_lshr_b32 s{sT1}, s{sT0}, 1\ns_and_b32 s{sT2}, s{sT0}, 1")
        a(f"s_mul_i32 s{sT3}, s{sT2}, {32*160}\ns_lshl_b32 s{sEX}, s{sT1}, 5\ns_add_u32 s{sT3}, s{sT3}, s{sEX}")
        a(f"v_add_u32 v6, s{sT3}, v4")
        r = 96 + 4*u
        a(f"ds_read_b64_tr_b16 v[{r}:{r+1}], v6\nds_read_b64_tr_b16 v[{r+2}:{r+3}], v6 offset:{4*160}")
        a(f"s_lshl_b32 s{sT3}, s{sT1}, 16\ns_lshl_b32 s{sT2}, s{sT2}, 6\ns_add_u32 s{sT3}, s{sT3}, s{sT2}")
        a(f"v_add_u32 v{108+u}, s{sT3}, v5")
        a(f"s_cmp_eq_u32 s{sT1}, 4\ns_cselect_b32 s{sT2}, 8, 16\ns_cmp_gt_u32 s{sT1}, 4\ns_cselect_b32 s{sT2}, 0, s{sT2}")
        a(f"v_cmp_gt_u32 vcc, s{sT2}, v2\ns_nop 1\nv_cndmask_b32 v{108+u}, v7, v{108+u}, vcc")
    a("s_waitcnt lgkmcnt(0)")
    for u in range(3):
        a(f"buffer_store_dwordx4 v[{96+4*u}:{99+4*u}], v{108+u}, s[{sSRDW}:{sSRDW+3}], 0 offen sc1")

def gen_bulk_pf(a, nshare, opts):
    nw = nshare*4
    per = -(-4608 // nw)
    n_ins = -(-per // 64)
    assert n_ins == 1 or True
    for it in range(n_ins):
        cnt = min(64, per - 64*it)
        a(f"s_mul_i32 s54, s{sOM}, {per}\ns_add_u32 s54, s54, {64*it}\nv_min_u32 v123, {cnt-1}, v{vLANE}\nv_add_u32 v123, s54, v123\nv_min_u32 v123, 4607, v123")
        a(f"s_mov_b32 s55, {(2**32 + 575)//576}\nv_mul_hi_u32 v124, v123, s55\nv_mul_u32_u24 v125, 576, v124\nv_sub_u32 v125, v123, v125\nv_mul_u32_u24 v125, 9216, v125\nv_lshl_add_u32 v125, v124, 7, v125")
        a(f"s_mul_i32 s55, s{sJ}, 1152\ns_add_u32 s55, s55, 128")
        a(f"buffer_load_dword v{vDUM}, v125, s[{sSRDA}:{sSRDA+3}], s55 offen{NT['pf']}")
        a(f"buffer_load_dword v{vDUM+1}, v125, s[{sSRDB}:{sSRDB+3}], s55 offen{NT['pf']}")


def gen_wd_pf(a, nshare, c0, c1):
    nw = nshare*4
    nc = c1 - c0
    tot = 576*nc
    per = -(-tot // nw)
    assert per <= 64
    a(f"s_mul_i32 s54, s{sOM}, {per}\nv_min_u32 v123, {per-1}, v1\nv_add_u32 v123, s54, v123\nv_min_u32 v123, {tot-1}, v123")
    a(f"s_mov_b32 s55, {(2**32 + 575)//576}\nv_mul_hi_u32 v124, v123, s55\nv_mul_u32_u24 v125, 576, v124\nv_sub_u32 v125, v123, v125\nv_mul_u32_u24 v125, 1152, v125\nv_lshl_add_u32 v125, v124, 7, v125")
    a(f"s_mul_i32 s55, s{sJ}, {576*1152}\ns_add_u32 s55, s55, {128*c0}")
    a(f"buffer_load_dword v{vDUM+2}, v125, s[{sWDS}:{sWDS+3}], s55 offen")

def gen_pf_setup(a, nshare):
    nw = nshare*4
    NL = -(-576 // nw)
    a(f"s_mul_i32 s{sT0}, s{sOM}, {NL}\nv_min_u32 v2, {NL-1}, v{vLANE}\nv_add_u32 v2, s{sT0}, v2\nv_min_u32 v2, 575, v2")
    a(f"v_mul_u32_u24 v{vPF}, 9216, v2")

def gen_pf_unit(a, nshare):
    nparts = nshare // 8
    NL = -(-576 // (nparts*4))
    assert NL <= 64
    a(f"s_lshr_b32 s{sT0}, s{sOM}, 2\ns_and_b32 s{sPFU}, s{sT0}, 7\ns_lshr_b32 s{sT0}, s{sT0}, 3")
    a(f"s_lshl_b32 s{sT0}, s{sT0}, 2\ns_add_u32 s{sT0}, s{sT0}, s{sW}\ns_mul_i32 s{sT0}, s{sT0}, {NL}")
    a(f"v_min_u32 v2, {NL-1}, v{vLANE}\nv_add_u32 v2, s{sT0}, v2\nv_min_u32 v2, 575, v2")
    a(f"s_cmp_lt_u32 s{sPFU}, 6\ns_cbranch_scc0 L_pfwd")
    a(f"v_mul_u32_u24 v{vPF}, 9216, v2\nv_mov_b32 v{vPF2}, v{vPF}")
    a(f"s_mov_b32 s{sPFA}, s{sSRDA}\ns_mov_b32 s{sPFA+1}, s{sSRDA+1}\ns_mov_b32 s{sPFB}, s{sSRDB}\ns_mov_b32 s{sPFB+1}, s{sSRDB+1}")
    a(f"s_mul_i32 s{sPFO}, s{sJ}, 1152\ns_add_u32 s{sT0}, s{sPFU}, 3\ns_lshl_b32 s{sT0}, s{sT0}, 7\ns_add_u32 s{sPFO}, s{sPFO}, s{sT0}")
    a("s_branch L_pfok")
    a.label("L_pfwd")
    a(f"v_mul_u32_u24 v{vPF}, 1152, v2\nv_add_u32 v{vPF2}, 128, v{vPF}")
    a(f"s_mov_b32 s{sPFA}, s{sWD}\ns_mov_b32 s{sPFA+1}, s{sWD+1}\ns_mov_b32 s{sPFB}, s{sWD}\ns_mov_b32 s{sPFB+1}, s{sWD+1}")
    a(f"s_mul_i32 s{sPFO}, s{sJ}, {576*1152}\ns_sub_u32 s{sT0}, s{sPFU}, 6\ns_lshl_b32 s{sT0}, s{sT0}, 8\ns_add_u32 s{sPFO}, s{sPFO}, s{sT0}")
    a.label("L_pfok")
    a(f"s_mov_b32 s{sPFA+2}, {576*4608*2}\ns_mov_b32 s{sPFA+3}, 0x00020000\ns_mov_b32 s{sPFB+2}, {576*4608*2}\ns_mov_b32 s{sPFB+3}, 0x00020000")

CV_CP = 4160
CV_WAVE = 4*CV_CP
sC, sCB, sCT, sCU, sXR = 70, 71, 76, 77, 78
HL = 64
vDC = 94
def poll(a, name, voff_reg, srd, soff, target, scnt, cmp="ge", sleep=8):
    a(f"s_mov_b32 s{scnt}, 0")
    a.label(f"L_poll_{name}")
    a(f"buffer_load_dword v3, v{voff_reg}, s[{srd}:{srd+3}], {soff} offen sc1")
    a("s_waitcnt vmcnt(0)")
    a(f"v_cmp_{'le' if cmp == 'ge' else 'eq'}_u32 vcc, {target}, v3")
    a(f"s_add_u32 s{scnt}, s{scnt}, 1")
    a(f"s_cmp_eq_u64 vcc, exec\ns_cbranch_scc1 L_pollok_{name}")
    a(f"s_cmp_lt_u32 s{scnt}, 20000\ns_cbranch_scc0 L_pollok_{name}")
    a(f"s_sleep {sleep}\ns_branch L_poll_{name}")
    a.label(f"L_pollok_{name}")

def gen_conv_issue(a, stamps):
    a(f"v_lshlrev_b32 v11, 2, v{vLANE}")
    a(f"s_cmp_ge_u32 s{sC}, 576\ns_cbranch_scc1 L_conv_skip1")
    a(f"s_mul_i32 s{sCB}, s{sW}, {CV_WAVE}\ns_add_u32 s{sCB}, s{sCB}, {HB}")
    a(f"s_mul_i32 s{sXR}, s{sW}, 4608\ns_add_u32 s{sXR}, s{sXR}, {LDS_XR}")
    a(f"s_lshl_b32 s{sCT}, s{sC}, 12")
    a(f"s_add_u32 s88, s{sHK}, s{sCT}\ns_addc_u32 s89, s{sHK+1}, 0\ns_mov_b32 s90, 4096\ns_mov_b32 s91, 0x00020000")
    for o in range(5):
        a(f"v_add_u32 v5, {(1024*o - 16) & 0xffffffff}, v{vPST}")
        a(f"buffer_load_dwordx4 v[{HL+6*o}:{HL+6*o+3}], v5, s[88:91], 0 offen{NT['h']}")
        a(f"v_add_u32 v6, {1024*o}, v{vPST}")
        a(f"buffer_load_dwordx2 v[{HL+6*o+4}:{HL+6*o+5}], v6, s[88:91], 0 offen{NT['h']}")
    a(f"s_lshl_b32 s{sCT}, s{sC}, 1\nv_mov_b32 v4, s{sCT}")
    a(f"buffer_load_ushort v{vDC}, v4, s[{sD}:{sD+3}], 0 offen")
    a.label("L_conv_skip1")

def gen_conv_issue2(a):
    a(f"s_cmp_ge_u32 s{sC}, 576\ns_cbranch_scc1 L_conv_skip2")
    a(f"s_lshl_b32 s{sCT}, s{sC}, 12\ns_add_u32 s{sCT}, s{sCT}, {WS_KVR}")
    a(f"s_mov_b32 m0, s{sXR}\ns_nop 0")
    for k in range(4):
        off = f" offset:{1024*k}" if k else ""
        a(f"buffer_load_dwordx4 v{vPST}, s[{sSRDW}:{sSRDW+3}], s{sCT} offen{off} sc1 lds")
    a.label("L_conv_skip2")

def publish_partial(a, val=2, wait=True):
    if wait: a("s_waitcnt vmcnt(0)")
    a(f"v_mov_b32 v4, 0\nv_mov_b32 v5, {val}")
    a(f"v_cmp_eq_u32 vcc, 0, v{vLANE}\ns_and_saveexec_b64 s[{sEX}:{sEX+1}], vcc")
    a(f"buffer_store_dword v5, v4, s[{sSRDW}:{sSRDW+3}], s{sPFLG} offen sc1")
    a(f"s_mov_b64 exec, s[{sEX}:{sEX+1}]")

def gen_conv_main(a, stamps):
    a(f"s_cmp_ge_u32 s{sW}, 2\ns_cbranch_scc1 L_tiles")
    a.label("L_convgo")
    for r in range(4): a(f"v_mov_b32 v{32+r}, 0")
    a(f"v_add_u32 v5, s{sXR}, v{vPST}")
    a(f"v_cmp_gt_u32 vcc, 32, v{vLANE}\ns_and_saveexec_b64 s[{sEX}:{sEX+1}], vcc")
    a(f"ds_write_b128 v5, v[32:35] offset:4096")
    a(f"s_mov_b64 exec, s[{sEX}:{sEX+1}]")
    a(f"v_mul_u32_u24 v6, {CV_CP}, v{vLANE}\nv_add_u32 v6, s{sCB}, v6")
    a(f"v_cmp_gt_u32 vcc, 4, v{vLANE}\ns_and_saveexec_b64 s[{sEX}:{sEX+1}], vcc")
    a(f"ds_write_b128 v6, v[32:35]")
    a(f"s_mov_b64 exec, s[{sEX}:{sEX+1}]")
    a(f"v_add_u32 v7, s{sCB}, v{vPST}")
    stamp(a, 17, stamps)
    for o in range(5):
        P = HL + 6*o
        t = 96 + 16*(o % 2)
        if o == 4:
            a(f"v_cmp_eq_u32 vcc, 0, v{vLANE}\ns_and_saveexec_b64 s[{sEX}:{sEX+1}], vcc")
        for n in range(4):
            a(f"v_mov_b32 v{t+n}, v{P+n}")
            a(f"v_alignbit_b32 v{t+4+n}, v{P+n+1}, v{P+n}, 16")
            a(f"v_mov_b32 v{t+8+n}, v{P+n+1}")
            a(f"v_alignbit_b32 v{t+12+n}, v{P+n+2}, v{P+n+1}, 16")
        for s_ in range(4):
            a(f"ds_write_b128 v7, v[{t+4*s_}:{t+4*s_+3}] offset:{s_*CV_CP + 16 + 1024*o}")
        if o == 4: a(f"s_mov_b64 exec, s[{sEX}:{sEX+1}]")
    a(f"v_and_b32 v14, 15, v{vLANE}\nv_lshrrev_b32 v15, 4, v{vLANE}")
    a(f"v_lshlrev_b32 v16, 5, v14\nv_lshlrev_b32 v17, 4, v15\nv_sub_u32 v16, v17, v16")
    a(f"s_add_u32 s{sCT}, s{sXR}, {2*(2032 - 32*56)}\nv_add_u32 v16, s{sCT}, v16")
    a(f"v_add_u32 v2, 1, v14\nv_and_b32 v3, 3, v2\nv_mul_u32_u24 v3, {CV_CP}, v3\nv_lshrrev_b32 v2, 2, v2")
    a(f"v_lshl_add_u32 v3, v2, 3, v3\nv_lshl_add_u32 v3, v15, 4, v3\nv_add_u32 v13, s{sCB}, v3")
    a("s_waitcnt lgkmcnt(0) vmcnt(0)")
    publish_partial(a, 3, wait=False)
    stamp(a, 19, stamps)
    lk = Lgkm(a)
    NB = 6; FB = 96; ACCB = 32
    def rdF(m):
        r = FB + 4*(m % NB)
        lk.issue(("F", m), f"ds_read_b64 v[{r}:{r+1}], v13 offset:{64*m}")
        lk.issue(("F", m), f"ds_read_b64 v[{r+2}:{r+3}], v13 offset:{64*m+8}")
    def rdG(i):
        lk.issue(("G", i), f"ds_read_b128 {A(4*(i+7),4)}, v16 offset:{(56-i)*64}")
    rdF(0)
    for T in range(8): rdG(8*T)
    rdF(1)
    for m in range(64):
        T0 = max(0, -(-(m-7)//8))
        lk.wait_for(("F", m))
        pend = []
        if m + 1 < 8: pend += [("G", 8*T - (m+1)) for T in range(8)]
        if m + 2 < 64: pend += [("F", m+2)]
        for T in range(T0, 8):
            if m < 8: lk.wait_for(("G", 8*T - m))
            c_ = "0" if m == 0 else f"v[{ACCB+4*T}:{ACCB+4*T+3}]"
            a(f"v_mfma_f32_16x16x32_bf16 v[{ACCB+4*T}:{ACCB+4*T+3}], v[{FB+4*(m%NB)}:{FB+4*(m%NB)+3}], {A(4*(8*T-m+7),4)}, {c_}")
            if pend:
                k, x = pend.pop(0)
                (rdG if k == "G" else rdF)(x)
        for k, x in pend: (rdG if k == "G" else rdF)(x)
    stamp(a, 21, stamps)
    a(f"v_lshlrev_b32 v5, 5, v14\nv_lshlrev_b32 v17, 3, v15\nv_add_u32 v17, v5, v17")
    a(f"s_add_u32 s{sCT}, s{sXR}, {2*2044 - 7*512}\nv_sub_u32 v2, s{sCT}, v17")
    for T in range(8): a(f"ds_read_b64 v[{96+2*T}:{97+2*T}], v2 offset:{(7-T)*512}")
    a(f"v_lshlrev_b32 v{vDC}, 16, v{vDC}")
    a(f"s_lshl_b32 s{sCT}, s{sC}, 12\ns_add_u32 s{sCT}, s{sCT}, {WS_ZT}\ns_mov_b32 s{sCU}, 0xffff0000")
    a("s_waitcnt lgkmcnt(0)")
    for T in range(8):
        kv = 96+2*T; ac = ACCB+4*T; t = 112 + 6*(T % 2)
        a(f"v_and_b32 v{t}, s{sCU}, v{kv+1}\nv_lshlrev_b32 v{t+1}, 16, v{kv+1}\nv_and_b32 v{t+2}, s{sCU}, v{kv}\nv_lshlrev_b32 v{t+3}, 16, v{kv}")
        for r in range(4): a(f"v_fmac_f32 v{ac+r}, v{t+r}, v{vDC}")
        a(f"v_cvt_pk_bf16_f32 v{t+4}, v{ac}, v{ac+1}\nv_cvt_pk_bf16_f32 v{t+5}, v{ac+2}, v{ac+3}")
        off = f" offset:{512*T}" if T else ""
        a(f"buffer_store_dwordx2 v[{t+4}:{t+5}], v17, s[{sSRDW}:{sSRDW+3}], s{sCT} offen{off} sc1")

def gen_pflag_addr(a, vdst, swave):
    a(f"s_lshl_b32 s{sT0}, s{sI}, 7\ns_lshl_b32 s{sT1}, {swave}, 2\ns_add_u32 s{sT0}, s{sT0}, s{sT1}\ns_add_u32 s{sT0}, s{sT0}, {WS_FLAG}")
    a(f"v_and_b32 v{vdst}, 7, v{vLANE}\nv_lshlrev_b32 v{vdst}, 4, v{vdst}\nv_add_u32 v{vdst}, s{sT0}, v{vdst}")

sFC, sFW, sST = 57, 55, 54
FP, FS, FX, FZ, FST = 128, 192, 208, 216, 232
def gen_final_addr(a):
    a(f"v_and_b32 v3, 15, v{vLANE}\nv_lshrrev_b32 v4, 4, v{vLANE}")
    a(f"s_lshl_b32 s{sT2}, s{sI}, 6\nv_add_u32 v5, s{sT2}, v3")
    a(f"s_lshl_b32 s{sT2}, s{sFC}, 6\ns_lshl_b32 s{sT1}, s{sFW}, 4\ns_add_u32 s{sT2}, s{sT2}, s{sT1}")
    a(f"v_lshlrev_b32 v6, 2, v4\nv_add_u32 v6, s{sT2}, v6")
    a(f"v_mul_u32_u24 v7, 1152, v5\nv_lshl_add_u32 v7, v6, 1, v7")
    a(f"v_lshlrev_b32 v8, 12, v6\nv_lshl_add_u32 v8, v5, 1, v8\nv_add_u32 v8, {WS_ZT}, v8")
    a(f"v_lshlrev_b32 v9, 3, v5\nv_add_u32 v9, {WS_STATS}, v9")

PSTG = 0
def gen_xstat_loads(a, agpr=False):
    R = (lambda r, n, base: f"a[{r-base[0]+base[1]}:{r-base[0]+base[1]+n-1}]") if agpr else (lambda r, n, base: f"v[{r}:{r+n-1}]")
    for aa in range(4):
        a(f"s_mov_b32 s{sT3}, {16*1152*aa}")
        a(f"buffer_load_dwordx2 {R(FX+2*aa, 2, (FX, 64))}, v7, s[{sX}:{sX+3}], s{sT3} offen")
    for aa in range(4):
        off = f" offset:{128*aa}" if aa else ""
        a(f"buffer_load_dwordx2 {R(FST+2*aa, 2, (FST, 72))}, v9, s[{sSRDW}:{sSRDW+3}], 0 offen{off} sc1")

def gen_final_loads(a, agpr=False):
    isz = 2048
    R = (lambda r, n, base: f"a[{r-base[0]+base[1]}:{r-base[0]+base[1]+n-1}]") if agpr else (lambda r, n, base: f"v[{r}:{r+n-1}]")
    a(f"s_mul_i32 s{sT2}, s{sI}, 9\ns_add_u32 s{sT2}, s{sT2}, s{sFC}\ns_lshl_b32 s{sT2}, s{sT2}, 2\ns_add_u32 s{sT2}, s{sT2}, s{sFW}\ns_mul_i32 s{sT2}, s{sT2}, {isz}\ns_add_u32 s{sT2}, s{sT2}, {WS_PART}")
    for j in range(8):
        for q in range(2):
            r = FP + (j*2 + q)*4
            off = f" offset:{1024*q}" if q else ""
            a(f"buffer_load_dwordx4 {R(r, 4, (FP, 0))}, v{vPST}, s[{sSRDW}:{sSRDW+3}], s{sT2} offen{off} sc1")
        if j < 7: a(f"s_add_u32 s{sT2}, s{sT2}, {32*9*4*isz}")
    gen_xstat_loads(a, agpr)

def gen_stage_partials(a, mid=None):
    a(f"s_mul_i32 s{sT2}, s{sI}, 9\ns_add_u32 s{sT2}, s{sT2}, s{sJ}\ns_mul_i32 s{sT2}, s{sT2}, 8192\ns_add_u32 s{sT2}, s{sT2}, {WS_PART}")
    for p in range(8):
        for h in range(2):
            a(f"s_mov_b32 m0, {PSTG + p*8192 + h*4096}\ns_add_u32 s{sT3}, s{sT2}, {h*4096}")
            for k in range(4):
                off = f" offset:{1024*k}" if k else ""
                a(f"buffer_load_dwordx4 v{vPST}, s[{sSRDW}:{sSRDW+3}], s{sT3} offen{off} sc1 lds")
        if p < 7: a(f"s_add_u32 s{sT2}, s{sT2}, {32*9*8192}")
        if p == 3 and mid is not None: mid()

def lds_wait_word(a, name, off):
    a(f"v_mov_b32 v2, {LDS_STAT + off}\ns_mov_b32 s{sCU}, 0")
    a.label(f"L_lw_{name}")
    a(f"ds_read_b32 v3, v2\ns_waitcnt lgkmcnt(0)\nv_readfirstlane_b32 s{sT0}, v3\ns_add_u32 s{sCU}, s{sCU}, 1")
    a(f"s_cmp_eq_u32 s{sT0}, 1\ns_cbranch_scc1 L_lwok_{name}\ns_cmp_lt_u32 s{sCU}, 200000\ns_cbranch_scc0 L_lwok_{name}\ns_sleep 1\ns_branch L_lw_{name}")
    a.label(f"L_lwok_{name}")

def gen_partials_from_lds(a):
    a(f"s_lshl_b32 s{sT0}, s{sW}, 11\nv_add_u32 v2, s{sT0}, v{vPST}")
    for p in range(8):
        for q in range(2):
            r = FP + (p*2 + q)*4
            a(f"ds_read_b128 v[{r}:{r+3}], v2 offset:{PSTG + p*8192 + q*1024}")
    a("s_waitcnt lgkmcnt(0)")

FZ2 = 84
def gen_final_z(a, tag, stamps=False):
    a(f"s_mov_b32 s{sCU}, 0")
    a.label(f"L_zre_{tag}")
    for aa in range(4):
        for e in range(4):
            off = f" offset:{32*aa}" if aa else ""
            a(f"s_mov_b32 s{sT3}, {e*4096}")
            a(f"buffer_load_ushort v{FZ+4*aa+e}, v8, s[{sSRDW}:{sSRDW+3}], s{sT3} offen{off} sc1")
    a(f"s_cmp_lg_u32 s{sST}, 1\ns_cbranch_scc1 L_z1_{tag}")
    for aa in range(4):
        for e in range(4):
            off = f" offset:{32*aa}" if aa else ""
            a(f"s_mov_b32 s{sT3}, {e*4096}")
            a(f"buffer_load_ushort v{FZ2+4*aa+e}, v101, s[{sSRDW}:{sSRDW+3}], s{sT3} offen{off} sc1")
    a("s_waitcnt vmcnt(0)")
    a(f"v_max3_u32 v2, v{FZ2}, v{FZ2+1}, v{FZ2+2}")
    for k in range(3, 15, 2): a(f"v_max3_u32 v2, v2, v{FZ2+k}, v{FZ2+k+1}")
    a(f"v_max_u32 v3, v2, v{FZ2+15}")
    a(f"s_branch L_z2_{tag}")
    a.label(f"L_z1_{tag}")
    a("s_waitcnt vmcnt(0)\nv_mov_b32 v3, 0")
    a.label(f"L_z2_{tag}")
    a(f"v_max3_u32 v2, v{FZ}, v{FZ+1}, v{FZ+2}")
    for k in range(3, 15, 2): a(f"v_max3_u32 v2, v2, v{FZ+k}, v{FZ+k+1}")
    a(f"v_max3_u32 v2, v2, v{FZ+15}, v3")
    a(f"v_cmp_eq_u32 vcc, 0xffff, v2\ns_add_u32 s{sCU}, s{sCU}, 1\ns_nop 0\ns_cmp_eq_u64 vcc, 0\ns_cbranch_scc1 L_zok_{tag}")
    a(f"s_cmp_lt_u32 s{sCU}, 5000\ns_cbranch_scc0 L_zok_{tag}\ns_sleep 2\ns_branch L_zre_{tag}")
    a.label(f"L_zok_{tag}")
    stamp(a, 29, stamps)

def gen_final_sum(a):
    a(f"s_mov_b32 s{sT3}, 0xffff0000")
    T = 240
    for j in range(8):
        for D in range(8):
            src = FP + 8*j + D
            if j == 0:
                a(f"v_lshlrev_b32 v{FS+2*D}, 16, v{src}\nv_and_b32 v{FS+2*D+1}, s{sT3}, v{src}")
            else:
                tt = T + 2*(D % 2)
                a(f"v_lshlrev_b32 v{tt}, 16, v{src}\nv_and_b32 v{tt+1}, s{sT3}, v{src}")
                a(f"v_pk_add_f32 v[{FS+2*D}:{FS+2*D+1}], v[{FS+2*D}:{FS+2*D+1}], v[{tt}:{tt+1}]")

OUTFL = ['']
XN, XF, R2, FF = 32, 48, 64, 68
def _unp(a, dst, src, M):
    a(f"v_lshlrev_b32 v{dst}, 16, v{src}\nv_and_b32 v{dst+1}, s{M}, v{src}\nv_lshlrev_b32 v{dst+2}, 16, v{src+1}\nv_and_b32 v{dst+3}, s{M}, v{src+1}")
def _pk(a, dst, src):
    a(f"v_cvt_pk_bf16_f32 v{dst}, v{src}, v{src+1}\nv_cvt_pk_bf16_f32 v{dst+1}, v{src+2}, v{src+3}")

def gen_final_pre_a(a):
    T = 240; M = sT3
    a(f"s_mov_b32 s{sT3}, 0xffff0000")
    for aa in range(4): a(f"v_rcp_f32 v{T+aa}, v{FST+2*aa+1}")
    a("s_nop 0")
    for aa in range(4): a(f"v_mul_f32 v{R2+aa}, v{T+aa}, v{T+aa}")
    for aa in range(4):
        P2 = T + 4 + 2*(aa % 2)
        _unp(a, XF+4*aa, FX+2*aa, M)
        for e in range(4): a(f"v_sub_f32 v{XN+4*aa+e}, v{XF+4*aa+e}, v{FST+2*aa}")
        _pk(a, P2, XN+4*aa); _unp(a, XN+4*aa, P2, M)
        for e in range(4): a(f"v_mul_f32 v{XN+4*aa+e}, v{XN+4*aa+e}, v{T+aa}")
        _pk(a, P2, XN+4*aa); _unp(a, XN+4*aa, P2, M)

def gen_final_pre_b(a):
    T = 244; M = sT3
    a(f"s_mov_b32 s{sT3}, 0xffff0000")
    for aa in range(4):
        P2 = T + 2*(aa % 2)
        for e in range(4): a(f"v_mul_f32 v{FF+4*aa+e}, v{FS+4*aa+e}, v{R2+aa}")
        _pk(a, P2, FF+4*aa); _unp(a, FF+4*aa, P2, M)

def gen_final_combine(a):
    U = 176; M = sT3
    a(f"s_mov_b32 s{sT3}, 0xffff0000")
    for aa in range(4):
        V4 = U + 8*(aa % 2)
        for e in range(4):
            a(f"v_lshlrev_b32 v{V4+e}, 16, v{FZ+4*aa+e}")
        for e in range(4): a(f"v_mul_f32 v{V4+e}, v{V4+e}, v{XN+4*aa+e}")
        _pk(a, V4+4, V4); _unp(a, V4, V4+4, M)
        for e in range(4): a(f"v_add_f32 v{V4+e}, v{V4+e}, v{XF+4*aa+e}")
        _pk(a, V4+4, V4); _unp(a, V4, V4+4, M)
        for e in range(4): a(f"v_add_f32 v{V4+e}, v{V4+e}, v{FF+4*aa+e}")
        _pk(a, V4+6, V4)
        a(f"s_mov_b32 s{sT2}, {16*1152*aa}")
        a(f"buffer_store_dwordx2 v[{V4+6}:{V4+7}], v7, s[{sOUT}:{sOUT+3}], s{sT2} offen" + OUTFL[0])

def gen_kernel(name, fp32_part=False, opts=None, stamps=False, mapping="32x1"):
    opts = opts or {}
    nodma = opts.get("no_dma")
    set_p1(opts.get("p1d", 3))
    a = Asm()
    a(f".globl {name}\n.p2align 8\n.type {name},@function\n{name}:")
    a("s_cmp_ge_u32 s2, 256\ns_cbranch_scc1 L_done")
    a("s_load_dwordx4 s[80:83], s[0:1], 0")
    a("s_load_dwordx4 s[88:91], s[0:1], 16")
    a("s_load_dwordx4 s[68:71], s[0:1], 32")
    a("s_load_dwordx4 s[4:7], s[0:1], 56")
    a("s_load_dwordx4 s[16:19], s[0:1], 72")
    a("s_load_dwordx4 s[44:47], s[0:1], 88")
    if stamps:
        a("s_memrealtime s[58:59]\ns_memtime s[50:51]")
    a(f"v_lshrrev_b32 v2, 6, v0\nv_and_b32 v{vLANE}, 63, v0")
    a(f"v_readfirstlane_b32 s{sW}, v2")
    if mapping == "32x1":
        a(f"s_and_b32 s{sJ}, s2, 7\ns_lshr_b32 s{sI}, s2, 3"); nshare = 32
        a(f"s_lshl_b32 s{sOM}, s{sI}, 2")
    elif mapping == "16x2":
        a(f"s_and_b32 s{sT0}, s2, 3\ns_lshl_b32 s{sT0}, s{sT0}, 1\ns_bfe_u32 s{sT1}, s2, 0x10003\ns_add_u32 s{sJ}, s{sT0}, s{sT1}")
        a(f"s_bfe_u32 s{sT0}, s2, 0x10002\ns_lshl_b32 s{sT0}, s{sT0}, 4\ns_lshr_b32 s{sT1}, s2, 4\ns_add_u32 s{sI}, s{sT0}, s{sT1}"); nshare = 16
        a(f"s_lshl_b32 s{sOM}, s{sT1}, 2")
    elif mapping == "8x4":
        a(f"s_and_b32 s{sT0}, s2, 1\ns_lshl_b32 s{sT0}, s{sT0}, 2\ns_bfe_u32 s{sT1}, s2, 0x20003\ns_add_u32 s{sJ}, s{sT0}, s{sT1}")
        a(f"s_bfe_u32 s{sT0}, s2, 0x20001\ns_lshl_b32 s{sT0}, s{sT0}, 3\ns_lshr_b32 s{sT1}, s2, 5\ns_add_u32 s{sI}, s{sT0}, s{sT1}"); nshare = 8
        a(f"s_lshl_b32 s{sOM}, s{sT1}, 2")
    a(f"v_lshlrev_b32 v{vPST}, 4, v{vLANE}")
    if not opts.get("no_codepf"):
        a("s_getpc_b64 s[52:53]")
        a.label("L_pc")
        a(f"s_sub_u32 s52, s52, L_pc-{name}\ns_subb_u32 s53, s53, 0")
        a(f"s_lshr_b32 s54, s2, 3\ns_and_b32 s54, s54, 3\ns_cmp_lg_u32 s54, s{sW}\ns_cbranch_scc1 L_nocpf")
        a(f"s_lshl_b32 s54, s{sW}, 13\nv_lshlrev_b32 v2, 7, v{vLANE}\nv_add_u32 v2, s54, v2\nv_min_u32 v2, L_done-{name}, v2")
        a(f"global_load_dword v{vDUM+3}, v2, s[52:53]")
        a.label("L_nocpf")
    a(f"s_add_u32 s{sOM}, s{sOM}, s{sW}")
    a(f"s_and_b32 s{sPAR}, s{sJ}, {0 if mapping == '32x1' else 1}")
    gen_q_addr(a, 0)
    a(f"s_mov_b32 s99, s{sT0}")
    a("s_waitcnt lgkmcnt(0)")
    a("s_mov_b32 s84, s82\ns_mov_b32 s85, s83")
    a(f"s_mov_b32 s{sQ+2}, {2048*576*2}\ns_mov_b32 s{sQ+3}, 0x00020000\ns_mov_b32 s{sT0}, s99")
    QREG = 176
    q0l = Asm(); gen_q_loads(q0l, QREG, 0, addr=False)
    early0 = len(a.lines)
    a.lines += tag_vm(q0l.lines, "q0")
    a("s_mov_b32 s92, s90\ns_mov_b32 s93, s91")
    a("s_mov_b32 s96, s70\ns_mov_b32 s97, s71")
    a("s_mov_b32 s8, s6\ns_mov_b32 s9, s7")
    a("s_mov_b32 s64, s18\ns_mov_b32 s65, s19")
    a("s_mov_b32 s12, s46\ns_mov_b32 s13, s47")
    a("s_mov_b32 s72, s80\ns_mov_b32 s73, s81")
    a(f"s_mov_b32 s18, {576*4608*2}\ns_mov_b32 s19, 0x00020000")
    for srd, n in ((sSRDA, 576*4608*2), (sSRDB, 576*4608*2), (sSRDW, WS_SIZE), (sDBG, 256), (sK, 2048*576*2), (sV, 2048*576*2), (sSK, 576*4*2), (sD, 576*2), (sOUT, 2048*576*2), (sX, 2048*576*2)):
        a(f"s_mov_b32 s{srd+2}, {n}\ns_mov_b32 s{srd+3}, 0x00020000")
    if stamps:
        a("v_mov_b32 v249, 0\nv_writelane_b32 v249, s50, 0")
    stamp(a, 1, stamps)
    p0 = early0
    QREG, KREG, vP9, vRUN = 176, 72, 250, 251
    def blk(fn, tag=None):
        t = Asm(); fn(t)
        return tag_vm(t.lines, tag) if tag else t.lines
    def B_pf0(t):
        gen_pf_setup(t, nshare)
        t(f"s_mul_i32 s{sPFO}, s{sJ}, 1152")
        t(f"buffer_load_dword v{vDUM}, v{vPF}, s[{sSRDA}:{sSRDA+3}], s{sPFO} offen")
        t(f"buffer_load_dword v{vDUM+1}, v{vPF}, s[{sSRDB}:{sSRDB+3}], s{sPFO} offen")
        t(f"s_add_u32 s{sPFO}, s{sPFO}, 128")
    def B_pf12(t):
        for r in range(2):
            t(f"buffer_load_dword v{vDUM}, v{vPF}, s[{sSRDA}:{sSRDA+3}], s{sPFO} offen")
            t(f"buffer_load_dword v{vDUM+1}, v{vPF}, s[{sSRDB}:{sSRDB+3}], s{sPFO} offen")
            t(f"s_add_u32 s{sPFO}, s{sPFO}, 128")
    def B_clr(t):
        t(f"v_mov_b32 v2, s{sPFLG}\nv_mov_b32 v3, 0x7ff00000\nv_cmp_eq_u32 vcc, 0, v{vLANE}\nv_mov_b32 v4, 0\ns_nop 0\nv_cndmask_b32 v2, v3, v2, vcc")
        t(f"buffer_store_dword v4, v2, s[{sSRDW}:{sSRDW+3}], 0 offen sc1")
        t(f"s_lshl_b32 s{sT2}, s{sC}, 12\ns_add_u32 s{sT2}, s{sT2}, {WS_ZT}\ns_cmp_lt_u32 s{sC}, 576\ns_cselect_b32 s{sT2}, s{sT2}, 0x7ff00000")
        for r in range(4): t(f"v_mov_b32 v{116+r}, -1")
        for k in range(4):
            off = f" offset:{1024*k}" if k else ""
            t(f"buffer_store_dwordx4 v[116:119], v{vPST}, s[{sSRDW}:{sSRDW+3}], s{sT2} offen{off} sc1")
    def B_setup(t):
        t(f"v_lshrrev_b32 v2, 3, v{vLANE}\nv_and_b32 v3, 7, v{vLANE}\nv_lshrrev_b32 v4, 1, v3\nv_and_b32 v5, 1, v3\nv_lshlrev_b32 v5, 4, v5")
        t(f"v_bfe_u32 v6, v{vLANE}, 4, 1\nv_lshlrev_b32 v7, 1, v6")
        t(f"s_mul_i32 s{sT0}, s{sW}, 24\nv_add_u32 v23, s{sT0}, v2\ns_movk_i32 s{sT1}, 9216\nv_mul_lo_u32 v21, v23, s{sT1}")
        for k in range(3):
            t(f"s_add_u32 s{sT1}, s{sW}, {k}\ns_and_b32 s{sT1}, s{sT1}, 1\ns_lshl_b32 s{sT1}, s{sT1}, 1")
            t(f"v_or_b32 v22, s{sT1}, v6\nv_xor_b32 v22, v4, v22\nv_lshlrev_b32 v22, 5, v22\nv_add3_u32 v22, v21, v22, v5")
            t(f"v_add_u32 v{VDG[k]}, {8*k*9216 - 1024*k}, v22\nv_mov_b32 v{VDU[k]}, v{VDG[k]}")
        t(f"s_mul_i32 s{sM0}, s{sW}, 3072\ns_add_u32 s{sM0+1}, s{sM0}, 12288")
        t(f"s_mul_i32 s{sT0}, s{sW}, 72\nv_add_u32 v23, s{sT0}, v2\ns_movk_i32 s{sT1}, 1152\nv_mul_lo_u32 v21, v23, s{sT1}")
        t(f"v_lshrrev_b32 v22, 1, v3\nv_bfe_u32 v23, v{vLANE}, 4, 2\nv_xor_b32 v22, v22, v23\nv_lshlrev_b32 v22, 5, v22\nv_and_b32 v23, 1, v3\nv_lshlrev_b32 v23, 4, v23\nv_add3_u32 v22, v21, v22, v23")
        for k in range(4): t(f"v_add_u32 v{vD2+k}, {8*k*1152 - 1024*k}, v22")
        t(f"v_and_b32 v2, 15, v{vLANE}\nv_bfe_u32 v3, v{vLANE}, 4, 1\nv_lshrrev_b32 v4, 5, v{vLANE}\nv_lshrrev_b32 v5, 2, v2\nv_bfe_u32 v6, v2, 3, 1")
        t(f"v_lshrrev_b32 v7, 4, v{vLANE}\nv_lshl_add_u32 v7, v7, 3, v5\nv_lshlrev_b32 v7, 7, v7\nv_lshl_add_u32 v21, v3, 1, v6\nv_xor_b32 v21, s{sW}, v21\nv_lshlrev_b32 v21, 5, v21")
        t(f"v_and_b32 v22, 3, v2\nv_lshlrev_b32 v22, 3, v22\nv_add3_u32 v{vRA1}, v7, v21, v22")
        t(f"v_add_u32 v{vRA1b}, 65536, v{vRA1}\nv_add_u32 v{vRA1c}, 131072, v{vRA1}")
        t(f"v_lshrrev_b32 v7, 4, v{vLANE}\nv_lshl_add_u32 v7, v7, 2, v5")
        t(f"v_bfe_u32 v21, v7, 1, 2\nv_xor_b32 v21, s{sW}, v21\nv_lshlrev_b32 v21, 5, v21\nv_lshlrev_b32 v7, 7, v7")
        t(f"v_add3_u32 v{vRA2}, v7, v21, v22\nv_add_u32 v{vRA2b}, 32768, v{vRA2}")
        t(f"s_mov_b32 s{sHIDX}, 0\ns_mov_b32 s{sB2}, 0")
        t(f"s_lshl_b32 s{sT0}, s{sJ}, 5\ns_add_u32 s{sT0}, s{sT0}, s{sI}\ns_mul_i32 s{sT0}, s{sT0}, {9*4*2048}\ns_mul_i32 s{sT1}, s{sW}, 2048\ns_add_u32 s{sT0}, s{sT0}, s{sT1}\ns_add_u32 s{sPOFF}, s{sT0}, {WS_PART}")
        t(f"s_mul_i32 s{sSOFF}, s{sJ}, {576*2}\ns_mov_b32 s{sINC}, {96*9216}")
        t(f"s_mov_b32 s{sINCW}, {(-5*96*9216 + (0 if opts.get('same_cols') else 128)) & 0xffffffff}")
        t(f"s_lshl_b32 s{sT0}, s{sI}, 7\ns_lshl_b32 s{sT1}, s{sJ}, 4\ns_add_u32 s{sT1}, s{sT1}, s{sT0}\ns_lshl_b32 s{sT0}, s{sW}, 2\ns_add_u32 s{sT1}, s{sT1}, s{sT0}\ns_add_u32 s{sPFLG}, s{sT1}, {WS_FLAG}")
        t(f"s_lshl_b32 s{sC}, s{sW}, 8\ns_add_u32 s{sC}, s{sC}, s2")
        t(f"s_lshl_b32 s{sT0}, s{sI}, 1\ns_add_u32 s{sT0}, s{sT0}, s{sJ}\ns_add_u32 s{sT0}, s{sT0}, {512 - 6}\ns_cmp_ge_u32 s{sJ}, 6\ns_cselect_b32 s{sT0}, s{sT0}, 999")
        t(f"s_cmp_eq_u32 s{sW}, 2\ns_cselect_b32 s{sC}, s{sT0}, s{sC}")
        gen_ln_setup(t)
    def B_dma012(t):
        for st in range(3):
            if st: t(f"s_add_u32 s{sSOFF}, s{sSOFF}, s{sINC}")
            tt = Asm(); dma1_group(tt, st)
            t.lines += tag_vm(tt.lines, "pair0") if st < 2 else tt.lines
    def B_frags(t):
        t(f"v_add_u32 v{vHR}, {HB}, v{vPST}\nv_add_u32 v2, {65536}, v{vHR}")
        for f in range(72):
            if f < 64: t(f"ds_read_b128 {xn_frag(f)}, v{vHR} offset:{f*1024}")
            else: t(f"ds_read_b128 {xn_frag(f)}, v2 offset:{(f-64)*1024}")
    a.lines += blk(B_pf0)
    a.lines += blk(B_setup)
    stamp(a, 2, stamps)
    if mapping != "32x1": a("s_waitcnt vmcnt(@q0)")
    a.lines += blk(lambda t: gen_q_loads(t, QREG, 1), "q1")
    a("s_waitcnt vmcnt(@q0)")
    stamp(a, 3, stamps)
    gen_ln_pass(a, QREG, 0)
    stamp(a, 6, stamps)
    a("s_waitcnt vmcnt(@q1)")
    a.lines += blk(B_pf12)
    a.lines += blk(lambda t: gen_kv_loads(t, KREG, vP9, vRUN), "kv")
    stamp(a, 5, stamps)
    gen_ln_pass(a, QREG, 1)
    a("s_waitcnt lgkmcnt(0)")
    stamp(a, 4, stamps)
    a("s_barrier")
    stamp(a, 7, stamps)
    fr = blk(B_frags); dm = groups_of(blk(B_dma012))
    interleave(a, fr, dm, start=4)
    a("s_waitcnt lgkmcnt(0)")
    stamp(a, 8, stamps)
    a("s_barrier")
    a(f"s_add_u32 s{sSOFF}, s{sSOFF}, s{sINC}")
    dma1_group(a, 3)
    a(f"s_add_u32 s{sSOFF}, s{sSOFF}, s{sINC}")
    dma1_group(a, 4, 0, 12 - P1_BAR)
    gen_pf_unit(a, nshare)
    stamp(a, 9, stamps)
    stamp(a, 10, stamps)
    a("s_waitcnt vmcnt(@pair0)")
    stamp(a, 11, stamps)
    a("s_barrier")
    lk = Lgkm(a)
    for kk in range(P1_D): p1_read(lk, kk, kk % P1_NB, ("A", kk))
    a(f"s_mov_b32 s{sCNT}, 4\ns_mov_b32 s62, 32\ns_mov_b32 s{sHIDX}, 8")
    stamp(a, 12, stamps)
    pre = list(lk.q)
    def post_bar(a_, lk_):
        t = Asm(); gen_kv_store(t); B_clr(t)
        for l in t.lines:
            if l.startswith("ds_read"): lk_.issue(("X", l), l)
            elif l == "s_waitcnt lgkmcnt(0)": a_(l); lk_.wait_all_keep = True; lk_.q = []
            else: a_(l)
    r0 = len(a.lines)
    gen_round(a, lk, 0, 1, "Z", opts=opts, extra=kv_compute_ops(vP9, vRUN))
    check_hazards(a.lines[r0:], "round0")
    a.lines[p0:] = resolve_vm(a.lines[p0:])
    a(f"v_and_b32 v2, 15, v{vLANE}\nv_lshlrev_b32 v2, 2, v2\nv_add_u32 v2, {LDS_STAT}, v2")
    for n in range(4): a(f"ds_read_b32 v{3+n}, v2 offset:{64*n}")
    a("s_waitcnt lgkmcnt(0)")
    for n in range(4):
        a(f"v_mul_f32 v7, v{3+n}, v{3+n}\nv_mul_f32 v{VC0[n]}, {hex(f2u(C0))}, v{3+n}\nv_mul_f32 v7, v7, v{3+n}\nv_mul_f32 v{VC1[n]}, {hex(f2u(C1))}, v7")
    a(f"s_mov_b32 s{sCNT}, 3")
    lk.q = list(pre)
    a.label("L_roundA")
    b0 = len(a.lines)
    gen_round(a, lk, 1, 0, "A", opts=opts)
    a.label("L_roundB")
    gen_round(a, lk, 0, 1, "B", last_check=True, opts=opts)
    assert lk.q == pre, (lk.q, pre)
    a(f"s_sub_u32 s{sCNT}, s{sCNT}, 1\ns_cmp_ge_i32 s{sCNT}, 0\ns_cbranch_scc1 L_roundA")
    check_hazards(a.lines[b0:] + a.lines[b0:], "phase1")
    a("s_waitcnt lgkmcnt(0)")
    stamp(a, 13, stamps)
    a("s_waitcnt vmcnt(0)")
    a("s_barrier")
    a(f"s_lshr_b32 s{sT0}, s{sW}, 1\ns_lshl_b32 s{sT0}, s{sT0}, 12\ns_and_b32 s{sT1}, s{sW}, 1\ns_lshl_b32 s{sT1}, s{sT1}, 3\ns_add_u32 s{sT0}, s{sT0}, s{sT1}")
    a(f"v_add_u32 v30, s{sT0}, v{vHR}\nv_add_u32 v31, 32768, v30")
    side = Asm()
    gen_kv_store(side)
    side.lines += blk(B_clr)
    gen_conv_issue(side, stamps)
    tmp = Asm(); gen_wd_pf(tmp, nshare, 4, 9)
    for l in tmp.lines: side(l.replace("v123", "v10X").replace("v124", "v127").replace("v125", "v5").replace("v10X", "v4"))
    groups, cur, hold = [], [], 0
    for l in side.lines:
        cur.append(l)
        if l.startswith("s_cbranch"): hold = 1
        if l.endswith(":"): hold = 0
        if not hold and (l.startswith("buffer_") or l.startswith("s_waitcnt") or l.endswith(":")):
            groups.append(cur); cur = []
    if cur: groups.append(cur)
    hw = []
    def hwrite(rho, src, nt):
        off = rho*8192 + nt*1024
        return f"ds_write_b64 v{30 if off < 32768 else 31}, v[{src+2*nt}:{src+2*nt+1}] offset:{off if off < 32768 else off - 32768}"
    for rho in range(8):
        src = HREG + 8*(rho+1)
        hw.append([hwrite(rho, src, 0), hwrite(rho, src, 1)]); hw.append([hwrite(rho, src, 2), hwrite(rho, src, 3)])
    merged = groups[:2]
    rest = groups[2:]
    k = 0
    while rest or hw:
        if rest: merged.append(rest.pop(0))
        if hw: merged.append(hw.pop(0))
        if hw: merged.append(hw.pop(0))
    interleave(a, gelu_ops(ACC[0]), merged, start=2)
    for nt in range(4): a(hwrite(8, HP, nt))
    a(f"v_mov_b32 v2, {LDS_STAT}\nv_mov_b32 v3, 0\nds_write_b32 v2, v3\nds_write_b32 v2, v3 offset:4\nds_write_b32 v2, v3 offset:8")
    stamp(a, 16, stamps)
    a("s_waitcnt lgkmcnt(0)\ns_barrier")
    a(f"v_add_u32 v2, 65536, v{vHR}")
    for K in range(18):
        for nt in range(4):
            f = 4*K + nt
            a(f"ds_read_b128 {h_frag(K, nt)}, v{vHR if f < 64 else 2} offset:{(f % 64)*1024}")
    a("s_waitcnt lgkmcnt(0)\ns_barrier")
    a(f"s_mov_b32 s{sSRDA+2}, {576*4608*2}\ns_mov_b32 s{sSRDB+2}, {576*4608*2}")
    a(f"s_mul_i32 s{sSOFF}, s{sJ}, {576*1152}\ns_add_u32 s{sSOFF}, s{sSOFF}, {0 if opts.get('same_cols') else 128}")
    a(f"s_mov_b32 s{sINC}, {192*1152}")
    a(f"s_mov_b32 s{sINCW}, {(-2*192*1152 + (0 if opts.get('same_cols') else 128)) & 0xffffffff}")
    if not nodma:
        dma1_group(a, 3)
        a(f"s_add_u32 s{sSOFF}, s{sSOFF}, s{sINC}")
        dma1_group(a, 4)
        a(f"s_mov_b32 s{sT0}, 0x7ff00000")
        for k in range(2): a(f"buffer_load_dword v{vDUM+k}, v{vPST}, s[{sSRDA}:{sSRDA+3}], s{sT0} offen")
    lk = Lgkm(a)
    for F in range(P2_D): p2_read(lk, F, F % P2_NB, ("B", F))
    pre2 = list(lk.q)
    a(f"s_mov_b32 s{sCNT}, 9")
    stamp(a, 14, stamps)
    a.label("L_p2")
    bs = len(a.lines)
    gen_p2_chunk(a, lk, opts, dma=True)
    assert lk.q == pre2 or opts.get("rstamp"), (lk.q, pre2)
    a(f"s_cmp_gt_u32 s{sCNT}, 2\ns_cbranch_scc1 L_p2")
    check_hazards(a.lines[bs:] + a.lines[bs:], "phase2")
    bs = len(a.lines)
    lk.q = list(pre2)
    gen_p2_chunk(a, lk, opts, dma=False, tag="7")
    check_hazards(a.lines[bs:], "phase2 chunk 7")
    stamp(a, 15, stamps)
    a("s_waitcnt vmcnt(2) lgkmcnt(0)")
    publish_partial(a, 1, wait=False)
    a(f"s_cmp_lg_u32 s{sW}, 0\ns_cbranch_scc1 L_kvseen")
    a(f"v_cmp_eq_u32 vcc, 0x01010101, v95\ns_nop 0\ns_cmp_eq_u64 vcc, exec\ns_cbranch_scc1 L_kvseen")
    poll(a, "kv", 11, sDBG, 0, "0x01010101", sCU, cmp="eq")
    a.label("L_kvseen")
    a("s_barrier")
    gen_conv_issue2(a)
    a(f"s_mov_b32 s{sFC}, s{sJ}\ns_mov_b32 s{sFW}, s{sW}")
    c0 = len(a.lines)
    gen_conv_main(a, stamps)
    stamp(a, 27, stamps)
    gen_final_addr(a)
    gen_xstat_loads(a)
    a(f"s_cmp_lg_u32 s{sW}, 0\ns_cbranch_scc1 L_nosig\nv_mov_b32 v2, {LDS_STAT}\nv_mov_b32 v3, 1\nds_write_b32 v2, v3")
    a.label("L_nosig")
    check_hazards(a.lines[c0:], "conv")
    stamp(a, 20, stamps)
    a(f"s_mov_b32 s{sST}, 3")
    a("s_branch L_stg")
    a.label("L_tiles")
    a(f"s_sub_u32 s{sMT}, s{sW}, 2\ns_lshl_b32 s{sMT}, s{sMT}, 1\ns_add_u32 s{sMTE}, s{sMT}, 1")
    a(f"s_mov_b32 s{sT1}, s{sMT}")
    t8 = len(a.lines)
    gen_p2_tile8(a)
    check_hazards(a.lines[t8:] + a.lines[t8:], "tile8")
    a(f"s_cmp_eq_u32 s{sW}, 3\ns_cbranch_scc1 L_noconv")
    a(f"s_waitcnt lgkmcnt(0)\nv_mov_b32 v2, {LDS_STAT + 8}\nv_mov_b32 v3, 1\nds_write_b32 v2, v3")
    a(f"s_cmp_lt_u32 s{sC}, 576\ns_cbranch_scc1 L_convgo")
    a.label("L_noconv")
    a(f"s_mov_b32 s{sST}, 3")
    a(f"s_cmp_eq_u32 s{sW}, 3\ns_cbranch_scc1 L_w3")
    publish_partial(a, 3)
    a(f"s_cmp_ge_u32 s{sJ}, 4\ns_cbranch_scc1 L_aaddr")
    a(f"s_mov_b32 s{sST}, 0\ns_mov_b32 s{sFC}, 8\ns_mov_b32 s{sFW}, s{sJ}")
    a(f"s_lshl_b32 s{sT0}, s{sI}, 7\ns_add_u32 s{sT0}, s{sT0}, {WS_FLAG}\nv_and_b32 v12, 31, v{vLANE}\nv_lshlrev_b32 v12, 2, v12\nv_add_u32 v12, s{sT0}, v12")
    poll(a, "pC", 12, sSRDW, "0", 3, sCU, cmp="ge", sleep=4)
    gen_final_addr(a)
    gen_final_loads(a)
    a("s_waitcnt vmcnt(0)")
    a("s_branch L_prea")
    a.label("L_w3")
    lds_wait_word(a, "w2", 8)
    a(f"s_cmp_eq_u32 s{sJ}, 7\ns_cselect_b32 s{sT1}, 2, 1")
    a("s_waitcnt vmcnt(2)")
    a(f"v_cmp_le_u32 vcc, s{sT1}, v29\ns_nop 0\ns_cmp_eq_u64 vcc, exec\ns_cbranch_scc1 L_pB_ok")
    poll(a, "pB", 12, sSRDW, "0", f"s{sT1}", sCU, cmp="ge", sleep=2)
    a.label("L_pB_ok")
    def mid():
        a("s_waitcnt vmcnt(32)")
        publish_partial(a, 3, wait=False)
    gen_stage_partials(a, mid)
    gen_final_addr(a)
    gen_xstat_loads(a)
    a("s_waitcnt vmcnt(0)")
    a(f"v_mov_b32 v2, {LDS_STAT + 4}\nv_mov_b32 v3, 1\nds_write_b32 v2, v3")
    a("s_branch L_prea")
    a.label("L_aaddr")
    gen_final_addr(a)
    gen_xstat_loads(a)
    a.label("L_stg")
    f0 = len(a.lines)
    a("s_waitcnt vmcnt(0)")
    a.label("L_prea")
    gen_final_pre_a(a)
    a(f"s_cmp_eq_u32 s{sST}, 0\ns_cbranch_scc1 L_fin2")
    lds_wait_word(a, "stg", 4)
    gen_partials_from_lds(a)
    a.label("L_fin2")
    stamp(a, 22, stamps)
    gen_final_sum(a)
    gen_final_pre_b(a)
    a(f"s_cmp_lg_u32 s{sST}, 0\ns_cbranch_scc1 L_zbar")
    for k in range(52): a(f"v_accvgpr_write_b32 a{80+k}, v{32+k}")
    a(f"v_mov_b32 v100, v7\nv_mov_b32 v101, v8")
    a(f"s_mov_b32 s{sST}, 1\ns_mov_b32 s{sFC}, s{sJ}\ns_mov_b32 s{sFW}, s{sW}\ns_branch L_aaddr")
    a.label("L_zbar")
    a(f"s_cmp_lt_u32 s{sC}, 576\ns_cbranch_scc1 L_zgo")
    a(f"v_mov_b32 v2, {LDS_STAT}\ns_mov_b32 s{sCU}, 0")
    a.label("L_zwait")
    a(f"ds_read_b32 v3, v2\ns_waitcnt lgkmcnt(0)\nv_readfirstlane_b32 s{sT0}, v3\ns_add_u32 s{sCU}, s{sCU}, 1")
    a(f"s_cmp_eq_u32 s{sT0}, 1\ns_cbranch_scc1 L_zgo\ns_cmp_lt_u32 s{sCU}, 100000\ns_cbranch_scc0 L_zgo\ns_sleep 2\ns_branch L_zwait")
    a.label("L_zgo")
    stamp(a, 28, stamps)
    gen_final_z(a, "A", stamps)
    a.label("L_comb")
    gen_final_combine(a)
    stamp(a, 31, stamps)
    check_hazards(a.lines[f0:], "final")
    a(f"s_cmp_lg_u32 s{sST}, 1\ns_cbranch_scc1 L_final_done")
    a("s_nop 1")
    for k in range(52): a(f"v_accvgpr_read_b32 v{32+k}, a{80+k}")
    a("v_mov_b32 v7, v100\nv_mov_b32 v8, v101")
    for k in range(16): a(f"v_mov_b32 v{FZ+k}, v{FZ2+k}")
    a(f"s_mov_b32 s{sST}, 2\ns_branch L_comb")
    a.label("L_final_done")
    if stamps:
        a("s_waitcnt vmcnt(0)")
        stamp(a, 23, stamps)
        a("s_memrealtime s[60:61]\ns_waitcnt lgkmcnt(0)\ns_sub_u32 s60, s60, s58\nv_writelane_b32 v249, s60, 24\nv_writelane_b32 v249, s58, 60")
        a(f"s_lshl_b32 s34, s2, 2\ns_add_u32 s34, s34, s{sW}\ns_lshl_b32 s34, s34, 8\ns_add_u32 s34, s34, {WS_STAMP2}")
        a(f"v_lshlrev_b32 v6, 2, v{vLANE}")
        a(f"buffer_store_dword v249, v6, s[{sSRDW}:{sSRDW+3}], s34 offen\ns_waitcnt vmcnt(0)")
    a.label("L_done")
    a("s_endpgm")
    return a

def kv_compute_ops(vP9, vRUN):
    PP, AC, VU = 208, 240, 160
    ops = ["s_mov_b32 s53, 0xffff0000", "s_mov_b32 s52, 0x05040100", "s_mov_b32 s98, 0x07060302"]
    def mkP(p):
        r = p + 1; o = []
        for e in range(4):
            o.append(f"v_perm_b32 v{PP+8*(p%4)+2*e}, v{KRAW+4*(r-1)+e}, v{KRAW+4*r+e}, s52")
            o.append(f"v_perm_b32 v{PP+8*(p%4)+2*e+1}, v{KRAW+4*(r-1)+e}, v{KRAW+4*r+e}, s98")
        return o
    ops += [f"v_lshlrev_b32 v6, 2, v{vRUN}", "v_sub_u32 v6, 63, v6", "v_mul_u32_u24 v6, 160, v6", f"v_lshl_add_u32 v6, v{vP9}, 4, v6", f"v_add_u32 v6, {LDS_KV - 3*160}, v6"]
    ops += mkP(0) + mkP(1)
    for tok in range(4):
        ops += mkP(tok + 2)
        for c in range(8):
            ops.append(f"v_dot2_f32_bf16 v{AC+c}, v{PP+8*(tok%4)+c}, v{KCO+2*c+1}, 0")
        for c in range(8):
            ops.append(f"v_dot2_f32_bf16 v{AC+c}, v{PP+8*((tok+2)%4)+c}, v{KCO+2*c}, v{AC+c}")
        for e in range(4):
            ops += [f"v_lshlrev_b32 v{VU+2*e}, 16, v{VRAW+4*tok+e}", f"v_and_b32 v{VU+2*e+1}, s53, v{VRAW+4*tok+e}"]
        for c in range(8):
            ops.append(f"v_mul_f32 v{AC+c}, v{AC+c}, v{VU+c}")
        for e in range(4):
            ops.append(f"v_cvt_pk_bf16_f32 v{VU+8+e}, v{AC+2*e}, v{AC+2*e+1}")
        ops.append(("ds", f"ds_write_b128 v6, v[{VU+8}:{VU+11}] offset:{(3-tok)*160}"))
    return ops

def kd(name, nvgpr_arch, nagpr, nsgpr=100):
    acc_off = (nvgpr_arch + 3)//4*4
    tot = acc_off + nagpr if nagpr else nvgpr_arch
    return f""".section .rodata,"a"
.p2align 6
.amdhsa_kernel {name}
  .amdhsa_next_free_vgpr {tot}
  .amdhsa_next_free_sgpr {nsgpr}
  .amdhsa_accum_offset {acc_off}
  .amdhsa_group_segment_fixed_size 0
  .amdhsa_kernarg_size 104
  .amdhsa_user_sgpr_count 2
  .amdhsa_user_sgpr_kernarg_segment_ptr 1
  .amdhsa_system_sgpr_workgroup_id_x 1
  .amdhsa_float_denorm_mode_32 3
.end_amdhsa_kernel
"""

NAME = "parallel_sum__ssm_conv_h3__glu_gated_geglu__prompt_kernel"
def build(fn, single_launch=True, **kw):
    a = gen_kernel(NAME, **kw)
    ref = open("parallel_sum__ssm_conv_h3__glu_gated_geglu__prompt.s.ref").read()
    hdr = []
    for l in ref.splitlines():
        if l.startswith("; Override launch"): break
        hdr.append(l)
    hdr = "\n".join(hdr) + "\n"
    hdr += f"; @launch grid=(256,1,1) block=(256,1,1) lds={LDS_TOTAL}\n"
    hdr += '.amdgcn_target "amdgcn-amd-amdhsa--gfx950"\n.text\n'
    open(fn, "w").write(hdr + a.text() + kd(NAME, 256, 256))

if __name__ == "__main__":
    import sys
    build("s_plain.s")
    build("s_st.s", stamps=True, opts={})
```
